```python
import torch

def _softmax(x, axis=-1):
    return torch.softmax(x, dim=axis)
def _gelu(x):
    return torch.nn.functional.gelu(x, approximate="tanh")
def _silu(x):
    return torch.nn.functional.silu(x)
def _sigmoid(x):
    return torch.sigmoid(x)
def _layernorm(x, axis=-1, eps=1e-5):
    m = x.mean(dim=axis, keepdim=True)
    v = x.var(dim=axis, keepdim=True, unbiased=False)
    return (x - m) / torch.sqrt(v + eps)
def _scatter_add(tgt, idx, src, axis=0):
    return tgt.clone().index_add_(axis, idx, src)
def _segment_sum(src, seg, n):
    out = torch.zeros((n,) + src.shape[1:], dtype=src.dtype)
    return out.index_add_(0, seg, src)
def _pad(x, pw):
    flat = tuple(v for pair in reversed(pw) for v in pair)
    return torch.nn.functional.pad(x, flat)

kernel_name = 'recurrent_scan__sliding_block_cached__dense_activation_relu__decode'

def setup_inputs():

    _w = (lambda a: (lambda t: t.to(torch.bfloat16) if t.is_floating_point() else t)(torch.as_tensor(a)))
    def _A_setup():
        B, Sq, D = 2, 1, 640
        Hq, Hkv, Sk, Dh = 32, 32, 8192, 128
        assert Hq % Hkv == 0, (Hq, Hkv)
        return {
            "x": _w((lambda *s: torch.randn(*s, dtype=torch.bfloat16) * 0.05)(B, Sq, D)),
            "k_cache": _w((lambda *s: torch.randn(*s, dtype=torch.bfloat16) * 1.6)(B, Hkv, Sk, Dh)),
            "v_cache": _w((lambda *s: torch.randn(*s, dtype=torch.bfloat16) * 0.2)(B, Hkv, Sk, Dh)),
            "wq": _w((lambda *s: torch.randn(*s, dtype=torch.bfloat16) * 1.6)(D, Hq * Dh) * (D ** -0.5)),
            "wo": _w((lambda *s: torch.randn(*s, dtype=torch.bfloat16) * 0.2)(Hq * Dh, D) * ((Hq * Dh) ** -0.5)),
        }
    _A_in = _A_setup()

    def _B_setup():
        B, S, D, Dff = 2, 1, 640, 1728
        return {
            "x": _w((lambda *s: torch.randn(*s, dtype=torch.bfloat16) * 0.05)(B, S, D)),
            "w1": _w((lambda *s: torch.randn(*s, dtype=torch.bfloat16) * 0.1)(D, Dff)),
            "w2": _w((lambda *s: torch.randn(*s, dtype=torch.bfloat16) * 0.1)(Dff, D)),
        }
    _B_in = _B_setup()

    return {
        "A_x": _A_in["x"],
        "A_k_cache": _A_in["k_cache"],
        "A_v_cache": _A_in["v_cache"],
        "A_wq": _A_in["wq"],
        "A_wo": _A_in["wo"],
        "B_x": _B_in["x"],
        "B_w1": _B_in["w1"],
        "B_w2": _B_in["w2"],
    }

def reference(A_x, A_k_cache, A_v_cache, A_wq, A_wo, B_x, B_w1, B_w2):
    def _A_ref(x, k_cache, v_cache, wq, wo):
        B, Sq, D = x.shape
        Hq, Dh = 32, 128
        Hkv, Sk = k_cache.shape[1], k_cache.shape[2]
        W = min(4096, max(256, Sk // 4))
        rep = Hq // Hkv
        q = (lambda x, *d: x.permute(*d))((x @ wq).reshape(B, Sq, Hq, Dh), 0, 2, 1, 3)
        k = (lambda x, n, axis: torch.repeat_interleave(x, n, dim=axis))(k_cache[:, :, Sk - W:, :], rep, axis=1)
        v = (lambda x, n, axis: torch.repeat_interleave(x, n, dim=axis))(v_cache[:, :, Sk - W:, :], rep, axis=1)
        scores = torch.einsum("bhqd,bhkd->bhqk", q, k) * (Dh ** -0.5)
        p = _softmax(scores, axis=-1)
        o = torch.einsum("bhqk,bhkd->bhqd", p, v)
        return (lambda x, *d: x.permute(*d))(o, 0, 2, 1, 3).reshape(B, Sq, Hq * Dh) @ wo

    def _B_ref(x, w1, w2):
        h = torch.einsum("bsd,df->bsf", x, w1)
        zero = torch.zeros_like(h)
        h = torch.maximum(h, zero)
        return torch.einsum("bsf,fd->bsd", h, w2)

    x = A_x
    xn = _layernorm(x, axis=-1)
    s = _A_ref(xn, A_k_cache, A_v_cache, A_wq, A_wo)
    g = _silu(_B_ref(xn, B_w1, B_w2))
    return x + s * g
```

```python
import sys, argparse

KNAME = "recurrent_scan__sliding_block_cached__dense_activation_relu__decode_kernel"

HEADER = """; Kernarg layout for this problem (88 bytes, ptrs only, base s[0:1]):
"""

WS_H1 = 0x0
WS_H2 = 0x80000
WS_H3A = 0xC0000
WS_H3B = 0x100000
WS_STAMP = 0x200000
WS_SIZE = 0x400000

L_QP = 0
L_HP = 16384
L_Y1P = 16384
L_Q = 28672
L_HH = 28928
L_OP = 29696
L_ML = 33792
L_OO = 33920
L_TOTAL = 35072

SENT = 0xFFFFFFFF
LOG2E = 1.4426950408889634


def f32bits(x):
    import struct
    return struct.unpack('<I', struct.pack('<f', x))[0]


class A:
    def __init__(self):
        self.l = []
        self.n = 0

    def __call__(self, s):
        self.l.append("    " + s)

    def label(self, s):
        self.l.append(s + ":")

    def newlabel(self, p="L"):
        self.n += 1
        return f"{p}_{self.n}"

    def c(self, s):
        self.l.append("    ; " + s)


def gen(opts):
    a = A()
    kvpol = opts.kvpol
    wpol = opts.wpol
    stamps = opts.stamps

    def stamp(idx):
        if not stamps:
            return
        a(f"s_memrealtime s[92:93]")
        a(f"s_waitcnt lgkmcnt(0)")
        a(f"v_mov_b32 v{VST}, s92")
        a(f"v_mov_b32 v{VST+1}, s93")
        a(f"s_mov_b64 s[94:95], exec")
        a(f"s_mov_b64 exec, 1")
        a(f"buffer_store_dwordx2 v[{VST}:{VST+1}], v{VST+2}, s[56:59], 0 offen offset:{idx*8}")
        a(f"s_mov_b64 exec, s[94:95]")

    VST = 160

    a("s_cmp_ge_u32 s2, 256")
    a("s_cbranch_scc1 L_end")
    a("s_load_dwordx16 s[16:31], s[0:1], 0")
    a("s_load_dwordx4 s[32:35], s[0:1], 64")
    a("s_load_dwordx2 s[36:37], s[0:1], 80")
    a("v_lshrrev_b32 v1, 6, v0")
    a("v_and_b32 v0, 63, v0")
    a("s_nop 0")
    a("v_readfirstlane_b32 s3, v1")
    if opts.xcdmap:
        a("s_and_b32 s4, s2, 7")
        a("s_lshr_b32 s5, s2, 6")
        a("s_lshl_b32 s5, s5, 3")
        a("s_or_b32 s4, s4, s5")
        a("s_lshr_b32 s5, s2, 3")
        a("s_and_b32 s5, s5, 7")
    else:
        a("s_lshr_b32 s4, s2, 3")
        a("s_and_b32 s5, s2, 7")
    a("s_lshl_b32 s6, s4, 3")
    a("s_or_b32 s6, s6, s5")
    a("s_lshr_b32 s7, s5, 2")
    a("s_and_b32 s8, s5, 3")
    a("s_waitcnt lgkmcnt(0)")
    a("s_mov_b32 s56, s36")
    a("s_mov_b32 s57, s37")
    a(f"s_mov_b32 s58, {WS_SIZE}")
    a("s_mov_b32 s59, 0x00020000")
    if stamps:
        a("s_mul_i32 s90, s6, 12")
        a("s_add_u32 s90, s90, s3")
        a("s_lshl_b32 s90, s90, 6")
        a(f"s_add_u32 s90, s90, {WS_STAMP}")
        a(f"v_mov_b32 v{VST+2}, s90")
        stamp(0)
    a("s_cmp_lt_u32 s3, 4")
    a("s_cbranch_scc1 L_aux")

    VOFF, VQ, VT, VS, VACC, VK, VV = 1, 2, 6, 8, 24, 32, 96
    a.c("---- streaming wave ----")
    a("s_sub_u32 s3, s3, 4")
    a("s_lshl_b32 s9, s7, 5")
    a("s_add_u32 s9, s9, s4")
    a("s_lshl_b32 s9, s9, 21")
    a("s_lshl_b32 s10, s8, 17")
    a("s_add_u32 s9, s9, s10")
    a("s_add_u32 s9, s9, 1572864")
    a("s_add_u32 s40, s18, s9")
    a("s_addc_u32 s41, s19, 0")
    a("s_mov_b32 s42, 131072")
    a("s_mov_b32 s43, 0x00020000")
    a("s_add_u32 s44, s20, s9")
    a("s_addc_u32 s45, s21, 0")
    a("s_mov_b32 s46, 131072")
    a("s_mov_b32 s47, 0x00020000")
    a("s_lshl_b32 s10, s3, 14")
    a(f"v_lshl_add_u32 v{VOFF}, v0, 4, s10")
    a("s_mov_b32 s11, 4096")
    a("s_mov_b32 s12, 8192")
    a("s_mov_b32 s13, 12288")
    soff = ["0", "s11", "s12", "s13"]
    for i in range(16):
        a(f"buffer_load_dwordx4 v[{VK+4*i}:{VK+4*i+3}], v{VOFF}, s[40:43], {soff[i>>2]} offen offset:{(i&3)*1024} {kvpol}")
    for i in range(16):
        a(f"buffer_load_dwordx4 v[{VV+4*i}:{VV+4*i+3}], v{VOFF}, s[44:47], {soff[i>>2]} offen offset:{(i&3)*1024} {kvpol}")
    stamp_extra = 0
    a("s_barrier")
    a("s_barrier")
    a("s_barrier")
    a(f"v_and_b32 v{VT}, 15, v0")
    a(f"v_lshlrev_b32 v{VT}, 4, v{VT}")
    a(f"ds_read_b128 v[{VQ}:{VQ+3}], v{VT} offset:{L_Q}")
    a("s_waitcnt lgkmcnt(0)")
    if stamps:
        a("s_memrealtime s[80:81]")
    for grp in range(4):
        a(f"s_waitcnt vmcnt({16 + 12 - 4*grp})")
        for d in range(4):
            for i in range(4*grp, 4*grp+4):
                src2 = "0" if d == 0 else f"v{VS+i}"
                a(f"v_dot2_f32_bf16 v{VS+i}, v{VK+4*i+d}, v{VQ+d}, {src2}")
    a("s_nop 2")
    for ctrl in ["quad_perm:[1,0,3,2]", "quad_perm:[2,3,0,1]", "row_half_mirror", "row_mirror"]:
        for i in range(16):
            a(f"v_add_f32_dpp v{VS+i}, v{VS+i}, v{VS+i} {ctrl} row_mask:0xf bank_mask:0xf")
    a(f"s_mov_b32 s14, 0x{f32bits(128 ** -0.5):08x}")
    a("s_mov_b32 s15, 0xffff0000")
    for p in range(8):
        s0, s1 = VS + 2*p, VS + 2*p + 1
        t = VK + p
        a(f"v_cvt_pk_bf16_f32 v{t}, v{s0}, v{s1}")
    for p in range(8):
        s0, s1 = VS + 2*p, VS + 2*p + 1
        t = VK + p
        a(f"v_lshlrev_b32 v{s0}, 16, v{t}")
        a(f"v_and_b32 v{s1}, s15, v{t}")
    for i in range(16):
        a(f"v_mul_f32 v{VS+i}, s14, v{VS+i}")
    for p in range(8):
        s0, s1 = VS + 2*p, VS + 2*p + 1
        t = VK + p
        a(f"v_cvt_pk_bf16_f32 v{t}, v{s0}, v{s1}")
    for p in range(8):
        s0, s1 = VS + 2*p, VS + 2*p + 1
        t = VK + p
        a(f"v_lshlrev_b32 v{s0}, 16, v{t}")
        a(f"v_and_b32 v{s1}, s15, v{t}")
    m = VT
    a(f"v_max3_f32 v{m}, v{VS}, v{VS+1}, v{VS+2}")
    for i in range(3, 15, 2):
        a(f"v_max3_f32 v{m}, v{m}, v{VS+i}, v{VS+i+1}")
    a(f"v_max_f32 v{m}, v{m}, v{VS+15}")
    a("s_nop 0")
    for r in range(4):
        a(f"v_readlane_b32 s{60+r}, v{m}, {16*r}")
    a("s_nop 1")
    a(f"v_mov_b32 v{m}, s60")
    a(f"v_max_f32 v{m}, s61, v{m}")
    a(f"v_max_f32 v{m}, s62, v{m}")
    a(f"v_max_f32 v{m}, s63, v{m}")
    a(f"s_mov_b32 s64, 0x{f32bits(LOG2E):08x}")
    for i in range(16):
        a(f"v_sub_f32 v{VS+i}, v{VS+i}, v{m}")
    for i in range(16):
        a(f"v_mul_f32 v{VS+i}, s64, v{VS+i}")
    for i in range(16):
        a(f"v_exp_f32 v{VS+i}, v{VS+i}")
    a("s_nop 0")
    PLO, PHI = VK, VK + 16
    for i in range(16):
        a(f"v_cvt_pk_bf16_f32 v{PLO+i}, v{VS+i}, 0")
    for i in range(16):
        a(f"v_lshlrev_b32 v{PHI+i}, 16, v{PLO+i}")
    lsum = VT + 1
    a(f"v_add_f32 v{lsum}, v{VS}, v{VS+1}")
    for i in range(2, 16):
        a(f"v_add_f32 v{lsum}, v{lsum}, v{VS+i}")
    a("s_nop 0")
    for r in range(4):
        a(f"v_readlane_b32 s{60+r}, v{lsum}, {16*r}")
    a("s_nop 1")
    a(f"v_mov_b32 v{lsum}, s60")
    a(f"v_add_f32 v{lsum}, s61, v{lsum}")
    a(f"v_add_f32 v{lsum}, s62, v{lsum}")
    a(f"v_add_f32 v{lsum}, s63, v{lsum}")
    a(f"s_lshl_b32 s10, s3, 2")
    a(f"v_mov_b32 v{VS}, s10")
    a(f"ds_write_b32 v{VS}, v{m} offset:{L_ML}")
    a(f"ds_write_b32 v{VS}, v{lsum} offset:{L_ML+32}")
    for i in range(16):
        a(f"s_waitcnt vmcnt({15-i})")
        for d in range(4):
            s2a = "0" if i == 0 else f"v{VACC+2*d}"
            s2b = "0" if i == 0 else f"v{VACC+2*d+1}"
            a(f"v_dot2_f32_bf16 v{VACC+2*d}, v{VV+4*i+d}, v{PLO+i}, {s2a}")
            a(f"v_dot2_f32_bf16 v{VACC+2*d+1}, v{VV+4*i+d}, v{PHI+i}, {s2b}")
    a("s_nop 2")
    for e in range(4):
        a(f"v_permlane32_swap_b32 v{VACC+e}, v{VACC+e+4}")
    a("s_nop 1")
    for e in range(4):
        a(f"v_add_f32 v{VACC+e}, v{VACC+e}, v{VACC+e+4}")
    a("s_nop 1")
    a(f"v_permlane16_swap_b32 v{VACC}, v{VACC+2}")
    a(f"v_permlane16_swap_b32 v{VACC+1}, v{VACC+3}")
    a("s_nop 1")
    a(f"v_add_f32 v{VACC}, v{VACC}, v{VACC+2}")
    a(f"v_add_f32 v{VACC+1}, v{VACC+1}, v{VACC+3}")
    a(f"v_and_b32 v{VS}, 15, v0")
    a(f"v_lshlrev_b32 v{VS}, 5, v{VS}")
    a(f"v_lshrrev_b32 v{VS+1}, 4, v0")
    a(f"v_lshl_add_u32 v{VS}, v{VS+1}, 3, v{VS}")
    a(f"s_lshl_b32 s10, s3, 9")
    a(f"v_add_u32 v{VS}, s10, v{VS}")
    a(f"ds_write_b64 v{VS}, v[{VACC}:{VACC+1}] offset:{L_OP}")
    a("s_waitcnt lgkmcnt(0)")
    a("s_barrier")
    if stamps:
        a(f"v_mov_b32 v{VST}, s80")
        a(f"v_mov_b32 v{VST+1}, s81")
        a(f"s_mov_b64 exec, 1")
        a(f"buffer_store_dwordx2 v[{VST}:{VST+1}], v{VST+2}, s[56:59], 0 offen offset:8")
        a(f"s_mov_b64 exec, -1")
        stamp(2)
    a("s_endpgm")

    a.label("L_aux")
    a.c("---- aux wave: a = s3 (0..3) ----")
    def srd(r, lo, size):
        a(f"s_mov_b32 s{r}, s{lo}")
        a(f"s_mov_b32 s{r+1}, s{lo+1}")
        a(f"s_mov_b32 s{r+2}, {size}")
        a(f"s_mov_b32 s{r+3}, 0x00020000")
    srd(40, 16, 2560)
    srd(44, 22, 5242880)
    srd(48, 28, 2211840)
    srd(52, 30, 2211840)
    srd(60, 24, 5242880)
    srd(64, 32, 2560)
    T = 1
    X0 = 4
    XR = 20
    WQ = 32
    W1 = 52
    TMP = 64
    ACC = 96
    W2 = 120
    WO = 128
    WO = 32
    a(f"s_lshl_b32 s10, s3, 6")
    a(f"v_add_u32 v{T}, s10, v0")
    a(f"v_lshlrev_b32 v2, 4, v0")
    a(f"v_lshlrev_b32 v3, 2, v0")
    a(f"buffer_load_dwordx4 v[4:7], v2, s[40:43], 0 offen")
    a(f"buffer_load_dword v8, v3, s[40:43], 0 offen offset:1024")
    a(f"buffer_load_dwordx4 v[12:15], v2, s[40:43], 0 offen offset:1280")
    a(f"buffer_load_dword v16, v3, s[40:43], 0 offen offset:2304")
    a("s_mul_i32 s9, s5, 80")
    a("s_mul_i32 s10, s3, 20")
    a("s_add_u32 s9, s9, s10")
    a(f"v_lshrrev_b32 v2, 4, v0")
    a(f"v_add_u32 v2, s9, v2")
    a(f"v_lshlrev_b32 v3, 1, v2")
    for i in range(5):
        for b in range(2):
            a(f"buffer_load_ushort v{XR+2*i+b}, v3, s[40:43], 0 offen offset:{b*1280 + i*8}")
    a(f"v_and_b32 v{TMP}, 15, v0")
    a(f"v_lshlrev_b32 v{TMP+1}, 13, v2")
    a(f"v_lshl_add_u32 v{TMP+1}, v{TMP}, 4, v{TMP+1}")
    a("s_lshl_b32 s10, s4, 8")
    a(f"v_add_u32 v{TMP+1}, s10, v{TMP+1}")
    for i in range(5):
        if i:
            a(f"s_mov_b32 s{70+i}, {i*32768}")
        so = "0" if i == 0 else f"s{70+i}"
        a(f"buffer_load_dwordx4 v[{WQ+4*i}:{WQ+4*i+3}], v{TMP+1}, s[44:47], {so} offen {wpol}")
    a("s_cmp_ge_u32 s4, 27")
    a("s_cbranch_scc1 L_now1")
    a("s_movk_i32 s10, 3456")
    a(f"v_mul_lo_u32 v{TMP+2}, v2, s10")
    a(f"v_lshl_add_u32 v{TMP+2}, v{TMP}, 3, v{TMP+2}")
    a("s_lshl_b32 s10, s4, 7")
    a(f"v_add_u32 v{TMP+2}, s10, v{TMP+2}")
    for i in range(5):
        if i:
            a(f"s_mov_b32 s{76+i}, {i*13824}")
        so = "0" if i == 0 else f"s{76+i}"
        a(f"buffer_load_dwordx2 v[{W1+2*i}:{W1+2*i+1}], v{TMP+2}, s[48:51], {so} offen {wpol}")
    a("s_branch L_w1done")
    a.label("L_now1")
    for i in range(10):
        a(f"v_mov_b32 v{W1+i}, 0")
    a.label("L_w1done")
    a(f"v_mov_b32 v{TMP+4}, -1")
    a(f"v_mov_b32 v{TMP+5}, -1")
    a(f"v_mov_b32 v{TMP+6}, -1")
    a(f"v_mov_b32 v{TMP+7}, -1")
    a("s_cmp_eq_u32 s3, 0")
    a("s_cbranch_scc0 L_clr1")
    a("s_lshl_b32 s10, s6, 10")
    a(f"s_add_u32 s10, s10, {WS_H2}")
    a(f"v_lshl_add_u32 v{TMP+3}, v0, 4, s10")
    a(f"buffer_store_dwordx4 v[{TMP+4}:{TMP+7}], v{TMP+3}, s[56:59], 0 offen sc1")
    a("s_branch L_clrdone")
    a.label("L_clr1")
    a("s_cmp_gt_u32 s3, 2")
    a("s_cbranch_scc1 L_clrdone")
    a("s_lshl_b32 s10, s5, 5")
    a("s_add_u32 s10, s10, s4")
    a("s_mul_i32 s10, s10, 640")
    a(f"s_add_u32 s10, s10, {WS_H3A}")
    a("s_sub_u32 s11, s3, 1")
    a(f"s_mul_i32 s11, s11, {WS_H3B-WS_H3A}")
    a("s_add_u32 s10, s10, s11")
    a(f"v_lshl_add_u32 v{TMP+3}, v0, 4, s10")
    a("v_cmp_gt_u32 vcc, 40, v0")
    a("s_and_saveexec_b64 s[12:13], vcc")
    a(f"buffer_store_dwordx4 v[{TMP+4}:{TMP+7}], v{TMP+3}, s[56:59], 0 offen sc1")
    a("s_mov_b64 exec, s[12:13]")
    a.label("L_clrdone")

    a("s_waitcnt vmcnt(0)")
    a("s_mov_b32 s15, 0xffff0000")
    F = TMP
    srcs = [[4, 5, 6, 7, 8], [12, 13, 14, 15, 16]]
    for b in range(2):
        for d in range(5):
            a(f"v_lshlrev_b32 v{F+10*b+2*d}, 16, v{srcs[b][d]}")
            a(f"v_and_b32 v{F+10*b+2*d+1}, s15, v{srcs[b][d]}")
    S0, S1 = TMP+20, TMP+21

    def wave_sum2(r0, r1, sbase):
        a("s_nop 1")
        for ctrl in ["quad_perm:[1,0,3,2]", "quad_perm:[2,3,0,1]", "row_half_mirror", "row_mirror"]:
            a(f"v_add_f32_dpp v{r0}, v{r0}, v{r0} {ctrl} row_mask:0xf bank_mask:0xf")
            a(f"v_add_f32_dpp v{r1}, v{r1}, v{r1} {ctrl} row_mask:0xf bank_mask:0xf")
            a("s_nop 0")
        a("s_nop 0")
        for r in range(4):
            a(f"v_readlane_b32 s{sbase+r}, v{r0}, {16*r}")
            a(f"v_readlane_b32 s{sbase+4+r}, v{r1}, {16*r}")
        a("s_nop 1")
        a(f"v_mov_b32 v{r0}, s{sbase}")
        a(f"v_mov_b32 v{r1}, s{sbase+4}")
        for r in range(1, 4):
            a(f"v_add_f32 v{r0}, s{sbase+r}, v{r0}")
            a(f"v_add_f32 v{r1}, s{sbase+4+r}, v{r1}")

    for b, S in ((0, S0), (1, S1)):
        a(f"v_add_f32 v{S}, v{F+10*b}, v{F+10*b+1}")
        for e in range(2, 10):
            a(f"v_add_f32 v{S}, v{S}, v{F+10*b+e}")
    wave_sum2(S0, S1, 80)
    a(f"s_mov_b32 s14, 0x{f32bits(1.0/640):08x}")
    a(f"v_mul_f32 v{S0}, s14, v{S0}")
    a(f"v_mul_f32 v{S1}, s14, v{S1}")
    Q0, Q1 = TMP+22, TMP+23
    for b, S in ((0, S0), (1, S1)):
        for e in range(10):
            a(f"v_sub_f32 v{F+10*b+e}, v{F+10*b+e}, v{S}")
    for b, Q in ((0, Q0), (1, Q1)):
        a(f"v_mul_f32 v{Q}, v{F+10*b}, v{F+10*b}")
        for e in range(1, 10):
            a(f"v_fma_f32 v{Q}, v{F+10*b+e}, v{F+10*b+e}, v{Q}")
    wave_sum2(Q0, Q1, 80)
    a(f"v_mul_f32 v{Q0}, s14, v{Q0}")
    a(f"v_mul_f32 v{Q1}, s14, v{Q1}")
    t0, t1 = TMP+24, TMP+25
    a(f"v_cvt_pk_bf16_f32 v{t0}, v{S0}, v{S1}")
    a(f"v_cvt_pk_bf16_f32 v{t1}, v{Q0}, v{Q1}")
    a(f"v_lshlrev_b32 v{S0}, 16, v{t0}")
    a(f"v_and_b32 v{S1}, s15, v{t0}")
    a(f"v_lshlrev_b32 v{Q0}, 16, v{t1}")
    a(f"v_and_b32 v{Q1}, s15, v{t1}")
    a(f"s_mov_b32 s14, 0x{f32bits(1e-5):08x}")
    a(f"v_add_f32 v{Q0}, s14, v{Q0}")
    a(f"v_add_f32 v{Q1}, s14, v{Q1}")
    a(f"v_cvt_pk_bf16_f32 v{t1}, v{Q0}, v{Q1}")
    a(f"v_lshlrev_b32 v{Q0}, 16, v{t1}")
    a(f"v_and_b32 v{Q1}, s15, v{t1}")
    a(f"v_sqrt_f32 v{Q0}, v{Q0}")
    a(f"v_sqrt_f32 v{Q1}, v{Q1}")
    a("s_nop 0")
    a(f"v_cvt_pk_bf16_f32 v{t1}, v{Q0}, v{Q1}")
    a(f"v_lshlrev_b32 v{Q0}, 16, v{t1}")
    a(f"v_and_b32 v{Q1}, s15, v{t1}")
    a(f"v_rcp_f32 v{Q0}, v{Q0}")
    a(f"v_rcp_f32 v{Q1}, v{Q1}")
    a("s_nop 0")
    XH = TMP
    MS = [S0, S1]; RS = [Q0, Q1]
    for i in range(5):
        for b in range(2):
            r = XR + 2*i + b
            a(f"v_lshlrev_b32 v{r}, 16, v{r}")
    for i in range(5):
        for b in range(2):
            r = XR + 2*i + b
            a(f"v_sub_f32 v{r}, v{r}, v{MS[b]}")
    for i in range(5):
        for b in range(2):
            r = XR + 2*i + b
            a(f"v_cvt_pk_bf16_f32 v{r}, v{r}, 0")
    for i in range(5):
        for b in range(2):
            r = XR + 2*i + b
            a(f"v_lshlrev_b32 v{r}, 16, v{r}")
    for i in range(5):
        for b in range(2):
            r = XR + 2*i + b
            a(f"v_mul_f32 v{r}, v{r}, v{RS[b]}")
    for i in range(5):
        for b in range(2):
            r = XR + 2*i + b
            a(f"v_cvt_pk_bf16_f32 v{r}, v{r}, 0")
    for i in range(5):
        for b in range(2):
            r = XR + 2*i + b
            a(f"v_lshlrev_b32 v{XH+2*i+b}, 16, v{r}")
    AQ = ACC; AH = ACC + 16
    for i in range(5):
        for b in range(2):
            for d in range(4):
                for hl in range(2):
                    acc = AQ + 8*b + 2*d + hl
                    xs = (XR if hl == 0 else XH) + 2*i + b
                    s2 = "0" if i == 0 else f"v{acc}"
                    a(f"v_dot2_f32_bf16 v{acc}, v{WQ+4*i+d}, v{xs}, {s2}")
    for i in range(5):
        for b in range(2):
            for d in range(2):
                for hl in range(2):
                    acc = AH + 4*b + 2*d + hl
                    xs = (XR if hl == 0 else XH) + 2*i + b
                    s2 = "0" if i == 0 else f"v{acc}"
                    a(f"v_dot2_f32_bf16 v{acc}, v{W1+2*i+d}, v{xs}, {s2}")
    a(f"v_lshrrev_b32 v2, 4, v0")
    a("s_lshl_b32 s10, s3, 2")
    a(f"v_add_u32 v2, s10, v2")
    a(f"v_and_b32 v3, 15, v0")
    a(f"v_lshlrev_b32 v{TMP+12}, 10, v2")
    a(f"v_lshl_add_u32 v{TMP+12}, v3, 5, v{TMP+12}")
    a(f"v_lshlrev_b32 v{TMP+13}, 9, v2")
    a(f"v_lshl_add_u32 v{TMP+13}, v3, 4, v{TMP+13}")
    a(f"ds_write_b128 v{TMP+12}, v[{AQ}:{AQ+3}] offset:{L_QP}")
    a(f"ds_write_b128 v{TMP+12}, v[{AQ+4}:{AQ+7}] offset:{L_QP+16}")
    a(f"ds_write_b128 v{TMP+12}, v[{AQ+8}:{AQ+11}] offset:{L_QP+512}")
    a(f"ds_write_b128 v{TMP+12}, v[{AQ+12}:{AQ+15}] offset:{L_QP+528}")
    a(f"ds_write_b128 v{TMP+13}, v[{AH}:{AH+3}] offset:{L_HP}")
    a(f"ds_write_b128 v{TMP+13}, v[{AH+4}:{AH+7}] offset:{L_HP+256}")
    a("s_waitcnt lgkmcnt(0)")
    a("s_barrier")
    stamp(1)
    a(f"v_lshlrev_b32 v2, 2, v{T}")
    for r in range(16):
        a(f"ds_read_b32 v{TMP+r}, v2 offset:{L_QP + r*1024}")
    a("s_cmp_gt_u32 s3, 1")
    a("s_cbranch_scc1 L_noh")
    for r in range(16):
        a(f"ds_read_b32 v{TMP+16+r}, v2 offset:{L_HP + r*512}")
    a("s_waitcnt lgkmcnt(0)")
    for r in range(1, 16):
        a(f"v_add_f32 v{TMP+16}, v{TMP+16}, v{TMP+16+r}")
    a(f"v_min_u32 v{TMP+16}, -2, v{TMP+16}")
    a("s_mul_i32 s10, s6, 1536")
    a(f"s_add_u32 s10, s10, {WS_H1 + 1024}")
    a(f"v_add_u32 v3, s10, v2")
    a(f"buffer_store_dword v{TMP+16}, v3, s[56:59], 0 offen sc1")
    a.label("L_noh")
    a("s_waitcnt lgkmcnt(0)")
    for r in range(1, 16):
        a(f"v_add_f32 v{TMP}, v{TMP}, v{TMP+r}")
    a("s_mul_i32 s10, s6, 1536")
    a(f"s_add_u32 s10, s10, {WS_H1}")
    a(f"v_add_u32 v3, s10, v2")
    a(f"buffer_store_dword v{TMP}, v3, s[56:59], 0 offen sc1")
    a("s_waitcnt vmcnt(0)")
    a("s_barrier")
    stamp(2)
    a("s_cmp_lg_u32 s3, 0")
    a("s_cbranch_scc1 L_noflag")
    a("s_lshl_b32 s10, s4, 2")
    a("v_mov_b32 v2, s10")
    a("v_mov_b32 v3, 1")
    a("s_mov_b64 exec, 1")
    a("global_atomic_add v2, v3, s[34:35] sc1")
    a("s_mov_b64 exec, -1")
    a.label("L_noflag")
    a("s_lshl_b32 s10, s4, 2")
    a("v_mov_b32 v2, s10")
    a(f"s_mov_b32 s11, {opts.maxpoll}")
    a.label("L_poll1")
    a("global_load_dword v3, v2, s[34:35] sc1")
    a("s_waitcnt vmcnt(0)")
    a("v_readfirstlane_b32 s10, v3")
    a("s_cmp_ge_u32 s10, 8")
    a("s_cbranch_scc1 L_poll1_done")
    a("s_sub_u32 s11, s11, 1")
    a("s_cmp_eq_u32 s11, 0")
    a("s_cbranch_scc1 L_poll1_done")
    a("s_sleep 2")
    a("s_branch L_poll1")
    a.label("L_poll1_done")
    stamp(3)
    a(f"s_lshl_b32 s10, s7, 7")
    a("s_cmp_gt_u32 s3, 1")
    a("s_cselect_b32 s10, 128, s10")
    a(f"v_add_u32 v2, s10, v{T}")
    a(f"v_lshlrev_b32 v2, 2, v2")
    a("s_mul_i32 s10, s4, 12288")
    a(f"s_add_u32 s10, s10, {WS_H1}")
    a(f"v_add_u32 v2, s10, v2")
    for jj in range(8):
        a(f"s_mov_b32 s{70+jj}, {jj*1536}")
        a(f"buffer_load_dword v{TMP+jj}, v2, s[56:59], s{70+jj} offen sc1")
    RG, C10 = 2, 3
    a(f"v_mul_u32_u24 v{RG}, 26, v0")
    a(f"v_lshrrev_b32 v{RG}, 8, v{RG}")
    a(f"v_mul_u32_u24 v{C10}, 10, v{RG}")
    a(f"v_sub_u32 v{C10}, v0, v{C10}")
    a("s_movk_i32 s14, 1280")
    a("v_cmp_gt_u32 vcc, 40, v0")
    a("s_and_saveexec_b64 s[12:13], vcc")
    a("s_cmp_ge_u32 s4, 27")
    a("s_cbranch_scc1 L_now2")
    a("s_lshl_b32 s10, s4, 6")
    a("s_lshl_b32 s11, s3, 4")
    a("s_add_u32 s10, s10, s11")
    a(f"v_add_u32 v{TMP+10}, s10, v{RG}")
    a(f"v_mul_lo_u32 v{TMP+10}, v{TMP+10}, s14")
    a(f"v_lshl_add_u32 v{TMP+10}, v{C10}, 4, v{TMP+10}")
    a("s_mul_i32 s10, s5, 160")
    a(f"v_add_u32 v{TMP+10}, s10, v{TMP+10}")
    for i in range(4):
        a(f"s_mov_b32 s{80+i}, {i*5120}")
        a(f"buffer_load_dwordx4 v[{W2+4*i}:{W2+4*i+3}], v{TMP+10}, s[52:55], s{80+i} offen {wpol}")
    a.label("L_now2")
    a("s_lshl_b32 s10, s4, 7")
    a("s_lshl_b32 s11, s3, 5")
    a("s_add_u32 s10, s10, s11")
    a(f"v_add_u32 v{TMP+11}, s10, v{RG}")
    a(f"v_mul_lo_u32 v{TMP+11}, v{TMP+11}, s14")
    a(f"v_lshl_add_u32 v{TMP+11}, v{C10}, 4, v{TMP+11}")
    a("s_mul_i32 s10, s5, 160")
    a(f"v_add_u32 v{TMP+11}, s10, v{TMP+11}")
    for i in range(8):
        a(f"s_mov_b32 s{80+i}, {i*5120}")
        a(f"buffer_load_dwordx4 v[{WO+4*i}:{WO+4*i+3}], v{TMP+11}, s[60:63], s{80+i} offen {wpol}")
    a("s_mov_b64 exec, s[12:13]")
    a("s_waitcnt vmcnt(8)")
    for jj in range(1, 8):
        a(f"v_add_f32 v{TMP}, v{TMP}, v{TMP+jj}")
    a(f"v_cvt_pk_bf16_f32 v{TMP}, v{TMP}, 0")
    a("s_cmp_gt_u32 s3, 1")
    a("s_cbranch_scc1 L_hpath")
    a(f"v_lshlrev_b32 v{TMP+1}, 1, v{T}")
    a(f"ds_write_b16 v{TMP+1}, v{TMP} offset:{L_Q}")
    a("s_branch L_qhdone")
    a.label("L_hpath")
    a(f"v_lshlrev_b32 v{TMP}, 16, v{TMP}")
    a(f"v_max_f32 v{TMP}, 0, v{TMP}")
    a(f"v_lshrrev_b32 v{TMP}, 16, v{TMP}")
    a(f"v_lshlrev_b32 v{TMP+1}, 2, v{T}")
    a(f"ds_write_b32 v{TMP+1}, v{TMP} offset:{L_HH - 512}")
    a.label("L_qhdone")
    a("s_waitcnt lgkmcnt(0)")
    a("s_barrier")
    AY = ACC
    a("s_cmp_ge_u32 s4, 27")
    a("s_cbranch_scc1 L_noffn2")
    a("s_lshl_b32 s10, s3, 4")
    a(f"v_add_u32 v{TMP}, s10, v{RG}")
    a(f"v_lshlrev_b32 v{TMP}, 2, v{TMP}")
    for i in range(4):
        for b in range(2):
            a(f"ds_read_b32 v{TMP+2+2*i+b}, v{TMP} offset:{L_HH + b*256 + i*16}")
    a("s_waitcnt lgkmcnt(0)")
    for k in range(8):
        a(f"v_lshlrev_b32 v{TMP+10+k}, 16, v{TMP+2+k}")
    a("s_waitcnt vmcnt(8)")
    for i in range(4):
        for b in range(2):
            for d in range(4):
                for hl in range(2):
                    acc = AY + 8*b + 2*d + hl
                    xs = (TMP+2 if hl == 0 else TMP+10) + 2*i + b
                    s2 = "0" if i == 0 else f"v{acc}"
                    a(f"v_dot2_f32_bf16 v{acc}, v{W2+4*i+d}, v{xs}, {s2}")
    a("s_branch L_ffn2w")
    a.label("L_noffn2")
    for k in range(16):
        a(f"v_mov_b32 v{AY+k}, 0")
    a.label("L_ffn2w")
    a("s_lshl_b32 s10, s3, 2")
    a(f"v_add_u32 v{TMP}, s10, v{RG}")
    a("s_movk_i32 s14, 640")
    a(f"v_mul_lo_u32 v{TMP}, v{TMP}, s14")
    a(f"v_lshl_add_u32 v{TMP+31}, v{C10}, 5, v{TMP}")
    a("s_nop 1")
    a("v_cmp_gt_u32 vcc, 40, v0")
    a("s_and_saveexec_b64 s[12:13], vcc")
    a(f"ds_write_b128 v{TMP+31}, v[{AY}:{AY+3}] offset:{L_QP}")
    a(f"ds_write_b128 v{TMP+31}, v[{AY+4}:{AY+7}] offset:{L_QP+16}")
    a(f"ds_write_b128 v{TMP+31}, v[{AY+8}:{AY+11}] offset:{L_QP+320}")
    a(f"ds_write_b128 v{TMP+31}, v[{AY+12}:{AY+15}] offset:{L_QP+336}")
    a("s_mov_b64 exec, s[12:13]")
    a("s_waitcnt lgkmcnt(0)")
    a("s_barrier")
    stamp(4)
    a("s_cmp_gt_u32 s3, 1")
    a("s_cbranch_scc1 L_y2sum")
    a("v_mov_b32 v2, 0")
    a(f"ds_read_b128 v[{TMP}:{TMP+3}], v2 offset:{L_ML}")
    a(f"ds_read_b128 v[{TMP+4}:{TMP+7}], v2 offset:{L_ML+16}")
    a(f"ds_read_b128 v[{TMP+8}:{TMP+11}], v2 offset:{L_ML+32}")
    a(f"ds_read_b128 v[{TMP+12}:{TMP+15}], v2 offset:{L_ML+48}")
    a(f"v_lshlrev_b32 v3, 2, v{T}")
    for w in range(8):
        a(f"ds_read_b32 v{TMP+16+w}, v3 offset:{L_OP + w*512}")
    a("s_waitcnt lgkmcnt(8)")
    M = TMP+24
    a(f"v_max3_f32 v{M}, v{TMP}, v{TMP+1}, v{TMP+2}")
    a(f"v_max3_f32 v{M}, v{M}, v{TMP+3}, v{TMP+4}")
    a(f"v_max3_f32 v{M}, v{M}, v{TMP+5}, v{TMP+6}")
    a(f"v_max_f32 v{M}, v{M}, v{TMP+7}")
    a(f"s_mov_b32 s14, 0x{f32bits(LOG2E):08x}")
    for w in range(8):
        a(f"v_sub_f32 v{TMP+w}, v{TMP+w}, v{M}")
    for w in range(8):
        a(f"v_mul_f32 v{TMP+w}, s14, v{TMP+w}")
    for w in range(8):
        a(f"v_exp_f32 v{TMP+w}, v{TMP+w}")
    a("s_nop 0")
    Ls = TMP+25
    a(f"v_mul_f32 v{Ls}, v{TMP}, v{TMP+8}")
    for w in range(1, 8):
        a(f"v_fma_f32 v{Ls}, v{TMP+w}, v{TMP+8+w}, v{Ls}")
    a("s_waitcnt lgkmcnt(0)")
    O = TMP+26
    a(f"v_mul_f32 v{O}, v{TMP}, v{TMP+16}")
    for w in range(1, 8):
        a(f"v_fma_f32 v{O}, v{TMP+w}, v{TMP+16+w}, v{O}")
    a(f"v_min_u32 v{O}, -2, v{O}")
    a(f"v_min_u32 v{M}, -2, v{M}")
    a(f"v_min_u32 v{Ls}, -2, v{Ls}")
    a("s_lshl_b32 s10, s6, 10")
    a(f"s_add_u32 s10, s10, {WS_H2}")
    a(f"v_add_u32 v3, s10, v3")
    a(f"buffer_store_dword v{O}, v3, s[56:59], 0 offen sc1")
    a("s_cmp_lg_u32 s3, 0")
    a("s_cbranch_scc1 L_y2sum")
    a("v_mov_b32 v3, s10")
    a("s_mov_b64 exec, 1")
    a(f"buffer_store_dwordx2 v[{M}:{Ls}], v3, s[56:59], 0 offen offset:512 sc1")
    a("s_mov_b64 exec, -1")
    a.label("L_y2sum")
    a("s_cmp_eq_u32 s3, 1")
    a("s_cbranch_scc1 L_y2done")
    a("s_cmp_eq_u32 s3, 0")
    a("s_movk_i32 s10, 128")
    a("s_cselect_b32 s10, s10, -128")
    a(f"v_add_u32 v2, s10, v{T}")
    a(f"v_lshlrev_b32 v2, 2, v2")
    for r in range(16):
        a(f"ds_read_b32 v{TMP+r}, v2 offset:{L_QP + r*640}")
    a("s_waitcnt lgkmcnt(0)")
    for r in range(1, 16):
        a(f"v_add_f32 v{TMP}, v{TMP}, v{TMP+r}")
    a(f"v_min_u32 v{TMP}, -2, v{TMP}")
    a("s_lshl_b32 s10, s5, 5")
    a("s_add_u32 s10, s10, s4")
    a("s_mul_i32 s10, s10, 640")
    a(f"s_add_u32 s10, s10, {WS_H3B}")
    a(f"v_add_u32 v3, s10, v2")
    a("s_movk_i32 s11, 640")
    a("v_cmp_gt_u32 vcc, s11, v2")
    a("s_and_saveexec_b64 s[12:13], vcc")
    a(f"buffer_store_dword v{TMP}, v3, s[56:59], 0 offen sc1")
    a("s_mov_b64 exec, s[12:13]")
    a.label("L_y2done")
    a(f"v_lshrrev_b32 v2, 7, v{T}")
    a(f"v_lshlrev_b32 v2, 12, v2")
    a("s_lshl_b32 s10, s4, 13")
    a(f"s_add_u32 s10, s10, {WS_H2}")
    a(f"v_add_u32 v2, s10, v2")
    a(f"v_and_b32 v3, 127, v{T}")
    a(f"v_lshl_add_u32 v3, v3, 2, v2")
    a(f"s_mov_b32 s11, {opts.maxpoll}")
    a.label("L_poll2")
    for s in range(4):
        a(f"buffer_load_dword v{TMP+s}, v3, s[56:59], 0 offen offset:{s*1024} sc1")
    for s in range(4):
        a(f"buffer_load_dwordx2 v[{TMP+4+2*s}:{TMP+5+2*s}], v2, s[56:59], 0 offen offset:{s*1024+512} sc1")
    a("s_waitcnt vmcnt(0)")
    a(f"v_max3_u32 v{TMP+12}, v{TMP}, v{TMP+1}, v{TMP+2}")
    for k in range(3, 11, 2):
        a(f"v_max3_u32 v{TMP+12}, v{TMP+12}, v{TMP+k}, v{TMP+k+1}")
    a(f"v_max_u32 v{TMP+12}, v{TMP+12}, v{TMP+11}")
    a(f"v_cmp_eq_u32 vcc, -1, v{TMP+12}")
    a("s_cbranch_vccz L_poll2_done")
    a("s_sub_u32 s11, s11, 1")
    a("s_cmp_eq_u32 s11, 0")
    a("s_cbranch_scc1 L_poll2_done")
    a("s_sleep 1")
    a("s_branch L_poll2")
    a.label("L_poll2_done")
    stamp(5)
    M = TMP+13
    a(f"v_max3_f32 v{M}, v{TMP+4}, v{TMP+6}, v{TMP+8}")
    a(f"v_max_f32 v{M}, v{M}, v{TMP+10}")
    for s in range(4):
        a(f"v_sub_f32 v{TMP+4+2*s}, v{TMP+4+2*s}, v{M}")
    for s in range(4):
        a(f"v_mul_f32 v{TMP+4+2*s}, s14, v{TMP+4+2*s}") if False else None
    a(f"s_mov_b32 s14, 0x{f32bits(LOG2E):08x}")
    for s in range(4):
        a(f"v_mul_f32 v{TMP+4+2*s}, s14, v{TMP+4+2*s}")
    for s in range(4):
        a(f"v_exp_f32 v{TMP+4+2*s}, v{TMP+4+2*s}")
    a("s_nop 0")
    Ls, O = TMP+14, TMP+15
    a(f"v_mul_f32 v{Ls}, v{TMP+4}, v{TMP+5}")
    a(f"v_mul_f32 v{O}, v{TMP+4}, v{TMP}")
    for s in range(1, 4):
        a(f"v_fma_f32 v{Ls}, v{TMP+4+2*s}, v{TMP+5+2*s}, v{Ls}")
        a(f"v_fma_f32 v{O}, v{TMP+4+2*s}, v{TMP+s}, v{O}")
    a(f"v_rcp_f32 v{Ls}, v{Ls}")
    a("s_nop 0")
    a(f"v_mul_f32 v{O}, v{O}, v{Ls}")
    a(f"v_cvt_pk_bf16_f32 v{O}, v{O}, 0")
    a(f"v_lshlrev_b32 v2, 2, v{T}")
    a(f"ds_write_b32 v2, v{O} offset:{L_OO}")
    a("s_waitcnt lgkmcnt(0)")
    a("s_barrier")
    RG, C10 = 2, 3
    a(f"v_mul_u32_u24 v{RG}, 26, v0")
    a(f"v_lshrrev_b32 v{RG}, 8, v{RG}")
    a("s_lshl_b32 s10, s3, 5")
    a(f"v_add_u32 v{TMP}, s10, v{RG}")
    a(f"v_lshlrev_b32 v{TMP}, 2, v{TMP}")
    OL = 4
    for i in range(8):
        for b in range(2):
            a(f"ds_read_b32 v{OL+2*i+b}, v{TMP} offset:{L_OO + b*512 + i*16}")
    a("s_waitcnt lgkmcnt(0)")
    for k in range(16):
        a(f"v_lshlrev_b32 v{TMP+2+k}, 16, v{OL+k}")
    for i in range(8):
        for b in range(2):
            for d in range(4):
                for hl in range(2):
                    acc = AY + 8*b + 2*d + hl
                    xs = (OL if hl == 0 else TMP+2) + 2*i + b
                    s2 = "0" if i == 0 else f"v{acc}"
                    a(f"v_dot2_f32_bf16 v{acc}, v{WO+4*i+d}, v{xs}, {s2}")
    a("s_nop 2")
    a("v_cmp_gt_u32 vcc, 40, v0")
    a("s_and_saveexec_b64 s[12:13], vcc")
    a(f"ds_write_b128 v{TMP+31}, v[{AY}:{AY+3}] offset:{L_Y1P}")
    a(f"ds_write_b128 v{TMP+31}, v[{AY+4}:{AY+7}] offset:{L_Y1P+16}")
    a(f"ds_write_b128 v{TMP+31}, v[{AY+8}:{AY+11}] offset:{L_Y1P+320}")
    a(f"ds_write_b128 v{TMP+31}, v[{AY+12}:{AY+15}] offset:{L_Y1P+336}")
    a("s_mov_b64 exec, s[12:13]")
    a("s_waitcnt lgkmcnt(0)")
    a("s_barrier")
    a("s_cmp_eq_u32 s3, 3")
    a("s_cbranch_scc1 L_end")
    a(f"v_lshlrev_b32 v2, 2, v{T}")
    for r in range(16):
        a(f"ds_read_b32 v{TMP+r}, v2 offset:{L_Y1P + r*640}")
    a("s_waitcnt lgkmcnt(0)")
    for r in range(1, 16):
        a(f"v_add_f32 v{TMP}, v{TMP}, v{TMP+r}")
    a(f"v_min_u32 v{TMP}, -2, v{TMP}")
    a("s_lshl_b32 s10, s5, 5")
    a("s_add_u32 s10, s10, s4")
    a("s_mul_i32 s10, s10, 640")
    a(f"s_add_u32 s10, s10, {WS_H3A}")
    a(f"v_add_u32 v3, s10, v2")
    a("s_movk_i32 s11, 640")
    a("v_cmp_gt_u32 vcc, s11, v2")
    a("s_and_saveexec_b64 s[12:13], vcc")
    a("s_cbranch_execz L_end")
    a(f"buffer_store_dword v{TMP}, v3, s[56:59], 0 offen sc1")
    stamp(6)
    a("s_lshl_b32 s10, s5, 2")
    a("s_cmp_lg_u32 s10, s4")
    a("s_cbranch_scc1 L_end")
    a("s_mov_b64 s[68:69], exec")
    a("s_mov_b64 exec, -1")
    a("v_and_b32 v4, 31, v0")
    a("v_lshlrev_b32 v4, 2, v4")
    a(f"s_mov_b32 s11, {opts.maxpoll}")
    a.label("L_poll3")
    a("global_load_dword v5, v4, s[34:35] sc1")
    a("s_waitcnt vmcnt(0)")
    a("v_cmp_gt_u32 vcc, 8, v5")
    a("s_cbranch_vccz L_poll3_done")
    a("s_sub_u32 s11, s11, 1")
    a("s_cmp_eq_u32 s11, 0")
    a("s_cbranch_scc1 L_poll3_done")
    a("s_sleep 1")
    a("s_branch L_poll3")
    a.label("L_poll3_done")
    a("s_mov_b64 exec, s[68:69]")
    a("s_mul_i32 s10, s5, 20480")
    a(f"s_add_u32 s10, s10, {WS_H3B}")
    a(f"v_add_u32 v3, s10, v2")
    for gg in range(32):
        a(f"s_mov_b32 s{70+(gg%8)}, {gg*640}") if False else None
    a(f"v_cmp_lt_u32 vcc, 79, v{T}")
    a(f"v_mov_b32 v4, 0")
    a(f"v_mov_b32 v5, {640-80}")
    a("s_nop 0")
    a(f"v_cndmask_b32 v4, v4, v5, vcc")
    a(f"v_add_u32 v4, v4, v{T}")
    a("s_mul_i32 s10, s5, 80")
    a(f"v_add_u32 v4, s10, v4")
    a(f"v_lshlrev_b32 v4, 1, v4")
    a(f"buffer_load_ushort v5, v4, s[40:43], 0 offen")

    def gather32(lbl, addr):
        a(f"s_mov_b32 s11, {opts.maxpoll}")
        a.label(lbl)
        for gg in range(32):
            off = gg*640
            so, io = divmod(off, 4096)
            a(f"buffer_load_dword v{TMP+gg}, v{addr}, s[56:59], s{70+so} offen offset:{io} sc1")
        a("s_waitcnt vmcnt(0)")
        a(f"v_max3_u32 v{TMP+32}, v{TMP}, v{TMP+1}, v{TMP+2}")
        for k in range(3, 31, 2):
            a(f"v_max3_u32 v{TMP+32}, v{TMP+32}, v{TMP+k}, v{TMP+k+1}")
        a(f"v_max_u32 v{TMP+32}, v{TMP+32}, v{TMP+31}")
        a(f"v_cmp_eq_u32 vcc, -1, v{TMP+32}")
        a(f"s_cbranch_vccz {lbl}_done")
        a("s_sub_u32 s11, s11, 1")
        a("s_cmp_eq_u32 s11, 0")
        a(f"s_cbranch_scc1 {lbl}_done")
        a("s_sleep 1")
        a(f"s_branch {lbl}")
        a.label(lbl + "_done")
    for k in range(5):
        a(f"s_mov_b32 s{70+k}, {k*4096}")
    gather32("L_poll4", 3)
    Y2 = 6
    a(f"v_add_f32 v{Y2}, v{TMP}, v{TMP+1}")
    for k in range(2, 32):
        a(f"v_add_f32 v{Y2}, v{Y2}, v{TMP+k}")
    a(f"v_cvt_pk_bf16_f32 v{Y2}, v{Y2}, 0")
    a(f"v_lshlrev_b32 v{Y2}, 16, v{Y2}")
    a(f"s_mov_b32 s14, 0x{f32bits(-LOG2E):08x}")
    a(f"v_mul_f32 v7, s14, v{Y2}")
    a(f"v_exp_f32 v7, v7")
    a("s_nop 0")
    a(f"v_add_f32 v7, 1.0, v7")
    a(f"v_rcp_f32 v7, v7")
    a("s_nop 0")
    a(f"v_mul_f32 v{Y2}, v{Y2}, v7")
    a(f"v_cvt_pk_bf16_f32 v{Y2}, v{Y2}, 0")
    a(f"v_lshlrev_b32 v{Y2}, 16, v{Y2}")
    a(f"v_add_u32 v3, {WS_H3A - WS_H3B}, v3")
    gather32("L_poll5", 3)
    Y1 = 7
    a(f"v_add_f32 v{Y1}, v{TMP}, v{TMP+1}")
    for k in range(2, 32):
        a(f"v_add_f32 v{Y1}, v{Y1}, v{TMP+k}")
    a(f"v_cvt_pk_bf16_f32 v{Y1}, v{Y1}, 0")
    a(f"v_lshlrev_b32 v{Y1}, 16, v{Y1}")
    a(f"v_mul_f32 v{Y1}, v{Y1}, v{Y2}")
    a(f"v_cvt_pk_bf16_f32 v{Y1}, v{Y1}, 0")
    a(f"v_lshlrev_b32 v{Y1}, 16, v{Y1}")
    a(f"v_lshlrev_b32 v5, 16, v5")
    a(f"v_add_f32 v{Y1}, v5, v{Y1}")
    a(f"v_cvt_pk_bf16_f32 v{Y1}, v{Y1}, 0")
    a(f"buffer_store_short v{Y1}, v4, s[64:67], 0 offen")
    stamp(7)
    a.label("L_end")
    a("s_endpgm")

    nv = 168 if stamps else 160
    out = HEADER
    out += f"; @launch grid=(256,1,1) block=(768,1,1) lds={L_TOTAL}\n"
    out += '.amdgcn_target "amdgcn-amd-amdhsa--gfx950"\n.text\n'
    out += f".globl {KNAME}\n.p2align 8\n.type {KNAME},@function\n{KNAME}:\n"
    out += "\n".join(a.l) + "\n"
    out += f""".section .rodata,"a"
.p2align 6
.amdhsa_kernel {KNAME}
  .amdhsa_next_free_vgpr {nv}
  .amdhsa_next_free_sgpr 96
  .amdhsa_accum_offset {nv}
  .amdhsa_group_segment_fixed_size 0
  .amdhsa_kernarg_size 88
  .amdhsa_user_sgpr_count 2
  .amdhsa_user_sgpr_kernarg_segment_ptr 1
  .amdhsa_system_sgpr_workgroup_id_x 1
.end_amdhsa_kernel
"""
    return out


if __name__ == "__main__":
    p = argparse.ArgumentParser()
    p.add_argument("-o", default="recurrent_scan__sliding_block_cached__dense_activation_relu__decode.s")
    p.add_argument("--kvpol", default="")
    p.add_argument("--wpol", default="")
    p.add_argument("--stamps", action="store_true")
    p.add_argument("--xcdmap", action="store_true")
    p.add_argument("--maxpoll", type=int, default=200000)
    o = p.parse_args()
    open(o.o, "w").write(gen(o))
    print("wrote", o.o)
```

```python
import sys, argparse, struct

KNAME = "recurrent_scan__sliding_block_cached__dense_activation_relu__decode_kernel"

HEADER = """; Kernarg layout for this problem (88 bytes, ptrs only, base s[0:1]):
"""

WS_H1 = 0x0
WS_H2 = 0xC0000
WS_H3A = 0x140000
WS_H3B = 0x190000
WS_EPOCH = 0x1F0000
WS_STAMP = 0x200000
WS_SIZE = 0x400000

L_QP = 0
L_HP = 4096
L_Q = 6144
L_H = 6400
L_OP = 6656
L_ML = 10752
L_OO = 10880
L_Y2P = 11392
L_Y1P = 13952
L_SYNC = 16896
L_TOTAL = 17408

LOG2E = 1.4426950408889634
OOB = 0x40000000


def f32bits(x):
    return struct.unpack('<I', struct.pack('<f', x))[0]


class A:
    def __init__(self):
        self.l = []

    def __call__(self, s):
        self.l.append("    " + s)

    def label(self, s):
        self.l.append(s + ":")

    def c(self, s):
        self.l.append("    ; " + s)


def gen(opts):
    a = A()
    kvpol = opts.kvpol
    wpol = opts.wpol
    stamps = opts.stamps
    ST0 = 72

    def stamp(idx, dbg=False):
        if opts.dbgst and idx >= 5 and not dbg:
            return
        if stamps:
            a(f"s_memrealtime s[{ST0+2*idx}:{ST0+2*idx+1}]")

    a("s_cmp_ge_u32 s2, 256")
    a("s_cbranch_scc1 L_end")
    a("s_load_dwordx16 s[16:31], s[0:1], 0")
    a("s_load_dwordx4 s[32:35], s[0:1], 64")
    a("s_load_dwordx2 s[36:37], s[0:1], 80")
    if stamps:
        for i in range(1, 8):
            a(f"s_mov_b64 s[{ST0+2*i}:{ST0+2*i+1}], 0")
        stamp(0)
    a("v_lshrrev_b32 v1, 6, v0")
    a("v_and_b32 v0, 63, v0")
    a("s_lshr_b32 s4, s2, 3")
    a("s_and_b32 s5, s2, 7")
    a("v_readfirstlane_b32 s3, v1")
    a("s_mov_b32 s6, s2")
    a("s_lshr_b32 s7, s5, 2")
    a("s_and_b32 s8, s5, 3")
    a(f"s_mov_b32 s58, {WS_SIZE}")
    a("s_mov_b32 s59, 0x00020000")
    a("s_cmp_lg_u32 s3, 0")
    a("s_cbranch_scc1 L_noclr")
    a("v_mov_b32 v4, 0")
    a("v_mov_b32 v5, 0")
    a("v_mov_b32 v6, 0")
    a("v_mov_b32 v7, 0")
    a(f"ds_write_b128 v4, v[4:7] offset:{L_SYNC}")
    a("s_waitcnt lgkmcnt(0)")
    a.label("L_noclr")
    a("s_barrier")
    a("s_cmp_lt_u32 s3, 4")
    a("s_cbranch_scc1 L_aux")

    VOFF, VQ, VT, VS, VACC, VK, VV = 1, 2, 6, 8, 24, 32, 96
    a.c("---- streaming wave ----")
    a("s_sub_u32 s3, s3, 4")
    a("s_lshl_b32 s9, s7, 5")
    a("s_add_u32 s9, s9, s4")
    a("s_lshl_b32 s9, s9, 21")
    a("s_lshl_b32 s10, s8, 17")
    a("s_add_u32 s9, s9, s10")
    a("s_add_u32 s9, s9, 1572864")
    a("s_lshl_b32 s10, s3, 14")
    a(f"v_lshl_add_u32 v{VOFF}, v0, 4, s10")
    a(f"s_mul_i32 s11, s4, {opts.rotg}")
    a(f"s_mul_i32 s12, s3, {opts.rotw}")
    a("s_add_u32 s11, s11, s12")
    a("s_lshl_b32 s11, s11, 10")
    a("s_mov_b32 s42, 131072")
    a("s_mov_b32 s43, 0x00020000")
    a("s_mov_b32 s46, 131072")
    a("s_mov_b32 s47, 0x00020000")
    a("s_waitcnt lgkmcnt(0)")
    a("s_add_u32 s40, s18, s9")
    a("s_addc_u32 s41, s19, 0")
    a("s_add_u32 s44, s20, s9")
    a("s_addc_u32 s45, s21, 0")
    a("s_mov_b32 s56, s36")
    a("s_mov_b32 s57, s37")
    for i in range(16):
        a(f"s_add_u32 s{16+i}, s11, {i*1024}")
        a(f"s_and_b32 s{16+i}, s{16+i}, 0x3c00")
        a(f"buffer_load_dwordx4 v[{VK+4*i}:{VK+4*i+3}], v{VOFF}, s[40:43], s{16+i} offen {kvpol}")
    for i in range(16):
        a(f"buffer_load_dwordx4 v[{VV+4*i}:{VV+4*i+3}], v{VOFF}, s[44:47], s{16+i} offen {kvpol}")
    a(f"v_mov_b32 v{VT+1}, 0")
    a(f"s_mov_b32 s12, {opts.maxspin}")
    a.label("L_qspin")
    a(f"ds_read_b32 v{VT}, v{VT+1} offset:{L_SYNC+4}")
    a("s_waitcnt lgkmcnt(0)")
    a(f"v_readfirstlane_b32 s10, v{VT}")
    a("s_cmp_lg_u32 s10, 0")
    a("s_cbranch_scc1 L_qspin_done")
    a("s_sleep 2")
    a("s_sub_u32 s12, s12, 1")
    a("s_cmp_lg_u32 s12, 0")
    a("s_cbranch_scc1 L_qspin")
    a.label("L_qspin_done")
    a(f"v_and_b32 v{VT}, 15, v0")
    a(f"v_lshlrev_b32 v{VT}, 4, v{VT}")
    a(f"ds_read_b128 v[{VQ}:{VQ+3}], v{VT} offset:{L_Q}")
    stamp(1)
    a("s_waitcnt lgkmcnt(0)")
    for grp in range(4):
        a(f"s_waitcnt vmcnt({16 + 12 - 4*grp})")
        for d in range(4):
            for i in range(4*grp, 4*grp+4):
                src2 = "0" if d == 0 else f"v{VS+i}"
                a(f"v_dot2_f32_bf16 v{VS+i}, v{VK+4*i+d}, v{VQ+d}, {src2}")
    a("s_nop 2")
    for ctrl in ["quad_perm:[1,0,3,2]", "quad_perm:[2,3,0,1]", "row_half_mirror", "row_mirror"]:
        for i in range(16):
            a(f"v_add_f32_dpp v{VS+i}, v{VS+i}, v{VS+i} {ctrl} row_mask:0xf bank_mask:0xf")
    a(f"s_mov_b32 s14, 0x{f32bits(128 ** -0.5):08x}")
    a("s_mov_b32 s15, 0xffff0000")
    for rnd in range(2):
        for p in range(8):
            a(f"v_cvt_pk_bf16_f32 v{VK+p}, v{VS+2*p}, v{VS+2*p+1}")
        for p in range(8):
            a(f"v_lshlrev_b32 v{VS+2*p}, 16, v{VK+p}")
            a(f"v_and_b32 v{VS+2*p+1}, s15, v{VK+p}")
        if rnd == 0:
            for i in range(16):
                a(f"v_mul_f32 v{VS+i}, s14, v{VS+i}")
    m = VT
    a(f"v_max3_f32 v{m}, v{VS}, v{VS+1}, v{VS+2}")
    for i in range(3, 15, 2):
        a(f"v_max3_f32 v{m}, v{m}, v{VS+i}, v{VS+i+1}")
    a(f"v_max_f32 v{m}, v{m}, v{VS+15}")
    a("s_nop 0")
    for r in range(4):
        a(f"v_readlane_b32 s{60+r}, v{m}, {16*r}")
    a("s_nop 1")
    a(f"v_mov_b32 v{m}, s60")
    a(f"v_max_f32 v{m}, s61, v{m}")
    a(f"v_max_f32 v{m}, s62, v{m}")
    a(f"v_max_f32 v{m}, s63, v{m}")
    a(f"s_mov_b32 s64, 0x{f32bits(LOG2E):08x}")
    for i in range(16):
        a(f"v_sub_f32 v{VS+i}, v{VS+i}, v{m}")
    for i in range(16):
        a(f"v_mul_f32 v{VS+i}, s64, v{VS+i}")
    for i in range(16):
        a(f"v_exp_f32 v{VS+i}, v{VS+i}")
    a("s_nop 0")
    PLO, PHI = VK, VK + 16
    for i in range(16):
        a(f"v_cvt_pk_bf16_f32 v{PLO+i}, v{VS+i}, 0")
    for i in range(16):
        a(f"v_lshlrev_b32 v{PHI+i}, 16, v{PLO+i}")
    lsum = VT + 1
    a(f"v_add_f32 v{lsum}, v{VS}, v{VS+1}")
    for i in range(2, 16):
        a(f"v_add_f32 v{lsum}, v{lsum}, v{VS+i}")
    a("s_nop 0")
    for r in range(4):
        a(f"v_readlane_b32 s{60+r}, v{lsum}, {16*r}")
    a("s_nop 1")
    a(f"v_mov_b32 v{lsum}, s60")
    a(f"v_add_f32 v{lsum}, s61, v{lsum}")
    a(f"v_add_f32 v{lsum}, s62, v{lsum}")
    a(f"v_add_f32 v{lsum}, s63, v{lsum}")
    a(f"s_lshl_b32 s10, s3, 2")
    a(f"v_mov_b32 v{VS}, s10")
    a(f"ds_write_b32 v{VS}, v{m} offset:{L_ML}")
    a(f"ds_write_b32 v{VS}, v{lsum} offset:{L_ML+32}")
    a(f"v_and_b32 v{VS}, 15, v0")
    a(f"v_lshlrev_b32 v{VS}, 5, v{VS}")
    a(f"v_lshrrev_b32 v{VS+1}, 4, v0")
    a(f"v_lshl_add_u32 v{VS}, v{VS+1}, 3, v{VS}")
    a(f"s_lshl_b32 s10, s3, 9")
    a(f"v_add_u32 v{VS}, s10, v{VS}")
    for i in range(16):
        a(f"s_waitcnt vmcnt({15-i})")
        for d in range(4):
            s2a = "0" if i == 0 else f"v{VACC+2*d}"
            s2b = "0" if i == 0 else f"v{VACC+2*d+1}"
            a(f"v_dot2_f32_bf16 v{VACC+2*d}, v{VV+4*i+d}, v{PLO+i}, {s2a}")
            a(f"v_dot2_f32_bf16 v{VACC+2*d+1}, v{VV+4*i+d}, v{PHI+i}, {s2b}")
    a("s_nop 2")
    for e in range(4):
        a(f"v_permlane32_swap_b32 v{VACC+e}, v{VACC+e+4}")
    a("s_nop 1")
    for e in range(4):
        a(f"v_add_f32 v{VACC+e}, v{VACC+e}, v{VACC+e+4}")
    a("s_nop 1")
    a(f"v_permlane16_swap_b32 v{VACC}, v{VACC+2}")
    a(f"v_permlane16_swap_b32 v{VACC+1}, v{VACC+3}")
    a("s_nop 1")
    a(f"v_add_f32 v{VACC}, v{VACC}, v{VACC+2}")
    a(f"v_add_f32 v{VACC+1}, v{VACC+1}, v{VACC+3}")
    a(f"ds_write_b64 v{VS}, v[{VACC}:{VACC+1}] offset:{L_OP}")
    stamp(2)
    a("s_waitcnt lgkmcnt(0)")
    a("s_barrier")
    a("s_add_u32 s3, s3, 4")
    a("s_branch L_fin")

    a.label("L_aux")
    a.c("---- aux wave: a = s3 (0..3) ----")
    a("s_setprio 3")
    T = 1
    XR = 20
    VE = 30
    WQ = 32
    W1 = 52
    TMP = 64
    ACC = 96
    W2 = 120
    WO = 136
    LO2 = 32
    LOO = 40
    a(f"s_lshl_b32 s10, s3, 6")
    a(f"v_add_u32 v{T}, s10, v0")
    a(f"v_lshlrev_b32 v2, 4, v0")
    a(f"v_lshlrev_b32 v3, 2, v0")
    a(f"v_mov_b32 v{VE}, {WS_EPOCH}")
    a("s_mul_i32 s9, s5, 80")
    a("s_mul_i32 s10, s3, 20")
    a("s_add_u32 s9, s9, s10")
    a(f"v_lshrrev_b32 v{TMP+8}, 4, v0")
    a(f"v_and_b32 v{TMP+9}, 15, v0")
    a(f"v_add_u32 v{TMP+10}, s9, v{TMP+8}")
    a(f"v_lshlrev_b32 v{TMP+11}, 1, v{TMP+10}")
    a(f"v_lshlrev_b32 v{TMP+1}, 13, v{TMP+10}")
    a(f"v_lshl_add_u32 v{TMP+1}, v{TMP+9}, 4, v{TMP+1}")
    a("s_lshl_b32 s10, s4, 8")
    a(f"v_add_u32 v{TMP+1}, s10, v{TMP+1}")
    a("s_cmp_ge_u32 s4, 27")
    a(f"s_cselect_b32 s13, {OOB}, 0")
    a("s_movk_i32 s10, 3456")
    a(f"v_mul_lo_u32 v{TMP+2}, v{TMP+10}, s10")
    a(f"v_lshl_add_u32 v{TMP+2}, v{TMP+9}, 3, v{TMP+2}")
    a("s_lshl_b32 s10, s4, 7")
    a("s_add_u32 s10, s10, s13")
    a(f"v_add_u32 v{TMP+2}, s10, v{TMP+2}")
    a(f"v_mov_b32 v{TMP+5}, 0")
    a(f"v_mov_b32 v{TMP+6}, {OOB}")
    a(f"v_cmp_lt_u32 vcc, 9, v{TMP+9}")
    a(f"v_cndmask_b32 v{TMP+5}, v{TMP+5}, v{TMP+6}, vcc")
    a(f"v_lshl_add_u32 v{TMP+5}, v{TMP+9}, 4, v{TMP+5}")
    a("s_mul_i32 s10, s5, 160")
    a(f"v_add_u32 v{TMP+5}, s10, v{TMP+5}")
    a("s_movk_i32 s14, 1280")
    a("s_lshl_b32 s10, s4, 6")
    a("s_lshl_b32 s11, s3, 4")
    a("s_add_u32 s10, s10, s11")
    a(f"v_lshl_add_u32 v{TMP+3}, v{TMP+8}, 2, s10")
    a(f"v_mul_lo_u32 v{TMP+3}, v{TMP+3}, s14")
    a(f"v_add_u32 v{TMP+3}, v{TMP+5}, v{TMP+3}")
    a(f"v_add_u32 v{TMP+3}, s13, v{TMP+3}")
    a("s_lshl_b32 s10, s4, 7")
    a("s_lshl_b32 s11, s3, 5")
    a("s_add_u32 s10, s10, s11")
    a(f"v_lshl_add_u32 v{TMP+4}, v{TMP+8}, 3, s10")
    a(f"v_mul_lo_u32 v{TMP+4}, v{TMP+4}, s14")
    a(f"v_add_u32 v{TMP+4}, v{TMP+5}, v{TMP+4}")
    for i in range(1, 5):
        a(f"s_mov_b32 s{88+i}, {i*32768}")
        a(f"s_mov_b32 s{92+i}, {i*13824}") if i < 4 else None
    a(f"s_mov_b32 s88, {4*13824}")
    a("s_movk_i32 s12, 5120")
    a("s_waitcnt lgkmcnt(0)")

    def srd(r, lo, size):
        a(f"s_mov_b32 s{r}, s{lo}")
        a(f"s_mov_b32 s{r+1}, s{lo+1}")
        a(f"s_mov_b32 s{r+2}, {size}")
        a(f"s_mov_b32 s{r+3}, 0x00020000")
    a("s_mov_b32 s56, s36")
    a("s_mov_b32 s57, s37")
    srd(40, 16, 2560)
    a(f"buffer_load_dword v{VE}, v{VE}, s[56:59], 0 offen sc1")
    a(f"buffer_load_dwordx4 v[4:7], v2, s[40:43], 0 offen")
    a(f"buffer_load_dword v8, v3, s[40:43], 0 offen offset:1024")
    a(f"buffer_load_dwordx4 v[12:15], v2, s[40:43], 0 offen offset:1280")
    a(f"buffer_load_dword v16, v3, s[40:43], 0 offen offset:2304")
    srd(44, 22, 5242880)
    for i in range(5):
        so = "0" if i == 0 else f"s{88+i}"
        a(f"buffer_load_dwordx4 v[{WQ+4*i}:{WQ+4*i+3}], v{TMP+1}, s[44:47], {so} offen {wpol}")
    srd(48, 28, 2211840)
    for i in range(5):
        so = "0" if i == 0 else (f"s{92+i}" if i < 4 else "s88")
        a(f"buffer_load_dwordx2 v[{W1+2*i}:{W1+2*i+1}], v{TMP+2}, s[48:51], {so} offen {wpol}")
    for i in range(5):
        for b in range(2):
            a(f"buffer_load_ushort v{XR+2*i+b}, v{TMP+11}, s[40:43], 0 offen offset:{b*1280 + i*8}")
    srd(52, 30, 2211840)
    for i in range(4):
        a(f"buffer_load_dwordx4 v[{W2+4*i}:{W2+4*i+3}], v{TMP+3}, s[52:55], 0 offen offset:{i*1280} {wpol}")
    srd(60, 24, 5242880)
    for i in range(8):
        so = "0" if i < 4 else "s12"
        a(f"buffer_load_dwordx4 v[{WO+4*i}:{WO+4*i+3}], v{TMP+4}, s[60:63], {so} offen offset:{(i&3)*1280} {wpol}")
    srd(64, 32, 2560)

    a("s_waitcnt vmcnt(32)")
    if opts.dbgst:
        stamp(5, True)
    a(f"v_readfirstlane_b32 s68, v{VE}")
    a("s_mov_b32 s15, 0xffff0000")
    a("s_add_u32 s68, s68, 1")
    a("s_xor_b32 s69, s68, 0x9e3779b9")
    F = TMP + 12
    srcs = [[4, 5, 6, 7, 8], [12, 13, 14, 15, 16]]
    for b in range(2):
        for d in range(5):
            a(f"v_lshlrev_b32 v{F+10*b+2*d}, 16, v{srcs[b][d]}")
            a(f"v_and_b32 v{F+10*b+2*d+1}, s15, v{srcs[b][d]}")
    S0, S1, Q0, Q1, t0, t1 = 4, 5, 6, 7, 8, 9

    def wave_sum2(r0, r1, sbase):
        a("s_nop 1")
        for ctrl in ["quad_perm:[1,0,3,2]", "quad_perm:[2,3,0,1]", "row_half_mirror", "row_mirror"]:
            a(f"v_add_f32_dpp v{r0}, v{r0}, v{r0} {ctrl} row_mask:0xf bank_mask:0xf")
            a(f"v_add_f32_dpp v{r1}, v{r1}, v{r1} {ctrl} row_mask:0xf bank_mask:0xf")
            a("s_nop 0")
        a("s_nop 0")
        for r in range(4):
            a(f"v_readlane_b32 s{sbase+r}, v{r0}, {16*r}")
            a(f"v_readlane_b32 s{sbase+4+r}, v{r1}, {16*r}")
        a("s_nop 1")
        a(f"v_mov_b32 v{r0}, s{sbase}")
        a(f"v_mov_b32 v{r1}, s{sbase+4}")
        for r in range(1, 4):
            a(f"v_add_f32 v{r0}, s{sbase+r}, v{r0}")
            a(f"v_add_f32 v{r1}, s{sbase+4+r}, v{r1}")

    for b, S in ((0, S0), (1, S1)):
        a(f"v_add_f32 v{S}, v{F+10*b}, v{F+10*b+1}")
        for e in range(2, 10):
            a(f"v_add_f32 v{S}, v{S}, v{F+10*b+e}")
    wave_sum2(S0, S1, 88)
    a(f"s_mov_b32 s14, 0x{f32bits(1.0/640):08x}")
    a(f"v_mul_f32 v{S0}, s14, v{S0}")
    a(f"v_mul_f32 v{S1}, s14, v{S1}")
    for b, S in ((0, S0), (1, S1)):
        for e in range(10):
            a(f"v_sub_f32 v{F+10*b+e}, v{F+10*b+e}, v{S}")
    for b, Q in ((0, Q0), (1, Q1)):
        a(f"v_mul_f32 v{Q}, v{F+10*b}, v{F+10*b}")
        for e in range(1, 10):
            a(f"v_fma_f32 v{Q}, v{F+10*b+e}, v{F+10*b+e}, v{Q}")
    wave_sum2(Q0, Q1, 88)
    a(f"v_mul_f32 v{Q0}, s14, v{Q0}")
    a(f"v_mul_f32 v{Q1}, s14, v{Q1}")
    a(f"v_cvt_pk_bf16_f32 v{t0}, v{S0}, v{S1}")
    a(f"v_cvt_pk_bf16_f32 v{t1}, v{Q0}, v{Q1}")
    a(f"v_lshlrev_b32 v{S0}, 16, v{t0}")
    a(f"v_and_b32 v{S1}, s15, v{t0}")
    a(f"v_lshlrev_b32 v{Q0}, 16, v{t1}")
    a(f"v_and_b32 v{Q1}, s15, v{t1}")
    a(f"s_mov_b32 s14, 0x{f32bits(1e-5):08x}")
    a(f"v_add_f32 v{Q0}, s14, v{Q0}")
    a(f"v_add_f32 v{Q1}, s14, v{Q1}")
    a(f"v_cvt_pk_bf16_f32 v{t1}, v{Q0}, v{Q1}")
    a(f"v_lshlrev_b32 v{Q0}, 16, v{t1}")
    a(f"v_and_b32 v{Q1}, s15, v{t1}")
    a(f"v_sqrt_f32 v{Q0}, v{Q0}")
    a(f"v_sqrt_f32 v{Q1}, v{Q1}")
    a("s_nop 0")
    a(f"v_cvt_pk_bf16_f32 v{t1}, v{Q0}, v{Q1}")
    a(f"v_lshlrev_b32 v{Q0}, 16, v{t1}")
    a(f"v_and_b32 v{Q1}, s15, v{t1}")
    a(f"v_rcp_f32 v{Q0}, v{Q0}")
    a(f"v_rcp_f32 v{Q1}, v{Q1}")
    a("s_nop 0")
    XH = F
    MS = [S0, S1]; RS = [Q0, Q1]
    if opts.dbgst:
        a("s_waitcnt vmcnt(27)")
        stamp(6, True)
        a("s_waitcnt vmcnt(22)")
        stamp(7, True)
    a("s_waitcnt vmcnt(12)")
    def each(fn):
        for i in range(5):
            for b in range(2):
                fn(XR + 2*i + b, b, i)
    each(lambda r, b, i: a(f"v_lshlrev_b32 v{r}, 16, v{r}"))
    each(lambda r, b, i: a(f"v_sub_f32 v{r}, v{r}, v{MS[b]}"))
    each(lambda r, b, i: a(f"v_cvt_pk_bf16_f32 v{r}, v{r}, 0"))
    each(lambda r, b, i: a(f"v_lshlrev_b32 v{r}, 16, v{r}"))
    each(lambda r, b, i: a(f"v_mul_f32 v{r}, v{r}, v{RS[b]}"))
    each(lambda r, b, i: a(f"v_cvt_pk_bf16_f32 v{r}, v{r}, 0"))
    each(lambda r, b, i: a(f"v_lshlrev_b32 v{XH+2*i+b}, 16, v{r}"))
    AQ = ACC; AH = ACC + 16
    for i in range(5):
        for b in range(2):
            for d in range(4):
                for hl in range(2):
                    acc = AQ + 8*b + 2*d + hl
                    xs = (XR if hl == 0 else XH) + 2*i + b
                    s2 = "0" if i == 0 else f"v{acc}"
                    a(f"v_dot2_f32_bf16 v{acc}, v{WQ+4*i+d}, v{xs}, {s2}")
    for i in range(5):
        for b in range(2):
            for d in range(2):
                for hl in range(2):
                    acc = AH + 4*b + 2*d + hl
                    xs = (XR if hl == 0 else XH) + 2*i + b
                    s2 = "0" if i == 0 else f"v{acc}"
                    a(f"v_dot2_f32_bf16 v{acc}, v{W1+2*i+d}, v{xs}, {s2}")

    def reduce16(base):
        a("s_nop 1")
        for k in range(8):
            a(f"v_permlane32_swap_b32 v{base+k}, v{base+k+8}")
        a("s_nop 1")
        for k in range(8):
            a(f"v_add_f32 v{base+k}, v{base+k}, v{base+k+8}")
        a("s_nop 1")
        for k in range(4):
            a(f"v_permlane16_swap_b32 v{base+k}, v{base+k+4}")
        a("s_nop 1")
        for k in range(4):
            a(f"v_add_f32 v{base+k}, v{base+k}, v{base+k+4}")

    reduce16(AQ)
    for k in range(4):
        a(f"v_permlane32_swap_b32 v{AH+k}, v{AH+k+4}")
    a("s_nop 1")
    for k in range(4):
        a(f"v_add_f32 v{AH+k}, v{AH+k}, v{AH+k+4}")
    a("s_nop 1")
    for k in range(2):
        a(f"v_permlane16_swap_b32 v{AH+k}, v{AH+k+2}")
    a("s_nop 1")
    for k in range(2):
        a(f"v_add_f32 v{AH+k}, v{AH+k}, v{AH+k+2}")
    RG, C = TMP+8, TMP+9
    a(f"v_lshrrev_b32 v2, 1, v{RG}")
    a(f"v_and_b32 v3, 1, v{RG}")
    a(f"v_lshlrev_b32 v{TMP}, 9, v2")
    a(f"v_lshl_add_u32 v{TMP}, v{C}, 5, v{TMP}")
    a(f"v_lshl_add_u32 v{TMP}, v3, 4, v{TMP}")
    a("s_lshl_b32 s10, s3, 10")
    a(f"v_add_u32 v{TMP}, s10, v{TMP}")
    a(f"ds_write_b128 v{TMP}, v[{AQ}:{AQ+3}] offset:{L_QP}")
    a(f"v_lshlrev_b32 v{TMP+1}, 8, v2")
    a(f"v_lshl_add_u32 v{TMP+1}, v{C}, 4, v{TMP+1}")
    a(f"v_lshl_add_u32 v{TMP+1}, v3, 3, v{TMP+1}")
    a("s_lshl_b32 s10, s3, 9")
    a(f"v_add_u32 v{TMP+1}, s10, v{TMP+1}")
    a(f"ds_write_b64 v{TMP+1}, v[{AH}:{AH+1}] offset:{L_HP}")
    VY = 31
    a("s_movk_i32 s10, 320")
    a(f"v_mul_u32_u24 v{VY}, s10, v2")
    a(f"v_lshl_add_u32 v{VY}, v{C}, 5, v{VY}")
    a(f"v_lshl_add_u32 v{VY}, v3, 4, v{VY}")
    a("s_mul_i32 s10, s3, 640")
    a(f"v_add_u32 v{VY}, s10, v{VY}")
    a(f"v_mov_b32 v10, v{RG}")
    a(f"v_mov_b32 v11, v{C}")
    a("v_mov_b32 v2, 0")
    a("v_mov_b32 v3, 1")
    a("s_mov_b64 exec, 1")
    a(f"ds_add_u32 v2, v3 offset:{L_SYNC}")
    a("s_mov_b64 exec, -1")

    def lds_spin(lbl, off, val):
        a(f"s_mov_b32 s12, {opts.maxspin}")
        a.label(lbl)
        a(f"ds_read_b32 v3, v2 offset:{off}")
        a("s_waitcnt lgkmcnt(0)")
        a(f"v_readfirstlane_b32 s10, v3")
        a(f"s_cmp_ge_u32 s10, {val}")
        a(f"s_cbranch_scc1 {lbl}_done")
        a("s_sub_u32 s12, s12, 1")
        a("s_cmp_lg_u32 s12, 0")
        a(f"s_cbranch_scc1 {lbl}")
        a.label(lbl + "_done")
    lds_spin("L_c1spin", L_SYNC, 4)
    stamp(1)

    G = TMP

    def set_tag(r):
        a(f"v_mov_b32 v{r+2}, s68")
        a(f"v_mov_b32 v{r+3}, s69")

    def check_tags(regs, lbl_retry_cnt, lbl_loop, lbl_done):
        for n, r in enumerate(regs):
            dst = "s[70:71]" if n == 0 else "vcc"
            a(f"v_cmp_ne_u64 {dst}, v[{r+2}:{r+3}], s[68:69]")
            if n:
                a("s_or_b64 s[70:71], s[70:71], vcc")
        a("s_cmp_eq_u64 s[70:71], 0")
        a(f"s_cbranch_scc1 {lbl_done}")
        a(f"s_sub_u32 {lbl_retry_cnt}, {lbl_retry_cnt}, 1")
        a(f"s_cmp_eq_u32 {lbl_retry_cnt}, 0")
        a(f"s_cbranch_scc0 {lbl_loop}")

    def preperm():
        a("s_mov_b32 s10, 0x05040100")
        a("s_mov_b32 s11, 0x07060302")
        for q in range(2):
            for d in range(4):
                r0, r1 = W2 + 8*q + d, W2 + 8*q + 4 + d
                a(f"v_perm_b32 v{LO2+4*q+d}, v{r1}, v{r0}, s10")
                a(f"v_perm_b32 v{r1}, v{r1}, v{r0}, s11")
        for q in range(4):
            for d in range(4):
                r0, r1 = WO + 8*q + d, WO + 8*q + 4 + d
                a(f"v_perm_b32 v{LOO+4*q+d}, v{r1}, v{r0}, s10")
                a(f"v_perm_b32 v{r1}, v{r1}, v{r0}, s11")

    a("s_cmp_eq_u32 s3, 3")
    a("s_cbranch_scc1 L_h1_gather")
    a(f"v_lshlrev_b32 v2, 3, v0")
    a("s_cmp_eq_u32 s3, 2")
    a("s_cbranch_scc1 L_h1_pubh")
    a("s_lshl_b32 s10, s3, 9")
    a(f"v_add_u32 v2, s10, v2")
    for w in range(4):
        a(f"ds_read_b64 v[{G+4+2*w}:{G+5+2*w}], v2 offset:{L_QP + w*1024}")
    a("s_lshl_b32 s11, s3, 10")
    a("s_branch L_h1_pub")
    a.label("L_h1_pubh")
    for w in range(4):
        a(f"ds_read_b64 v[{G+4+2*w}:{G+5+2*w}], v2 offset:{L_HP + w*512}")
    a("s_movk_i32 s11, 2048")
    a.label("L_h1_pub")
    a("s_mul_i32 s10, s6, 3072")
    a("s_add_u32 s10, s10, s11")
    if WS_H1:
        a(f"s_add_u32 s10, s10, {WS_H1}")
    a(f"v_lshl_add_u32 v3, v0, 4, s10")
    set_tag(G)
    a("s_waitcnt lgkmcnt(0)")
    a(f"v_add_f32 v{G}, v{G+4}, v{G+6}")
    a(f"v_add_f32 v{G+1}, v{G+5}, v{G+7}")
    a(f"v_add_f32 v{G+8}, v{G+8}, v{G+10}")
    a(f"v_add_f32 v{G+9}, v{G+9}, v{G+11}")
    a(f"v_add_f32 v{G}, v{G}, v{G+8}")
    a(f"v_add_f32 v{G+1}, v{G+1}, v{G+9}")
    a(f"buffer_store_dwordx4 v[{G}:{G+3}], v3, s[56:59], 0 offen sc1")
    a("s_cmp_eq_u32 s3, 2")
    a("s_cbranch_scc1 L_h1_gather")
    a("s_waitcnt vmcnt(1)")
    preperm()
    stamp(2)
    a("s_branch L_b3")

    a.label("L_h1_gather")
    a("s_lshl_b32 s10, s7, 10")
    a("s_cmp_eq_u32 s3, 2")
    a("s_cselect_b32 s10, 2048, s10")
    a("s_mul_i32 s11, s4, 24576")
    a("s_add_u32 s10, s10, s11")
    if WS_H1:
        a(f"s_add_u32 s10, s10, {WS_H1}")
    a(f"v_lshl_add_u32 v3, v0, 4, s10")
    for jj in range(1, 8):
        a(f"s_mov_b32 s{88+jj}, {jj*3072}")
    a(f"s_mov_b32 s12, {opts.maxpoll}")
    a("s_mov_b32 s9, 1")
    a.label("L_poll1")
    for jj in range(8):
        so = "0" if jj == 0 else f"s{88+jj}"
        a(f"buffer_load_dwordx4 v[{G+4*jj}:{G+4*jj+3}], v3, s[56:59], {so} offen sc1")
    a("s_cmp_eq_u32 s9, 0")
    a("s_cbranch_scc1 L_poll1_w")
    a("s_mov_b32 s9, 0")
    a("s_waitcnt vmcnt(8)")
    preperm()
    a.label("L_poll1_w")
    a("s_waitcnt vmcnt(0)")
    check_tags([G+4*jj for jj in range(8)], "s12", "L_poll1", "L_poll1_done")
    a.label("L_poll1_done")
    stamp(2)
    for e in range(2):
        a(f"v_add_f32 v{G+e}, v{G+e}, v{G+4+e}")
        a(f"v_add_f32 v{G+8+e}, v{G+8+e}, v{G+12+e}")
        a(f"v_add_f32 v{G+16+e}, v{G+16+e}, v{G+20+e}")
        a(f"v_add_f32 v{G+24+e}, v{G+24+e}, v{G+28+e}")
    for e in range(2):
        a(f"v_add_f32 v{G+e}, v{G+e}, v{G+8+e}")
        a(f"v_add_f32 v{G+16+e}, v{G+16+e}, v{G+24+e}")
    for e in range(2):
        a(f"v_add_f32 v{G+e}, v{G+e}, v{G+16+e}")
    a(f"v_lshlrev_b32 v2, 2, v0")
    a("s_cmp_eq_u32 s3, 2")
    a("s_cbranch_scc0 L_qw")
    a(f"v_max_f32 v{G}, 0, v{G}")
    a(f"v_max_f32 v{G+1}, 0, v{G+1}")
    a(f"v_add_u32 v2, {L_H - L_Q}, v2")
    a.label("L_qw")
    a(f"v_cvt_pk_bf16_f32 v{G}, v{G}, v{G+1}")
    a(f"ds_write_b32 v2, v{G} offset:{L_Q}")
    a("s_cmp_eq_u32 s3, 2")
    a("s_cselect_b32 s10, 8, 4")
    a("v_mov_b32 v2, s10")
    a("v_mov_b32 v3, 1")
    a(f"ds_write_b32 v2, v3 offset:{L_SYNC}")
    a.label("L_b3")
    a("v_mov_b32 v2, 0")
    lds_spin("L_hspin", L_SYNC+8, 1)
    stamp(3)
    AY = ACC
    a("s_lshl_b32 s10, s3, 5")
    a(f"v_lshl_add_u32 v2, v10, 3, s10")
    a(f"ds_read_b64 v[{TMP}:{TMP+1}], v2 offset:{L_H}")
    a(f"ds_read_b64 v[{TMP+2}:{TMP+3}], v2 offset:{L_H+128}")
    a("s_waitcnt lgkmcnt(0)")
    for q in range(2):
        for b in range(2):
            for d in range(4):
                for hl in range(2):
                    acc = AY + 8*b + 2*d + hl
                    w = (LO2 + 4*q + d) if hl == 0 else (W2 + 8*q + 4 + d)
                    s2 = "0" if q == 0 else f"v{acc}"
                    a(f"v_dot2_f32_bf16 v{acc}, v{w}, v{TMP+2*b+q}, {s2}")
    reduce16(AY)
    a("s_nop 0")
    a("v_cmp_gt_u32 vcc, 10, v11")
    a("s_and_saveexec_b64 s[10:11], vcc")
    a(f"ds_write_b128 v{VY}, v[{AY}:{AY+3}] offset:{L_Y2P}")
    a("s_mov_b64 exec, s[10:11]")
    a("s_waitcnt lgkmcnt(0)")
    a("s_barrier")
    stamp(4)

    def publish_y(lds_base, ws_base):
        a(f"v_lshlrev_b32 v2, 3, v0")
        for w in range(4):
            a(f"ds_read_b64 v[{TMP+8+2*w}:{TMP+9+2*w}], v2 offset:{lds_base + w*640}")
        for w in range(4):
            a(f"ds_read_b64 v[{TMP+16+2*w}:{TMP+17+2*w}], v2 offset:{lds_base + w*640 + 512}")
        a("s_mul_i32 s10, s5, 40960")
        a("s_lshl_b32 s11, s4, 6")
        a("s_add_u32 s10, s10, s11")
        a(f"s_add_u32 s10, s10, {ws_base}")
        a("v_lshrrev_b32 v3, 2, v0")
        a("v_lshlrev_b32 v3, 11, v3")
        a("v_and_b32 v2, 3, v0")
        a("v_lshl_add_u32 v3, v2, 4, v3")
        a("v_add_u32 v3, s10, v3")
        a("s_mov_b32 s9, 32768")
        set_tag(TMP)
        set_tag(TMP+4)
        a("s_waitcnt lgkmcnt(4)" if not stamps else "s_waitcnt lgkmcnt(0)")
        for e in range(2):
            a(f"v_add_f32 v{TMP+8+e}, v{TMP+8+e}, v{TMP+10+e}")
            a(f"v_add_f32 v{TMP+12+e}, v{TMP+12+e}, v{TMP+14+e}")
            a(f"v_add_f32 v{TMP+e}, v{TMP+8+e}, v{TMP+12+e}")
        a(f"buffer_store_dwordx4 v[{TMP}:{TMP+3}], v3, s[56:59], 0 offen sc1")
        a("s_waitcnt lgkmcnt(0)")
        for e in range(2):
            a(f"v_add_f32 v{TMP+16+e}, v{TMP+16+e}, v{TMP+18+e}")
            a(f"v_add_f32 v{TMP+20+e}, v{TMP+20+e}, v{TMP+22+e}")
            a(f"v_add_f32 v{TMP+4+e}, v{TMP+16+e}, v{TMP+20+e}")
        a("s_mov_b64 exec, 0xffff")
        a(f"buffer_store_dwordx4 v[{TMP+4}:{TMP+7}], v3, s[56:59], s9 offen sc1")
        a("s_mov_b64 exec, -1")

    a("s_cmp_eq_u32 s3, 0")
    a("s_cbranch_scc1 L_h2_pub")
    a("s_cmp_eq_u32 s3, 3")
    a("s_cbranch_scc0 L_h2_gather")
    publish_y(L_Y2P, WS_H3B)
    stamp(5)
    a("s_branch L_b5")
    a.label("L_h2_pub")
    a("v_mov_b32 v2, 0")
    a(f"ds_read_b128 v[{TMP}:{TMP+3}], v2 offset:{L_ML}")
    a(f"ds_read_b128 v[{TMP+4}:{TMP+7}], v2 offset:{L_ML+16}")
    a(f"ds_read_b128 v[{TMP+8}:{TMP+11}], v2 offset:{L_ML+32}")
    a(f"ds_read_b128 v[{TMP+12}:{TMP+15}], v2 offset:{L_ML+48}")
    a(f"v_lshlrev_b32 v3, 3, v0")
    OPR = ACC
    for w in range(8):
        a(f"ds_read_b64 v[{OPR+2*w}:{OPR+2*w+1}], v3 offset:{L_OP + w*512}")
    a("s_lshl_b32 s10, s6, 11")
    a(f"s_add_u32 s10, s10, {WS_H2}")
    a(f"v_lshl_add_u32 v3, v0, 4, s10")
    a(f"s_mov_b32 s14, 0x{f32bits(LOG2E):08x}")
    GM = TMP + 16
    GO = TMP + 20
    set_tag(GM)
    set_tag(GO)
    a("s_waitcnt lgkmcnt(8)" if not stamps else "s_waitcnt lgkmcnt(0)")
    M = GM
    a(f"v_max3_f32 v{M}, v{TMP}, v{TMP+1}, v{TMP+2}")
    a(f"v_max3_f32 v{M}, v{M}, v{TMP+3}, v{TMP+4}")
    a(f"v_max3_f32 v{M}, v{M}, v{TMP+5}, v{TMP+6}")
    a(f"v_max_f32 v{M}, v{M}, v{TMP+7}")
    for w in range(8):
        a(f"v_sub_f32 v{TMP+w}, v{TMP+w}, v{M}")
    for w in range(8):
        a(f"v_mul_f32 v{TMP+w}, s14, v{TMP+w}")
    for w in range(8):
        a(f"v_exp_f32 v{TMP+w}, v{TMP+w}")
    a("s_nop 0")
    Ls = GM + 1
    a(f"v_mul_f32 v{Ls}, v{TMP}, v{TMP+8}")
    for w in range(1, 8):
        a(f"v_fma_f32 v{Ls}, v{TMP+w}, v{TMP+8+w}, v{Ls}")
    a("s_waitcnt lgkmcnt(0)")
    for e in range(2):
        a(f"v_mul_f32 v{GO+e}, v{TMP}, v{OPR+e}")
    for w in range(1, 8):
        for e in range(2):
            a(f"v_fma_f32 v{GO+e}, v{TMP+w}, v{OPR+2*w+e}, v{GO+e}")
    a(f"buffer_store_dwordx4 v[{GO}:{GO+3}], v3, s[56:59], 0 offen sc1")
    a("s_mov_b64 exec, 0xff")
    a(f"buffer_store_dwordx4 v[{GM}:{GM+3}], v3, s[56:59], 0 offen offset:1024 sc1")
    a("s_mov_b64 exec, -1")
    stamp(5)
    a("s_branch L_b5")
    a.label("L_h2_gather")
    a("s_sub_u32 s9, s3, 1")
    a("s_lshl_b32 s10, s9, 13")
    a("s_lshl_b32 s11, s4, 14")
    a("s_add_u32 s10, s10, s11")
    a(f"s_add_u32 s10, s10, {WS_H2}")
    a(f"v_lshl_add_u32 v3, v0, 4, s10")
    a(f"v_mov_b32 v2, s10")
    a("s_movk_i32 s11, 4096")
    a(f"s_mov_b32 s12, {opts.maxpoll}")
    a.label("L_poll2")
    for s in range(4):
        so = "0" if s < 2 else "s11"
        a(f"buffer_load_dwordx4 v[{G+4*s}:{G+4*s+3}], v3, s[56:59], {so} offen offset:{(s&1)*2048} sc1")
    for s in range(4):
        so = "0" if s < 2 else "s11"
        a(f"buffer_load_dwordx4 v[{G+16+4*s}:{G+19+4*s}], v2, s[56:59], {so} offen offset:{(s&1)*2048+1024} sc1")
    a("s_waitcnt vmcnt(0)")
    check_tags([G+4*s for s in range(8)], "s12", "L_poll2", "L_poll2_done")
    a.label("L_poll2_done")
    stamp(5)
    if stamps and opts.cnt:
        a(f"s_sub_u32 s{ST0+2}, {opts.maxpoll}, s12")
        a(f"s_mov_b32 s{ST0+3}, 0x7fffffff")
    M = 4
    ms = [G+16+4*s for s in range(4)]
    a(f"v_max3_f32 v{M}, v{ms[0]}, v{ms[1]}, v{ms[2]}")
    a(f"v_max_f32 v{M}, v{M}, v{ms[3]}")
    a(f"s_mov_b32 s14, 0x{f32bits(LOG2E):08x}")
    for s in range(4):
        a(f"v_sub_f32 v{ms[s]}, v{ms[s]}, v{M}")
    for s in range(4):
        a(f"v_mul_f32 v{ms[s]}, s14, v{ms[s]}")
    for s in range(4):
        a(f"v_exp_f32 v{ms[s]}, v{ms[s]}")
    a("s_nop 0")
    Ls, O0, O1 = 5, 6, 7
    a(f"v_mul_f32 v{Ls}, v{ms[0]}, v{ms[0]+1}")
    a(f"v_mul_f32 v{O0}, v{ms[0]}, v{G}")
    a(f"v_mul_f32 v{O1}, v{ms[0]}, v{G+1}")
    for s in range(1, 4):
        a(f"v_fma_f32 v{Ls}, v{ms[s]}, v{ms[s]+1}, v{Ls}")
        a(f"v_fma_f32 v{O0}, v{ms[s]}, v{G+4*s}, v{O0}")
        a(f"v_fma_f32 v{O1}, v{ms[s]}, v{G+4*s+1}, v{O1}")
    a(f"v_rcp_f32 v{Ls}, v{Ls}")
    a(f"v_lshlrev_b32 v2, 2, v0")
    a("s_lshl_b32 s10, s9, 8")
    a(f"v_add_u32 v2, s10, v2")
    a(f"v_mul_f32 v{O0}, v{O0}, v{Ls}")
    a(f"v_mul_f32 v{O1}, v{O1}, v{Ls}")
    a(f"v_cvt_pk_bf16_f32 v{O0}, v{O0}, v{O1}")
    a(f"ds_write_b32 v2, v{O0} offset:{L_OO}")
    a.label("L_b5")
    a("s_waitcnt lgkmcnt(0)")
    a("s_barrier")
    a("s_lshl_b32 s10, s3, 6")
    a(f"v_lshl_add_u32 v2, v10, 4, s10")
    a(f"ds_read_b128 v[{TMP}:{TMP+3}], v2 offset:{L_OO}")
    a(f"ds_read_b128 v[{TMP+4}:{TMP+7}], v2 offset:{L_OO+256}")
    a("s_waitcnt lgkmcnt(0)")
    for q in range(4):
        for b in range(2):
            for d in range(4):
                for hl in range(2):
                    acc = AY + 8*b + 2*d + hl
                    w = (LOO + 4*q + d) if hl == 0 else (WO + 8*q + 4 + d)
                    s2 = "0" if q == 0 else f"v{acc}"
                    a(f"v_dot2_f32_bf16 v{acc}, v{w}, v{TMP+4*b+q}, {s2}")
    reduce16(AY)
    a("s_nop 0")
    a("v_cmp_gt_u32 vcc, 10, v11")
    a("s_and_saveexec_b64 s[10:11], vcc")
    a(f"ds_write_b128 v{VY}, v[{AY}:{AY+3}] offset:{L_Y1P}")
    a("s_mov_b64 exec, s[10:11]")
    a("s_waitcnt lgkmcnt(0)")
    a("s_barrier")
    stamp(6)
    a("s_cmp_eq_u32 s3, 0")
    a("s_cbranch_scc0 L_final")
    publish_y(L_Y1P, WS_H3A)
    stamp(7)
    a("s_branch L_fin")
    a.label("L_final")
    a("s_cmp_eq_u32 s3, 3")
    a("s_cbranch_scc0 L_fin")
    a("s_cmp_ge_u32 s4, 20")
    a("s_cbranch_scc1 L_fin")
    a("s_mul_i32 s10, s5, 20")
    a("s_add_u32 s10, s10, s4")
    a("s_lshl_b32 s10, s10, 11")
    a(f"s_add_u32 s10, s10, {WS_H3A}")
    a(f"v_lshl_add_u32 v3, v0, 4, s10")
    a(f"s_mov_b32 s11, {WS_H3B - WS_H3A}")
    a("s_cmp_ge_u32 s4, 10")
    a("s_cselect_b32 s9, 560, 0")
    a("s_lshl_b32 s10, s4, 3")
    a("s_add_u32 s9, s9, s10")
    a("s_mul_i32 s10, s5, 80")
    a("s_add_u32 s9, s9, s10")
    a("v_and_b32 v4, 3, v0")
    a("v_lshlrev_b32 v4, 1, v4")
    a("v_lshrrev_b32 v5, 5, v0")
    a("v_add_u32 v4, v4, v5")
    a("v_add_u32 v4, s9, v4")
    a("v_lshlrev_b32 v4, 1, v4")
    a("buffer_load_ushort v5, v4, s[40:43], 0 offen")
    a(f"s_mov_b32 s12, {opts.maxpoll}")
    a.label("L_poll3")
    a(f"buffer_load_dwordx4 v[{G}:{G+3}], v3, s[56:59], 0 offen sc1")
    a(f"buffer_load_dwordx4 v[{G+4}:{G+7}], v3, s[56:59], 0 offen offset:1024 sc1")
    a(f"buffer_load_dwordx4 v[{G+8}:{G+11}], v3, s[56:59], s11 offen sc1")
    a(f"buffer_load_dwordx4 v[{G+12}:{G+15}], v3, s[56:59], s11 offen offset:1024 sc1")
    a("s_waitcnt vmcnt(0)")
    check_tags([G, G+4, G+8, G+12], "s12", "L_poll3", "L_poll3_done")
    a.label("L_poll3_done")
    if stamps and opts.cnt:
        a(f"s_sub_u32 s{ST0+2}, {opts.maxpoll}, s12")
        a(f"s_mov_b32 s{ST0+3}, 0x7fffffff")
        stamp(2)
    U0, U1, W0_, W1_ = G, G+1, G+8, G+9
    a(f"v_add_f32 v{U0}, v{G}, v{G+4}")
    a(f"v_add_f32 v{U1}, v{G+1}, v{G+5}")
    a(f"v_add_f32 v{W0_}, v{G+8}, v{G+12}")
    a(f"v_add_f32 v{W1_}, v{G+9}, v{G+13}")
    a("s_nop 1")
    for ctrl in ["row_ror:4", "row_ror:8"]:
        for r in (U0, U1, W0_, W1_):
            a(f"v_add_f32_dpp v{r}, v{r}, v{r} {ctrl} row_mask:0xf bank_mask:0xf")
        a("s_nop 0")
    a("s_nop 0")
    a(f"v_permlane32_swap_b32 v{U0}, v{U1}")
    a(f"v_permlane32_swap_b32 v{W0_}, v{W1_}")
    a("s_nop 1")
    a(f"v_add_f32 v{U0}, v{U0}, v{U1}")
    a(f"v_add_f32 v{W0_}, v{W0_}, v{W1_}")
    a("s_nop 0")
    a(f"v_mov_b32 v{U1}, v{U0}")
    a(f"v_mov_b32 v{W1_}, v{W0_}")
    a("s_nop 1")
    a(f"v_permlane16_swap_b32 v{U0}, v{U1}")
    a(f"v_permlane16_swap_b32 v{W0_}, v{W1_}")
    a("s_nop 1")
    Y1, Y2 = U0, W0_
    a(f"v_add_f32 v{Y1}, v{U0}, v{U1}")
    a(f"v_add_f32 v{Y2}, v{W0_}, v{W1_}")
    a(f"v_cvt_pk_bf16_f32 v{Y2}, v{Y2}, v{Y1}")
    a("s_mov_b32 s15, 0xffff0000")
    a(f"v_and_b32 v{Y1}, s15, v{Y2}")
    a(f"v_lshlrev_b32 v{Y2}, 16, v{Y2}")
    a(f"s_mov_b32 s14, 0x{f32bits(-LOG2E):08x}")
    a(f"v_mul_f32 v7, s14, v{Y2}")
    a(f"v_exp_f32 v7, v7")
    a("s_nop 0")
    a(f"v_add_f32 v7, 1.0, v7")
    a(f"v_rcp_f32 v7, v7")
    a("s_nop 0")
    a(f"v_mul_f32 v{Y2}, v{Y2}, v7")
    a(f"v_cvt_pk_bf16_f32 v{Y2}, v{Y2}, 0")
    a(f"v_lshlrev_b32 v{Y2}, 16, v{Y2}")
    a(f"v_mul_f32 v{Y1}, v{Y1}, v{Y2}")
    a(f"v_cvt_pk_bf16_f32 v{Y1}, v{Y1}, 0")
    a(f"v_lshlrev_b32 v{Y1}, 16, v{Y1}")
    a(f"v_lshlrev_b32 v5, 16, v5")
    a(f"v_add_f32 v{Y1}, v5, v{Y1}")
    a(f"v_cvt_pk_bf16_f32 v{Y1}, v{Y1}, 0")
    a("s_mov_b32 s10, 15")
    a("s_mov_b32 s11, 15")
    a("s_mov_b64 exec, s[10:11]")
    a(f"buffer_store_short v{Y1}, v4, s[64:67], 0 offen")
    a("s_cmp_lg_u32 s6, 0")
    a("s_cbranch_scc1 L_noep")
    a("s_mov_b64 exec, 1")
    a(f"v_mov_b32 v2, {WS_EPOCH}")
    a("v_mov_b32 v3, s68")
    a("buffer_store_dword v3, v2, s[56:59], 0 offen sc1")
    a.label("L_noep")
    a("s_mov_b64 exec, -1")
    stamp(7)
    a.label("L_fin")
    if stamps:
        a("s_mul_i32 s90, s6, 12")
        a("s_add_u32 s90, s90, s3")
        a("s_lshl_b32 s90, s90, 6")
        a(f"s_add_u32 s90, s90, {WS_STAMP}")
        a("v_mov_b32 v2, s90")
        a("s_waitcnt lgkmcnt(0)")
        for i in range(16):
            a(f"v_mov_b32 v{8+i}, s{ST0+i}")
        a("s_mov_b64 exec, 1")
        for q in range(4):
            a(f"buffer_store_dwordx4 v[{8+4*q}:{11+4*q}], v2, s[56:59], 0 offen offset:{16*q}")
    a.label("L_end")
    a("s_endpgm")

    nv = 168
    out = HEADER
    out += f"; @launch grid=(256,1,1) block=(768,1,1) lds={L_TOTAL}\n"
    out += '.amdgcn_target "amdgcn-amd-amdhsa--gfx950"\n.text\n'
    out += f".globl {KNAME}\n.p2align 8\n.type {KNAME},@function\n{KNAME}:\n"
    out += "\n".join(a.l) + "\n"
    out += f""".section .rodata,"a"
.p2align 6
.amdhsa_kernel {KNAME}
  .amdhsa_next_free_vgpr {nv}
  .amdhsa_next_free_sgpr 96
  .amdhsa_accum_offset {nv}
  .amdhsa_group_segment_fixed_size 0
  .amdhsa_kernarg_size 88
  .amdhsa_user_sgpr_count 2
  .amdhsa_user_sgpr_kernarg_segment_ptr 1
  .amdhsa_system_sgpr_workgroup_id_x 1
.end_amdhsa_kernel
"""
    return out


if __name__ == "__main__":
    p = argparse.ArgumentParser()
    p.add_argument("-o", default="recurrent_scan__sliding_block_cached__dense_activation_relu__decode.s")
    p.add_argument("--kvpol", default="nt")
    p.add_argument("--wpol", default="nt")
    p.add_argument("--stamps", action="store_true")
    p.add_argument("--maxpoll", type=int, default=20000)
    p.add_argument("--cnt", action="store_true")
    p.add_argument("--maxspin", type=int, default=2000000)
    p.add_argument("--dbgst", action="store_true")
    p.add_argument("--rotg", type=int, default=1)
    p.add_argument("--rotw", type=int, default=4)
    o = p.parse_args()
    open(o.o, "w").write(gen(o))
    print("wrote", o.o)
```

```python
import sys, argparse, struct

KNAME = "recurrent_scan__sliding_block_cached__dense_activation_relu__decode_kernel"

HEADER = """; Kernarg layout for this problem (88 bytes, ptrs only, base s[0:1]):
"""

WS_H1 = 0x0
WS_H2 = 0xC0000
WS_H3A = 0x140000
WS_H3B = 0x190000
WS_EPOCH = 0x1F0000
WS_STAMP = 0x200000
WS_SIZE = 0x400000

L_QP = 0
L_HP = 4096
L_Q = 6144
L_H = 6400
L_OP = 6656
L_ML = 10752
L_OO = 10880
L_Y2P = 11392
L_Y1P = 13952
L_SYNC = 16896
L_TOTAL = 17408

LOG2E = 1.4426950408889634
OOB = 0x40000000


def f32bits(x):
    return struct.unpack('<I', struct.pack('<f', x))[0]


class A:
    def __init__(self):
        self.l = []

    def __call__(self, s):
        self.l.append("    " + s)

    def label(self, s):
        self.l.append(s + ":")

    def c(self, s):
        self.l.append("    ; " + s)


def gen(opts):
    a = A()
    kvpol = opts.kvpol
    wpol = opts.wpol
    stamps = opts.stamps
    ST0 = 72

    def stamp(idx, dbg=False):
        if opts.dbgst and idx >= 5 and not dbg:
            return
        if stamps:
            a(f"s_memrealtime s[{ST0+2*idx}:{ST0+2*idx+1}]")

    a("s_cmp_ge_u32 s2, 256")
    a("s_cbranch_scc1 L_end")
    a("s_load_dwordx16 s[16:31], s[0:1], 0")
    a("s_load_dwordx4 s[32:35], s[0:1], 64")
    a("s_load_dwordx2 s[36:37], s[0:1], 80")
    if stamps:
        for i in range(1, 8):
            a(f"s_mov_b64 s[{ST0+2*i}:{ST0+2*i+1}], 0")
        stamp(0)
    a("v_lshrrev_b32 v1, 6, v0")
    a("v_and_b32 v0, 63, v0")
    a("s_lshr_b32 s4, s2, 3")
    a("s_and_b32 s5, s2, 7")
    a("v_readfirstlane_b32 s3, v1")
    a("s_mov_b32 s6, s2")
    a("s_lshr_b32 s7, s5, 2")
    a("s_and_b32 s8, s5, 3")
    a(f"s_mov_b32 s58, {WS_SIZE}")
    a("s_mov_b32 s59, 0x00020000")
    a("s_cmp_lg_u32 s3, 0")
    a("s_cbranch_scc1 L_noclr")
    a("v_mov_b32 v4, 0")
    a("v_mov_b32 v5, 0")
    a("v_mov_b32 v6, 0")
    a("v_mov_b32 v7, 0")
    a(f"ds_write_b128 v4, v[4:7] offset:{L_SYNC}")
    a("s_waitcnt lgkmcnt(0)")
    a.label("L_noclr")
    a("s_barrier")
    a("s_cmp_lt_u32 s3, 4")
    a("s_cbranch_scc1 L_aux")

    VOFF, VQ, VT, VS, VACC, VK, VV = 1, 2, 6, 8, 24, 32, 96
    a.c("---- streaming wave ----")
    a("s_sub_u32 s3, s3, 4")
    a("s_lshl_b32 s9, s7, 5")
    a("s_add_u32 s9, s9, s4")
    a("s_lshl_b32 s9, s9, 21")
    a("s_lshl_b32 s10, s8, 17")
    a("s_add_u32 s9, s9, s10")
    a("s_add_u32 s9, s9, 1572864")
    a("s_lshl_b32 s10, s3, 14")
    a(f"v_lshl_add_u32 v{VOFF}, v0, 4, s10")
    a(f"s_mul_i32 s11, s4, {opts.rotg}")
    a(f"s_mul_i32 s12, s3, {opts.rotw}")
    a("s_add_u32 s11, s11, s12")
    a("s_lshl_b32 s11, s11, 10")
    a("s_mov_b32 s42, 131072")
    a("s_mov_b32 s43, 0x00020000")
    a("s_mov_b32 s46, 131072")
    a("s_mov_b32 s47, 0x00020000")
    a("s_waitcnt lgkmcnt(0)")
    a("s_add_u32 s40, s18, s9")
    a("s_addc_u32 s41, s19, 0")
    a("s_add_u32 s44, s20, s9")
    a("s_addc_u32 s45, s21, 0")
    a("s_mov_b32 s56, s36")
    a("s_mov_b32 s57, s37")
    for i in range(16):
        a(f"s_add_u32 s{16+i}, s11, {i*1024}")
        a(f"s_and_b32 s{16+i}, s{16+i}, 0x3c00")
        a(f"buffer_load_dwordx4 v[{VK+4*i}:{VK+4*i+3}], v{VOFF}, s[40:43], s{16+i} offen {kvpol}")
    for i in range(16):
        a(f"buffer_load_dwordx4 v[{VV+4*i}:{VV+4*i+3}], v{VOFF}, s[44:47], s{16+i} offen {kvpol}")
    a(f"v_mov_b32 v{VT+1}, 0")
    a(f"s_mov_b32 s12, {opts.maxspin}")
    a.label("L_qspin")
    a(f"ds_read_b32 v{VT}, v{VT+1} offset:{L_SYNC+4}")
    a("s_waitcnt lgkmcnt(0)")
    a(f"v_readfirstlane_b32 s10, v{VT}")
    a("s_cmp_lg_u32 s10, 0")
    a("s_cbranch_scc1 L_qspin_done")
    a("s_sleep 2")
    a("s_sub_u32 s12, s12, 1")
    a("s_cmp_lg_u32 s12, 0")
    a("s_cbranch_scc1 L_qspin")
    a.label("L_qspin_done")
    a(f"v_and_b32 v{VT}, 15, v0")
    a(f"v_lshlrev_b32 v{VT}, 4, v{VT}")
    a(f"ds_read_b128 v[{VQ}:{VQ+3}], v{VT} offset:{L_Q}")
    stamp(1)
    a("s_waitcnt lgkmcnt(0)")
    for grp in range(4):
        a(f"s_waitcnt vmcnt({16 + 12 - 4*grp})")
        for d in range(4):
            for i in range(4*grp, 4*grp+4):
                src2 = "0" if d == 0 else f"v{VS+i}"
                a(f"v_dot2_f32_bf16 v{VS+i}, v{VK+4*i+d}, v{VQ+d}, {src2}")
    a("s_nop 2")
    for ctrl in ["quad_perm:[1,0,3,2]", "quad_perm:[2,3,0,1]", "row_half_mirror", "row_mirror"]:
        for i in range(16):
            a(f"v_add_f32_dpp v{VS+i}, v{VS+i}, v{VS+i} {ctrl} row_mask:0xf bank_mask:0xf")
    a(f"s_mov_b32 s14, 0x{f32bits(128 ** -0.5):08x}")
    a("s_mov_b32 s15, 0xffff0000")
    for rnd in range(2):
        for p in range(8):
            a(f"v_cvt_pk_bf16_f32 v{VK+p}, v{VS+2*p}, v{VS+2*p+1}")
        for p in range(8):
            a(f"v_lshlrev_b32 v{VS+2*p}, 16, v{VK+p}")
            a(f"v_and_b32 v{VS+2*p+1}, s15, v{VK+p}")
        if rnd == 0:
            for i in range(16):
                a(f"v_mul_f32 v{VS+i}, s14, v{VS+i}")
    m = VT
    a(f"v_max3_f32 v{m}, v{VS}, v{VS+1}, v{VS+2}")
    for i in range(3, 15, 2):
        a(f"v_max3_f32 v{m}, v{m}, v{VS+i}, v{VS+i+1}")
    a(f"v_max_f32 v{m}, v{m}, v{VS+15}")
    a("s_nop 0")
    for r in range(4):
        a(f"v_readlane_b32 s{60+r}, v{m}, {16*r}")
    a("s_nop 1")
    a(f"v_mov_b32 v{m}, s60")
    a(f"v_max_f32 v{m}, s61, v{m}")
    a(f"v_max_f32 v{m}, s62, v{m}")
    a(f"v_max_f32 v{m}, s63, v{m}")
    a(f"s_mov_b32 s64, 0x{f32bits(LOG2E):08x}")
    for i in range(16):
        a(f"v_sub_f32 v{VS+i}, v{VS+i}, v{m}")
    for i in range(16):
        a(f"v_mul_f32 v{VS+i}, s64, v{VS+i}")
    for i in range(16):
        a(f"v_exp_f32 v{VS+i}, v{VS+i}")
    a("s_nop 0")
    PLO, PHI = VK, VK + 16
    for i in range(16):
        a(f"v_cvt_pk_bf16_f32 v{PLO+i}, v{VS+i}, 0")
    for i in range(16):
        a(f"v_lshlrev_b32 v{PHI+i}, 16, v{PLO+i}")
    lsum = VT + 1
    a(f"v_add_f32 v{lsum}, v{VS}, v{VS+1}")
    for i in range(2, 16):
        a(f"v_add_f32 v{lsum}, v{lsum}, v{VS+i}")
    a("s_nop 0")
    for r in range(4):
        a(f"v_readlane_b32 s{60+r}, v{lsum}, {16*r}")
    a("s_nop 1")
    a(f"v_mov_b32 v{lsum}, s60")
    a(f"v_add_f32 v{lsum}, s61, v{lsum}")
    a(f"v_add_f32 v{lsum}, s62, v{lsum}")
    a(f"v_add_f32 v{lsum}, s63, v{lsum}")
    a(f"s_lshl_b32 s10, s3, 2")
    a(f"v_mov_b32 v{VS}, s10")
    a(f"ds_write_b32 v{VS}, v{m} offset:{L_ML}")
    a(f"ds_write_b32 v{VS}, v{lsum} offset:{L_ML+32}")
    a(f"v_and_b32 v{VS}, 15, v0")
    a(f"v_lshlrev_b32 v{VS}, 5, v{VS}")
    a(f"v_lshrrev_b32 v{VS+1}, 4, v0")
    a(f"v_lshl_add_u32 v{VS}, v{VS+1}, 3, v{VS}")
    a(f"s_lshl_b32 s10, s3, 9")
    a(f"v_add_u32 v{VS}, s10, v{VS}")
    for i in range(16):
        a(f"s_waitcnt vmcnt({15-i})")
        for d in range(4):
            s2a = "0" if i == 0 else f"v{VACC+2*d}"
            s2b = "0" if i == 0 else f"v{VACC+2*d+1}"
            a(f"v_dot2_f32_bf16 v{VACC+2*d}, v{VV+4*i+d}, v{PLO+i}, {s2a}")
            a(f"v_dot2_f32_bf16 v{VACC+2*d+1}, v{VV+4*i+d}, v{PHI+i}, {s2b}")
    a("s_nop 2")
    for e in range(4):
        a(f"v_permlane32_swap_b32 v{VACC+e}, v{VACC+e+4}")
    a("s_nop 1")
    for e in range(4):
        a(f"v_add_f32 v{VACC+e}, v{VACC+e}, v{VACC+e+4}")
    a("s_nop 1")
    a(f"v_permlane16_swap_b32 v{VACC}, v{VACC+2}")
    a(f"v_permlane16_swap_b32 v{VACC+1}, v{VACC+3}")
    a("s_nop 1")
    a(f"v_add_f32 v{VACC}, v{VACC}, v{VACC+2}")
    a(f"v_add_f32 v{VACC+1}, v{VACC+1}, v{VACC+3}")
    a(f"ds_write_b64 v{VS}, v[{VACC}:{VACC+1}] offset:{L_OP}")
    stamp(2)
    a("s_waitcnt lgkmcnt(0)")
    a("s_barrier")
    a("s_add_u32 s3, s3, 4")
    a("s_branch L_fin")

    a.label("L_aux")
    a.c("---- aux wave: a = s3 (0..3) ----")
    a("s_setprio 3")
    T = 1
    XR = 20
    VE = 30
    WQ = 32
    W1 = 52
    TMP = 64
    ACC = 96
    W2 = 120
    WO = 136
    LO2 = 32
    LOO = 40
    a(f"s_lshl_b32 s10, s3, 6")
    a(f"v_add_u32 v{T}, s10, v0")
    a(f"v_lshlrev_b32 v2, 4, v0")
    a(f"v_lshlrev_b32 v3, 2, v0")
    a(f"v_mov_b32 v{VE}, {WS_EPOCH}")
    a("s_mul_i32 s9, s5, 80")
    a("s_mul_i32 s10, s3, 20")
    a("s_add_u32 s9, s9, s10")
    a(f"v_lshrrev_b32 v{TMP+8}, 4, v0")
    a(f"v_and_b32 v{TMP+9}, 15, v0")
    a(f"v_add_u32 v{TMP+10}, s9, v{TMP+8}")
    a(f"v_lshlrev_b32 v{TMP+11}, 1, v{TMP+10}")
    a(f"v_lshlrev_b32 v{TMP+1}, 13, v{TMP+10}")
    a(f"v_lshl_add_u32 v{TMP+1}, v{TMP+9}, 4, v{TMP+1}")
    a("s_lshl_b32 s10, s4, 8")
    a(f"v_add_u32 v{TMP+1}, s10, v{TMP+1}")
    a("s_cmp_ge_u32 s4, 27")
    a(f"s_cselect_b32 s13, {OOB}, 0")
    a("s_movk_i32 s10, 3456")
    a(f"v_mul_lo_u32 v{TMP+2}, v{TMP+10}, s10")
    a(f"v_lshl_add_u32 v{TMP+2}, v{TMP+9}, 3, v{TMP+2}")
    a("s_lshl_b32 s10, s4, 7")
    a("s_add_u32 s10, s10, s13")
    a(f"v_add_u32 v{TMP+2}, s10, v{TMP+2}")
    a(f"v_mov_b32 v{TMP+5}, 0")
    a(f"v_mov_b32 v{TMP+6}, {OOB}")
    a(f"v_cmp_lt_u32 vcc, 9, v{TMP+9}")
    a(f"v_cndmask_b32 v{TMP+5}, v{TMP+5}, v{TMP+6}, vcc")
    a(f"v_lshl_add_u32 v{TMP+5}, v{TMP+9}, 4, v{TMP+5}")
    a("s_mul_i32 s10, s5, 160")
    a(f"v_add_u32 v{TMP+5}, s10, v{TMP+5}")
    a("s_movk_i32 s14, 1280")
    a("s_lshl_b32 s10, s4, 6")
    a("s_lshl_b32 s11, s3, 4")
    a("s_add_u32 s10, s10, s11")
    a(f"v_lshl_add_u32 v{TMP+3}, v{TMP+8}, 2, s10")
    a(f"v_mul_lo_u32 v{TMP+3}, v{TMP+3}, s14")
    a(f"v_add_u32 v{TMP+3}, v{TMP+5}, v{TMP+3}")
    a(f"v_add_u32 v{TMP+3}, s13, v{TMP+3}")
    a("s_lshl_b32 s10, s4, 7")
    a("s_lshl_b32 s11, s3, 5")
    a("s_add_u32 s10, s10, s11")
    a(f"v_lshl_add_u32 v{TMP+4}, v{TMP+8}, 3, s10")
    a(f"v_mul_lo_u32 v{TMP+4}, v{TMP+4}, s14")
    a(f"v_add_u32 v{TMP+4}, v{TMP+5}, v{TMP+4}")
    for i in range(1, 5):
        a(f"s_mov_b32 s{88+i}, {i*32768}")
        a(f"s_mov_b32 s{92+i}, {i*13824}") if i < 4 else None
    a(f"s_mov_b32 s88, {4*13824}")
    a("s_movk_i32 s12, 5120")
    a("s_waitcnt lgkmcnt(0)")

    def srd(r, lo, size):
        a(f"s_mov_b32 s{r}, s{lo}")
        a(f"s_mov_b32 s{r+1}, s{lo+1}")
        a(f"s_mov_b32 s{r+2}, {size}")
        a(f"s_mov_b32 s{r+3}, 0x00020000")
    a("s_mov_b32 s56, s36")
    a("s_mov_b32 s57, s37")
    srd(40, 16, 2560)
    a(f"buffer_load_dword v{VE}, v{VE}, s[56:59], 0 offen sc1")
    a(f"buffer_load_dwordx4 v[4:7], v2, s[40:43], 0 offen")
    a(f"buffer_load_dword v8, v3, s[40:43], 0 offen offset:1024")
    a(f"buffer_load_dwordx4 v[12:15], v2, s[40:43], 0 offen offset:1280")
    a(f"buffer_load_dword v16, v3, s[40:43], 0 offen offset:2304")
    srd(44, 22, 5242880)
    for i in range(5):
        so = "0" if i == 0 else f"s{88+i}"
        a(f"buffer_load_dwordx4 v[{WQ+4*i}:{WQ+4*i+3}], v{TMP+1}, s[44:47], {so} offen {wpol}")
    srd(48, 28, 2211840)
    for i in range(5):
        so = "0" if i == 0 else (f"s{92+i}" if i < 4 else "s88")
        a(f"buffer_load_dwordx2 v[{W1+2*i}:{W1+2*i+1}], v{TMP+2}, s[48:51], {so} offen {wpol}")
    for i in range(5):
        for b in range(2):
            a(f"buffer_load_ushort v{XR+2*i+b}, v{TMP+11}, s[40:43], 0 offen offset:{b*1280 + i*8}")
    srd(52, 30, 2211840)
    for i in range(4):
        a(f"buffer_load_dwordx4 v[{W2+4*i}:{W2+4*i+3}], v{TMP+3}, s[52:55], 0 offen offset:{i*1280} {wpol}")
    srd(60, 24, 5242880)
    for i in range(8):
        so = "0" if i < 4 else "s12"
        a(f"buffer_load_dwordx4 v[{WO+4*i}:{WO+4*i+3}], v{TMP+4}, s[60:63], {so} offen offset:{(i&3)*1280} {wpol}")
    srd(64, 32, 2560)

    a("s_waitcnt vmcnt(32)")
    if opts.dbgst:
        stamp(5, True)
    a(f"v_readfirstlane_b32 s68, v{VE}")
    a("s_mov_b32 s15, 0xffff0000")
    a("s_add_u32 s68, s68, 1")
    a("s_xor_b32 s69, s68, 0x9e3779b9")
    F = TMP + 12
    srcs = [[4, 5, 6, 7, 8], [12, 13, 14, 15, 16]]
    for b in range(2):
        for d in range(5):
            a(f"v_lshlrev_b32 v{F+10*b+2*d}, 16, v{srcs[b][d]}")
            a(f"v_and_b32 v{F+10*b+2*d+1}, s15, v{srcs[b][d]}")
    S0, S1, Q0, Q1, t0, t1 = 4, 5, 6, 7, 8, 9

    def wave_sum2(r0, r1, sbase):
        a("s_nop 1")
        for ctrl in ["quad_perm:[1,0,3,2]", "quad_perm:[2,3,0,1]", "row_half_mirror", "row_mirror"]:
            a(f"v_add_f32_dpp v{r0}, v{r0}, v{r0} {ctrl} row_mask:0xf bank_mask:0xf")
            a(f"v_add_f32_dpp v{r1}, v{r1}, v{r1} {ctrl} row_mask:0xf bank_mask:0xf")
            a("s_nop 0")
        a("s_nop 0")
        for r in range(4):
            a(f"v_readlane_b32 s{sbase+r}, v{r0}, {16*r}")
            a(f"v_readlane_b32 s{sbase+4+r}, v{r1}, {16*r}")
        a("s_nop 1")
        a(f"v_mov_b32 v{r0}, s{sbase}")
        a(f"v_mov_b32 v{r1}, s{sbase+4}")
        for r in range(1, 4):
            a(f"v_add_f32 v{r0}, s{sbase+r}, v{r0}")
            a(f"v_add_f32 v{r1}, s{sbase+4+r}, v{r1}")

    for b, S in ((0, S0), (1, S1)):
        a(f"v_add_f32 v{S}, v{F+10*b}, v{F+10*b+1}")
        for e in range(2, 10):
            a(f"v_add_f32 v{S}, v{S}, v{F+10*b+e}")
    wave_sum2(S0, S1, 88)
    a(f"s_mov_b32 s14, 0x{f32bits(1.0/640):08x}")
    a(f"v_mul_f32 v{S0}, s14, v{S0}")
    a(f"v_mul_f32 v{S1}, s14, v{S1}")
    for b, S in ((0, S0), (1, S1)):
        for e in range(10):
            a(f"v_sub_f32 v{F+10*b+e}, v{F+10*b+e}, v{S}")
    for b, Q in ((0, Q0), (1, Q1)):
        a(f"v_mul_f32 v{Q}, v{F+10*b}, v{F+10*b}")
        for e in range(1, 10):
            a(f"v_fma_f32 v{Q}, v{F+10*b+e}, v{F+10*b+e}, v{Q}")
    wave_sum2(Q0, Q1, 88)
    a(f"v_mul_f32 v{Q0}, s14, v{Q0}")
    a(f"v_mul_f32 v{Q1}, s14, v{Q1}")
    a(f"v_cvt_pk_bf16_f32 v{t0}, v{S0}, v{S1}")
    a(f"v_cvt_pk_bf16_f32 v{t1}, v{Q0}, v{Q1}")
    a(f"v_lshlrev_b32 v{S0}, 16, v{t0}")
    a(f"v_and_b32 v{S1}, s15, v{t0}")
    a(f"v_lshlrev_b32 v{Q0}, 16, v{t1}")
    a(f"v_and_b32 v{Q1}, s15, v{t1}")
    a(f"s_mov_b32 s14, 0x{f32bits(1e-5):08x}")
    a(f"v_add_f32 v{Q0}, s14, v{Q0}")
    a(f"v_add_f32 v{Q1}, s14, v{Q1}")
    a(f"v_cvt_pk_bf16_f32 v{t1}, v{Q0}, v{Q1}")
    a(f"v_lshlrev_b32 v{Q0}, 16, v{t1}")
    a(f"v_and_b32 v{Q1}, s15, v{t1}")
    a(f"v_sqrt_f32 v{Q0}, v{Q0}")
    a(f"v_sqrt_f32 v{Q1}, v{Q1}")
    a("s_nop 0")
    a(f"v_cvt_pk_bf16_f32 v{t1}, v{Q0}, v{Q1}")
    a(f"v_lshlrev_b32 v{Q0}, 16, v{t1}")
    a(f"v_and_b32 v{Q1}, s15, v{t1}")
    a(f"v_rcp_f32 v{Q0}, v{Q0}")
    a(f"v_rcp_f32 v{Q1}, v{Q1}")
    a("s_nop 0")
    XH = F
    MS = [S0, S1]; RS = [Q0, Q1]
    if opts.dbgst:
        a("s_waitcnt vmcnt(27)")
        stamp(6, True)
        a("s_waitcnt vmcnt(22)")
        stamp(7, True)
    a("s_waitcnt vmcnt(12)")
    def each(fn):
        for i in range(5):
            for b in range(2):
                fn(XR + 2*i + b, b, i)
    each(lambda r, b, i: a(f"v_lshlrev_b32 v{r}, 16, v{r}"))
    each(lambda r, b, i: a(f"v_sub_f32 v{r}, v{r}, v{MS[b]}"))
    each(lambda r, b, i: a(f"v_cvt_pk_bf16_f32 v{r}, v{r}, 0"))
    each(lambda r, b, i: a(f"v_lshlrev_b32 v{r}, 16, v{r}"))
    each(lambda r, b, i: a(f"v_mul_f32 v{r}, v{r}, v{RS[b]}"))
    each(lambda r, b, i: a(f"v_cvt_pk_bf16_f32 v{r}, v{r}, 0"))
    each(lambda r, b, i: a(f"v_lshlrev_b32 v{XH+2*i+b}, 16, v{r}"))
    AQ = ACC; AH = ACC + 16
    for i in range(5):
        for b in range(2):
            for d in range(4):
                for hl in range(2):
                    acc = AQ + 8*b + 2*d + hl
                    xs = (XR if hl == 0 else XH) + 2*i + b
                    s2 = "0" if i == 0 else f"v{acc}"
                    a(f"v_dot2_f32_bf16 v{acc}, v{WQ+4*i+d}, v{xs}, {s2}")
    for i in range(5):
        for b in range(2):
            for d in range(2):
                for hl in range(2):
                    acc = AH + 4*b + 2*d + hl
                    xs = (XR if hl == 0 else XH) + 2*i + b
                    s2 = "0" if i == 0 else f"v{acc}"
                    a(f"v_dot2_f32_bf16 v{acc}, v{W1+2*i+d}, v{xs}, {s2}")

    def reduce16(base):
        a("s_nop 1")
        for k in range(8):
            a(f"v_permlane32_swap_b32 v{base+k}, v{base+k+8}")
        a("s_nop 1")
        for k in range(8):
            a(f"v_add_f32 v{base+k}, v{base+k}, v{base+k+8}")
        a("s_nop 1")
        for k in range(4):
            a(f"v_permlane16_swap_b32 v{base+k}, v{base+k+4}")
        a("s_nop 1")
        for k in range(4):
            a(f"v_add_f32 v{base+k}, v{base+k}, v{base+k+4}")

    reduce16(AQ)
    for k in range(4):
        a(f"v_permlane32_swap_b32 v{AH+k}, v{AH+k+4}")
    a("s_nop 1")
    for k in range(4):
        a(f"v_add_f32 v{AH+k}, v{AH+k}, v{AH+k+4}")
    a("s_nop 1")
    for k in range(2):
        a(f"v_permlane16_swap_b32 v{AH+k}, v{AH+k+2}")
    a("s_nop 1")
    for k in range(2):
        a(f"v_add_f32 v{AH+k}, v{AH+k}, v{AH+k+2}")
    RG, C = TMP+8, TMP+9
    a(f"v_lshrrev_b32 v2, 1, v{RG}")
    a(f"v_and_b32 v3, 1, v{RG}")
    a(f"v_lshlrev_b32 v{TMP}, 9, v2")
    a(f"v_lshl_add_u32 v{TMP}, v{C}, 5, v{TMP}")
    a(f"v_lshl_add_u32 v{TMP}, v3, 4, v{TMP}")
    a("s_lshl_b32 s10, s3, 10")
    a(f"v_add_u32 v{TMP}, s10, v{TMP}")
    a(f"ds_write_b128 v{TMP}, v[{AQ}:{AQ+3}] offset:{L_QP}")
    a(f"v_lshlrev_b32 v{TMP+1}, 8, v2")
    a(f"v_lshl_add_u32 v{TMP+1}, v{C}, 4, v{TMP+1}")
    a(f"v_lshl_add_u32 v{TMP+1}, v3, 3, v{TMP+1}")
    a("s_lshl_b32 s10, s3, 9")
    a(f"v_add_u32 v{TMP+1}, s10, v{TMP+1}")
    a(f"ds_write_b64 v{TMP+1}, v[{AH}:{AH+1}] offset:{L_HP}")
    VY = 31
    a("s_movk_i32 s10, 320")
    a(f"v_mul_u32_u24 v{VY}, s10, v2")
    a(f"v_lshl_add_u32 v{VY}, v{C}, 5, v{VY}")
    a(f"v_lshl_add_u32 v{VY}, v3, 4, v{VY}")
    a("s_mul_i32 s10, s3, 640")
    a(f"v_add_u32 v{VY}, s10, v{VY}")
    a(f"v_mov_b32 v10, v{RG}")
    a(f"v_mov_b32 v11, v{C}")
    a("v_mov_b32 v2, 0")
    a("v_mov_b32 v3, 1")
    a("s_mov_b64 exec, 1")
    a(f"ds_add_u32 v2, v3 offset:{L_SYNC}")
    a("s_mov_b64 exec, -1")

    def lds_spin(lbl, off, val):
        a(f"s_mov_b32 s12, {opts.maxspin}")
        a.label(lbl)
        a(f"ds_read_b32 v3, v2 offset:{off}")
        a("s_waitcnt lgkmcnt(0)")
        a(f"v_readfirstlane_b32 s10, v3")
        a(f"s_cmp_ge_u32 s10, {val}")
        a(f"s_cbranch_scc1 {lbl}_done")
        a("s_sub_u32 s12, s12, 1")
        a("s_cmp_lg_u32 s12, 0")
        a(f"s_cbranch_scc1 {lbl}")
        a.label(lbl + "_done")
    lds_spin("L_c1spin", L_SYNC, 4)
    stamp(1)

    G = TMP

    def set_tag(r):
        a(f"v_mov_b32 v{r+2}, s68")
        a(f"v_mov_b32 v{r+3}, s69")

    def check_tags(regs, lbl_retry_cnt, lbl_loop, lbl_done):
        for n, r in enumerate(regs):
            dst = "s[70:71]" if n == 0 else "vcc"
            a(f"v_cmp_ne_u64 {dst}, v[{r+2}:{r+3}], s[68:69]")
            if n:
                a("s_or_b64 s[70:71], s[70:71], vcc")
        a("s_cmp_eq_u64 s[70:71], 0")
        a(f"s_cbranch_scc1 {lbl_done}")
        a(f"s_sub_u32 {lbl_retry_cnt}, {lbl_retry_cnt}, 1")
        a(f"s_cmp_eq_u32 {lbl_retry_cnt}, 0")
        a(f"s_cbranch_scc0 {lbl_loop}")

    def preperm():
        a("s_mov_b32 s10, 0x05040100")
        a("s_mov_b32 s11, 0x07060302")
        for q in range(2):
            for d in range(4):
                r0, r1 = W2 + 8*q + d, W2 + 8*q + 4 + d
                a(f"v_perm_b32 v{LO2+4*q+d}, v{r1}, v{r0}, s10")
                a(f"v_perm_b32 v{r1}, v{r1}, v{r0}, s11")
        for q in range(4):
            for d in range(4):
                r0, r1 = WO + 8*q + d, WO + 8*q + 4 + d
                a(f"v_perm_b32 v{LOO+4*q+d}, v{r1}, v{r0}, s10")
                a(f"v_perm_b32 v{r1}, v{r1}, v{r0}, s11")

    a("s_cmp_eq_u32 s3, 3")
    a("s_cbranch_scc1 L_h1_gather")
    a(f"v_lshlrev_b32 v2, 3, v0")
    a("s_cmp_eq_u32 s3, 2")
    a("s_cbranch_scc1 L_h1_pubh")
    a("s_lshl_b32 s10, s3, 9")
    a(f"v_add_u32 v2, s10, v2")
    for w in range(4):
        a(f"ds_read_b64 v[{G+4+2*w}:{G+5+2*w}], v2 offset:{L_QP + w*1024}")
    a("s_lshl_b32 s11, s3, 10")
    a("s_branch L_h1_pub")
    a.label("L_h1_pubh")
    for w in range(4):
        a(f"ds_read_b64 v[{G+4+2*w}:{G+5+2*w}], v2 offset:{L_HP + w*512}")
    a("s_movk_i32 s11, 2048")
    a.label("L_h1_pub")
    a("s_mul_i32 s10, s6, 3072")
    a("s_add_u32 s10, s10, s11")
    if WS_H1:
        a(f"s_add_u32 s10, s10, {WS_H1}")
    a(f"v_lshl_add_u32 v3, v0, 4, s10")
    set_tag(G)
    a("s_waitcnt lgkmcnt(0)")
    a(f"v_add_f32 v{G}, v{G+4}, v{G+6}")
    a(f"v_add_f32 v{G+1}, v{G+5}, v{G+7}")
    a(f"v_add_f32 v{G+8}, v{G+8}, v{G+10}")
    a(f"v_add_f32 v{G+9}, v{G+9}, v{G+11}")
    a(f"v_add_f32 v{G}, v{G}, v{G+8}")
    a(f"v_add_f32 v{G+1}, v{G+1}, v{G+9}")
    a(f"buffer_store_dwordx4 v[{G}:{G+3}], v3, s[56:59], 0 offen sc1")
    a("s_cmp_eq_u32 s3, 2")
    a("s_cbranch_scc1 L_h1_gather")
    a("s_waitcnt vmcnt(1)")
    preperm()
    stamp(2)
    a("s_branch L_b3")

    a.label("L_h1_gather")
    a("s_lshl_b32 s10, s7, 10")
    a("s_cmp_eq_u32 s3, 2")
    a("s_cselect_b32 s10, 2048, s10")
    a("s_mul_i32 s11, s4, 24576")
    a("s_add_u32 s10, s10, s11")
    if WS_H1:
        a(f"s_add_u32 s10, s10, {WS_H1}")
    a(f"v_lshl_add_u32 v3, v0, 4, s10")
    for jj in range(1, 8):
        a(f"s_mov_b32 s{88+jj}, {jj*3072}")
    a(f"s_mov_b32 s12, {opts.maxpoll}")
    a("s_mov_b32 s9, 1")
    a.label("L_poll1")
    for jj in range(8):
        so = "0" if jj == 0 else f"s{88+jj}"
        a(f"buffer_load_dwordx4 v[{G+4*jj}:{G+4*jj+3}], v3, s[56:59], {so} offen sc1")
    a("s_cmp_eq_u32 s9, 0")
    a("s_cbranch_scc1 L_poll1_w")
    a("s_mov_b32 s9, 0")
    a("s_waitcnt vmcnt(8)")
    preperm()
    a.label("L_poll1_w")
    a("s_waitcnt vmcnt(0)")
    check_tags([G+4*jj for jj in range(8)], "s12", "L_poll1", "L_poll1_done")
    a.label("L_poll1_done")
    stamp(2)
    for e in range(2):
        a(f"v_add_f32 v{G+e}, v{G+e}, v{G+4+e}")
        a(f"v_add_f32 v{G+8+e}, v{G+8+e}, v{G+12+e}")
        a(f"v_add_f32 v{G+16+e}, v{G+16+e}, v{G+20+e}")
        a(f"v_add_f32 v{G+24+e}, v{G+24+e}, v{G+28+e}")
    for e in range(2):
        a(f"v_add_f32 v{G+e}, v{G+e}, v{G+8+e}")
        a(f"v_add_f32 v{G+16+e}, v{G+16+e}, v{G+24+e}")
    for e in range(2):
        a(f"v_add_f32 v{G+e}, v{G+e}, v{G+16+e}")
    a(f"v_lshlrev_b32 v2, 2, v0")
    a("s_cmp_eq_u32 s3, 2")
    a("s_cbranch_scc0 L_qw")
    a(f"v_max_f32 v{G}, 0, v{G}")
    a(f"v_max_f32 v{G+1}, 0, v{G+1}")
    a(f"v_add_u32 v2, {L_H - L_Q}, v2")
    a.label("L_qw")
    a(f"v_cvt_pk_bf16_f32 v{G}, v{G}, v{G+1}")
    a(f"ds_write_b32 v2, v{G} offset:{L_Q}")
    a("s_cmp_eq_u32 s3, 2")
    a("s_cselect_b32 s10, 8, 4")
    a("v_mov_b32 v2, s10")
    a("v_mov_b32 v3, 1")
    a(f"ds_write_b32 v2, v3 offset:{L_SYNC}")
    a.label("L_b3")
    a("v_mov_b32 v2, 0")
    lds_spin("L_hspin", L_SYNC+8, 1)
    stamp(3)
    AY = ACC
    a("s_lshl_b32 s10, s3, 5")
    a(f"v_lshl_add_u32 v2, v10, 3, s10")
    a(f"ds_read_b64 v[{TMP}:{TMP+1}], v2 offset:{L_H}")
    a(f"ds_read_b64 v[{TMP+2}:{TMP+3}], v2 offset:{L_H+128}")
    a("s_waitcnt lgkmcnt(0)")
    for q in range(2):
        for b in range(2):
            for d in range(4):
                for hl in range(2):
                    acc = AY + 8*b + 2*d + hl
                    w = (LO2 + 4*q + d) if hl == 0 else (W2 + 8*q + 4 + d)
                    s2 = "0" if q == 0 else f"v{acc}"
                    a(f"v_dot2_f32_bf16 v{acc}, v{w}, v{TMP+2*b+q}, {s2}")
    reduce16(AY)
    a("s_nop 0")
    a("v_cmp_gt_u32 vcc, 10, v11")
    a("s_and_saveexec_b64 s[10:11], vcc")
    a(f"ds_write_b128 v{VY}, v[{AY}:{AY+3}] offset:{L_Y2P}")
    a("s_mov_b64 exec, s[10:11]")
    a("s_waitcnt lgkmcnt(0)")
    a("s_barrier")
    stamp(4)

    def publish_y(lds_base, ws_base):
        a(f"v_lshlrev_b32 v2, 3, v0")
        for w in range(4):
            a(f"ds_read_b64 v[{TMP+8+2*w}:{TMP+9+2*w}], v2 offset:{lds_base + w*640}")
        for w in range(4):
            a(f"ds_read_b64 v[{TMP+16+2*w}:{TMP+17+2*w}], v2 offset:{lds_base + w*640 + 512}")
        a("s_mul_i32 s10, s5, 40960")
        a("s_lshl_b32 s11, s4, 6")
        a("s_add_u32 s10, s10, s11")
        a(f"s_add_u32 s10, s10, {ws_base}")
        a("v_lshrrev_b32 v3, 2, v0")
        a("v_lshlrev_b32 v3, 11, v3")
        a("v_and_b32 v2, 3, v0")
        a("v_lshl_add_u32 v3, v2, 4, v3")
        a("v_add_u32 v3, s10, v3")
        a("s_mov_b32 s9, 32768")
        set_tag(TMP)
        set_tag(TMP+4)
        a("s_waitcnt lgkmcnt(4)" if not stamps else "s_waitcnt lgkmcnt(0)")
        for e in range(2):
            a(f"v_add_f32 v{TMP+8+e}, v{TMP+8+e}, v{TMP+10+e}")
            a(f"v_add_f32 v{TMP+12+e}, v{TMP+12+e}, v{TMP+14+e}")
            a(f"v_add_f32 v{TMP+e}, v{TMP+8+e}, v{TMP+12+e}")
        a(f"buffer_store_dwordx4 v[{TMP}:{TMP+3}], v3, s[56:59], 0 offen sc1")
        a("s_waitcnt lgkmcnt(0)")
        for e in range(2):
            a(f"v_add_f32 v{TMP+16+e}, v{TMP+16+e}, v{TMP+18+e}")
            a(f"v_add_f32 v{TMP+20+e}, v{TMP+20+e}, v{TMP+22+e}")
            a(f"v_add_f32 v{TMP+4+e}, v{TMP+16+e}, v{TMP+20+e}")
        a("s_mov_b64 exec, 0xffff")
        a(f"buffer_store_dwordx4 v[{TMP+4}:{TMP+7}], v3, s[56:59], s9 offen sc1")
        a("s_mov_b64 exec, -1")

    a("s_cmp_eq_u32 s3, 0")
    a("s_cbranch_scc1 L_h2_pub")
    a("s_cmp_eq_u32 s3, 3")
    a("s_cbranch_scc0 L_h2_gather")
    publish_y(L_Y2P, WS_H3B)
    stamp(5)
    a("s_branch L_b5")
    a.label("L_h2_pub")
    a("v_mov_b32 v2, 0")
    a(f"ds_read_b128 v[{TMP}:{TMP+3}], v2 offset:{L_ML}")
    a(f"ds_read_b128 v[{TMP+4}:{TMP+7}], v2 offset:{L_ML+16}")
    a(f"ds_read_b128 v[{TMP+8}:{TMP+11}], v2 offset:{L_ML+32}")
    a(f"ds_read_b128 v[{TMP+12}:{TMP+15}], v2 offset:{L_ML+48}")
    a(f"v_lshlrev_b32 v3, 3, v0")
    OPR = ACC
    for w in range(8):
        a(f"ds_read_b64 v[{OPR+2*w}:{OPR+2*w+1}], v3 offset:{L_OP + w*512}")
    a("s_lshl_b32 s10, s6, 11")
    a(f"s_add_u32 s10, s10, {WS_H2}")
    a(f"v_lshl_add_u32 v3, v0, 4, s10")
    a(f"s_mov_b32 s14, 0x{f32bits(LOG2E):08x}")
    GM = TMP + 16
    GO = TMP + 20
    set_tag(GM)
    set_tag(GO)
    a("s_waitcnt lgkmcnt(8)" if not stamps else "s_waitcnt lgkmcnt(0)")
    M = GM
    a(f"v_max3_f32 v{M}, v{TMP}, v{TMP+1}, v{TMP+2}")
    a(f"v_max3_f32 v{M}, v{M}, v{TMP+3}, v{TMP+4}")
    a(f"v_max3_f32 v{M}, v{M}, v{TMP+5}, v{TMP+6}")
    a(f"v_max_f32 v{M}, v{M}, v{TMP+7}")
    for w in range(8):
        a(f"v_sub_f32 v{TMP+w}, v{TMP+w}, v{M}")
    for w in range(8):
        a(f"v_mul_f32 v{TMP+w}, s14, v{TMP+w}")
    for w in range(8):
        a(f"v_exp_f32 v{TMP+w}, v{TMP+w}")
    a("s_nop 0")
    Ls = GM + 1
    a(f"v_mul_f32 v{Ls}, v{TMP}, v{TMP+8}")
    for w in range(1, 8):
        a(f"v_fma_f32 v{Ls}, v{TMP+w}, v{TMP+8+w}, v{Ls}")
    a("s_waitcnt lgkmcnt(0)")
    for e in range(2):
        a(f"v_mul_f32 v{GO+e}, v{TMP}, v{OPR+e}")
    for w in range(1, 8):
        for e in range(2):
            a(f"v_fma_f32 v{GO+e}, v{TMP+w}, v{OPR+2*w+e}, v{GO+e}")
    a(f"buffer_store_dwordx4 v[{GO}:{GO+3}], v3, s[56:59], 0 offen sc1")
    a("s_mov_b64 exec, 0xff")
    a(f"buffer_store_dwordx4 v[{GM}:{GM+3}], v3, s[56:59], 0 offen offset:1024 sc1")
    a("s_mov_b64 exec, -1")
    stamp(5)
    a("s_branch L_b5")
    a.label("L_h2_gather")
    a("s_sub_u32 s9, s3, 1")
    a("s_lshl_b32 s10, s9, 13")
    a("s_lshl_b32 s11, s4, 14")
    a("s_add_u32 s10, s10, s11")
    a(f"s_add_u32 s10, s10, {WS_H2}")
    a(f"v_lshl_add_u32 v3, v0, 4, s10")
    a(f"v_mov_b32 v2, s10")
    a("s_movk_i32 s11, 4096")
    a(f"s_mov_b32 s12, {opts.maxpoll}")
    a.label("L_poll2")
    for s in range(4):
        so = "0" if s < 2 else "s11"
        a(f"buffer_load_dwordx4 v[{G+4*s}:{G+4*s+3}], v3, s[56:59], {so} offen offset:{(s&1)*2048} sc1")
    for s in range(4):
        so = "0" if s < 2 else "s11"
        a(f"buffer_load_dwordx4 v[{G+16+4*s}:{G+19+4*s}], v2, s[56:59], {so} offen offset:{(s&1)*2048+1024} sc1")
    a("s_waitcnt vmcnt(0)")
    check_tags([G+4*s for s in range(8)], "s12", "L_poll2", "L_poll2_done")
    a.label("L_poll2_done")
    stamp(5)
    if stamps and opts.cnt:
        a(f"s_sub_u32 s{ST0+2}, {opts.maxpoll}, s12")
        a(f"s_mov_b32 s{ST0+3}, 0x7fffffff")
    M = 4
    ms = [G+16+4*s for s in range(4)]
    a(f"v_max3_f32 v{M}, v{ms[0]}, v{ms[1]}, v{ms[2]}")
    a(f"v_max_f32 v{M}, v{M}, v{ms[3]}")
    a(f"s_mov_b32 s14, 0x{f32bits(LOG2E):08x}")
    for s in range(4):
        a(f"v_sub_f32 v{ms[s]}, v{ms[s]}, v{M}")
    for s in range(4):
        a(f"v_mul_f32 v{ms[s]}, s14, v{ms[s]}")
    for s in range(4):
        a(f"v_exp_f32 v{ms[s]}, v{ms[s]}")
    a("s_nop 0")
    Ls, O0, O1 = 5, 6, 7
    a(f"v_mul_f32 v{Ls}, v{ms[0]}, v{ms[0]+1}")
    a(f"v_mul_f32 v{O0}, v{ms[0]}, v{G}")
    a(f"v_mul_f32 v{O1}, v{ms[0]}, v{G+1}")
    for s in range(1, 4):
        a(f"v_fma_f32 v{Ls}, v{ms[s]}, v{ms[s]+1}, v{Ls}")
        a(f"v_fma_f32 v{O0}, v{ms[s]}, v{G+4*s}, v{O0}")
        a(f"v_fma_f32 v{O1}, v{ms[s]}, v{G+4*s+1}, v{O1}")
    a(f"v_rcp_f32 v{Ls}, v{Ls}")
    a(f"v_lshlrev_b32 v2, 2, v0")
    a("s_lshl_b32 s10, s9, 8")
    a(f"v_add_u32 v2, s10, v2")
    a(f"v_mul_f32 v{O0}, v{O0}, v{Ls}")
    a(f"v_mul_f32 v{O1}, v{O1}, v{Ls}")
    a(f"v_cvt_pk_bf16_f32 v{O0}, v{O0}, v{O1}")
    a(f"ds_write_b32 v2, v{O0} offset:{L_OO}")
    a.label("L_b5")
    a("s_waitcnt lgkmcnt(0)")
    a("s_barrier")
    a("s_lshl_b32 s10, s3, 6")
    a(f"v_lshl_add_u32 v2, v10, 4, s10")
    a(f"ds_read_b128 v[{TMP}:{TMP+3}], v2 offset:{L_OO}")
    a(f"ds_read_b128 v[{TMP+4}:{TMP+7}], v2 offset:{L_OO+256}")
    a("s_waitcnt lgkmcnt(0)")
    for q in range(4):
        for b in range(2):
            for d in range(4):
                for hl in range(2):
                    acc = AY + 8*b + 2*d + hl
                    w = (LOO + 4*q + d) if hl == 0 else (WO + 8*q + 4 + d)
                    s2 = "0" if q == 0 else f"v{acc}"
                    a(f"v_dot2_f32_bf16 v{acc}, v{w}, v{TMP+4*b+q}, {s2}")
    reduce16(AY)
    a("s_nop 0")
    a("v_cmp_gt_u32 vcc, 10, v11")
    a("s_and_saveexec_b64 s[10:11], vcc")
    a(f"ds_write_b128 v{VY}, v[{AY}:{AY+3}] offset:{L_Y1P}")
    a("s_mov_b64 exec, s[10:11]")
    a("s_waitcnt lgkmcnt(0)")
    a("s_barrier")
    stamp(6)
    a("s_cmp_eq_u32 s3, 0")
    a("s_cbranch_scc0 L_final")
    publish_y(L_Y1P, WS_H3A)
    stamp(7)
    a("s_branch L_fin")
    a.label("L_final")
    a("s_cmp_eq_u32 s3, 3")
    a("s_cbranch_scc0 L_fin")
    a("s_cmp_ge_u32 s4, 20")
    a("s_cbranch_scc1 L_fin")
    a("s_mul_i32 s10, s5, 20")
    a("s_add_u32 s10, s10, s4")
    a("s_lshl_b32 s10, s10, 11")
    a(f"s_add_u32 s10, s10, {WS_H3A}")
    a(f"v_lshl_add_u32 v3, v0, 4, s10")
    a(f"s_mov_b32 s11, {WS_H3B - WS_H3A}")
    a("s_cmp_ge_u32 s4, 10")
    a("s_cselect_b32 s9, 560, 0")
    a("s_lshl_b32 s10, s4, 3")
    a("s_add_u32 s9, s9, s10")
    a("s_mul_i32 s10, s5, 80")
    a("s_add_u32 s9, s9, s10")
    a("v_and_b32 v4, 3, v0")
    a("v_lshlrev_b32 v4, 1, v4")
    a("v_lshrrev_b32 v5, 5, v0")
    a("v_add_u32 v4, v4, v5")
    a("v_add_u32 v4, s9, v4")
    a("v_lshlrev_b32 v4, 1, v4")
    a("buffer_load_ushort v5, v4, s[40:43], 0 offen")
    a(f"s_mov_b32 s12, {opts.maxpoll}")
    a.label("L_poll3")
    a(f"buffer_load_dwordx4 v[{G}:{G+3}], v3, s[56:59], 0 offen sc1")
    a(f"buffer_load_dwordx4 v[{G+4}:{G+7}], v3, s[56:59], 0 offen offset:1024 sc1")
    a(f"buffer_load_dwordx4 v[{G+8}:{G+11}], v3, s[56:59], s11 offen sc1")
    a(f"buffer_load_dwordx4 v[{G+12}:{G+15}], v3, s[56:59], s11 offen offset:1024 sc1")
    a("s_waitcnt vmcnt(0)")
    check_tags([G, G+4, G+8, G+12], "s12", "L_poll3", "L_poll3_done")
    a.label("L_poll3_done")
    if stamps and opts.cnt:
        a(f"s_sub_u32 s{ST0+2}, {opts.maxpoll}, s12")
        a(f"s_mov_b32 s{ST0+3}, 0x7fffffff")
        stamp(2)
    U0, U1, W0_, W1_ = G, G+1, G+8, G+9
    a(f"v_add_f32 v{U0}, v{G}, v{G+4}")
    a(f"v_add_f32 v{U1}, v{G+1}, v{G+5}")
    a(f"v_add_f32 v{W0_}, v{G+8}, v{G+12}")
    a(f"v_add_f32 v{W1_}, v{G+9}, v{G+13}")
    a("s_nop 1")
    for ctrl in ["row_ror:4", "row_ror:8"]:
        for r in (U0, U1, W0_, W1_):
            a(f"v_add_f32_dpp v{r}, v{r}, v{r} {ctrl} row_mask:0xf bank_mask:0xf")
        a("s_nop 0")
    a("s_nop 0")
    a(f"v_permlane32_swap_b32 v{U0}, v{U1}")
    a(f"v_permlane32_swap_b32 v{W0_}, v{W1_}")
    a("s_nop 1")
    a(f"v_add_f32 v{U0}, v{U0}, v{U1}")
    a(f"v_add_f32 v{W0_}, v{W0_}, v{W1_}")
    a("s_nop 0")
    a(f"v_mov_b32 v{U1}, v{U0}")
    a(f"v_mov_b32 v{W1_}, v{W0_}")
    a("s_nop 1")
    a(f"v_permlane16_swap_b32 v{U0}, v{U1}")
    a(f"v_permlane16_swap_b32 v{W0_}, v{W1_}")
    a("s_nop 1")
    Y1, Y2 = U0, W0_
    a(f"v_add_f32 v{Y1}, v{U0}, v{U1}")
    a(f"v_add_f32 v{Y2}, v{W0_}, v{W1_}")
    a(f"v_cvt_pk_bf16_f32 v{Y2}, v{Y2}, v{Y1}")
    a("s_mov_b32 s15, 0xffff0000")
    a(f"v_and_b32 v{Y1}, s15, v{Y2}")
    a(f"v_lshlrev_b32 v{Y2}, 16, v{Y2}")
    a(f"s_mov_b32 s14, 0x{f32bits(-LOG2E):08x}")
    a(f"v_mul_f32 v7, s14, v{Y2}")
    a(f"v_exp_f32 v7, v7")
    a("s_nop 0")
    a(f"v_add_f32 v7, 1.0, v7")
    a(f"v_rcp_f32 v7, v7")
    a("s_nop 0")
    a(f"v_mul_f32 v{Y2}, v{Y2}, v7")
    a(f"v_cvt_pk_bf16_f32 v{Y2}, v{Y2}, 0")
    a(f"v_lshlrev_b32 v{Y2}, 16, v{Y2}")
    a(f"v_mul_f32 v{Y1}, v{Y1}, v{Y2}")
    a(f"v_cvt_pk_bf16_f32 v{Y1}, v{Y1}, 0")
    a(f"v_lshlrev_b32 v{Y1}, 16, v{Y1}")
    a(f"v_lshlrev_b32 v5, 16, v5")
    a(f"v_add_f32 v{Y1}, v5, v{Y1}")
    a(f"v_cvt_pk_bf16_f32 v{Y1}, v{Y1}, 0")
    a("s_mov_b32 s10, 15")
    a("s_mov_b32 s11, 15")
    a("s_mov_b64 exec, s[10:11]")
    a(f"buffer_store_short v{Y1}, v4, s[64:67], 0 offen")
    a("s_cmp_lg_u32 s6, 0")
    a("s_cbranch_scc1 L_noep")
    a("s_mov_b64 exec, 1")
    a(f"v_mov_b32 v2, {WS_EPOCH}")
    a("v_mov_b32 v3, s68")
    a("buffer_store_dword v3, v2, s[56:59], 0 offen sc1")
    a.label("L_noep")
    a("s_mov_b64 exec, -1")
    stamp(7)
    a.label("L_fin")
    if stamps:
        a("s_mul_i32 s90, s6, 12")
        a("s_add_u32 s90, s90, s3")
        a("s_lshl_b32 s90, s90, 6")
        a(f"s_add_u32 s90, s90, {WS_STAMP}")
        a("v_mov_b32 v2, s90")
        a("s_waitcnt lgkmcnt(0)")
        for i in range(16):
            a(f"v_mov_b32 v{8+i}, s{ST0+i}")
        a("s_mov_b64 exec, 1")
        for q in range(4):
            a(f"buffer_store_dwordx4 v[{8+4*q}:{11+4*q}], v2, s[56:59], 0 offen offset:{16*q}")
        if opts.dbgout:
            a("s_cmp_lg_u32 s3, 3")
            a("s_cbranch_scc1 L_end")
            a("s_cmp_eq_u32 s6, 0")
            a("s_cselect_b32 s10, 0, 32")
            a("s_cbranch_scc1 L_dbgw")
            a("s_cmp_lg_u32 s6, 101")
            a("s_cbranch_scc1 L_end")
            a.label("L_dbgw")
            for i in range(8):
                a(f"s_sub_u32 s11, s{ST0+2*i}, s{ST0}")
                a(f"v_mov_b32 v{8+i}, s11")
            a("v_mov_b32 v2, s10")
            a("global_store_dwordx4 v2, v[8:11], s[34:35]")
            a("global_store_dwordx4 v2, v[12:15], s[34:35] offset:16")
    a.label("L_end")
    a("s_endpgm")

    nv = 168
    out = HEADER
    out += f"; @launch grid=(256,1,1) block=(768,1,1) lds={L_TOTAL}\n"
    out += '.amdgcn_target "amdgcn-amd-amdhsa--gfx950"\n.text\n'
    out += f".globl {KNAME}\n.p2align 8\n.type {KNAME},@function\n{KNAME}:\n"
    out += "\n".join(a.l) + "\n"
    out += f""".section .rodata,"a"
.p2align 6
.amdhsa_kernel {KNAME}
  .amdhsa_next_free_vgpr {nv}
  .amdhsa_next_free_sgpr 96
  .amdhsa_accum_offset {nv}
  .amdhsa_group_segment_fixed_size 0
  .amdhsa_kernarg_size 88
  .amdhsa_user_sgpr_count 2
  .amdhsa_user_sgpr_kernarg_segment_ptr 1
  .amdhsa_system_sgpr_workgroup_id_x 1
.end_amdhsa_kernel
"""
    return out


if __name__ == "__main__":
    p = argparse.ArgumentParser()
    p.add_argument("-o", default="recurrent_scan__sliding_block_cached__dense_activation_relu__decode.s")
    p.add_argument("--kvpol", default="nt")
    p.add_argument("--wpol", default="nt")
    p.add_argument("--stamps", action="store_true")
    p.add_argument("--maxpoll", type=int, default=20000)
    p.add_argument("--dbgout", action="store_true")
    p.add_argument("--cnt", action="store_true")
    p.add_argument("--maxspin", type=int, default=2000000)
    p.add_argument("--dbgst", action="store_true")
    p.add_argument("--rotg", type=int, default=1)
    p.add_argument("--rotw", type=int, default=4)
    o = p.parse_args()
    open(o.o, "w").write(gen(o))
    print("wrote", o.o)
```

```python
import re

TRANS = ("v_exp_f32", "v_rcp_f32", "v_sqrt_f32", "v_rsq_f32", "v_log_f32", "v_sin_f32", "v_cos_f32")


def regs_of(tok):
    tok = tok.strip()
    m = re.fullmatch(r"([vs])(\d+)", tok)
    if m:
        return [(m.group(1), int(m.group(2)))]
    m = re.fullmatch(r"([vs])\[(\d+):(\d+)\]", tok)
    if m:
        return [(m.group(1), i) for i in range(int(m.group(2)), int(m.group(3)) + 1)]
    if tok == "vcc":
        return [("s", 106), ("s", 107)]
    if tok == "exec":
        return [("s", 126), ("s", 127)]
    return []


class Ins:
    __slots__ = ("op", "cls", "wr", "rd", "srcc", "ab", "states", "dpp", "storedata", "text")


def parse(text):
    t = text.split(";")[0].strip()
    parts = t.split(None, 1)
    op = parts[0]
    rest = parts[1] if len(parts) > 1 else ""
    ops = [o.strip() for o in rest.split(",")]
    mods = ""
    if ops and " " in ops[-1]:
        first, mods = ops[-1].split(None, 1)
        ops[-1] = first
    i = Ins()
    i.op = op; i.text = text; i.wr = []; i.rd = []; i.srcc = []; i.ab = []; i.states = 1
    i.dpp = ("quad_perm" in mods or "row_" in mods or "wave_" in mods or op.endswith("_dpp"))
    i.storedata = []
    R = [regs_of(o) for o in ops]
    flat = lambda l: [r for x in l for r in x]
    if op == "s_nop":
        i.cls = "nop"; i.states = int(ops[0]) + 1
    elif op.startswith("v_mfma"):
        i.cls = "mfma"; i.wr = R[0]; i.ab = R[1] + R[2]; i.srcc = R[3]; i.rd = i.ab + i.srcc
    elif op.startswith("v_dot"):
        i.cls = "dot"; i.wr = R[0]; i.ab = R[1] + R[2]; i.srcc = R[3]; i.rd = i.ab + i.srcc
    elif op.startswith("v_permlane"):
        i.cls = "perm"; i.wr = R[0] + R[1]; i.rd = R[0] + R[1]
    elif op.startswith("v_readlane") or op.startswith("v_readfirstlane"):
        i.cls = "rdlane"; i.wr = R[0]; i.rd = flat(R[1:])
    elif op.startswith("v_cmp"):
        i.cls = "valu"; i.wr = R[0]; i.rd = flat(R[1:])
    elif op.startswith("v_"):
        i.cls = "trans" if op.replace("_e32", "").replace("_e64", "") in TRANS else "valu"
        i.wr = R[0]; i.rd = flat(R[1:])
        if op.startswith("v_fmac") or op.startswith("v_mac"):
            i.rd = i.rd + R[0]
    elif op.startswith("buffer_load") or op.startswith("global_load"):
        i.cls = "vmem"; i.wr = R[0]; i.rd = flat(R[1:])
    elif op.startswith("buffer_atomic"):
        i.cls = "vmem"; i.wr = R[0]; i.rd = flat(R)
    elif op.startswith("buffer_store"):
        i.cls = "vmem"; i.rd = flat(R)
        if "x4" in op or "x3" in op:
            i.storedata = R[0]
    elif op.startswith("global_store"):
        i.cls = "vmem"; i.rd = flat(R)
        if "x4" in op or "x3" in op:
            i.storedata = R[1]
    elif op.startswith("ds_read") or "_rtn" in op:
        i.cls = "ds"; i.wr = R[0]; i.rd = flat(R[1:])
    elif op.startswith("ds_"):
        i.cls = "ds"; i.rd = flat(R)
    elif op.startswith("s_"):
        i.cls = "salu"
        if op.startswith(("s_cmp", "s_cbranch", "s_branch", "s_waitcnt", "s_barrier", "s_sleep", "s_setprio", "s_endpgm", "s_bitcmp")):
            i.rd = flat(R)
        else:
            i.wr = R[0]; i.rd = flat(R[1:])
    else:
        raise ValueError("unknown instruction " + text)
    return i


VALU_CLS = ("valu", "trans", "dot", "perm", "rdlane")


def need(p, c):
    n = 0
    pw = set(p.wr); cr = set(c.rd); cw = set(c.wr)
    pv = {r for r in pw if r[0] == "v"}
    ps = {r for r in pw if r[0] == "s"}
    if p.cls in VALU_CLS:
        if ps:
            if c.cls == "vmem" and ps & cr: n = max(n, 5)
            if c.cls in VALU_CLS + ("mfma",) and ps & cr:
                n = max(n, 4 if c.cls == "rdlane" else 2)
            if ("s", 126) in ps:
                if c.dpp: n = max(n, 5)
                if c.cls in ("perm", "rdlane", "mfma"): n = max(n, 4)
        if pv:
            if c.dpp and pv & cr: n = max(n, 2)
            if c.cls == "perm" and pv & cr: n = max(n, 2)
            if c.cls == "rdlane" and pv & cr: n = max(n, 1)
            if c.cls == "mfma" and pv & cr: n = max(n, 2)
            if p.cls == "trans" and c.cls != "trans" and pv & cr: n = max(n, 1)
            if p.cls == "dot":
                if c.cls == "dot" and c.op == p.op:
                    if pv & set(c.ab): n = max(n, 3)
                    if (pv & cw) and not (pv & set(c.srcc)): n = max(n, 3)
                elif pv & (cr | cw): n = max(n, 3)
    if p.cls == "mfma":
        if c.cls == "mfma":
            if pv & set(c.ab): n = max(n, 8)
            if pv & set(c.srcc):
                n = max(n, 0 if set(c.srcc) == pv else 6)
            elif pv & cw: n = max(n, 8)
        elif pv & (cr | cw): n = max(n, 8)
        if c.cls in VALU_CLS and set(p.srcc) & cw: n = max(n, 3)
    if p.storedata:
        if set(p.storedata) & cw:
            n = max(n, 2 if c.cls in VALU_CLS + ("mfma",) else 1)
    return n


class A:
    def __init__(self):
        self.l = []
        self.hist = []
        self.pos = 0

    def _emit(self, s):
        self.l.append("    " + s)

    def __call__(self, s):
        i = parse(s)
        req = 0
        for (p, ppos) in self.hist[-24:]:
            d = self.pos - (ppos + 1)
            nn = need(p, i)
            if nn > d:
                req = max(req, nn - d)
        while req > 0:
            k = min(req, 16)
            self._emit(f"s_nop {k-1}")
            self.pos += k
            req -= k
        self._emit(s)
        self.hist.append((i, self.pos + i.states - 1))
        self.pos += i.states

    def label(self, s):
        self.l.append(s + ":")

    def c(self, s):
        self.l.append("    ; " + s)

    def raw(self, s):
        self.l.append(s)
```

```python
import sys, argparse, struct

KNAME = "recurrent_scan__sliding_block_cached__dense_activation_relu__decode_kernel"

HEADER = """; Kernarg layout for this problem (88 bytes, ptrs only, base s[0:1]):
"""

WS_H1 = 0x0
WS_H2 = 0xC0000
WS_H3A = 0x140000
WS_H3B = 0x190000
WS_EPOCH = 0x1F0000
WS_STAMP = 0x200000
WS_SIZE = 0x400000

L_QP = 0
L_HP = 4096
L_Q = 6144
L_H = 6400
L_OP = 6656
L_ML = 10752
L_OO = 10880
L_Y2P = 11392
L_Y1P = 13952
L_SYNC = 16896
L_TOTAL = 17408

LOG2E = 1.4426950408889634
OOB = 0x40000000


def f32bits(x):
    return struct.unpack('<I', struct.pack('<f', x))[0]


class A:
    def __init__(self):
        self.l = []

    def __call__(self, s):
        self.l.append("    " + s)

    def label(self, s):
        self.l.append(s + ":")

    def c(self, s):
        self.l.append("    ; " + s)


def gen(opts):
    a = A()
    kvpol = opts.kvpol
    wpol = opts.wpol
    stamps = opts.stamps
    ST0 = 72

    def stamp(idx, dbg=False):
        if opts.dbgst and idx >= 5 and not dbg:
            return
        if stamps:
            a(f"s_memrealtime s[{ST0+2*idx}:{ST0+2*idx+1}]")

    a("s_cmp_ge_u32 s2, 256")
    a("s_cbranch_scc1 L_end")
    a("s_load_dwordx16 s[16:31], s[0:1], 0")
    a("s_load_dwordx4 s[32:35], s[0:1], 64")
    a("s_load_dwordx2 s[36:37], s[0:1], 80")
    if stamps:
        for i in range(1, 8):
            a(f"s_mov_b64 s[{ST0+2*i}:{ST0+2*i+1}], 0")
        stamp(0)
    a("v_lshrrev_b32 v1, 6, v0")
    a("v_and_b32 v0, 63, v0")
    if opts.xcdmap:
        a("s_and_b32 s4, s2, 7")
        a("s_lshr_b32 s5, s2, 6")
        a("s_lshl_b32 s5, s5, 3")
        a("s_or_b32 s4, s4, s5")
        a("s_lshr_b32 s5, s2, 3")
        a("s_and_b32 s5, s5, 7")
    else:
        a("s_lshr_b32 s4, s2, 3")
        a("s_and_b32 s5, s2, 7")
        if opts.jxor:
            a(f"s_xor_b32 s5, s5, {opts.jxor}")
    a("v_readfirstlane_b32 s3, v1")
    a("s_lshl_b32 s6, s4, 3")
    a("s_or_b32 s6, s6, s5")
    a("s_lshr_b32 s7, s5, 2")
    a("s_and_b32 s8, s5, 3")
    a(f"s_mov_b32 s58, {WS_SIZE}")
    a("s_mov_b32 s59, 0x00020000")
    a("s_cmp_lg_u32 s3, 0")
    a("s_cbranch_scc1 L_noclr")
    a("v_mov_b32 v4, 0")
    a("v_mov_b32 v5, 0")
    a("v_mov_b32 v6, 0")
    a("v_mov_b32 v7, 0")
    a(f"ds_write_b128 v4, v[4:7] offset:{L_SYNC}")
    a("s_waitcnt lgkmcnt(0)")
    a.label("L_noclr")
    a("s_barrier")
    a("s_cmp_lt_u32 s3, 4")
    a("s_cbranch_scc1 L_aux")

    VOFF, VQ, VT, VS, VACC, VK, VV = 1, 2, 6, 8, 24, 32, 96
    a.c("---- streaming wave ----")
    a("s_sub_u32 s3, s3, 4")
    a("s_lshl_b32 s9, s7, 5")
    a("s_add_u32 s9, s9, s4")
    a("s_lshl_b32 s9, s9, 21")
    a("s_lshl_b32 s10, s8, 17")
    a("s_add_u32 s9, s9, s10")
    a("s_add_u32 s9, s9, 1572864")
    a("s_lshl_b32 s10, s3, 14")
    a(f"v_lshl_add_u32 v{VOFF}, v0, 4, s10")
    a(f"s_mul_i32 s11, s4, {opts.rotg}")
    a(f"s_mul_i32 s12, s3, {opts.rotw}")
    a("s_add_u32 s11, s11, s12")
    a("s_lshl_b32 s11, s11, 10")
    a("s_mov_b32 s42, 131072")
    a("s_mov_b32 s43, 0x00020000")
    a("s_mov_b32 s46, 131072")
    a("s_mov_b32 s47, 0x00020000")
    a("s_waitcnt lgkmcnt(0)")
    a("s_add_u32 s40, s18, s9")
    a("s_addc_u32 s41, s19, 0")
    a("s_add_u32 s44, s20, s9")
    a("s_addc_u32 s45, s21, 0")
    a("s_mov_b32 s56, s36")
    a("s_mov_b32 s57, s37")
    for i in range(16):
        a(f"s_add_u32 s{16+i}, s11, {i*1024}")
        a(f"s_and_b32 s{16+i}, s{16+i}, 0x3c00")
        a(f"buffer_load_dwordx4 v[{VK+4*i}:{VK+4*i+3}], v{VOFF}, s[40:43], s{16+i} offen {kvpol}")
    for i in range(16):
        a(f"buffer_load_dwordx4 v[{VV+4*i}:{VV+4*i+3}], v{VOFF}, s[44:47], s{16+i} offen {kvpol}")
    a(f"v_mov_b32 v{VT+1}, 0")
    a(f"s_mov_b32 s12, {opts.maxspin}")
    a.label("L_qspin")
    a(f"ds_read_b32 v{VT}, v{VT+1} offset:{L_SYNC+4}")
    a("s_waitcnt lgkmcnt(0)")
    a(f"v_readfirstlane_b32 s10, v{VT}")
    a("s_cmp_lg_u32 s10, 0")
    a("s_cbranch_scc1 L_qspin_done")
    a("s_sleep 2")
    a("s_sub_u32 s12, s12, 1")
    a("s_cmp_lg_u32 s12, 0")
    a("s_cbranch_scc1 L_qspin")
    a.label("L_qspin_done")
    a(f"v_and_b32 v{VT}, 15, v0")
    a(f"v_lshlrev_b32 v{VT}, 4, v{VT}")
    a(f"ds_read_b128 v[{VQ}:{VQ+3}], v{VT} offset:{L_Q}")
    stamp(1)
    a("s_waitcnt lgkmcnt(0)")
    for grp in range(4):
        a(f"s_waitcnt vmcnt({16 + 12 - 4*grp})")
        for d in range(4):
            for i in range(4*grp, 4*grp+4):
                src2 = "0" if d == 0 else f"v{VS+i}"
                a(f"v_dot2_f32_bf16 v{VS+i}, v{VK+4*i+d}, v{VQ+d}, {src2}")
    a("s_nop 2")
    for ctrl in ["quad_perm:[1,0,3,2]", "quad_perm:[2,3,0,1]", "row_half_mirror", "row_mirror"]:
        for i in range(16):
            a(f"v_add_f32_dpp v{VS+i}, v{VS+i}, v{VS+i} {ctrl} row_mask:0xf bank_mask:0xf")
    a(f"s_mov_b32 s14, 0x{f32bits(128 ** -0.5):08x}")
    a("s_mov_b32 s15, 0xffff0000")
    for rnd in range(2):
        for p in range(8):
            a(f"v_cvt_pk_bf16_f32 v{VK+p}, v{VS+2*p}, v{VS+2*p+1}")
        for p in range(8):
            a(f"v_lshlrev_b32 v{VS+2*p}, 16, v{VK+p}")
            a(f"v_and_b32 v{VS+2*p+1}, s15, v{VK+p}")
        if rnd == 0:
            for i in range(16):
                a(f"v_mul_f32 v{VS+i}, s14, v{VS+i}")
    m = VT
    a(f"v_max3_f32 v{m}, v{VS}, v{VS+1}, v{VS+2}")
    for i in range(3, 15, 2):
        a(f"v_max3_f32 v{m}, v{m}, v{VS+i}, v{VS+i+1}")
    a(f"v_max_f32 v{m}, v{m}, v{VS+15}")
    a("s_nop 0")
    for r in range(4):
        a(f"v_readlane_b32 s{60+r}, v{m}, {16*r}")
    a("s_nop 1")
    a(f"v_mov_b32 v{m}, s60")
    a(f"v_max_f32 v{m}, s61, v{m}")
    a(f"v_max_f32 v{m}, s62, v{m}")
    a(f"v_max_f32 v{m}, s63, v{m}")
    a(f"s_mov_b32 s64, 0x{f32bits(LOG2E):08x}")
    for i in range(16):
        a(f"v_sub_f32 v{VS+i}, v{VS+i}, v{m}")
    for i in range(16):
        a(f"v_mul_f32 v{VS+i}, s64, v{VS+i}")
    for i in range(16):
        a(f"v_exp_f32 v{VS+i}, v{VS+i}")
    a("s_nop 0")
    PLO, PHI = VK, VK + 16
    for i in range(16):
        a(f"v_cvt_pk_bf16_f32 v{PLO+i}, v{VS+i}, 0")
    for i in range(16):
        a(f"v_lshlrev_b32 v{PHI+i}, 16, v{PLO+i}")
    lsum = VT + 1
    a(f"v_add_f32 v{lsum}, v{VS}, v{VS+1}")
    for i in range(2, 16):
        a(f"v_add_f32 v{lsum}, v{lsum}, v{VS+i}")
    a("s_nop 0")
    for r in range(4):
        a(f"v_readlane_b32 s{60+r}, v{lsum}, {16*r}")
    a("s_nop 1")
    a(f"v_mov_b32 v{lsum}, s60")
    a(f"v_add_f32 v{lsum}, s61, v{lsum}")
    a(f"v_add_f32 v{lsum}, s62, v{lsum}")
    a(f"v_add_f32 v{lsum}, s63, v{lsum}")
    a(f"s_lshl_b32 s10, s3, 2")
    a(f"v_mov_b32 v{VS}, s10")
    a(f"ds_write_b32 v{VS}, v{m} offset:{L_ML}")
    a(f"ds_write_b32 v{VS}, v{lsum} offset:{L_ML+32}")
    a(f"v_and_b32 v{VS}, 15, v0")
    a(f"v_lshlrev_b32 v{VS}, 5, v{VS}")
    a(f"v_lshrrev_b32 v{VS+1}, 4, v0")
    a(f"v_lshl_add_u32 v{VS}, v{VS+1}, 3, v{VS}")
    a(f"s_lshl_b32 s10, s3, 9")
    a(f"v_add_u32 v{VS}, s10, v{VS}")
    for i in range(16):
        a(f"s_waitcnt vmcnt({15-i})")
        for d in range(4):
            s2a = "0" if i == 0 else f"v{VACC+2*d}"
            s2b = "0" if i == 0 else f"v{VACC+2*d+1}"
            a(f"v_dot2_f32_bf16 v{VACC+2*d}, v{VV+4*i+d}, v{PLO+i}, {s2a}")
            a(f"v_dot2_f32_bf16 v{VACC+2*d+1}, v{VV+4*i+d}, v{PHI+i}, {s2b}")
    a("s_nop 2")
    for e in range(4):
        a(f"v_permlane32_swap_b32 v{VACC+e}, v{VACC+e+4}")
    a("s_nop 1")
    for e in range(4):
        a(f"v_add_f32 v{VACC+e}, v{VACC+e}, v{VACC+e+4}")
    a("s_nop 1")
    a(f"v_permlane16_swap_b32 v{VACC}, v{VACC+2}")
    a(f"v_permlane16_swap_b32 v{VACC+1}, v{VACC+3}")
    a("s_nop 1")
    a(f"v_add_f32 v{VACC}, v{VACC}, v{VACC+2}")
    a(f"v_add_f32 v{VACC+1}, v{VACC+1}, v{VACC+3}")
    a(f"ds_write_b64 v{VS}, v[{VACC}:{VACC+1}] offset:{L_OP}")
    stamp(2)
    a("s_waitcnt lgkmcnt(0)")
    a("s_barrier")
    a("s_add_u32 s3, s3, 4")
    a("s_branch L_fin")

    a.label("L_aux")
    a.c("---- aux wave: a = s3 (0..3) ----")
    a("s_setprio 3")
    T = 1
    XR = 20
    VE = 30
    WQ = 32
    W1 = 52
    TMP = 64
    ACC = 96
    W2 = 120
    WO = 136
    LO2 = 32
    LOO = 40
    a(f"s_lshl_b32 s10, s3, 6")
    a(f"v_add_u32 v{T}, s10, v0")
    a(f"v_lshlrev_b32 v2, 4, v0")
    a(f"v_lshlrev_b32 v3, 2, v0")
    a(f"v_mov_b32 v{VE}, {WS_EPOCH}")
    a("s_mul_i32 s9, s5, 80")
    a("s_mul_i32 s10, s3, 20")
    a("s_add_u32 s9, s9, s10")
    a(f"v_lshrrev_b32 v{TMP+8}, 4, v0")
    a(f"v_and_b32 v{TMP+9}, 15, v0")
    a(f"v_add_u32 v{TMP+10}, s9, v{TMP+8}")
    a(f"v_lshlrev_b32 v{TMP+11}, 1, v{TMP+10}")
    a(f"v_lshlrev_b32 v{TMP+1}, 13, v{TMP+10}")
    a(f"v_lshl_add_u32 v{TMP+1}, v{TMP+9}, 4, v{TMP+1}")
    a("s_lshl_b32 s10, s4, 8")
    a(f"v_add_u32 v{TMP+1}, s10, v{TMP+1}")
    a("s_cmp_ge_u32 s4, 27")
    a(f"s_cselect_b32 s13, {OOB}, 0")
    a("s_movk_i32 s10, 3456")
    a(f"v_mul_lo_u32 v{TMP+2}, v{TMP+10}, s10")
    a(f"v_lshl_add_u32 v{TMP+2}, v{TMP+9}, 3, v{TMP+2}")
    a("s_lshl_b32 s10, s4, 7")
    a("s_add_u32 s10, s10, s13")
    a(f"v_add_u32 v{TMP+2}, s10, v{TMP+2}")
    a(f"v_mov_b32 v{TMP+5}, 0")
    a(f"v_mov_b32 v{TMP+6}, {OOB}")
    a(f"v_cmp_lt_u32 vcc, 9, v{TMP+9}")
    a(f"v_cndmask_b32 v{TMP+5}, v{TMP+5}, v{TMP+6}, vcc")
    a(f"v_lshl_add_u32 v{TMP+5}, v{TMP+9}, 4, v{TMP+5}")
    a("s_mul_i32 s10, s5, 160")
    a(f"v_add_u32 v{TMP+5}, s10, v{TMP+5}")
    a("s_movk_i32 s14, 1280")
    a("s_lshl_b32 s10, s4, 6")
    a("s_lshl_b32 s11, s3, 4")
    a("s_add_u32 s10, s10, s11")
    a(f"v_lshl_add_u32 v{TMP+3}, v{TMP+8}, 2, s10")
    a(f"v_mul_lo_u32 v{TMP+3}, v{TMP+3}, s14")
    a(f"v_add_u32 v{TMP+3}, v{TMP+5}, v{TMP+3}")
    a(f"v_add_u32 v{TMP+3}, s13, v{TMP+3}")
    a("s_lshl_b32 s10, s4, 7")
    a("s_lshl_b32 s11, s3, 5")
    a("s_add_u32 s10, s10, s11")
    a(f"v_lshl_add_u32 v{TMP+4}, v{TMP+8}, 3, s10")
    a(f"v_mul_lo_u32 v{TMP+4}, v{TMP+4}, s14")
    a(f"v_add_u32 v{TMP+4}, v{TMP+5}, v{TMP+4}")
    for i in range(1, 5):
        a(f"s_mov_b32 s{88+i}, {i*32768}")
        a(f"s_mov_b32 s{92+i}, {i*13824}") if i < 4 else None
    a(f"s_mov_b32 s88, {4*13824}")
    a("s_movk_i32 s12, 5120")
    a("s_waitcnt lgkmcnt(0)")

    def srd(r, lo, size):
        a(f"s_mov_b32 s{r}, s{lo}")
        a(f"s_mov_b32 s{r+1}, s{lo+1}")
        a(f"s_mov_b32 s{r+2}, {size}")
        a(f"s_mov_b32 s{r+3}, 0x00020000")
    a("s_mov_b32 s56, s36")
    a("s_mov_b32 s57, s37")
    srd(40, 16, 2560)
    a(f"buffer_load_dword v{VE}, v{VE}, s[56:59], 0 offen sc1")
    a(f"buffer_load_dwordx4 v[4:7], v2, s[40:43], 0 offen")
    a(f"buffer_load_dword v8, v3, s[40:43], 0 offen offset:1024")
    a(f"buffer_load_dwordx4 v[12:15], v2, s[40:43], 0 offen offset:1280")
    a(f"buffer_load_dword v16, v3, s[40:43], 0 offen offset:2304")
    srd(44, 22, 5242880)
    for i in range(5):
        so = "0" if i == 0 else f"s{88+i}"
        a(f"buffer_load_dwordx4 v[{WQ+4*i}:{WQ+4*i+3}], v{TMP+1}, s[44:47], {so} offen {wpol}")
    srd(48, 28, 2211840)
    for i in range(5):
        so = "0" if i == 0 else (f"s{92+i}" if i < 4 else "s88")
        a(f"buffer_load_dwordx2 v[{W1+2*i}:{W1+2*i+1}], v{TMP+2}, s[48:51], {so} offen {wpol}")
    for i in range(5):
        for b in range(2):
            a(f"buffer_load_ushort v{XR+2*i+b}, v{TMP+11}, s[40:43], 0 offen offset:{b*1280 + i*8}")
    srd(52, 30, 2211840)
    for i in range(4):
        a(f"buffer_load_dwordx4 v[{W2+4*i}:{W2+4*i+3}], v{TMP+3}, s[52:55], 0 offen offset:{i*1280} {wpol}")
    srd(60, 24, 5242880)
    for i in range(8):
        so = "0" if i < 4 else "s12"
        a(f"buffer_load_dwordx4 v[{WO+4*i}:{WO+4*i+3}], v{TMP+4}, s[60:63], {so} offen offset:{(i&3)*1280} {wpol}")
    srd(64, 32, 2560)

    a("s_waitcnt vmcnt(32)")
    if opts.dbgst:
        stamp(5, True)
    a(f"v_readfirstlane_b32 s68, v{VE}")
    a("s_mov_b32 s15, 0xffff0000")
    a("s_add_u32 s68, s68, 1")
    a("s_xor_b32 s69, s68, 0x9e3779b9")
    F = TMP + 12
    srcs = [[4, 5, 6, 7, 8], [12, 13, 14, 15, 16]]
    for b in range(2):
        for d in range(5):
            a(f"v_lshlrev_b32 v{F+10*b+2*d}, 16, v{srcs[b][d]}")
            a(f"v_and_b32 v{F+10*b+2*d+1}, s15, v{srcs[b][d]}")
    S0, S1, Q0, Q1, t0, t1 = 4, 5, 6, 7, 8, 9

    def wave_sum2(r0, r1, sbase):
        a("s_nop 1")
        for ctrl in ["quad_perm:[1,0,3,2]", "quad_perm:[2,3,0,1]", "row_half_mirror", "row_mirror"]:
            a(f"v_add_f32_dpp v{r0}, v{r0}, v{r0} {ctrl} row_mask:0xf bank_mask:0xf")
            a(f"v_add_f32_dpp v{r1}, v{r1}, v{r1} {ctrl} row_mask:0xf bank_mask:0xf")
            a("s_nop 0")
        a("s_nop 0")
        for r in range(4):
            a(f"v_readlane_b32 s{sbase+r}, v{r0}, {16*r}")
            a(f"v_readlane_b32 s{sbase+4+r}, v{r1}, {16*r}")
        a("s_nop 1")
        a(f"v_mov_b32 v{r0}, s{sbase}")
        a(f"v_mov_b32 v{r1}, s{sbase+4}")
        for r in range(1, 4):
            a(f"v_add_f32 v{r0}, s{sbase+r}, v{r0}")
            a(f"v_add_f32 v{r1}, s{sbase+4+r}, v{r1}")

    for b, S in ((0, S0), (1, S1)):
        a(f"v_add_f32 v{S}, v{F+10*b}, v{F+10*b+1}")
        for e in range(2, 10):
            a(f"v_add_f32 v{S}, v{S}, v{F+10*b+e}")
    wave_sum2(S0, S1, 88)
    a(f"s_mov_b32 s14, 0x{f32bits(1.0/640):08x}")
    a(f"v_mul_f32 v{S0}, s14, v{S0}")
    a(f"v_mul_f32 v{S1}, s14, v{S1}")
    for b, S in ((0, S0), (1, S1)):
        for e in range(10):
            a(f"v_sub_f32 v{F+10*b+e}, v{F+10*b+e}, v{S}")
    for b, Q in ((0, Q0), (1, Q1)):
        a(f"v_mul_f32 v{Q}, v{F+10*b}, v{F+10*b}")
        for e in range(1, 10):
            a(f"v_fma_f32 v{Q}, v{F+10*b+e}, v{F+10*b+e}, v{Q}")
    wave_sum2(Q0, Q1, 88)
    a(f"v_mul_f32 v{Q0}, s14, v{Q0}")
    a(f"v_mul_f32 v{Q1}, s14, v{Q1}")
    a(f"v_cvt_pk_bf16_f32 v{t0}, v{S0}, v{S1}")
    a(f"v_cvt_pk_bf16_f32 v{t1}, v{Q0}, v{Q1}")
    a(f"v_lshlrev_b32 v{S0}, 16, v{t0}")
    a(f"v_and_b32 v{S1}, s15, v{t0}")
    a(f"v_lshlrev_b32 v{Q0}, 16, v{t1}")
    a(f"v_and_b32 v{Q1}, s15, v{t1}")
    a(f"s_mov_b32 s14, 0x{f32bits(1e-5):08x}")
    a(f"v_add_f32 v{Q0}, s14, v{Q0}")
    a(f"v_add_f32 v{Q1}, s14, v{Q1}")
    a(f"v_cvt_pk_bf16_f32 v{t1}, v{Q0}, v{Q1}")
    a(f"v_lshlrev_b32 v{Q0}, 16, v{t1}")
    a(f"v_and_b32 v{Q1}, s15, v{t1}")
    a(f"v_sqrt_f32 v{Q0}, v{Q0}")
    a(f"v_sqrt_f32 v{Q1}, v{Q1}")
    a("s_nop 0")
    a(f"v_cvt_pk_bf16_f32 v{t1}, v{Q0}, v{Q1}")
    a(f"v_lshlrev_b32 v{Q0}, 16, v{t1}")
    a(f"v_and_b32 v{Q1}, s15, v{t1}")
    a(f"v_rcp_f32 v{Q0}, v{Q0}")
    a(f"v_rcp_f32 v{Q1}, v{Q1}")
    a("s_nop 0")
    XH = F
    MS = [S0, S1]; RS = [Q0, Q1]
    if opts.dbgst:
        a("s_waitcnt vmcnt(27)")
        stamp(6, True)
        a("s_waitcnt vmcnt(22)")
        stamp(7, True)
    a("s_waitcnt vmcnt(12)")
    def each(fn):
        for i in range(5):
            for b in range(2):
                fn(XR + 2*i + b, b, i)
    each(lambda r, b, i: a(f"v_lshlrev_b32 v{r}, 16, v{r}"))
    each(lambda r, b, i: a(f"v_sub_f32 v{r}, v{r}, v{MS[b]}"))
    each(lambda r, b, i: a(f"v_cvt_pk_bf16_f32 v{r}, v{r}, 0"))
    each(lambda r, b, i: a(f"v_lshlrev_b32 v{r}, 16, v{r}"))
    each(lambda r, b, i: a(f"v_mul_f32 v{r}, v{r}, v{RS[b]}"))
    each(lambda r, b, i: a(f"v_cvt_pk_bf16_f32 v{r}, v{r}, 0"))
    each(lambda r, b, i: a(f"v_lshlrev_b32 v{XH+2*i+b}, 16, v{r}"))
    AQ = ACC; AH = ACC + 16
    for i in range(5):
        for b in range(2):
            for d in range(4):
                for hl in range(2):
                    acc = AQ + 8*b + 2*d + hl
                    xs = (XR if hl == 0 else XH) + 2*i + b
                    s2 = "0" if i == 0 else f"v{acc}"
                    a(f"v_dot2_f32_bf16 v{acc}, v{WQ+4*i+d}, v{xs}, {s2}")
    for i in range(5):
        for b in range(2):
            for d in range(2):
                for hl in range(2):
                    acc = AH + 4*b + 2*d + hl
                    xs = (XR if hl == 0 else XH) + 2*i + b
                    s2 = "0" if i == 0 else f"v{acc}"
                    a(f"v_dot2_f32_bf16 v{acc}, v{W1+2*i+d}, v{xs}, {s2}")

    def reduce16(base):
        a("s_nop 1")
        for k in range(8):
            a(f"v_permlane32_swap_b32 v{base+k}, v{base+k+8}")
        a("s_nop 1")
        for k in range(8):
            a(f"v_add_f32 v{base+k}, v{base+k}, v{base+k+8}")
        a("s_nop 1")
        for k in range(4):
            a(f"v_permlane16_swap_b32 v{base+k}, v{base+k+4}")
        a("s_nop 1")
        for k in range(4):
            a(f"v_add_f32 v{base+k}, v{base+k}, v{base+k+4}")

    reduce16(AQ)
    for k in range(4):
        a(f"v_permlane32_swap_b32 v{AH+k}, v{AH+k+4}")
    a("s_nop 1")
    for k in range(4):
        a(f"v_add_f32 v{AH+k}, v{AH+k}, v{AH+k+4}")
    a("s_nop 1")
    for k in range(2):
        a(f"v_permlane16_swap_b32 v{AH+k}, v{AH+k+2}")
    a("s_nop 1")
    for k in range(2):
        a(f"v_add_f32 v{AH+k}, v{AH+k}, v{AH+k+2}")
    RG, C = TMP+8, TMP+9
    a(f"v_lshrrev_b32 v2, 1, v{RG}")
    a(f"v_and_b32 v3, 1, v{RG}")
    a(f"v_lshlrev_b32 v{TMP}, 9, v2")
    a(f"v_lshl_add_u32 v{TMP}, v{C}, 5, v{TMP}")
    a(f"v_lshl_add_u32 v{TMP}, v3, 4, v{TMP}")
    a("s_lshl_b32 s10, s3, 10")
    a(f"v_add_u32 v{TMP}, s10, v{TMP}")
    a(f"ds_write_b128 v{TMP}, v[{AQ}:{AQ+3}] offset:{L_QP}")
    a(f"v_lshlrev_b32 v{TMP+1}, 8, v2")
    a(f"v_lshl_add_u32 v{TMP+1}, v{C}, 4, v{TMP+1}")
    a(f"v_lshl_add_u32 v{TMP+1}, v3, 3, v{TMP+1}")
    a("s_lshl_b32 s10, s3, 9")
    a(f"v_add_u32 v{TMP+1}, s10, v{TMP+1}")
    a(f"ds_write_b64 v{TMP+1}, v[{AH}:{AH+1}] offset:{L_HP}")
    VY = 31
    a("s_movk_i32 s10, 320")
    a(f"v_mul_u32_u24 v{VY}, s10, v2")
    a(f"v_lshl_add_u32 v{VY}, v{C}, 5, v{VY}")
    a(f"v_lshl_add_u32 v{VY}, v3, 4, v{VY}")
    a("s_mul_i32 s10, s3, 640")
    a(f"v_add_u32 v{VY}, s10, v{VY}")
    a(f"v_mov_b32 v10, v{RG}")
    a(f"v_mov_b32 v11, v{C}")
    a("v_mov_b32 v2, 0")
    a("v_mov_b32 v3, 1")
    a("s_mov_b64 exec, 1")
    a(f"ds_add_u32 v2, v3 offset:{L_SYNC}")
    a("s_mov_b64 exec, -1")

    def lds_spin(lbl, off, val):
        a(f"s_mov_b32 s12, {opts.maxspin}")
        a.label(lbl)
        a(f"ds_read_b32 v3, v2 offset:{off}")
        a("s_waitcnt lgkmcnt(0)")
        a(f"v_readfirstlane_b32 s10, v3")
        a(f"s_cmp_ge_u32 s10, {val}")
        a(f"s_cbranch_scc1 {lbl}_done")
        a("s_sub_u32 s12, s12, 1")
        a("s_cmp_lg_u32 s12, 0")
        a(f"s_cbranch_scc1 {lbl}")
        a.label(lbl + "_done")
    lds_spin("L_c1spin", L_SYNC, 4)
    stamp(1)

    G = TMP

    def set_tag(r):
        a(f"v_mov_b32 v{r+2}, s68")
        a(f"v_mov_b32 v{r+3}, s69")

    def check_tags(regs, lbl_retry_cnt, lbl_loop, lbl_done):
        for n, r in enumerate(regs):
            dst = "s[70:71]" if n == 0 else "vcc"
            a(f"v_cmp_ne_u64 {dst}, v[{r+2}:{r+3}], s[68:69]")
            if n:
                a("s_or_b64 s[70:71], s[70:71], vcc")
        a("s_cmp_eq_u64 s[70:71], 0")
        a(f"s_cbranch_scc1 {lbl_done}")
        if opts.psleep and lbl_loop != "L_poll1":
            a(f"s_sleep {opts.psleep}")
        a(f"s_sub_u32 {lbl_retry_cnt}, {lbl_retry_cnt}, 1")
        a(f"s_cmp_eq_u32 {lbl_retry_cnt}, 0")
        a(f"s_cbranch_scc0 {lbl_loop}")

    def preperm():
        a("s_mov_b32 s10, 0x05040100")
        a("s_mov_b32 s11, 0x07060302")
        for q in range(2):
            for d in range(4):
                r0, r1 = W2 + 8*q + d, W2 + 8*q + 4 + d
                a(f"v_perm_b32 v{LO2+4*q+d}, v{r1}, v{r0}, s10")
                a(f"v_perm_b32 v{r1}, v{r1}, v{r0}, s11")
        for q in range(4):
            for d in range(4):
                r0, r1 = WO + 8*q + d, WO + 8*q + 4 + d
                a(f"v_perm_b32 v{LOO+4*q+d}, v{r1}, v{r0}, s10")
                a(f"v_perm_b32 v{r1}, v{r1}, v{r0}, s11")

    a("s_cmp_eq_u32 s3, 3")
    a("s_cbranch_scc1 L_h1_gather")
    a(f"v_lshlrev_b32 v2, 3, v0")
    a("s_cmp_eq_u32 s3, 2")
    a("s_cbranch_scc1 L_h1_pubh")
    a("s_lshl_b32 s10, s3, 9")
    a(f"v_add_u32 v2, s10, v2")
    for w in range(4):
        a(f"ds_read_b64 v[{G+4+2*w}:{G+5+2*w}], v2 offset:{L_QP + w*1024}")
    a("s_lshl_b32 s11, s3, 10")
    a("s_branch L_h1_pub")
    a.label("L_h1_pubh")
    for w in range(4):
        a(f"ds_read_b64 v[{G+4+2*w}:{G+5+2*w}], v2 offset:{L_HP + w*512}")
    a("s_movk_i32 s11, 2048")
    a.label("L_h1_pub")
    a("s_mul_i32 s10, s6, 3072")
    a("s_add_u32 s10, s10, s11")
    if WS_H1:
        a(f"s_add_u32 s10, s10, {WS_H1}")
    a(f"v_lshl_add_u32 v3, v0, 4, s10")
    set_tag(G)
    a("s_waitcnt lgkmcnt(0)")
    a(f"v_add_f32 v{G}, v{G+4}, v{G+6}")
    a(f"v_add_f32 v{G+1}, v{G+5}, v{G+7}")
    a(f"v_add_f32 v{G+8}, v{G+8}, v{G+10}")
    a(f"v_add_f32 v{G+9}, v{G+9}, v{G+11}")
    a(f"v_add_f32 v{G}, v{G}, v{G+8}")
    a(f"v_add_f32 v{G+1}, v{G+1}, v{G+9}")
    a(f"buffer_store_dwordx4 v[{G}:{G+3}], v3, s[56:59], 0 offen sc1")
    a("s_cmp_eq_u32 s3, 2")
    a("s_cbranch_scc1 L_h1_gather")
    a("s_waitcnt vmcnt(1)")
    preperm()
    stamp(2)
    a("s_branch L_b3")

    a.label("L_h1_gather")
    a("s_lshl_b32 s10, s7, 10")
    a("s_cmp_eq_u32 s3, 2")
    a("s_cselect_b32 s10, 2048, s10")
    a("s_mul_i32 s11, s4, 24576")
    a("s_add_u32 s10, s10, s11")
    if WS_H1:
        a(f"s_add_u32 s10, s10, {WS_H1}")
    a(f"v_lshl_add_u32 v3, v0, 4, s10")
    for jj in range(1, 8):
        a(f"s_mov_b32 s{88+jj}, {jj*3072}")
    a(f"s_mov_b32 s12, {opts.maxpoll}")
    a("s_mov_b32 s9, 1")
    a.label("L_poll1")
    for jj in range(8):
        so = "0" if jj == 0 else f"s{88+jj}"
        a(f"buffer_load_dwordx4 v[{G+4*jj}:{G+4*jj+3}], v3, s[56:59], {so} offen sc1")
    a("s_cmp_eq_u32 s9, 0")
    a("s_cbranch_scc1 L_poll1_w")
    a("s_mov_b32 s9, 0")
    a("s_waitcnt vmcnt(8)")
    preperm()
    a.label("L_poll1_w")
    a("s_waitcnt vmcnt(0)")
    check_tags([G+4*jj for jj in range(8)], "s12", "L_poll1", "L_poll1_done")
    a.label("L_poll1_done")
    stamp(2)
    for e in range(2):
        a(f"v_add_f32 v{G+e}, v{G+e}, v{G+4+e}")
        a(f"v_add_f32 v{G+8+e}, v{G+8+e}, v{G+12+e}")
        a(f"v_add_f32 v{G+16+e}, v{G+16+e}, v{G+20+e}")
        a(f"v_add_f32 v{G+24+e}, v{G+24+e}, v{G+28+e}")
    for e in range(2):
        a(f"v_add_f32 v{G+e}, v{G+e}, v{G+8+e}")
        a(f"v_add_f32 v{G+16+e}, v{G+16+e}, v{G+24+e}")
    for e in range(2):
        a(f"v_add_f32 v{G+e}, v{G+e}, v{G+16+e}")
    a(f"v_lshlrev_b32 v2, 2, v0")
    a("s_cmp_eq_u32 s3, 2")
    a("s_cbranch_scc0 L_qw")
    a(f"v_max_f32 v{G}, 0, v{G}")
    a(f"v_max_f32 v{G+1}, 0, v{G+1}")
    a(f"v_add_u32 v2, {L_H - L_Q}, v2")
    a.label("L_qw")
    a(f"v_cvt_pk_bf16_f32 v{G}, v{G}, v{G+1}")
    a(f"ds_write_b32 v2, v{G} offset:{L_Q}")
    a("s_cmp_eq_u32 s3, 2")
    a("s_cselect_b32 s10, 8, 4")
    a("v_mov_b32 v2, s10")
    a("v_mov_b32 v3, 1")
    a(f"ds_write_b32 v2, v3 offset:{L_SYNC}")
    a.label("L_b3")
    a("v_mov_b32 v2, 0")
    lds_spin("L_hspin", L_SYNC+8, 1)
    stamp(3)
    AY = ACC
    a("s_lshl_b32 s10, s3, 5")
    a(f"v_lshl_add_u32 v2, v10, 3, s10")
    a(f"ds_read_b64 v[{TMP}:{TMP+1}], v2 offset:{L_H}")
    a(f"ds_read_b64 v[{TMP+2}:{TMP+3}], v2 offset:{L_H+128}")
    a("s_waitcnt lgkmcnt(0)")
    for q in range(2):
        for b in range(2):
            for d in range(4):
                for hl in range(2):
                    acc = AY + 8*b + 2*d + hl
                    w = (LO2 + 4*q + d) if hl == 0 else (W2 + 8*q + 4 + d)
                    s2 = "0" if q == 0 else f"v{acc}"
                    a(f"v_dot2_f32_bf16 v{acc}, v{w}, v{TMP+2*b+q}, {s2}")
    reduce16(AY)
    a("s_nop 0")
    a("v_cmp_gt_u32 vcc, 10, v11")
    a("s_and_saveexec_b64 s[10:11], vcc")
    a(f"ds_write_b128 v{VY}, v[{AY}:{AY+3}] offset:{L_Y2P}")
    a("s_mov_b64 exec, s[10:11]")
    a("s_waitcnt lgkmcnt(0)")
    a("s_barrier")
    stamp(4)

    def publish_y(lds_base, ws_base):
        a(f"v_lshlrev_b32 v2, 3, v0")
        for w in range(4):
            a(f"ds_read_b64 v[{TMP+8+2*w}:{TMP+9+2*w}], v2 offset:{lds_base + w*640}")
        for w in range(4):
            a(f"ds_read_b64 v[{TMP+16+2*w}:{TMP+17+2*w}], v2 offset:{lds_base + w*640 + 512}")
        a("s_mul_i32 s10, s5, 40960")
        a("s_lshl_b32 s11, s4, 6")
        a("s_add_u32 s10, s10, s11")
        a(f"s_add_u32 s10, s10, {ws_base}")
        a("v_lshrrev_b32 v3, 2, v0")
        a("v_lshlrev_b32 v3, 11, v3")
        a("v_and_b32 v2, 3, v0")
        a("v_lshl_add_u32 v3, v2, 4, v3")
        a("v_add_u32 v3, s10, v3")
        a("s_mov_b32 s9, 32768")
        set_tag(TMP)
        set_tag(TMP+4)
        a("s_waitcnt lgkmcnt(4)" if not stamps else "s_waitcnt lgkmcnt(0)")
        for e in range(2):
            a(f"v_add_f32 v{TMP+8+e}, v{TMP+8+e}, v{TMP+10+e}")
            a(f"v_add_f32 v{TMP+12+e}, v{TMP+12+e}, v{TMP+14+e}")
            a(f"v_add_f32 v{TMP+e}, v{TMP+8+e}, v{TMP+12+e}")
        a(f"buffer_store_dwordx4 v[{TMP}:{TMP+3}], v3, s[56:59], 0 offen sc1")
        a("s_waitcnt lgkmcnt(0)")
        for e in range(2):
            a(f"v_add_f32 v{TMP+16+e}, v{TMP+16+e}, v{TMP+18+e}")
            a(f"v_add_f32 v{TMP+20+e}, v{TMP+20+e}, v{TMP+22+e}")
            a(f"v_add_f32 v{TMP+4+e}, v{TMP+16+e}, v{TMP+20+e}")
        a("s_mov_b64 exec, 0xffff")
        a(f"buffer_store_dwordx4 v[{TMP+4}:{TMP+7}], v3, s[56:59], s9 offen sc1")
        a("s_mov_b64 exec, -1")

    a("s_cmp_eq_u32 s3, 0")
    a("s_cbranch_scc1 L_h2_pub")
    a("s_cmp_eq_u32 s3, 3")
    a("s_cbranch_scc0 L_h2_gather")
    publish_y(L_Y2P, WS_H3B)
    stamp(5)
    a("s_branch L_b5")
    a.label("L_h2_pub")
    a("v_mov_b32 v2, 0")
    a(f"ds_read_b128 v[{TMP}:{TMP+3}], v2 offset:{L_ML}")
    a(f"ds_read_b128 v[{TMP+4}:{TMP+7}], v2 offset:{L_ML+16}")
    a(f"ds_read_b128 v[{TMP+8}:{TMP+11}], v2 offset:{L_ML+32}")
    a(f"ds_read_b128 v[{TMP+12}:{TMP+15}], v2 offset:{L_ML+48}")
    a(f"v_lshlrev_b32 v3, 3, v0")
    OPR = ACC
    for w in range(8):
        a(f"ds_read_b64 v[{OPR+2*w}:{OPR+2*w+1}], v3 offset:{L_OP + w*512}")
    a("s_lshl_b32 s10, s6, 11")
    a(f"s_add_u32 s10, s10, {WS_H2}")
    a(f"v_lshl_add_u32 v3, v0, 4, s10")
    a(f"s_mov_b32 s14, 0x{f32bits(LOG2E):08x}")
    GM = TMP + 16
    GO = TMP + 20
    set_tag(GM)
    set_tag(GO)
    a("s_waitcnt lgkmcnt(8)" if not stamps else "s_waitcnt lgkmcnt(0)")
    M = GM
    a(f"v_max3_f32 v{M}, v{TMP}, v{TMP+1}, v{TMP+2}")
    a(f"v_max3_f32 v{M}, v{M}, v{TMP+3}, v{TMP+4}")
    a(f"v_max3_f32 v{M}, v{M}, v{TMP+5}, v{TMP+6}")
    a(f"v_max_f32 v{M}, v{M}, v{TMP+7}")
    for w in range(8):
        a(f"v_sub_f32 v{TMP+w}, v{TMP+w}, v{M}")
    for w in range(8):
        a(f"v_mul_f32 v{TMP+w}, s14, v{TMP+w}")
    for w in range(8):
        a(f"v_exp_f32 v{TMP+w}, v{TMP+w}")
    a("s_nop 0")
    Ls = GM + 1
    a(f"v_mul_f32 v{Ls}, v{TMP}, v{TMP+8}")
    for w in range(1, 8):
        a(f"v_fma_f32 v{Ls}, v{TMP+w}, v{TMP+8+w}, v{Ls}")
    a("s_waitcnt lgkmcnt(0)")
    for e in range(2):
        a(f"v_mul_f32 v{GO+e}, v{TMP}, v{OPR+e}")
    for w in range(1, 8):
        for e in range(2):
            a(f"v_fma_f32 v{GO+e}, v{TMP+w}, v{OPR+2*w+e}, v{GO+e}")
    a(f"buffer_store_dwordx4 v[{GO}:{GO+3}], v3, s[56:59], 0 offen sc1")
    a("s_mov_b64 exec, 0xff")
    a(f"buffer_store_dwordx4 v[{GM}:{GM+3}], v3, s[56:59], 0 offen offset:1024 sc1")
    a("s_mov_b64 exec, -1")
    stamp(5)
    a("s_branch L_b5")
    a.label("L_h2_gather")
    a("s_sub_u32 s9, s3, 1")
    a("s_lshl_b32 s10, s9, 13")
    a("s_lshl_b32 s11, s4, 14")
    a("s_add_u32 s10, s10, s11")
    a(f"s_add_u32 s10, s10, {WS_H2}")
    a(f"v_lshl_add_u32 v3, v0, 4, s10")
    a(f"v_mov_b32 v2, s10")
    a("s_movk_i32 s11, 4096")
    a(f"s_mov_b32 s12, {opts.maxpoll}")
    a.label("L_poll2")
    for s in range(4):
        so = "0" if s < 2 else "s11"
        a(f"buffer_load_dwordx4 v[{G+4*s}:{G+4*s+3}], v3, s[56:59], {so} offen offset:{(s&1)*2048} sc1")
    for s in range(4):
        so = "0" if s < 2 else "s11"
        a(f"buffer_load_dwordx4 v[{G+16+4*s}:{G+19+4*s}], v2, s[56:59], {so} offen offset:{(s&1)*2048+1024} sc1")
    a("s_waitcnt vmcnt(0)")
    check_tags([G+4*s for s in range(8)], "s12", "L_poll2", "L_poll2_done")
    a.label("L_poll2_done")
    stamp(5)
    if stamps and opts.cnt:
        a(f"s_sub_u32 s{ST0+2}, {opts.maxpoll}, s12")
        a(f"s_mov_b32 s{ST0+3}, 0x7fffffff")
    M = 4
    ms = [G+16+4*s for s in range(4)]
    a(f"v_max3_f32 v{M}, v{ms[0]}, v{ms[1]}, v{ms[2]}")
    a(f"v_max_f32 v{M}, v{M}, v{ms[3]}")
    a(f"s_mov_b32 s14, 0x{f32bits(LOG2E):08x}")
    for s in range(4):
        a(f"v_sub_f32 v{ms[s]}, v{ms[s]}, v{M}")
    for s in range(4):
        a(f"v_mul_f32 v{ms[s]}, s14, v{ms[s]}")
    for s in range(4):
        a(f"v_exp_f32 v{ms[s]}, v{ms[s]}")
    a("s_nop 0")
    Ls, O0, O1 = 5, 6, 7
    a(f"v_mul_f32 v{Ls}, v{ms[0]}, v{ms[0]+1}")
    a(f"v_mul_f32 v{O0}, v{ms[0]}, v{G}")
    a(f"v_mul_f32 v{O1}, v{ms[0]}, v{G+1}")
    for s in range(1, 4):
        a(f"v_fma_f32 v{Ls}, v{ms[s]}, v{ms[s]+1}, v{Ls}")
        a(f"v_fma_f32 v{O0}, v{ms[s]}, v{G+4*s}, v{O0}")
        a(f"v_fma_f32 v{O1}, v{ms[s]}, v{G+4*s+1}, v{O1}")
    a(f"v_rcp_f32 v{Ls}, v{Ls}")
    a(f"v_lshlrev_b32 v2, 2, v0")
    a("s_lshl_b32 s10, s9, 8")
    a(f"v_add_u32 v2, s10, v2")
    a(f"v_mul_f32 v{O0}, v{O0}, v{Ls}")
    a(f"v_mul_f32 v{O1}, v{O1}, v{Ls}")
    a(f"v_cvt_pk_bf16_f32 v{O0}, v{O0}, v{O1}")
    a(f"ds_write_b32 v2, v{O0} offset:{L_OO}")
    a.label("L_b5")
    a("s_waitcnt lgkmcnt(0)")
    a("s_barrier")
    a("s_lshl_b32 s10, s3, 6")
    a(f"v_lshl_add_u32 v2, v10, 4, s10")
    a(f"ds_read_b128 v[{TMP}:{TMP+3}], v2 offset:{L_OO}")
    a(f"ds_read_b128 v[{TMP+4}:{TMP+7}], v2 offset:{L_OO+256}")
    a("s_waitcnt lgkmcnt(0)")
    for q in range(4):
        for b in range(2):
            for d in range(4):
                for hl in range(2):
                    acc = AY + 8*b + 2*d + hl
                    w = (LOO + 4*q + d) if hl == 0 else (WO + 8*q + 4 + d)
                    s2 = "0" if q == 0 else f"v{acc}"
                    a(f"v_dot2_f32_bf16 v{acc}, v{w}, v{TMP+4*b+q}, {s2}")
    reduce16(AY)
    a("s_nop 0")
    a("v_cmp_gt_u32 vcc, 10, v11")
    a("s_and_saveexec_b64 s[10:11], vcc")
    a(f"ds_write_b128 v{VY}, v[{AY}:{AY+3}] offset:{L_Y1P}")
    a("s_mov_b64 exec, s[10:11]")
    a("s_waitcnt lgkmcnt(0)")
    a("s_barrier")
    stamp(6)
    a("s_cmp_eq_u32 s3, 0")
    a("s_cbranch_scc0 L_final")
    publish_y(L_Y1P, WS_H3A)
    stamp(7)
    a("s_branch L_fin")
    a.label("L_final")
    a("s_cmp_eq_u32 s3, 3")
    a("s_cbranch_scc0 L_fin")
    a("s_cmp_ge_u32 s4, 20")
    a("s_cbranch_scc1 L_fin")
    a("s_mul_i32 s10, s5, 20")
    a("s_add_u32 s10, s10, s4")
    a("s_lshl_b32 s10, s10, 11")
    a(f"s_add_u32 s10, s10, {WS_H3A}")
    a(f"v_lshl_add_u32 v3, v0, 4, s10")
    a(f"s_mov_b32 s11, {WS_H3B - WS_H3A}")
    a("s_cmp_ge_u32 s4, 10")
    a("s_cselect_b32 s9, 560, 0")
    a("s_lshl_b32 s10, s4, 3")
    a("s_add_u32 s9, s9, s10")
    a("s_mul_i32 s10, s5, 80")
    a("s_add_u32 s9, s9, s10")
    a("v_and_b32 v4, 3, v0")
    a("v_lshlrev_b32 v4, 1, v4")
    a("v_lshrrev_b32 v5, 5, v0")
    a("v_add_u32 v4, v4, v5")
    a("v_add_u32 v4, s9, v4")
    a("v_lshlrev_b32 v4, 1, v4")
    a("buffer_load_ushort v5, v4, s[40:43], 0 offen")
    a(f"s_mov_b32 s12, {opts.maxpoll}")
    a.label("L_poll3")
    a(f"buffer_load_dwordx4 v[{G}:{G+3}], v3, s[56:59], 0 offen sc1")
    a(f"buffer_load_dwordx4 v[{G+4}:{G+7}], v3, s[56:59], 0 offen offset:1024 sc1")
    a(f"buffer_load_dwordx4 v[{G+8}:{G+11}], v3, s[56:59], s11 offen sc1")
    a(f"buffer_load_dwordx4 v[{G+12}:{G+15}], v3, s[56:59], s11 offen offset:1024 sc1")
    a("s_waitcnt vmcnt(0)")
    check_tags([G, G+4, G+8, G+12], "s12", "L_poll3", "L_poll3_done")
    a.label("L_poll3_done")
    if stamps and opts.cnt:
        a(f"s_sub_u32 s{ST0+2}, {opts.maxpoll}, s12")
        a(f"s_mov_b32 s{ST0+3}, 0x7fffffff")
        stamp(2)
    U0, U1, W0_, W1_ = G, G+1, G+8, G+9
    a(f"v_add_f32 v{U0}, v{G}, v{G+4}")
    a(f"v_add_f32 v{U1}, v{G+1}, v{G+5}")
    a(f"v_add_f32 v{W0_}, v{G+8}, v{G+12}")
    a(f"v_add_f32 v{W1_}, v{G+9}, v{G+13}")
    a("s_nop 1")
    for ctrl in ["row_ror:4", "row_ror:8"]:
        for r in (U0, U1, W0_, W1_):
            a(f"v_add_f32_dpp v{r}, v{r}, v{r} {ctrl} row_mask:0xf bank_mask:0xf")
        a("s_nop 0")
    a("s_nop 0")
    a(f"v_permlane32_swap_b32 v{U0}, v{U1}")
    a(f"v_permlane32_swap_b32 v{W0_}, v{W1_}")
    a("s_nop 1")
    a(f"v_add_f32 v{U0}, v{U0}, v{U1}")
    a(f"v_add_f32 v{W0_}, v{W0_}, v{W1_}")
    a("s_nop 0")
    a(f"v_mov_b32 v{U1}, v{U0}")
    a(f"v_mov_b32 v{W1_}, v{W0_}")
    a("s_nop 1")
    a(f"v_permlane16_swap_b32 v{U0}, v{U1}")
    a(f"v_permlane16_swap_b32 v{W0_}, v{W1_}")
    a("s_nop 1")
    Y1, Y2 = U0, W0_
    a(f"v_add_f32 v{Y1}, v{U0}, v{U1}")
    a(f"v_add_f32 v{Y2}, v{W0_}, v{W1_}")
    a(f"v_cvt_pk_bf16_f32 v{Y2}, v{Y2}, v{Y1}")
    a("s_mov_b32 s15, 0xffff0000")
    a(f"v_and_b32 v{Y1}, s15, v{Y2}")
    a(f"v_lshlrev_b32 v{Y2}, 16, v{Y2}")
    a(f"s_mov_b32 s14, 0x{f32bits(-LOG2E):08x}")
    a(f"v_mul_f32 v7, s14, v{Y2}")
    a(f"v_exp_f32 v7, v7")
    a("s_nop 0")
    a(f"v_add_f32 v7, 1.0, v7")
    a(f"v_rcp_f32 v7, v7")
    a("s_nop 0")
    a(f"v_mul_f32 v{Y2}, v{Y2}, v7")
    a(f"v_cvt_pk_bf16_f32 v{Y2}, v{Y2}, 0")
    a(f"v_lshlrev_b32 v{Y2}, 16, v{Y2}")
    a(f"v_mul_f32 v{Y1}, v{Y1}, v{Y2}")
    a(f"v_cvt_pk_bf16_f32 v{Y1}, v{Y1}, 0")
    a(f"v_lshlrev_b32 v{Y1}, 16, v{Y1}")
    a(f"v_lshlrev_b32 v5, 16, v5")
    a(f"v_add_f32 v{Y1}, v5, v{Y1}")
    a(f"v_cvt_pk_bf16_f32 v{Y1}, v{Y1}, 0")
    if opts.hold:
        a.label("L_hold")
        a("s_memrealtime s[88:89]")
        a("s_waitcnt lgkmcnt(0)")
        a(f"s_sub_u32 s10, s88, s{ST0}")
        a(f"s_cmp_lt_u32 s10, {opts.hold}")
        a("s_cbranch_scc1 L_hold")
    a("s_mov_b32 s10, 15")
    a("s_mov_b32 s11, 15")
    a("s_mov_b64 exec, s[10:11]")
    a(f"buffer_store_short v{Y1}, v4, s[64:67], 0 offen")
    a("s_cmp_lg_u32 s6, 0")
    a("s_cbranch_scc1 L_noep")
    a("s_mov_b64 exec, 1")
    a(f"v_mov_b32 v2, {WS_EPOCH}")
    a("v_mov_b32 v3, s68")
    a("buffer_store_dword v3, v2, s[56:59], 0 offen sc1")
    a.label("L_noep")
    a("s_mov_b64 exec, -1")
    stamp(7)
    a.label("L_fin")
    if stamps:
        a("s_mul_i32 s90, s6, 12")
        a("s_add_u32 s90, s90, s3")
        a("s_lshl_b32 s90, s90, 6")
        a(f"s_add_u32 s90, s90, {WS_STAMP}")
        a("v_mov_b32 v2, s90")
        a("s_waitcnt lgkmcnt(0)")
        for i in range(16):
            a(f"v_mov_b32 v{8+i}, s{ST0+i}")
        a("s_mov_b64 exec, 1")
        for q in range(4):
            a(f"buffer_store_dwordx4 v[{8+4*q}:{11+4*q}], v2, s[56:59], 0 offen offset:{16*q}")
        if opts.dbgout:
            a("s_cmp_lg_u32 s3, 3")
            a("s_cbranch_scc1 L_end")
            a("s_cmp_eq_u32 s6, 0")
            a("s_cselect_b32 s10, 0, 32")
            a("s_cbranch_scc1 L_dbgw")
            a("s_cmp_lg_u32 s6, 101")
            a("s_cbranch_scc1 L_end")
            a.label("L_dbgw")
            for i in range(8):
                a(f"s_sub_u32 s11, s{ST0+2*i}, s{ST0}")
                a(f"v_mov_b32 v{8+i}, s11")
            a("v_mov_b32 v2, s10")
            a("global_store_dwordx4 v2, v[8:11], s[34:35]")
            a("global_store_dwordx4 v2, v[12:15], s[34:35] offset:16")
    a.label("L_end")
    a("s_endpgm")

    nv = 168
    out = HEADER
    out += f"; @launch grid=(256,1,1) block=(768,1,1) lds={L_TOTAL}\n"
    out += '.amdgcn_target "amdgcn-amd-amdhsa--gfx950"\n.text\n'
    out += f".globl {KNAME}\n.p2align 8\n.type {KNAME},@function\n{KNAME}:\n"
    out += "\n".join(a.l) + "\n"
    out += f""".section .rodata,"a"
.p2align 6
.amdhsa_kernel {KNAME}
  .amdhsa_next_free_vgpr {nv}
  .amdhsa_next_free_sgpr 96
  .amdhsa_accum_offset {nv}
  .amdhsa_group_segment_fixed_size 0
  .amdhsa_kernarg_size 88
  .amdhsa_user_sgpr_count 2
  .amdhsa_user_sgpr_kernarg_segment_ptr 1
  .amdhsa_system_sgpr_workgroup_id_x 1
.end_amdhsa_kernel
"""
    return out


if __name__ == "__main__":
    p = argparse.ArgumentParser()
    p.add_argument("-o", default="recurrent_scan__sliding_block_cached__dense_activation_relu__decode.s")
    p.add_argument("--kvpol", default="nt")
    p.add_argument("--wpol", default="nt")
    p.add_argument("--stamps", action="store_true")
    p.add_argument("--maxpoll", type=int, default=20000)
    p.add_argument("--dbgout", action="store_true")
    p.add_argument("--hold", type=int, default=0)
    p.add_argument("--xcdmap", action="store_true")
    p.add_argument("--psleep", type=int, default=0)
    p.add_argument("--jxor", type=int, default=0)
    p.add_argument("--cnt", action="store_true")
    p.add_argument("--maxspin", type=int, default=2000000)
    p.add_argument("--dbgst", action="store_true")
    p.add_argument("--rotg", type=int, default=1)
    p.add_argument("--rotw", type=int, default=4)
    o = p.parse_args()
    open(o.o, "w").write(gen(o))
    print("wrote", o.o)
```

```python
import sys, argparse, struct
from asmh import A
from gen2 import HEADER, KNAME

WS_H1 = 0x0
WS_H2 = 0xC0000
WS_ML = 0x100000
WS_H1F = 0x110000
WS_H2F = 0x118000
WS_H3A = 0x140000
WS_H3B = 0x190000
WS_EPOCH = 0x1F0000
WS_STAMP = 0x200000
WS_SIZE = 0x400000

L_QP = 0
L_HP = 4096
L_Q = 6144
L_H = 6400
L_OP = 6656
L_ML = 10752
L_F = 10816
L_TAG = 10848
L_Y2P = 11392
L_Y1P = 13952
L_SYNC = 18048
L_TOTAL = 18176
C1, QF, HF, C2, FF, C3, C4, C5, C6, HG = [L_SYNC + 4 * i for i in range(10)]

LOG2E = 1.4426950408889634
OOB = 0x40000000
LANES10 = "0x03ff03ff"


def f32bits(x):
    return struct.unpack('<I', struct.pack('<f', x))[0]


def gen(opts):
    a = A()
    kvpol = opts.kvpol
    wpol = opts.wpol
    stamps = opts.stamps
    W = opts.win
    ST0 = 72

    def stamp(idx):
        if stamps:
            a(f"s_memrealtime s[{ST0+2*idx}:{ST0+2*idx+1}]")

    uid = [0]

    def lds_spin(off, val, vz, vt, sleep=0):
        uid[0] += 1
        lbl = f"L_spin{uid[0]}"
        a(f"s_mov_b32 s12, {opts.maxspin}")
        a.label(lbl)
        a(f"ds_read_b32 v{vt}, v{vz} offset:{off}")
        a("s_waitcnt lgkmcnt(0)")
        a(f"v_readfirstlane_b32 s10, v{vt}")
        a(f"s_cmp_ge_u32 s10, {val}")
        a(f"s_cbranch_scc1 {lbl}_done")
        if sleep:
            a(f"s_sleep {sleep}")
        a("s_sub_u32 s12, s12, 1")
        a("s_cmp_lg_u32 s12, 0")
        a(f"s_cbranch_scc1 {lbl}")
        a.label(lbl + "_done")

    def lds_arrive(off, vz, vt, rtn=False):
        a(f"v_mov_b32 v{vt}, 1")
        a("s_mov_b64 exec, 1")
        if rtn:
            a(f"ds_add_rtn_u32 v{vt}, v{vz}, v{vt} offset:{off}")
        else:
            a(f"ds_add_u32 v{vz}, v{vt} offset:{off}")
        a("s_mov_b64 exec, -1")
        if rtn:
            a("s_waitcnt lgkmcnt(0)")
            a(f"v_readfirstlane_b32 s10, v{vt}")

    def set_tag(r):
        a(f"v_mov_b32 v{r+2}, s68")
        a(f"v_mov_b32 v{r+3}, s69")

    def tags_bad(regs):
        for n, r in enumerate(regs):
            dst = "s[70:71]" if n == 0 else "vcc"
            a(f"v_cmp_ne_u64 {dst}, v[{r+2}:{r+3}], s[68:69]")
            if n:
                a("s_or_b64 s[70:71], s[70:71], vcc")
        a("s_cmp_eq_u64 s[70:71], 0")

    def pipelined_poll(name, nsets, setregs, issue, stag, res, slow=0):
        nl = len(setregs[0])
        a(f"s_mov_b32 s12, {opts.maxpoll}")
        a("s_mov_b64 s[38:39], -1")
        for k in range(nsets):
            issue(k)
            if k + 1 < nsets and stag:
                a(f"s_sleep {stag}")
        a.label(f"L_{name}")
        for k in range(nsets):
            a(f"s_waitcnt vmcnt({(nsets-1)*nl})")
            for n, r in enumerate(setregs[k]):
                dst = "s[70:71]" if n == 0 else "vcc"
                a(f"v_cmp_eq_u64 {dst}, v[{r+2}:{r+3}], s[68:69]")
                if n:
                    a("s_and_b64 s[70:71], s[70:71], vcc")
            a("s_and_b64 exec, s[70:71], s[38:39]")
            for n, r in enumerate(setregs[k]):
                a(f"v_mov_b32 v{res[2*n]}, v{r}")
                a(f"v_mov_b32 v{res[2*n+1]}, v{r+1}")
            a("s_andn2_b64 s[38:39], s[38:39], s[70:71]")
            a("s_mov_b64 exec, s[38:39]")
            a(f"s_cbranch_scc0 L_{name}_done")
            if slow:
                a("s_bcnt1_i32_b64 s10, s[38:39]")
                a(f"s_cmp_lt_u32 s10, {slow[0]}")
                uid[0] += 1
                a(f"s_cbranch_scc1 L_fast{uid[0]}")
                a(f"s_sleep {slow[1]}")
                a.label(f"L_fast{uid[0]}")
            issue(k)
            a("s_mov_b64 exec, -1")
        a("s_sub_u32 s12, s12, 1")
        a("s_cmp_lg_u32 s12, 0")
        a(f"s_cbranch_scc1 L_{name}")
        a.label(f"L_{name}_done")
        a("s_mov_b64 exec, -1")

    def hint_poll(name, ws_off_sgpr, sleep):
        a(f"s_add_u32 s14, s56, s{ws_off_sgpr}")
        a("s_addc_u32 s15, s57, 0")
        a(f"s_mov_b32 s12, {opts.maxpoll}")
        a.label(f"L_{name}")
        a("s_load_dwordx16 s[16:31], s[14:15], 0 glc")
        a("s_waitcnt lgkmcnt(0)")
        for i in range(8):
            a(f"s_cmp_eq_u64 s[{16+2*i}:{17+2*i}], s[68:69]")
            a(f"s_cbranch_scc0 L_{name}_no")
        a(f"s_branch L_{name}_done")
        a.label(f"L_{name}_no")
        if sleep:
            a(f"s_sleep {sleep}")
        a("s_sub_u32 s12, s12, 1")
        a("s_cmp_lg_u32 s12, 0")
        a(f"s_cbranch_scc1 L_{name}")
        a.label(f"L_{name}_done")

    a("s_cmp_ge_u32 s2, 256")
    a("s_cbranch_scc1 L_end")
    a("s_load_dwordx16 s[16:31], s[0:1], 0")
    a("s_load_dwordx4 s[32:35], s[0:1], 64")
    a("s_load_dwordx2 s[36:37], s[0:1], 80")
    if stamps:
        for i in range(1, 8):
            a(f"s_mov_b64 s[{ST0+2*i}:{ST0+2*i+1}], 0")
        stamp(0)
    a("v_lshrrev_b32 v1, 6, v0")
    a("v_and_b32 v0, 63, v0")
    if opts.map == "C":
        a("s_and_b32 s4, s2, 7")
        a("s_lshr_b32 s5, s2, 6")
        a("s_lshl_b32 s5, s5, 3")
        a("s_or_b32 s4, s4, s5")
        a("s_lshr_b32 s5, s2, 3")
        a("s_and_b32 s5, s5, 7")
    else:
        a("s_lshr_b32 s4, s2, 3")
        a("s_and_b32 s5, s2, 7")
    a("v_readfirstlane_b32 s3, v1")
    a("s_lshl_b32 s6, s4, 3")
    a("s_or_b32 s6, s6, s5")
    a("s_lshr_b32 s7, s5, 2")
    a("s_and_b32 s8, s5, 3")
    a(f"s_mov_b32 s58, {WS_SIZE}")
    a("s_mov_b32 s59, 0x00020000")
    a("s_cmp_lt_u32 s3, 4")
    a("s_cbranch_scc1 L_aux")

    VOFF, VQ, VT, VS, VACC, VK, VV, VF = 1, 2, 6, 8, 24, 32, 96, 160
    a.c("---- streaming wave ----")
    a("s_sub_u32 s3, s3, 4")
    a("s_lshl_b32 s9, s7, 5")
    a("s_add_u32 s9, s9, s4")
    a("s_lshl_b32 s9, s9, 21")
    a("s_lshl_b32 s10, s8, 17")
    a("s_add_u32 s9, s9, s10")
    a("s_add_u32 s9, s9, 1572864")
    a("s_lshl_b32 s10, s3, 14")
    a(f"v_lshl_add_u32 v{VOFF}, v0, 4, s10")
    a(f"s_mul_i32 s11, s4, {opts.rotg}")
    a(f"s_mul_i32 s12, s3, {opts.rotw}")
    a("s_add_u32 s11, s11, s12")
    a("s_lshl_b32 s11, s11, 10")
    a("s_mov_b32 s42, 131072")
    a("s_mov_b32 s43, 0x00020000")
    a("s_mov_b32 s46, 131072")
    a("s_mov_b32 s47, 0x00020000")
    a("s_cmp_lt_u32 s4, 20")
    a("s_cselect_b32 s13, 1, 0")
    a("s_cmp_lt_u32 s3, 2")
    a("s_cselect_b32 s13, s13, 0")
    a("s_cmp_ge_u32 s4, 10")
    a("s_cselect_b32 s14, 560, 0")
    a("s_lshl_b32 s10, s4, 3")
    a("s_add_u32 s14, s14, s10")
    a("s_mul_i32 s10, s5, 80")
    a("s_add_u32 s14, s14, s10")
    a("s_lshl_b32 s10, s3, 2")
    a("s_add_u32 s14, s14, s10")
    VXV = VK + 63
    a(f"v_and_b32 v{VT}, 1, v0")
    a(f"v_lshlrev_b32 v{VT}, 1, v{VT}")
    a(f"v_lshrrev_b32 v{VT+1}, 5, v0")
    a(f"v_add3_u32 v{VT}, v{VT}, v{VT+1}, s14")
    a(f"v_lshlrev_b32 v{VQ}, 1, v{VT}")
    a("s_waitcnt lgkmcnt(0)")
    a("s_add_u32 s40, s18, s9")
    a("s_addc_u32 s41, s19, 0")
    a("s_add_u32 s44, s20, s9")
    a("s_addc_u32 s45, s21, 0")
    a("s_mov_b32 s56, s36")
    a("s_mov_b32 s57, s37")
    a("s_mov_b32 s48, s16")
    a("s_mov_b32 s49, s17")
    a("s_movk_i32 s50, 2560")
    a("s_mov_b32 s51, 0x00020000")
    a("s_mov_b32 s64, s32")
    a("s_mov_b32 s65, s33")
    a("s_movk_i32 s66, 2560")
    a("s_mov_b32 s67, 0x00020000")
    for i in range(16):
        a(f"s_add_u32 s{16+i}, s11, {i*1024}")
        a(f"s_and_b32 s{16+i}, s{16+i}, 0x3c00")
    a("s_barrier")
    a("s_cmp_eq_u32 s13, 0")
    a("s_cbranch_scc1 L_nox")
    a(f"buffer_load_ushort v{VF+7+0}, v{VQ}, s[48:51], 0 offen")
    a.label("L_nox")
    XV = VF + 7
    issued = [0]

    def issue(n):
        if n < 16:
            a(f"buffer_load_dwordx4 v[{VK+4*n}:{VK+4*n+3}], v{VOFF}, s[40:43], s{16+n} offen {kvpol}")
        else:
            i = n - 16
            a(f"buffer_load_dwordx4 v[{VV+4*i}:{VV+4*i+3}], v{VOFF}, s[44:47], s{16+i} offen {kvpol}")
        issued[0] = n + 1

    a(f"v_mov_b32 v{VT+1}, 0")
    for n in range(W):
        issue(n)
    for n in range(W, 32):
        a(f"ds_read_b32 v{VT}, v{VT+1} offset:{QF}")
        a(f"s_waitcnt vmcnt({W-1})")
        a("s_waitcnt lgkmcnt(0)")
        a(f"v_readfirstlane_b32 s10, v{VT}")
        a("s_cmp_lg_u32 s10, 0")
        a(f"s_cbranch_scc1 L_burst{n}")
        issue(n)
    lds_spin(QF, 1, VT + 1, VT, sleep=1)
    a("s_branch L_qready")
    for n in range(W, 32):
        a.label(f"L_burst{n}")
        issue(n)
    a.label("L_qready")
    a(f"v_and_b32 v{VT}, 15, v0")
    a(f"v_lshlrev_b32 v{VT}, 4, v{VT}")
    a(f"ds_read_b128 v[{VQ}:{VQ+3}], v{VT} offset:{L_Q}")
    a(f"ds_read_b64 v[{VS}:{VS+1}], v{VT+1} offset:{L_TAG}")
    stamp(1)
    a("s_waitcnt lgkmcnt(0)")
    a(f"v_readfirstlane_b32 s68, v{VS}")
    a(f"v_readfirstlane_b32 s69, v{VS+1}")
    for grp in range(4):
        a(f"s_waitcnt vmcnt({16 + 12 - 4*grp})")
        for d in range(4):
            for i in range(4*grp, 4*grp+4):
                src2 = "0" if d == 0 else f"v{VS+i}"
                a(f"v_dot2_f32_bf16 v{VS+i}, v{VK+4*i+d}, v{VQ+d}, {src2}")
    for ctrl in ["quad_perm:[1,0,3,2]", "quad_perm:[2,3,0,1]", "row_half_mirror", "row_mirror"]:
        for i in range(16):
            a(f"v_add_f32_dpp v{VS+i}, v{VS+i}, v{VS+i} {ctrl} row_mask:0xf bank_mask:0xf")
    a(f"s_mov_b32 s14, 0x{f32bits(128 ** -0.5):08x}")
    a("s_mov_b32 s15, 0xffff0000")
    for rnd in range(2):
        for p in range(8):
            a(f"v_cvt_pk_bf16_f32 v{VK+p}, v{VS+2*p}, v{VS+2*p+1}")
        for p in range(8):
            a(f"v_lshlrev_b32 v{VS+2*p}, 16, v{VK+p}")
            a(f"v_and_b32 v{VS+2*p+1}, s15, v{VK+p}")
        if rnd == 0:
            for i in range(16):
                a(f"v_mul_f32 v{VS+i}, s14, v{VS+i}")
    m = VT
    a(f"v_max3_f32 v{m}, v{VS}, v{VS+1}, v{VS+2}")
    for i in range(3, 15, 2):
        a(f"v_max3_f32 v{m}, v{m}, v{VS+i}, v{VS+i+1}")
    a(f"v_max_f32 v{m}, v{m}, v{VS+15}")
    for r in range(4):
        a(f"v_readlane_b32 s{60+r}, v{m}, {16*r}")
    a(f"v_mov_b32 v{m}, s60")
    a(f"v_max_f32 v{m}, s61, v{m}")
    a(f"v_max_f32 v{m}, s62, v{m}")
    a(f"v_max_f32 v{m}, s63, v{m}")
    a(f"s_mov_b32 s14, 0x{f32bits(LOG2E):08x}")
    for i in range(16):
        a(f"v_sub_f32 v{VS+i}, v{VS+i}, v{m}")
    for i in range(16):
        a(f"v_mul_f32 v{VS+i}, s14, v{VS+i}")
    for i in range(16):
        a(f"v_exp_f32 v{VS+i}, v{VS+i}")
    PLO, PHI = VK, VK + 16
    a(f"v_mov_b32 v{VXV}, v{XV}")
    for i in range(16):
        a(f"v_cvt_pk_bf16_f32 v{PLO+i}, v{VS+i}, 0")
    for i in range(16):
        a(f"v_lshlrev_b32 v{PHI+i}, 16, v{PLO+i}")
    lsum = VT + 1
    a(f"v_add_f32 v{lsum}, v{VS}, v{VS+1}")
    for i in range(2, 16):
        a(f"v_add_f32 v{lsum}, v{lsum}, v{VS+i}")
    for r in range(4):
        a(f"v_readlane_b32 s{60+r}, v{lsum}, {16*r}")
    a(f"v_mov_b32 v{lsum}, s60")
    a(f"v_add_f32 v{lsum}, s61, v{lsum}")
    a(f"v_add_f32 v{lsum}, s62, v{lsum}")
    a(f"v_add_f32 v{lsum}, s63, v{lsum}")
    VZ = VQ
    a(f"s_lshl_b32 s10, s3, 2")
    a(f"v_mov_b32 v{VS}, s10")
    a(f"v_mov_b32 v{VZ}, 0")
    a(f"ds_write_b32 v{VS}, v{m} offset:{L_ML}")
    a(f"ds_write_b32 v{VS}, v{lsum} offset:{L_ML+32}")
    lds_arrive(C2, VZ, VS + 1)
    a(f"v_and_b32 v{VS}, 15, v0")
    a(f"v_lshlrev_b32 v{VS}, 5, v{VS}")
    a(f"v_lshrrev_b32 v{VS+1}, 4, v0")
    a(f"v_lshl_add_u32 v{VS}, v{VS+1}, 3, v{VS}")
    a(f"s_lshl_b32 s10, s3, 9")
    a(f"v_add_u32 v{VS}, s10, v{VS}")
    VCA, VPA, GO = VS + 2, VS + 3, VS + 4
    a(f"v_lshlrev_b32 v{VCA}, 3, v0")
    a("s_lshl_b32 s10, s6, 10")
    a(f"s_add_u32 s10, s10, {WS_H2}")
    a(f"v_lshl_add_u32 v{VPA}, v0, 4, s10")
    set_tag(GO)
    for i in range(16):
        a(f"s_waitcnt vmcnt({15 - i})")
        if i == opts.hpos:
            lds_arrive(C6, VZ, VS + 8)
        if i == opts.fpos:
            stamp(3)
            lds_spin(FF, 1, VZ, VS + 8, sleep=1)
            a(f"ds_read_b128 v[{VF}:{VF+3}], v{VZ} offset:{L_F}")
            a(f"ds_read_b128 v[{VF+4}:{VF+7}], v{VZ} offset:{L_F+16}")
            a("s_setprio 3")
        for d in range(4):
            s2a = "0" if i == 0 else f"v{VACC+2*d}"
            s2b = "0" if i == 0 else f"v{VACC+2*d+1}"
            a(f"v_dot2_f32_bf16 v{VACC+2*d}, v{VV+4*i+d}, v{PLO+i}, {s2a}")
            a(f"v_dot2_f32_bf16 v{VACC+2*d+1}, v{VV+4*i+d}, v{PHI+i}, {s2b}")
    assert issued[0] == 32
    for e in range(4):
        a(f"v_permlane32_swap_b32 v{VACC+e}, v{VACC+e+4}")
    for e in range(4):
        a(f"v_add_f32 v{VACC+e}, v{VACC+e}, v{VACC+e+4}")
    a(f"v_permlane16_swap_b32 v{VACC}, v{VACC+2}")
    a(f"v_permlane16_swap_b32 v{VACC+1}, v{VACC+3}")
    a(f"v_add_f32 v{VACC}, v{VACC}, v{VACC+2}")
    a(f"v_add_f32 v{VACC+1}, v{VACC+1}, v{VACC+3}")
    a(f"ds_write_b64 v{VS}, v[{VACC}:{VACC+1}] offset:{L_OP}")
    lds_arrive(C3, VZ, VS + 8, rtn=True)
    stamp(2)
    a("s_cmp_eq_u32 s10, 7")
    a("s_cbranch_scc0 L_nocomb")
    OPR = VK
    for w in range(8):
        a(f"ds_read_b64 v[{OPR+2*w}:{OPR+2*w+1}], v{VCA} offset:{L_OP + w*512}")
    for w in range(8):
        a(f"s_waitcnt lgkmcnt({7-w})")
        for e in range(2):
            if w == 0:
                a(f"v_mul_f32 v{GO+e}, v{VF}, v{OPR+e}")
            else:
                a(f"v_fma_f32 v{GO+e}, v{VF+w}, v{OPR+2*w+e}, v{GO+e}")
    a(f"buffer_store_dwordx4 v[{GO}:{GO+3}], v{VPA}, s[56:59], 0 offen sc1")
    stamp(4)
    a.label("L_nocomb")
    a("s_cmp_eq_u32 s13, 0")
    a("s_cbranch_scc1 L_sfin")
    a("s_cmp_ge_u32 s4, 10")
    a("s_cselect_b32 s9, 70, 0")
    a("s_add_u32 s9, s9, s4")
    a("s_mul_i32 s10, s5, 10")
    a("s_add_u32 s9, s9, s10")
    a("s_lshl_b32 s9, s9, 1")
    a("s_add_u32 s9, s9, s3")
    a("s_lshl_b32 s9, s9, 10")
    a(f"s_add_u32 s9, s9, {WS_H3A}")
    FA, FO = VS, VS + 1
    a(f"v_lshl_add_u32 v{FA}, v0, 4, s9")
    a(f"s_mov_b32 s11, {WS_H3B - WS_H3A}")
    P = VK

    def reduce_duo(r0):
        for ctrl in ["quad_perm:[2,3,0,1]", "row_ror:4", "row_ror:8"]:
            a(f"v_add_f32_dpp v{r0}, v{r0}, v{r0} {ctrl} row_mask:0xf bank_mask:0xf")
            a(f"v_add_f32_dpp v{r0+1}, v{r0+1}, v{r0+1} {ctrl} row_mask:0xf bank_mask:0xf")
        a(f"v_permlane32_swap_b32 v{r0}, v{r0+1}")
        a(f"v_add_f32 v{r0}, v{r0}, v{r0+1}")
        a(f"v_mov_b32 v{r0+1}, v{r0}")
        a(f"v_permlane16_swap_b32 v{r0}, v{r0+1}")
        a(f"v_add_f32 v{r0}, v{r0}, v{r0+1}")

    RY2, RY1 = P + 4, P + 6
    pipelined_poll("pollY2", 1, [[P]],
                   lambda k: a(f"buffer_load_dwordx4 v[{P}:{P+3}], v{FA}, s[56:59], s11 offen sc1"), 0,
                   [RY2, RY2 + 1], slow=(1, 8))
    n3 = opts.npoll3
    Y1S = [[P + 8 + 4*k] for k in range(n3)]
    a("s_cmp_ge_u32 s4, 10")
    a("s_cselect_b32 s14, 560, 0")
    a("s_lshl_b32 s10, s4, 3")
    a("s_add_u32 s14, s14, s10")
    a("s_mul_i32 s10, s5, 80")
    a("s_add_u32 s14, s14, s10")
    a("s_lshl_b32 s10, s3, 2")
    a("s_add_u32 s14, s14, s10")
    a(f"v_and_b32 v{FO}, 1, v0")
    a(f"v_lshlrev_b32 v{FO}, 1, v{FO}")
    a(f"v_lshrrev_b32 v{FO+1}, 5, v0")
    a(f"v_add3_u32 v{FO}, v{FO}, v{FO+1}, s14")
    a(f"v_lshlrev_b32 v{FO}, 1, v{FO}")
    reduce_duo(RY2)
    Y2 = RY2
    T7 = P
    a(f"v_cvt_pk_bf16_f32 v{Y2}, v{Y2}, 0")
    a(f"v_lshlrev_b32 v{Y2}, 16, v{Y2}")
    a(f"s_mov_b32 s14, 0x{f32bits(-LOG2E):08x}")
    a(f"v_mul_f32 v{T7}, s14, v{Y2}")
    a(f"v_exp_f32 v{T7}, v{T7}")
    a(f"v_add_f32 v{T7}, 1.0, v{T7}")
    a(f"v_rcp_f32 v{T7}, v{T7}")
    a(f"v_mul_f32 v{Y2}, v{Y2}, v{T7}")
    a(f"v_cvt_pk_bf16_f32 v{Y2}, v{Y2}, 0")
    a(f"v_lshlrev_b32 v{Y2}, 16, v{Y2}")
    a(f"v_lshlrev_b32 v{VXV}, 16, v{VXV}")
    stamp(5)
    lds_spin(opts.ygate[0], opts.ygate[1], VZ, VS + 8, sleep=1)
    pipelined_poll("pollY1", n3, Y1S,
                   lambda k: a(f"buffer_load_dwordx4 v[{Y1S[k][0]}:{Y1S[k][0]+3}], v{FA}, s[56:59], 0 offen sc1"), opts.stag3,
                   [RY1, RY1 + 1])
    stamp(6)
    Y1 = RY1
    reduce_duo(Y1)
    a(f"v_cvt_pk_bf16_f32 v{Y1}, v{Y1}, 0")
    a(f"v_lshlrev_b32 v{Y1}, 16, v{Y1}")
    a(f"v_mul_f32 v{Y1}, v{Y1}, v{Y2}")
    a(f"v_cvt_pk_bf16_f32 v{Y1}, v{Y1}, 0")
    a(f"v_lshlrev_b32 v{Y1}, 16, v{Y1}")
    a(f"v_add_f32 v{Y1}, v{VXV}, v{Y1}")
    a(f"v_cvt_pk_bf16_f32 v{Y1}, v{Y1}, 0")
    a("s_mov_b32 s10, 3")
    a("s_mov_b32 s11, 3")
    a("s_mov_b64 exec, s[10:11]")
    a(f"buffer_store_short v{Y1}, v{FO}, s[64:67], 0 offen")
    a("s_or_b32 s10, s6, s3")
    a("s_cmp_lg_u32 s10, 0")
    a("s_cbranch_scc1 L_noep")
    a("s_mov_b64 exec, 1")
    a(f"v_mov_b32 v{VS+2}, {WS_EPOCH}")
    a(f"v_mov_b32 v{VS+3}, s68")
    a(f"buffer_store_dword v{VS+3}, v{VS+2}, s[56:59], 0 offen sc1")
    a.label("L_noep")
    a("s_mov_b64 exec, -1")
    stamp(7)
    a.label("L_sfin")
    a("s_add_u32 s3, s3, 4")
    a("s_branch L_fin")

    a.label("L_aux")
    a.c("---- aux wave: a = s3 (0..3) ----")
    a("s_setprio 3")
    XR = 20
    VE = 30
    WQ = 32
    W1 = 52
    TMP = 64
    ACC = 96
    W2 = 120
    WO = 136
    LO2 = 96
    AY = 104
    BOP = 32
    a("s_cmp_lg_u32 s3, 0")
    a("s_cbranch_scc1 L_noclr")
    for r in range(4, 8):
        a(f"v_mov_b32 v{r}, 0")
    a(f"ds_write_b128 v4, v[4:7] offset:{L_SYNC}")
    a(f"ds_write_b128 v4, v[4:7] offset:{L_SYNC+16}")
    a(f"ds_write_b128 v4, v[4:7] offset:{L_SYNC+32}")
    a.label("L_noclr")
    a(f"v_lshlrev_b32 v2, 4, v0")
    a(f"v_lshlrev_b32 v3, 2, v0")
    a(f"v_mov_b32 v{VE}, {WS_EPOCH}")
    a("s_mul_i32 s9, s5, 80")
    a("s_mul_i32 s10, s3, 20")
    a("s_add_u32 s9, s9, s10")
    a(f"v_lshrrev_b32 v10, 4, v0")
    a(f"v_and_b32 v11, 15, v0")
    RG, C = 10, 11
    a(f"v_add_u32 v{TMP+10}, s9, v{RG}")
    a(f"v_lshlrev_b32 v{TMP+11}, 1, v{TMP+10}")
    a(f"v_lshlrev_b32 v{TMP+1}, 13, v{TMP+10}")
    a(f"v_lshl_add_u32 v{TMP+1}, v{C}, 4, v{TMP+1}")
    a("s_lshl_b32 s10, s4, 8")
    a(f"v_add_u32 v{TMP+1}, s10, v{TMP+1}")
    a("s_cmp_ge_u32 s4, 27")
    a(f"s_cselect_b32 s13, {OOB}, 0")
    a("s_movk_i32 s10, 3456")
    a(f"v_mul_lo_u32 v{TMP+2}, v{TMP+10}, s10")
    a(f"v_lshl_add_u32 v{TMP+2}, v{C}, 3, v{TMP+2}")
    a("s_lshl_b32 s10, s4, 7")
    a("s_add_u32 s10, s10, s13")
    a(f"v_add_u32 v{TMP+2}, s10, v{TMP+2}")
    for i in range(1, 5):
        a(f"s_mov_b32 s{88+i}, {i*32768}")
        if i < 4:
            a(f"s_mov_b32 s{92+i}, {i*13824}")
    a(f"s_mov_b32 s88, {4*13824}")
    a("s_waitcnt lgkmcnt(0)")

    def srd(r, lo, size):
        a(f"s_mov_b32 s{r}, s{lo}")
        a(f"s_mov_b32 s{r+1}, s{lo+1}")
        a(f"s_mov_b32 s{r+2}, {size}")
        a(f"s_mov_b32 s{r+3}, 0x00020000")
    a("s_mov_b32 s56, s36")
    a("s_mov_b32 s57, s37")
    srd(40, 16, 2560)
    a(f"buffer_load_dword v{VE}, v{VE}, s[56:59], 0 offen sc1")
    a(f"buffer_load_dwordx4 v[4:7], v2, s[40:43], 0 offen")
    a(f"buffer_load_dword v8, v3, s[40:43], 0 offen offset:1024")
    a(f"buffer_load_dwordx4 v[12:15], v2, s[40:43], 0 offen offset:1280")
    a(f"buffer_load_dword v16, v3, s[40:43], 0 offen offset:2304")
    srd(44, 22, 5242880)
    for i in range(5):
        so = "0" if i == 0 else f"s{88+i}"
        a(f"buffer_load_dwordx4 v[{WQ+4*i}:{WQ+4*i+3}], v{TMP+1}, s[44:47], {so} offen {wpol}")
    srd(48, 28, 2211840)
    for i in range(5):
        so = "0" if i == 0 else (f"s{92+i}" if i < 4 else "s88")
        a(f"buffer_load_dwordx2 v[{W1+2*i}:{W1+2*i+1}], v{TMP+2}, s[48:51], {so} offen {wpol}")
    for i in range(5):
        for b in range(2):
            a(f"buffer_load_ushort v{XR+2*i+b}, v{TMP+11}, s[40:43], 0 offen offset:{b*1280 + i*8}")
    a("s_waitcnt lgkmcnt(0)")
    a("s_barrier")
    a(f"v_mov_b32 v{TMP+5}, 0")
    a(f"v_mov_b32 v{TMP+6}, {OOB}")
    a(f"v_cmp_lt_u32 vcc, 9, v{C}")
    a(f"v_cndmask_b32 v{TMP+5}, v{TMP+5}, v{TMP+6}, vcc")
    a(f"v_lshl_add_u32 v{TMP+5}, v{C}, 4, v{TMP+5}")
    a("s_mul_i32 s10, s5, 160")
    a(f"v_add_u32 v{TMP+5}, s10, v{TMP+5}")
    a("s_movk_i32 s14, 1280")
    a("s_lshl_b32 s10, s4, 6")
    a("s_lshl_b32 s11, s3, 4")
    a("s_add_u32 s10, s10, s11")
    a(f"v_lshl_add_u32 v{TMP+3}, v{RG}, 2, s10")
    a(f"v_mul_lo_u32 v{TMP+3}, v{TMP+3}, s14")
    a(f"v_add_u32 v{TMP+3}, v{TMP+5}, v{TMP+3}")
    a(f"v_add_u32 v{TMP+3}, s13, v{TMP+3}")
    a("s_lshl_b32 s10, s4, 7")
    a("s_lshl_b32 s11, s3, 5")
    a("s_add_u32 s10, s10, s11")
    a(f"v_lshl_add_u32 v{TMP+4}, v{RG}, 3, s10")
    a(f"v_mul_lo_u32 v{TMP+4}, v{TMP+4}, s14")
    a(f"v_add_u32 v{TMP+4}, v{TMP+5}, v{TMP+4}")
    a("s_movk_i32 s12, 5120")
    srd(52, 30, 2211840)
    for i in range(4):
        a(f"buffer_load_dwordx4 v[{W2+4*i}:{W2+4*i+3}], v{TMP+3}, s[52:55], 0 offen offset:{i*1280} {wpol}")
    srd(60, 24, 5242880)
    for i in range(8):
        so = "0" if i < 4 else "s12"
        a(f"buffer_load_dwordx4 v[{WO+4*i}:{WO+4*i+3}], v{TMP+4}, s[60:63], {so} offen offset:{(i&3)*1280} {wpol}")

    a("s_waitcnt vmcnt(32)")
    a(f"v_readfirstlane_b32 s68, v{VE}")
    a("s_mov_b32 s15, 0xffff0000")
    a("s_add_u32 s68, s68, 1")
    a("s_xor_b32 s69, s68, 0x9e3779b9")
    F = TMP + 12
    srcs = [[4, 5, 6, 7, 8], [12, 13, 14, 15, 16]]
    for b in range(2):
        for d in range(5):
            a(f"v_lshlrev_b32 v{F+10*b+2*d}, 16, v{srcs[b][d]}")
            a(f"v_and_b32 v{F+10*b+2*d+1}, s15, v{srcs[b][d]}")
    S0, S1, Q0, Q1, t0, t1 = 4, 5, 6, 7, 8, 9

    def wave_sum2(r0, r1, sbase):
        for ctrl in ["quad_perm:[1,0,3,2]", "quad_perm:[2,3,0,1]", "row_half_mirror", "row_mirror"]:
            a(f"v_add_f32_dpp v{r0}, v{r0}, v{r0} {ctrl} row_mask:0xf bank_mask:0xf")
            a(f"v_add_f32_dpp v{r1}, v{r1}, v{r1} {ctrl} row_mask:0xf bank_mask:0xf")
        for r in range(4):
            a(f"v_readlane_b32 s{sbase+r}, v{r0}, {16*r}")
            a(f"v_readlane_b32 s{sbase+4+r}, v{r1}, {16*r}")
        a(f"v_mov_b32 v{r0}, s{sbase}")
        a(f"v_mov_b32 v{r1}, s{sbase+4}")
        for r in range(1, 4):
            a(f"v_add_f32 v{r0}, s{sbase+r}, v{r0}")
            a(f"v_add_f32 v{r1}, s{sbase+4+r}, v{r1}")

    for e in range(1, 10):
        for b, S in ((0, S0), (1, S1)):
            if e == 1:
                a(f"v_add_f32 v{S}, v{F+10*b}, v{F+10*b+1}")
            else:
                a(f"v_add_f32 v{S}, v{S}, v{F+10*b+e}")
    wave_sum2(S0, S1, 88)
    a(f"s_mov_b32 s14, 0x{f32bits(1.0/640):08x}")
    a(f"v_mul_f32 v{S0}, s14, v{S0}")
    a(f"v_mul_f32 v{S1}, s14, v{S1}")
    for b, S in ((0, S0), (1, S1)):
        for e in range(10):
            a(f"v_sub_f32 v{F+10*b+e}, v{F+10*b+e}, v{S}")
    for e in range(10):
        for b, Q in ((0, Q0), (1, Q1)):
            if e == 0:
                a(f"v_mul_f32 v{Q}, v{F+10*b}, v{F+10*b}")
            else:
                a(f"v_fma_f32 v{Q}, v{F+10*b+e}, v{F+10*b+e}, v{Q}")
    wave_sum2(Q0, Q1, 88)
    a(f"v_mul_f32 v{Q0}, s14, v{Q0}")
    a(f"v_mul_f32 v{Q1}, s14, v{Q1}")
    a(f"v_cvt_pk_bf16_f32 v{t0}, v{S0}, v{S1}")
    a(f"v_cvt_pk_bf16_f32 v{t1}, v{Q0}, v{Q1}")
    a(f"v_lshlrev_b32 v{S0}, 16, v{t0}")
    a(f"v_and_b32 v{S1}, s15, v{t0}")
    a(f"v_lshlrev_b32 v{Q0}, 16, v{t1}")
    a(f"v_and_b32 v{Q1}, s15, v{t1}")
    a(f"s_mov_b32 s14, 0x{f32bits(1e-5):08x}")
    a(f"v_add_f32 v{Q0}, s14, v{Q0}")
    a(f"v_add_f32 v{Q1}, s14, v{Q1}")
    a(f"v_cvt_pk_bf16_f32 v{t1}, v{Q0}, v{Q1}")
    a(f"v_lshlrev_b32 v{Q0}, 16, v{t1}")
    a(f"v_and_b32 v{Q1}, s15, v{t1}")
    a(f"v_sqrt_f32 v{Q0}, v{Q0}")
    a(f"v_sqrt_f32 v{Q1}, v{Q1}")
    a(f"v_cvt_pk_bf16_f32 v{t1}, v{Q0}, v{Q1}")
    a(f"v_lshlrev_b32 v{Q0}, 16, v{t1}")
    a(f"v_and_b32 v{Q1}, s15, v{t1}")
    a(f"v_rcp_f32 v{Q0}, v{Q0}")
    a(f"v_rcp_f32 v{Q1}, v{Q1}")
    XH = F
    MS = [S0, S1]; RS = [Q0, Q1]
    a("s_waitcnt vmcnt(12)")

    def each(fn):
        for i in range(5):
            for b in range(2):
                fn(XR + 2*i + b, b, i)
    each(lambda r, b, i: a(f"v_lshlrev_b32 v{r}, 16, v{r}"))
    each(lambda r, b, i: a(f"v_sub_f32 v{r}, v{r}, v{MS[b]}"))
    each(lambda r, b, i: a(f"v_cvt_pk_bf16_f32 v{r}, v{r}, 0"))
    each(lambda r, b, i: a(f"v_lshlrev_b32 v{r}, 16, v{r}"))
    each(lambda r, b, i: a(f"v_mul_f32 v{r}, v{r}, v{RS[b]}"))
    each(lambda r, b, i: a(f"v_cvt_pk_bf16_f32 v{r}, v{r}, 0"))
    each(lambda r, b, i: a(f"v_lshlrev_b32 v{XH+2*i+b}, 16, v{r}"))
    AQ = ACC; AH = ACC + 16
    for i in range(5):
        for b in range(2):
            for d in range(4):
                for hl in range(2):
                    acc = AQ + 8*b + 2*d + hl
                    xs = (XR if hl == 0 else XH) + 2*i + b
                    s2 = "0" if i == 0 else f"v{acc}"
                    a(f"v_dot2_f32_bf16 v{acc}, v{WQ+4*i+d}, v{xs}, {s2}")
    for i in range(5):
        for b in range(2):
            for d in range(2):
                for hl in range(2):
                    acc = AH + 4*b + 2*d + hl
                    xs = (XR if hl == 0 else XH) + 2*i + b
                    s2 = "0" if i == 0 else f"v{acc}"
                    a(f"v_dot2_f32_bf16 v{acc}, v{W1+2*i+d}, v{xs}, {s2}")

    def reduce16(base):
        for k in range(8):
            a(f"v_permlane32_swap_b32 v{base+k}, v{base+k+8}")
        for k in range(8):
            a(f"v_add_f32 v{base+k}, v{base+k}, v{base+k+8}")
        for k in range(4):
            a(f"v_permlane16_swap_b32 v{base+k}, v{base+k+4}")
        for k in range(4):
            a(f"v_add_f32 v{base+k}, v{base+k}, v{base+k+4}")

    reduce16(AQ)
    for k in range(4):
        a(f"v_permlane32_swap_b32 v{AH+k}, v{AH+k+4}")
    for k in range(4):
        a(f"v_add_f32 v{AH+k}, v{AH+k}, v{AH+k+4}")
    for k in range(2):
        a(f"v_permlane16_swap_b32 v{AH+k}, v{AH+k+2}")
    for k in range(2):
        a(f"v_add_f32 v{AH+k}, v{AH+k}, v{AH+k+2}")
    a(f"v_lshrrev_b32 v2, 1, v{RG}")
    a(f"v_and_b32 v3, 1, v{RG}")
    a(f"v_lshlrev_b32 v{TMP}, 9, v2")
    a(f"v_lshl_add_u32 v{TMP}, v{C}, 5, v{TMP}")
    a(f"v_lshl_add_u32 v{TMP}, v3, 4, v{TMP}")
    a("s_lshl_b32 s10, s3, 10")
    a(f"v_add_u32 v{TMP}, s10, v{TMP}")
    a(f"ds_write_b128 v{TMP}, v[{AQ}:{AQ+3}] offset:{L_QP}")
    a(f"v_lshlrev_b32 v{TMP+1}, 8, v2")
    a(f"v_lshl_add_u32 v{TMP+1}, v{C}, 4, v{TMP+1}")
    a(f"v_lshl_add_u32 v{TMP+1}, v3, 3, v{TMP+1}")
    a("s_lshl_b32 s10, s3, 9")
    a(f"v_add_u32 v{TMP+1}, s10, v{TMP+1}")
    a(f"ds_write_b64 v{TMP+1}, v[{AH}:{AH+1}] offset:{L_HP}")
    VY = 31
    a("s_movk_i32 s10, 320")
    a(f"v_mul_u32_u24 v{VY}, s10, v2")
    a(f"v_lshl_add_u32 v{VY}, v{C}, 5, v{VY}")
    a(f"v_lshl_add_u32 v{VY}, v3, 4, v{VY}")
    a("s_mul_i32 s10, s3, 640")
    a(f"v_add_u32 v{VY}, s10, v{VY}")
    VZ = 12
    a(f"v_mov_b32 v{VZ}, 0")
    lds_arrive(C1, VZ, 3)
    lds_spin(C1, 4, VZ, 3)
    stamp(1)

    G = TMP

    def check_tags(regs, lbl_retry_cnt, lbl_loop, lbl_done):
        tags_bad(regs)
        a(f"s_cbranch_scc1 {lbl_done}")
        a(f"s_sub_u32 {lbl_retry_cnt}, {lbl_retry_cnt}, 1")
        a(f"s_cmp_eq_u32 {lbl_retry_cnt}, 0")
        a(f"s_cbranch_scc0 {lbl_loop}")

    def preperm():
        a("s_mov_b32 s10, 0x05040100")
        a("s_mov_b32 s11, 0x07060302")
        for q in range(2):
            for d in range(4):
                r0, r1 = W2 + 8*q + d, W2 + 8*q + 4 + d
                a(f"v_perm_b32 v{LO2+4*q+d}, v{r1}, v{r0}, s10")
                a(f"v_perm_b32 v{r1}, v{r1}, v{r0}, s11")
        for e in range(8):
            for t in range(4):
                r0, r1 = WO + 8*t + (e >> 1), WO + 8*t + 4 + (e >> 1)
                a(f"v_perm_b32 v{BOP+4*e+t}, v{r1}, v{r0}, s{10 + (e & 1)}")

    a("s_cmp_eq_u32 s3, 3")
    a("s_cbranch_scc1 L_h1_gather")
    a(f"v_lshlrev_b32 v2, 3, v0")
    a("s_cmp_eq_u32 s3, 2")
    a("s_cbranch_scc1 L_h1_pubh")
    a("s_lshl_b32 s10, s3, 9")
    a(f"v_add_u32 v2, s10, v2")
    for w in range(4):
        a(f"ds_read_b64 v[{G+4+2*w}:{G+5+2*w}], v2 offset:{L_QP + w*1024}")
    a("s_lshl_b32 s11, s3, 10")
    a("s_branch L_h1_pub")
    a.label("L_h1_pubh")
    for w in range(4):
        a(f"ds_read_b64 v[{G+4+2*w}:{G+5+2*w}], v2 offset:{L_HP + w*512}")
    a("s_movk_i32 s11, 2048")
    a.label("L_h1_pub")
    a("s_mul_i32 s10, s6, 3072")
    a("s_add_u32 s10, s10, s11")
    a(f"v_lshl_add_u32 v3, v0, 4, s10")
    set_tag(G)
    a("s_waitcnt lgkmcnt(0)")
    a(f"v_add_f32 v{G}, v{G+4}, v{G+6}")
    a(f"v_add_f32 v{G+1}, v{G+5}, v{G+7}")
    a(f"v_add_f32 v{G+8}, v{G+8}, v{G+10}")
    a(f"v_add_f32 v{G+9}, v{G+9}, v{G+11}")
    a(f"v_add_f32 v{G}, v{G}, v{G+8}")
    a(f"v_add_f32 v{G+1}, v{G+1}, v{G+9}")
    a(f"buffer_store_dwordx4 v[{G}:{G+3}], v3, s[56:59], 0 offen sc1")
    a("s_mul_i32 s10, s4, 192")
    a("s_lshl_b32 s11, s3, 6")
    a("s_add_u32 s10, s10, s11")
    a("s_lshl_b32 s11, s5, 3")
    a("s_add_u32 s10, s10, s11")
    a(f"s_add_u32 s10, s10, {WS_H1F}")
    a("v_mov_b32 v3, s10")
    a("s_mov_b64 exec, 1")
    a(f"buffer_store_dwordx2 v[{G+2}:{G+3}], v3, s[56:59], 0 offen sc1")
    a("s_mov_b64 exec, -1")
    a("s_cmp_eq_u32 s3, 2")
    a("s_cbranch_scc1 L_h1_gather")
    a("s_waitcnt vmcnt(2)")
    preperm()
    stamp(2)
    a("s_branch L_b3")

    a.label("L_h1_gather")
    a("s_lshl_b32 s10, s7, 10")
    a("s_cmp_eq_u32 s3, 2")
    a("s_cselect_b32 s10, 2048, s10")
    a("s_mul_i32 s11, s4, 24576")
    a("s_add_u32 s10, s10, s11")
    a(f"v_lshl_add_u32 v3, v0, 4, s10")
    for jj in range(1, 8):
        a(f"s_mov_b32 s{88+jj}, {jj*3072}")
    a("s_cmp_eq_u32 s3, 2")
    a("s_cbranch_scc1 L_pp2")
    a("s_waitcnt vmcnt(0)")
    a("s_branch L_pp")
    a.label("L_pp2")
    a("s_waitcnt vmcnt(2)")
    a.label("L_pp")
    preperm()
    a("s_cmp_eq_u32 s3, 2")
    a("s_cselect_b32 s10, 2, s7")
    a("s_lshl_b32 s10, s10, 6")
    a("s_mul_i32 s11, s4, 192")
    a("s_add_u32 s10, s10, s11")
    a(f"s_add_u32 s10, s10, {WS_H1F}")
    hint_poll("hint1", 10, 0)
    a(f"s_mov_b32 s12, {opts.maxpoll}")
    a.label("L_poll1")
    for jj in range(8):
        so = "0" if jj == 0 else f"s{88+jj}"
        a(f"buffer_load_dwordx4 v[{G+4*jj}:{G+4*jj+3}], v3, s[56:59], {so} offen sc1")
    a("s_waitcnt vmcnt(0)")
    check_tags([G+4*jj for jj in range(8)], "s12", "L_poll1", "L_poll1_done")
    a.label("L_poll1_done")
    stamp(2)
    for e in range(2):
        a(f"v_add_f32 v{G+e}, v{G+e}, v{G+4+e}")
        a(f"v_add_f32 v{G+8+e}, v{G+8+e}, v{G+12+e}")
        a(f"v_add_f32 v{G+16+e}, v{G+16+e}, v{G+20+e}")
        a(f"v_add_f32 v{G+24+e}, v{G+24+e}, v{G+28+e}")
    for e in range(2):
        a(f"v_add_f32 v{G+e}, v{G+e}, v{G+8+e}")
        a(f"v_add_f32 v{G+16+e}, v{G+16+e}, v{G+24+e}")
    for e in range(2):
        a(f"v_add_f32 v{G+e}, v{G+e}, v{G+16+e}")
    a(f"v_lshlrev_b32 v2, 2, v0")
    a("s_cmp_eq_u32 s3, 2")
    a("s_cbranch_scc0 L_qw")
    a(f"v_max_f32 v{G}, 0, v{G}")
    a(f"v_max_f32 v{G+1}, 0, v{G+1}")
    a(f"v_add_u32 v2, {L_H - L_Q}, v2")
    a.label("L_qw")
    a(f"v_cvt_pk_bf16_f32 v{G}, v{G}, v{G+1}")
    a(f"ds_write_b32 v2, v{G} offset:{L_Q}")
    a("v_mov_b32 v2, s68")
    a("v_mov_b32 v3, s69")
    a(f"ds_write_b64 v{VZ}, v[2:3] offset:{L_TAG}")
    a("s_cmp_eq_u32 s3, 2")
    a(f"s_movk_i32 s10, {QF}")
    a(f"s_movk_i32 s11, {HF}")
    a(f"s_cselect_b32 s10, s11, s10")
    a("v_mov_b32 v2, s10")
    a("v_mov_b32 v3, 1")
    a(f"ds_write_b32 v2, v3")
    a.label("L_b3")
    lds_spin(HF, 1, VZ, 3)
    a("s_lshl_b32 s10, s3, 5")
    a(f"v_lshl_add_u32 v2, v{RG}, 3, s10")
    a(f"ds_read_b64 v[{TMP}:{TMP+1}], v2 offset:{L_H}")
    a(f"ds_read_b64 v[{TMP+2}:{TMP+3}], v2 offset:{L_H+128}")
    a("s_waitcnt lgkmcnt(0)")
    for q in range(2):
        for b in range(2):
            for d in range(4):
                for hl in range(2):
                    acc = AY + 8*b + 2*d + hl
                    w = (LO2 + 4*q + d) if hl == 0 else (W2 + 8*q + 4 + d)
                    s2 = "0" if q == 0 else f"v{acc}"
                    a(f"v_dot2_f32_bf16 v{acc}, v{w}, v{TMP+2*b+q}, {s2}")
    reduce16(AY)
    a(f"s_mov_b32 s10, {LANES10}")
    a(f"s_mov_b32 s11, {LANES10}")
    a("s_mov_b64 exec, s[10:11]")
    a(f"ds_write_b128 v{VY}, v[{AY}:{AY+3}] offset:{L_Y2P}")
    a("s_mov_b64 exec, -1")
    lds_arrive(C4, VZ, 3, rtn=True)
    a("s_cmp_eq_u32 s10, 3")
    a("s_cbranch_scc0 L_noy2")
    a(f"v_lshlrev_b32 v2, 3, v0")
    for w in range(4):
        a(f"ds_read_b64 v[{TMP+8+2*w}:{TMP+9+2*w}], v2 offset:{L_Y2P + w*640}")
    for w in range(4):
        a(f"ds_read_b64 v[{TMP+16+2*w}:{TMP+17+2*w}], v2 offset:{L_Y2P + w*640 + 512}")
    def pair_addr(vdst, vp, vt):
        a(f"v_lshrrev_b32 v{vdst}, 2, v{vp}")
        a(f"v_cmp_lt_u32 vcc, 39, v{vp}")
        a(f"v_mov_b32 v{vt}, 0")
        a(f"v_cndmask_b32 v{vt}, v{vt}, v{TMP+31}, vcc")
        a(f"v_add_u32 v{vdst}, v{vdst}, v{vt}")
        a(f"v_lshlrev_b32 v{vdst}, 11, v{vdst}")
        a(f"v_and_b32 v{vt}, 2, v{vp}")
        a(f"v_lshl_add_u32 v{vdst}, v{vt}, 9, v{vdst}")
        a(f"v_and_b32 v{vt}, 1, v{vp}")
        a(f"v_lshl_add_u32 v{vdst}, v{vt}, 4, v{vdst}")
        a(f"v_add_u32 v{vdst}, s10, v{vdst}")
    a("s_mul_i32 s10, s5, 20480")
    a("s_lshl_b32 s11, s4, 5")
    a("s_add_u32 s10, s10, s11")
    a(f"s_add_u32 s10, s10, {WS_H3B}")
    a(f"v_mov_b32 v{TMP+31}, 70")
    pair_addr(3, 0, TMP + 30)
    a(f"v_add_u32 v{TMP+29}, 64, v0")
    pair_addr(2, TMP + 29, TMP + 30)
    set_tag(TMP)
    set_tag(TMP+4)
    a("s_waitcnt lgkmcnt(0)")
    for e in range(2):
        a(f"v_add_f32 v{TMP+8+e}, v{TMP+8+e}, v{TMP+10+e}")
        a(f"v_add_f32 v{TMP+12+e}, v{TMP+12+e}, v{TMP+14+e}")
        a(f"v_add_f32 v{TMP+e}, v{TMP+8+e}, v{TMP+12+e}")
    a(f"buffer_store_dwordx4 v[{TMP}:{TMP+3}], v3, s[56:59], 0 offen sc1")
    for e in range(2):
        a(f"v_add_f32 v{TMP+16+e}, v{TMP+16+e}, v{TMP+18+e}")
        a(f"v_add_f32 v{TMP+20+e}, v{TMP+20+e}, v{TMP+22+e}")
        a(f"v_add_f32 v{TMP+4+e}, v{TMP+16+e}, v{TMP+20+e}")
    a("s_mov_b64 exec, 0xffff")
    a(f"buffer_store_dwordx4 v[{TMP+4}:{TMP+7}], v2, s[56:59], 0 offen sc1")
    a("s_mov_b64 exec, -1")
    a.label("L_noy2")
    stamp(3)
    MASK = 120
    AOP = 136
    ACC2 = 96
    YR = 104
    VPH, VYW, VY0, VY1 = 13, 14, 15, 16
    GY = 20
    a("v_lshrrev_b32 v2, 1, v0")
    a("v_and_b32 v2, 7, v2")
    for q in range(4):
        for h in range(2):
            a(f"v_cmp_eq_u32 vcc, {2*q+h}, v2")
            a(f"v_cndmask_b32 v{MASK+2*q+h}, 0, -1, vcc")
    a("v_and_b32 v3, 1, v0")
    a("v_lshlrev_b32 v3, 12, v3")
    a("v_lshrrev_b32 v4, 1, v2")
    a("v_lshl_add_u32 v3, v4, 10, v3")
    a(f"v_lshl_add_u32 v3, v{RG}, 6, v3")
    a("v_and_b32 v4, 1, v2")
    a("v_lshl_add_u32 v3, v4, 5, v3")
    a("s_lshl_b32 s10, s4, 13")
    a("s_lshl_b32 s11, s3, 8")
    a("s_add_u32 s10, s10, s11")
    a(f"s_add_u32 s10, s10, {WS_H2}")
    a(f"v_add_u32 v{VPH}, s10, v3")
    a("s_lshl_b32 s10, s3, 10")
    a(f"v_lshl_add_u32 v{VYW}, v0, 4, s10")
    a(f"v_lshlrev_b32 v3, 11, v{C}")
    a(f"v_lshrrev_b32 v4, 1, v{RG}")
    a("v_lshl_add_u32 v3, v4, 10, v3")
    a(f"v_and_b32 v4, 1, v{RG}")
    a("v_lshl_add_u32 v3, v4, 4, v3")
    a("s_mul_i32 s10, s5, 20480")
    a("s_lshl_b32 s11, s4, 5")
    a("s_add_u32 s10, s10, s11")
    a(f"s_add_u32 s10, s10, {WS_H3A}")
    a(f"v_add_u32 v{VY0}, s10, v3")
    a(f"v_lshlrev_b32 v{VY1}, 4, v0")
    set_tag(GY)
    set_tag(GY + 4)
    a("s_cmp_lg_u32 s3, 0")
    a("s_cbranch_scc1 L_noml")
    lds_spin(C2, 8, VZ, 3, sleep=1)
    a(f"ds_read_b128 v[{TMP}:{TMP+3}], v{VZ} offset:{L_ML}")
    a(f"ds_read_b128 v[{TMP+4}:{TMP+7}], v{VZ} offset:{L_ML+16}")
    a(f"ds_read_b128 v[{TMP+8}:{TMP+11}], v{VZ} offset:{L_ML+32}")
    a(f"ds_read_b128 v[{TMP+12}:{TMP+15}], v{VZ} offset:{L_ML+48}")
    GM = TMP + 16
    set_tag(GM)
    a("s_lshl_b32 s10, s6, 4")
    a(f"s_add_u32 s10, s10, {WS_ML}")
    a("v_mov_b32 v3, s10")
    a(f"s_mov_b32 s14, 0x{f32bits(LOG2E):08x}")
    a("s_waitcnt lgkmcnt(0)")
    M = GM
    a(f"v_max3_f32 v{M}, v{TMP}, v{TMP+1}, v{TMP+2}")
    a(f"v_max3_f32 v{M}, v{M}, v{TMP+3}, v{TMP+4}")
    a(f"v_max3_f32 v{M}, v{M}, v{TMP+5}, v{TMP+6}")
    a(f"v_max_f32 v{M}, v{M}, v{TMP+7}")
    E8 = TMP + 24
    for w in range(8):
        a(f"v_sub_f32 v{E8+w}, v{TMP+w}, v{M}")
    for w in range(8):
        a(f"v_mul_f32 v{E8+w}, s14, v{E8+w}")
    for w in range(8):
        a(f"v_exp_f32 v{E8+w}, v{E8+w}")
    a("s_mov_b64 exec, 1")
    a(f"ds_write_b128 v{VZ}, v[{E8}:{E8+3}] offset:{L_F}")
    a(f"ds_write_b128 v{VZ}, v[{E8+4}:{E8+7}] offset:{L_F+16}")
    a("v_mov_b32 v4, 1")
    a(f"ds_write_b32 v{VZ}, v4 offset:{FF}")
    a("s_mov_b64 exec, -1")
    Ls = GM + 1
    a(f"v_mul_f32 v{Ls}, v{E8}, v{TMP+8}")
    for w in range(1, 8):
        a(f"v_fma_f32 v{Ls}, v{E8+w}, v{TMP+8+w}, v{Ls}")
    a("s_mov_b64 exec, 1")
    a(f"buffer_store_dwordx4 v[{GM}:{GM+3}], v3, s[56:59], 0 offen sc1")
    a("s_mov_b64 exec, -1")
    a.label("L_noml")
    lds_spin(C2, 8, VZ, 3, sleep=2)
    GP = TMP + 20
    VFS = 17
    a("v_and_b32 v3, 1, v0")
    a("v_lshlrev_b32 v3, 6, v3")
    a("v_lshrrev_b32 v4, 2, v0")
    a("v_and_b32 v4, 3, v4")
    a("v_lshl_add_u32 v3, v4, 4, v3")
    a("s_lshl_b32 s10, s4, 7")
    a(f"s_add_u32 s10, s10, {WS_ML}")
    a("v_add_u32 v4, s10, v3")
    a(f"s_mov_b32 s14, 0x{f32bits(LOG2E):08x}")
    a(f"s_mov_b32 s12, {opts.maxpoll}")
    a.label("L_pollml")
    a(f"buffer_load_dwordx4 v[{GP}:{GP+3}], v4, s[56:59], 0 offen sc1")
    a("s_waitcnt vmcnt(0)")
    tags_bad([GP])
    a("s_cbranch_scc1 L_pollml_done")
    a("s_sleep 8")
    a("s_sub_u32 s12, s12, 1")
    a("s_cmp_lg_u32 s12, 0")
    a("s_cbranch_scc1 L_pollml")
    a.label("L_pollml_done")
    a(f"v_max_f32_dpp v5, v{GP}, v{GP} row_ror:4 row_mask:0xf bank_mask:0xf")
    a(f"v_max_f32_dpp v5, v5, v5 row_ror:8 row_mask:0xf bank_mask:0xf")
    a(f"v_sub_f32 v6, v{GP}, v5")
    a(f"v_mul_f32 v6, s14, v6")
    a(f"v_exp_f32 v6, v6")
    a(f"v_mul_f32 v7, v6, v{GP+1}")
    a(f"v_add_f32_dpp v7, v7, v7 row_ror:4 row_mask:0xf bank_mask:0xf")
    a(f"v_add_f32_dpp v7, v7, v7 row_ror:8 row_mask:0xf bank_mask:0xf")
    a(f"v_rcp_f32 v7, v7")
    a(f"v_mul_f32 v{VFS}, v6, v7")
    stamp(4)
    a("s_cmp_lg_u32 s3, 0")
    a("s_cbranch_scc1 L_nohint")
    lds_spin(C6, 8, VZ, 3, sleep=1)
    a("s_lshl_b32 s9, s4, 6")
    a(f"s_add_u32 s9, s9, {WS_H2F}")
    a("s_lshl_b32 s10, s5, 3")
    a("s_add_u32 s10, s10, s9")
    a("v_mov_b32 v3, s10")
    a("s_mov_b64 exec, 1")
    a(f"buffer_store_dwordx2 v[{GY+2}:{GY+3}], v3, s[56:59], 0 offen sc1")
    a("s_mov_b64 exec, -1")
    hint_poll("hint2", 9, 1)
    a("v_mov_b32 v3, 1")
    a(f"ds_write_b32 v{VZ}, v3 offset:{HG}")
    a.label("L_nohint")
    lds_spin(HG, 1, VZ, 3)
    a(f"s_mov_b32 s9, {160*1024}")
    n2 = opts.npoll2
    PS = [[TMP + 8*k, TMP + 8*k + 4] for k in range(n2)]

    def issue2(k):
        a(f"buffer_load_dwordx4 v[{PS[k][0]}:{PS[k][0]+3}], v{VPH}, s[56:59], 0 offen sc1")
        a(f"buffer_load_dwordx4 v[{PS[k][1]}:{PS[k][1]+3}], v{VPH}, s[56:59], 0 offen offset:16 sc1")
    O4 = [4, 5, 6, 7]
    pipelined_poll("pollH2", n2, PS, issue2, opts.stag2, O4)
    stamp(5)
    for r in O4:
        a(f"v_mul_f32 v{r}, v{VFS}, v{r}")
    for ctrl in ["row_ror:4", "row_ror:8"]:
        for r in O4:
            a(f"v_add_f32_dpp v{r}, v{r}, v{r} {ctrl} row_mask:0xf bank_mask:0xf")
    D0, D1 = 2, 3
    a(f"v_cvt_pk_bf16_f32 v{D0}, v{O4[0]}, v{O4[1]}")
    a(f"v_cvt_pk_bf16_f32 v{D1}, v{O4[2]}, v{O4[3]}")
    for q in range(4):
        a(f"v_and_b32 v{AOP+4*q}, v{D0}, v{MASK+2*q}")
        a(f"v_and_b32 v{AOP+4*q+1}, v{D1}, v{MASK+2*q}")
        a(f"v_and_b32 v{AOP+4*q+2}, v{D0}, v{MASK+2*q+1}")
        a(f"v_and_b32 v{AOP+4*q+3}, v{D1}, v{MASK+2*q+1}")
    for q in range(4):
        for od in range(2):
            acc = ACC2 + 4*od
            c = "0" if q == 0 else f"v[{acc}:{acc+3}]"
            e = 2*q + od
            a(f"v_mfma_f32_16x16x32_bf16 v[{acc}:{acc+3}], v[{AOP+4*q}:{AOP+4*q+3}], v[{BOP+4*e}:{BOP+4*e+3}], {c}")
    YW = YR
    a(f"v_add_f32 v{YW}, v{ACC2}, v{ACC2+2}")
    a(f"v_add_f32 v{YW+1}, v{ACC2+4}, v{ACC2+6}")
    a(f"v_add_f32 v{YW+2}, v{ACC2+1}, v{ACC2+3}")
    a(f"v_add_f32 v{YW+3}, v{ACC2+5}, v{ACC2+7}")
    a(f"ds_write_b128 v{VYW}, v[{YW}:{YW+3}] offset:{L_Y1P}")
    lds_arrive(C5, VZ, 3, rtn=True)
    stamp(6)
    a("s_cmp_eq_u32 s10, 3")
    a("s_cbranch_scc0 L_fin")
    for w in range(4):
        a(f"ds_read_b128 v[{YR+4*w}:{YR+4*w+3}], v{VY1} offset:{L_Y1P + w*1024}")
    a(f"s_mov_b32 s10, {LANES10}")
    a(f"s_mov_b32 s11, {LANES10}")
    a("s_waitcnt lgkmcnt(2)")
    for e in range(4):
        a(f"v_add_f32 v{YR+e}, v{YR+e}, v{YR+4+e}")
    a("s_waitcnt lgkmcnt(0)")
    for e in range(4):
        a(f"v_add_f32 v{YR+8+e}, v{YR+8+e}, v{YR+12+e}")
    a(f"v_add_f32 v{GY}, v{YR}, v{YR+8}")
    a(f"v_add_f32 v{GY+1}, v{YR+1}, v{YR+9}")
    a(f"v_add_f32 v{GY+4}, v{YR+2}, v{YR+10}")
    a(f"v_add_f32 v{GY+5}, v{YR+3}, v{YR+11}")
    a("s_mov_b64 exec, s[10:11]")
    a(f"buffer_store_dwordx4 v[{GY}:{GY+3}], v{VY0}, s[56:59], 0 offen sc1")
    a(f"buffer_store_dwordx4 v[{GY+4}:{GY+7}], v{VY0}, s[56:59], s9 offen sc1")
    a("s_mov_b64 exec, -1")
    stamp(7)
    a.label("L_fin")
    if stamps:
        a("s_mul_i32 s90, s6, 12")
        a("s_add_u32 s90, s90, s3")
        a("s_lshl_b32 s90, s90, 6")
        a(f"s_add_u32 s90, s90, {WS_STAMP}")
        a("v_mov_b32 v2, s90")
        a("s_waitcnt lgkmcnt(0)")
        for i in range(16):
            a(f"v_mov_b32 v{8+i}, s{ST0+i}")
        a("s_mov_b64 exec, 1")
        for q in range(4):
            a(f"buffer_store_dwordx4 v[{8+4*q}:{11+4*q}], v2, s[56:59], 0 offen offset:{16*q}")
    a.label("L_end")
    a("s_endpgm")

    nv = 168
    out = HEADER
    out += f"; @launch grid=(256,1,1) block=(768,1,1) lds={L_TOTAL}\n"
    out += '.amdgcn_target "amdgcn-amd-amdhsa--gfx950"\n.text\n'
    out += f".globl {KNAME}\n.p2align 8\n.type {KNAME},@function\n{KNAME}:\n"
    out += "\n".join(a.l) + "\n"
    out += f""".section .rodata,"a"
.p2align 6
.amdhsa_kernel {KNAME}
  .amdhsa_next_free_vgpr {nv}
  .amdhsa_next_free_sgpr 96
  .amdhsa_accum_offset {nv}
  .amdhsa_group_segment_fixed_size 0
  .amdhsa_kernarg_size 88
  .amdhsa_user_sgpr_count 2
  .amdhsa_user_sgpr_kernarg_segment_ptr 1
  .amdhsa_system_sgpr_workgroup_id_x 1
.end_amdhsa_kernel
"""
    return out


def main():
    p = argparse.ArgumentParser()
    p.add_argument("-o", default="recurrent_scan__sliding_block_cached__dense_activation_relu__decode.s")
    p.add_argument("--kvpol", default="nt")
    p.add_argument("--wpol", default="nt")
    p.add_argument("--stamps", action="store_true")
    p.add_argument("--maxpoll", type=int, default=20000)
    p.add_argument("--maxspin", type=int, default=2000000)
    p.add_argument("--rotg", type=int, default=1)
    p.add_argument("--rotw", type=int, default=4)
    p.add_argument("--map", default="C")
    p.add_argument("--win", type=int, default=4)
    p.add_argument("--qkv", type=lambda s: [int(x) for x in s.split(",")], default=[1, 1, 1, 1])
    p.add_argument("--fpos", type=int, default=12)
    p.add_argument("--hpos", type=int, default=8)
    p.add_argument("--ygate", type=lambda s: tuple(eval(x) for x in s.split(",")), default=(C5, 1))
    p.add_argument("--gate", type=int, default=8)
    p.add_argument("--npoll2", type=int, default=2)
    p.add_argument("--npoll3", type=int, default=4)
    p.add_argument("--stag2", type=int, default=6)
    p.add_argument("--stag3", type=int, default=3)
    o = p.parse_args()
    open(o.o, "w").write(gen(o))
    print("wrote", o.o)


if __name__ == "__main__":
    main()
```

```python
import sys, argparse, struct
from asmh import A
from gen2 import HEADER, KNAME

WS_H1 = 0x0
WS_H2 = 0xC0000
GSTR = 4352
WS_ML = 0x340000
WS_H1F = 0x380000
WS_H2F = 0x300000
WS_H3A = 0x140000
WS_H3B = 0x190000
WS_EPOCH = 0x1F0000
WS_STAMP = 0x200000
WS_SIZE = 0x400000

L_QP = 0
L_HP = 4096
L_Q = 6144
L_H = 6400
L_OP = 6656
L_ML = 10752
L_F = 10816
L_TAG = 10848
L_Y2P = 11392
L_Y1P = 13952
L_SYNC = 18048
L_TOTAL = 18176
C1, QF, HF, C2, FF, C3, C4, C5, C6, HG = [L_SYNC + 4 * i for i in range(10)]

LOG2E = 1.4426950408889634
OOB = 0x40000000
LANES10 = "0x03ff03ff"


def f32bits(x):
    return struct.unpack('<I', struct.pack('<f', x))[0]


def gen(opts):
    a = A()
    kvpol = opts.kvpol
    wpol = opts.wpol
    stamps = opts.stamps
    W = opts.win
    ST0 = 72

    def stamp(idx):
        if stamps:
            a(f"s_memrealtime s[{ST0+2*idx}:{ST0+2*idx+1}]")

    uid = [0]

    def lds_spin(off, val, vz, vt, sleep=0):
        uid[0] += 1
        lbl = f"L_spin{uid[0]}"
        a(f"s_mov_b32 s12, {opts.maxspin}")
        a.label(lbl)
        a(f"ds_read_b32 v{vt}, v{vz} offset:{off}")
        a("s_waitcnt lgkmcnt(0)")
        a(f"v_readfirstlane_b32 s10, v{vt}")
        a(f"s_cmp_ge_u32 s10, {val}")
        a(f"s_cbranch_scc1 {lbl}_done")
        if sleep:
            a(f"s_sleep {sleep}")
        a("s_sub_u32 s12, s12, 1")
        a("s_cmp_lg_u32 s12, 0")
        a(f"s_cbranch_scc1 {lbl}")
        a.label(lbl + "_done")

    def lds_arrive(off, vz, vt, rtn=False):
        a(f"v_mov_b32 v{vt}, 1")
        a("s_mov_b64 exec, 1")
        if rtn:
            a(f"ds_add_rtn_u32 v{vt}, v{vz}, v{vt} offset:{off}")
        else:
            a(f"ds_add_u32 v{vz}, v{vt} offset:{off}")
        a("s_mov_b64 exec, -1")
        if rtn:
            a("s_waitcnt lgkmcnt(0)")
            a(f"v_readfirstlane_b32 s10, v{vt}")

    def set_tag(r):
        a(f"v_mov_b32 v{r+2}, s68")
        a(f"v_mov_b32 v{r+3}, s69")

    def tags_bad(regs):
        for n, r in enumerate(regs):
            dst = "s[70:71]" if n == 0 else "vcc"
            a(f"v_cmp_ne_u64 {dst}, v[{r+2}:{r+3}], s[68:69]")
            if n:
                a("s_or_b64 s[70:71], s[70:71], vcc")
        a("s_cmp_eq_u64 s[70:71], 0")

    def pipelined_poll(name, nsets, setregs, issue, stag, res, slow=0, after_issue=None):
        nl = len(setregs[0])
        a(f"s_mov_b32 s12, {opts.maxpoll}")
        a("s_mov_b64 s[38:39], -1")
        for k in range(nsets):
            issue(k)
            if k == 0 and after_issue:
                after_issue()
            if k + 1 < nsets and stag:
                a(f"s_sleep {stag}")
        a.label(f"L_{name}")
        for k in range(nsets):
            a(f"s_waitcnt vmcnt({(nsets-1)*nl})")
            for n, r in enumerate(setregs[k]):
                dst = "s[70:71]" if n == 0 else "vcc"
                a(f"v_cmp_eq_u64 {dst}, v[{r+2}:{r+3}], s[68:69]")
                if n:
                    a("s_and_b64 s[70:71], s[70:71], vcc")
            a("s_and_b64 exec, s[70:71], s[38:39]")
            for n, r in enumerate(setregs[k]):
                a(f"v_mov_b32 v{res[2*n]}, v{r}")
                a(f"v_mov_b32 v{res[2*n+1]}, v{r+1}")
            a("s_andn2_b64 s[38:39], s[38:39], s[70:71]")
            a("s_mov_b64 exec, s[38:39]")
            a(f"s_cbranch_scc0 L_{name}_done")
            if slow:
                a("s_bcnt1_i32_b64 s10, s[38:39]")
                a(f"s_cmp_lt_u32 s10, {slow[0]}")
                uid[0] += 1
                a(f"s_cbranch_scc1 L_fast{uid[0]}")
                a(f"s_sleep {slow[1]}")
                a.label(f"L_fast{uid[0]}")
            issue(k)
            a("s_mov_b64 exec, -1")
        a("s_sub_u32 s12, s12, 1")
        a("s_cmp_lg_u32 s12, 0")
        a(f"s_cbranch_scc1 L_{name}")
        a.label(f"L_{name}_done")
        a("s_mov_b64 exec, -1")

    def hint_poll(name, ws_off_sgpr, sleep):
        a(f"s_add_u32 s14, s56, s{ws_off_sgpr}")
        a("s_addc_u32 s15, s57, 0")
        a(f"s_mov_b32 s12, {opts.maxpoll}")
        a.label(f"L_{name}")
        a("s_load_dwordx16 s[16:31], s[14:15], 0 glc")
        a("s_waitcnt lgkmcnt(0)")
        for i in range(8):
            a(f"s_cmp_eq_u64 s[{16+2*i}:{17+2*i}], s[68:69]")
            a(f"s_cbranch_scc0 L_{name}_no")
        a(f"s_branch L_{name}_done")
        a.label(f"L_{name}_no")
        if sleep:
            a(f"s_sleep {sleep}")
        a("s_sub_u32 s12, s12, 1")
        a("s_cmp_lg_u32 s12, 0")
        a(f"s_cbranch_scc1 L_{name}")
        a.label(f"L_{name}_done")

    a("s_cmp_ge_u32 s2, 256")
    a("s_cbranch_scc1 L_end")
    a("s_load_dwordx16 s[16:31], s[0:1], 0")
    a("s_load_dwordx4 s[32:35], s[0:1], 64")
    a("s_load_dwordx2 s[36:37], s[0:1], 80")
    if stamps:
        for i in range(1, 8):
            a(f"s_mov_b64 s[{ST0+2*i}:{ST0+2*i+1}], 0")
        stamp(0)
    a("v_lshrrev_b32 v1, 6, v0")
    a("v_and_b32 v0, 63, v0")
    if opts.map == "C":
        a("s_and_b32 s4, s2, 7")
        a("s_lshr_b32 s5, s2, 6")
        a("s_lshl_b32 s5, s5, 3")
        a("s_or_b32 s4, s4, s5")
        a("s_lshr_b32 s5, s2, 3")
        a("s_and_b32 s5, s5, 7")
    else:
        a("s_lshr_b32 s4, s2, 3")
        a("s_and_b32 s5, s2, 7")
    a("v_readfirstlane_b32 s3, v1")
    a("s_lshl_b32 s6, s4, 3")
    a("s_or_b32 s6, s6, s5")
    a("s_lshr_b32 s7, s5, 2")
    a("s_and_b32 s8, s5, 3")
    a(f"s_mov_b32 s58, {WS_SIZE}")
    a("s_mov_b32 s59, 0x00020000")
    a("s_cmp_lt_u32 s3, 4")
    a("s_cbranch_scc1 L_aux")

    VOFF, VQ, VT, VS, VACC, VK, VV, VF = 1, 2, 6, 8, 24, 32, 96, 160
    a.c("---- streaming wave ----")
    a("s_sub_u32 s3, s3, 4")
    a("s_lshl_b32 s9, s7, 5")
    a("s_add_u32 s9, s9, s4")
    a("s_lshl_b32 s9, s9, 21")
    a("s_lshl_b32 s10, s8, 17")
    a("s_add_u32 s9, s9, s10")
    a("s_add_u32 s9, s9, 1572864")
    a("s_lshl_b32 s10, s3, 14")
    a(f"v_lshl_add_u32 v{VOFF}, v0, 4, s10")
    a(f"s_mul_i32 s11, s4, {opts.rotg}")
    a(f"s_mul_i32 s12, s3, {opts.rotw}")
    a("s_add_u32 s11, s11, s12")
    a("s_lshl_b32 s11, s11, 10")
    a("s_mov_b32 s42, 131072")
    a("s_mov_b32 s43, 0x00020000")
    a("s_mov_b32 s46, 131072")
    a("s_mov_b32 s47, 0x00020000")
    a("s_cmp_lt_u32 s4, 20")
    a("s_cselect_b32 s13, 1, 0")
    a("s_cmp_lt_u32 s3, 2")
    a("s_cselect_b32 s13, s13, 0")
    a("s_cmp_ge_u32 s4, 10")
    a("s_cselect_b32 s14, 560, 0")
    a("s_lshl_b32 s10, s4, 3")
    a("s_add_u32 s14, s14, s10")
    a("s_mul_i32 s10, s5, 80")
    a("s_add_u32 s14, s14, s10")
    a("s_lshl_b32 s10, s3, 2")
    a("s_add_u32 s14, s14, s10")
    VXV = VK + 63
    a(f"v_and_b32 v{VT}, 1, v0")
    a(f"v_lshlrev_b32 v{VT}, 1, v{VT}")
    a(f"v_lshrrev_b32 v{VT+1}, 5, v0")
    a(f"v_add3_u32 v{VT}, v{VT}, v{VT+1}, s14")
    a(f"v_lshlrev_b32 v{VQ}, 1, v{VT}")
    a("s_waitcnt lgkmcnt(0)")
    a("s_add_u32 s40, s18, s9")
    a("s_addc_u32 s41, s19, 0")
    a("s_add_u32 s44, s20, s9")
    a("s_addc_u32 s45, s21, 0")
    a("s_mov_b32 s56, s36")
    a("s_mov_b32 s57, s37")
    a("s_mov_b32 s48, s16")
    a("s_mov_b32 s49, s17")
    a("s_movk_i32 s50, 2560")
    a("s_mov_b32 s51, 0x00020000")
    a("s_mov_b32 s64, s32")
    a("s_mov_b32 s65, s33")
    a("s_movk_i32 s66, 2560")
    a("s_mov_b32 s67, 0x00020000")
    for i in range(16):
        a(f"s_add_u32 s{16+i}, s11, {i*1024}")
        a(f"s_and_b32 s{16+i}, s{16+i}, 0x3c00")
    a("s_barrier")
    a("s_cmp_eq_u32 s13, 0")
    a("s_cbranch_scc1 L_nox")
    a(f"buffer_load_ushort v{VF+7+0}, v{VQ}, s[48:51], 0 offen")
    a.label("L_nox")
    XV = VF + 7
    def issue(n):
        if n < 16:
            a(f"buffer_load_dwordx4 v[{VK+4*n}:{VK+4*n+3}], v{VOFF}, s[40:43], s{16+n} offen {kvpol}")
        else:
            i = n - 16
            a(f"buffer_load_dwordx4 v[{VV+4*i}:{VV+4*i+3}], v{VOFF}, s[44:47], s{16+i} offen {kvpol}")

    W2 = opts.win2 or W
    NS = 16 - W2
    slot_i = [0]
    SREM = "s9"

    FLAT = opts.sched in ("flat", "ab")
    AB = opts.sched == "ab"

    def dstamp(idx):
        if opts.dbgst:
            stamp(idx)

    def late_burst():
        a(f"s_cmp_eq_u32 {SREM}, 0")
        a("s_cbranch_scc1 L_nolate")
        for n in range(opts.kwin, 32):
            issue(n)
        dstamp(5)
        a.label("L_nolate")

    def slot():
        k = slot_i[0]
        slot_i[0] += 1
        if AB and k == opts.bpos:
            late_burst()
        if FLAT:
            return
        if k < NS:
            a(f"s_cmp_gt_u32 {SREM}, {k}")
            a(f"s_cbranch_scc0 L_slot{k}_no")
            a(f"s_waitcnt vmcnt({W2-1})")
            issue(16 + 15 - k)
            a(f"s_branch L_slot{k}_done")
            a.label(f"L_slot{k}_no")
            a("s_waitcnt vmcnt(0)")
            a.label(f"L_slot{k}_done")
        else:
            a(f"s_waitcnt vmcnt({max(W2 - 1 - (k - NS), 0)})")

    a(f"v_mov_b32 v{VT+1}, 0")
    for n in range(W):
        issue(n)
    if AB:
        KW = opts.kwin
        for n in range(W, KW):
            a(f"s_waitcnt vmcnt({W-1})")
            issue(n)
        a(f"ds_read_b32 v{VT}, v{VT+1} offset:{QF}")
        a(f"s_waitcnt vmcnt({KW - 16})")
        a("s_waitcnt lgkmcnt(0)")
        a(f"v_readfirstlane_b32 {SREM}, v{VT}")
        a(f"s_cmp_lg_u32 {SREM}, 0")
        a(f"s_cbranch_scc1 L_qready")
        for n in range(KW, 32):
            issue(n)
        dstamp(5)
        lds_spin(QF, 1, VT + 1, VT, sleep=1)
        a(f"s_mov_b32 {SREM}, 0")
    elif FLAT:
        for n in range(W, 32):
            if n < opts.kwin:
                a(f"s_waitcnt vmcnt({W-1})")
            issue(n)
        dstamp(5)
        lds_spin(QF, 1, VT + 1, VT, sleep=1)
    else:
        for n in range(W, 16 + W2):
            a(f"s_waitcnt vmcnt({(W if n < 16 else W2) - 1})")
            issue(n)
        dstamp(5)
        for n in range(16 + W2, 32):
            a(f"ds_read_b32 v{VT}, v{VT+1} offset:{QF}")
            a(f"s_mov_b32 {SREM}, {32 - n}")
            a(f"s_waitcnt vmcnt({W2-1})")
            a("s_waitcnt lgkmcnt(0)")
            a(f"v_readfirstlane_b32 s10, v{VT}")
            a("s_cmp_lg_u32 s10, 0")
            a(f"s_cbranch_scc1 L_qready")
            issue(n)
        a(f"s_mov_b32 {SREM}, 0")
        a(f"s_waitcnt vmcnt({16 if False else min(W2, 16)})")
        lds_spin(QF, 1, VT + 1, VT, sleep=1)
    a.label("L_qready")
    a(f"v_and_b32 v{VT}, 15, v0")
    a(f"v_lshlrev_b32 v{VT}, 4, v{VT}")
    a(f"ds_read_b128 v[{VQ}:{VQ+3}], v{VT} offset:{L_Q}")
    a(f"ds_read_b64 v[{VS}:{VS+1}], v{VT+1} offset:{L_TAG}")
    stamp(1)
    a("s_waitcnt lgkmcnt(0)")
    a(f"v_readfirstlane_b32 s68, v{VS}")
    a(f"v_readfirstlane_b32 s69, v{VS+1}")
    for grp in range(4):
        if FLAT and not AB:
            a(f"s_waitcnt vmcnt({16 + 12 - 4*grp})")
        for d in range(4):
            for i in range(4*grp, 4*grp+4):
                src2 = "0" if d == 0 else f"v{VS+i}"
                a(f"v_dot2_f32_bf16 v{VS+i}, v{VK+4*i+d}, v{VQ+d}, {src2}")
    slot()
    for ctrl in ["quad_perm:[1,0,3,2]", "quad_perm:[2,3,0,1]", "row_half_mirror", "row_mirror"]:
        for i in range(16):
            a(f"v_add_f32_dpp v{VS+i}, v{VS+i}, v{VS+i} {ctrl} row_mask:0xf bank_mask:0xf")
    slot()
    a(f"s_mov_b32 s14, 0x{f32bits(128 ** -0.5):08x}")
    a("s_mov_b32 s15, 0xffff0000")
    for rnd in range(2):
        for p in range(8):
            a(f"v_cvt_pk_bf16_f32 v{VK+p}, v{VS+2*p}, v{VS+2*p+1}")
        for p in range(8):
            a(f"v_lshlrev_b32 v{VS+2*p}, 16, v{VK+p}")
            a(f"v_and_b32 v{VS+2*p+1}, s15, v{VK+p}")
        if rnd == 0:
            for i in range(16):
                a(f"v_mul_f32 v{VS+i}, s14, v{VS+i}")
    m = VT
    a(f"v_max3_f32 v{m}, v{VS}, v{VS+1}, v{VS+2}")
    for i in range(3, 15, 2):
        a(f"v_max3_f32 v{m}, v{m}, v{VS+i}, v{VS+i+1}")
    a(f"v_max_f32 v{m}, v{m}, v{VS+15}")
    for r in range(4):
        a(f"v_readlane_b32 s{60+r}, v{m}, {16*r}")
    a(f"v_mov_b32 v{m}, s60")
    a(f"v_max_f32 v{m}, s61, v{m}")
    a(f"v_max_f32 v{m}, s62, v{m}")
    a(f"v_max_f32 v{m}, s63, v{m}")
    slot()
    a(f"s_mov_b32 s14, 0x{f32bits(LOG2E):08x}")
    for i in range(16):
        a(f"v_sub_f32 v{VS+i}, v{VS+i}, v{m}")
    for i in range(16):
        a(f"v_mul_f32 v{VS+i}, s14, v{VS+i}")
    for i in range(16):
        a(f"v_exp_f32 v{VS+i}, v{VS+i}")
    PLO, PHI = VK, VK + 16
    a(f"v_mov_b32 v{VXV}, v{XV}")
    for i in range(16):
        a(f"v_cvt_pk_bf16_f32 v{PLO+i}, v{VS+i}, 0")
    for i in range(16):
        a(f"v_lshlrev_b32 v{PHI+i}, 16, v{PLO+i}")
    lsum = VT + 1
    a(f"v_add_f32 v{lsum}, v{VS}, v{VS+1}")
    for i in range(2, 16):
        a(f"v_add_f32 v{lsum}, v{lsum}, v{VS+i}")
    for r in range(4):
        a(f"v_readlane_b32 s{60+r}, v{lsum}, {16*r}")
    a(f"v_mov_b32 v{lsum}, s60")
    a(f"v_add_f32 v{lsum}, s61, v{lsum}")
    a(f"v_add_f32 v{lsum}, s62, v{lsum}")
    a(f"v_add_f32 v{lsum}, s63, v{lsum}")
    VZ = VQ
    a(f"s_lshl_b32 s10, s3, 2")
    a(f"v_mov_b32 v{VS}, s10")
    a(f"v_mov_b32 v{VZ}, 0")
    a(f"ds_write_b32 v{VS}, v{m} offset:{L_ML}")
    a(f"ds_write_b32 v{VS}, v{lsum} offset:{L_ML+32}")
    lds_arrive(C2, VZ, VS + 1)
    a(f"v_and_b32 v{VS}, 15, v0")
    a(f"v_lshlrev_b32 v{VS}, 5, v{VS}")
    a(f"v_lshrrev_b32 v{VS+1}, 4, v0")
    a(f"v_lshl_add_u32 v{VS}, v{VS+1}, 3, v{VS}")
    a(f"s_lshl_b32 s10, s3, 9")
    a(f"v_add_u32 v{VS}, s10, v{VS}")
    VCA, VPA, GO = VS + 2, VS + 3, VS + 4
    a(f"v_lshlrev_b32 v{VCA}, 3, v0")
    a("s_lshl_b32 s10, s6, 10")
    a(f"s_add_u32 s10, s10, {WS_H2}")
    a(f"v_lshl_add_u32 v{VPA}, v0, 4, s10")
    set_tag(GO)
    order = list(range(W2)) + list(range(15, W2 - 1, -1))
    if FLAT:
        order = list(range(16))
    dstamp(6)
    if AB and opts.bpos >= 3:
        late_burst()
    if FLAT:
        slot_i[0] = 16
    for t in range(16):
        i = order[t]
        while slot_i[0] <= t:
            slot()
        if FLAT:
            a(f"s_waitcnt vmcnt({15 - t})")
        if t == 15:
            dstamp(7)
        if t == opts.hpos:
            lds_arrive(C6, VZ, VS + 8)
        if t == opts.fpos:
            stamp(3)
            lds_spin(FF, 1, VZ, VS + 8, sleep=1)
            a(f"ds_read_b128 v[{VF}:{VF+3}], v{VZ} offset:{L_F}")
            a(f"ds_read_b128 v[{VF+4}:{VF+7}], v{VZ} offset:{L_F+16}")
            a("s_setprio 3")
        for d in range(4):
            s2a = "0" if t == 0 else f"v{VACC+2*d}"
            s2b = "0" if t == 0 else f"v{VACC+2*d+1}"
            a(f"v_dot2_f32_bf16 v{VACC+2*d}, v{VV+4*i+d}, v{PLO+i}, {s2a}")
            a(f"v_dot2_f32_bf16 v{VACC+2*d+1}, v{VV+4*i+d}, v{PHI+i}, {s2b}")
    assert slot_i[0] == 16
    for e in range(4):
        a(f"v_permlane32_swap_b32 v{VACC+e}, v{VACC+e+4}")
    for e in range(4):
        a(f"v_add_f32 v{VACC+e}, v{VACC+e}, v{VACC+e+4}")
    a(f"v_permlane16_swap_b32 v{VACC}, v{VACC+2}")
    a(f"v_permlane16_swap_b32 v{VACC+1}, v{VACC+3}")
    a(f"v_add_f32 v{VACC}, v{VACC}, v{VACC+2}")
    a(f"v_add_f32 v{VACC+1}, v{VACC+1}, v{VACC+3}")
    a(f"ds_write_b64 v{VS}, v[{VACC}:{VACC+1}] offset:{L_OP}")
    lds_arrive(C3, VZ, VS + 8, rtn=True)
    stamp(2)
    a("s_cmp_eq_u32 s10, 7")
    a("s_cbranch_scc0 L_nocomb")
    OPR = VK
    for w in range(8):
        a(f"ds_read_b64 v[{OPR+2*w}:{OPR+2*w+1}], v{VCA} offset:{L_OP + w*512}")
    for w in range(8):
        a(f"s_waitcnt lgkmcnt({7-w})")
        for e in range(2):
            if w == 0:
                a(f"v_mul_f32 v{GO+e}, v{VF}, v{OPR+e}")
            else:
                a(f"v_fma_f32 v{GO+e}, v{VF+w}, v{OPR+2*w+e}, v{GO+e}")
    a(f"buffer_store_dwordx4 v[{GO}:{GO+3}], v{VPA}, s[56:59], 0 offen sc1")
    stamp(4)
    a.label("L_nocomb")
    if "t" in opts.abl:
        a("s_branch L_sfin")
    a("s_cmp_eq_u32 s13, 0")
    a("s_cbranch_scc1 L_sfin")
    a("s_cmp_ge_u32 s4, 10")
    a("s_cselect_b32 s9, 70, 0")
    a("s_add_u32 s9, s9, s4")
    a("s_mul_i32 s10, s5, 10")
    a("s_add_u32 s9, s9, s10")
    a("s_lshl_b32 s9, s9, 1")
    a("s_add_u32 s9, s9, s3")
    a("s_lshl_b32 s9, s9, 10")
    a(f"s_add_u32 s9, s9, {WS_H3A}")
    FA, FO = VS, VS + 1
    a(f"v_lshl_add_u32 v{FA}, v0, 4, s9")
    a(f"s_mov_b32 s11, {WS_H3B - WS_H3A}")
    P = VK

    def reduce_duo(r0):
        for ctrl in ["quad_perm:[2,3,0,1]", "row_ror:4", "row_ror:8"]:
            a(f"v_add_f32_dpp v{r0}, v{r0}, v{r0} {ctrl} row_mask:0xf bank_mask:0xf")
            a(f"v_add_f32_dpp v{r0+1}, v{r0+1}, v{r0+1} {ctrl} row_mask:0xf bank_mask:0xf")
        a(f"v_permlane32_swap_b32 v{r0}, v{r0+1}")
        a(f"v_add_f32 v{r0}, v{r0}, v{r0+1}")
        a(f"v_mov_b32 v{r0+1}, v{r0}")
        a(f"v_permlane16_swap_b32 v{r0}, v{r0+1}")
        a(f"v_add_f32 v{r0}, v{r0}, v{r0+1}")

    RY2, RY1 = P + 4, P + 6
    pipelined_poll("pollY2", 1, [[P]],
                   lambda k: a(f"buffer_load_dwordx4 v[{P}:{P+3}], v{FA}, s[56:59], s11 offen sc1"), 0,
                   [RY2, RY2 + 1], slow=(1, 8))
    n3 = opts.npoll3
    Y1S = [[P + 8 + 4*k] for k in range(n3)]
    a("s_cmp_ge_u32 s4, 10")
    a("s_cselect_b32 s14, 560, 0")
    a("s_lshl_b32 s10, s4, 3")
    a("s_add_u32 s14, s14, s10")
    a("s_mul_i32 s10, s5, 80")
    a("s_add_u32 s14, s14, s10")
    a("s_lshl_b32 s10, s3, 2")
    a("s_add_u32 s14, s14, s10")
    a(f"v_and_b32 v{FO}, 1, v0")
    a(f"v_lshlrev_b32 v{FO}, 1, v{FO}")
    a(f"v_lshrrev_b32 v{FO+1}, 5, v0")
    a(f"v_add3_u32 v{FO}, v{FO}, v{FO+1}, s14")
    a(f"v_lshlrev_b32 v{FO}, 1, v{FO}")
    reduce_duo(RY2)
    Y2 = RY2
    T7 = P
    a(f"v_cvt_pk_bf16_f32 v{Y2}, v{Y2}, 0")
    a(f"v_lshlrev_b32 v{Y2}, 16, v{Y2}")
    a(f"s_mov_b32 s14, 0x{f32bits(-LOG2E):08x}")
    a(f"v_mul_f32 v{T7}, s14, v{Y2}")
    a(f"v_exp_f32 v{T7}, v{T7}")
    a(f"v_add_f32 v{T7}, 1.0, v{T7}")
    a(f"v_rcp_f32 v{T7}, v{T7}")
    a(f"v_mul_f32 v{Y2}, v{Y2}, v{T7}")
    a(f"v_cvt_pk_bf16_f32 v{Y2}, v{Y2}, 0")
    a(f"v_lshlrev_b32 v{Y2}, 16, v{Y2}")
    a(f"v_lshlrev_b32 v{VXV}, 16, v{VXV}")
    if not opts.dbgst:
        stamp(5)
    lds_spin(opts.ygate[0], opts.ygate[1], VZ, VS + 8, sleep=1)
    pipelined_poll("pollY1", n3, Y1S,
                   lambda k: a(f"buffer_load_dwordx4 v[{Y1S[k][0]}:{Y1S[k][0]+3}], v{FA}, s[56:59], 0 offen sc1"), opts.stag3,
                   [RY1, RY1 + 1])
    if not opts.dbgst:
        stamp(6)
    Y1 = RY1
    reduce_duo(Y1)
    a(f"v_cvt_pk_bf16_f32 v{Y1}, v{Y1}, 0")
    a(f"v_lshlrev_b32 v{Y1}, 16, v{Y1}")
    a(f"v_mul_f32 v{Y1}, v{Y1}, v{Y2}")
    a(f"v_cvt_pk_bf16_f32 v{Y1}, v{Y1}, 0")
    a(f"v_lshlrev_b32 v{Y1}, 16, v{Y1}")
    a(f"v_add_f32 v{Y1}, v{VXV}, v{Y1}")
    a(f"v_cvt_pk_bf16_f32 v{Y1}, v{Y1}, 0")
    a("s_mov_b32 s10, 3")
    a("s_mov_b32 s11, 3")
    a("s_mov_b64 exec, s[10:11]")
    a(f"buffer_store_short v{Y1}, v{FO}, s[64:67], 0 offen")
    a("s_or_b32 s10, s6, s3")
    a("s_cmp_lg_u32 s10, 0")
    a("s_cbranch_scc1 L_noep")
    a("s_mov_b64 exec, 1")
    a(f"v_mov_b32 v{VS+2}, {WS_EPOCH}")
    a(f"v_mov_b32 v{VS+3}, s68")
    a(f"buffer_store_dword v{VS+3}, v{VS+2}, s[56:59], 0 offen sc1")
    a.label("L_noep")
    a("s_mov_b64 exec, -1")
    if not opts.dbgst:
        stamp(7)
    else:
        stamp(4)
    a.label("L_sfin")
    a("s_add_u32 s3, s3, 4")
    a("s_branch L_fin")

    a.label("L_aux")
    a.c("---- aux wave: a = s3 (0..3) ----")
    a("s_setprio 3")
    XR = 20
    VE = 30
    WQ = 32
    W1 = 52
    TMP = 64
    ACC = 96
    W2 = 120
    WO = 136
    LO2 = 96
    AY = 104
    BOP = 32
    a("s_cmp_lg_u32 s3, 0")
    a("s_cbranch_scc1 L_noclr")
    for r in range(4, 8):
        a(f"v_mov_b32 v{r}, 0")
    a(f"ds_write_b128 v4, v[4:7] offset:{L_SYNC}")
    a(f"ds_write_b128 v4, v[4:7] offset:{L_SYNC+16}")
    a(f"ds_write_b128 v4, v[4:7] offset:{L_SYNC+32}")
    a.label("L_noclr")
    a(f"v_lshlrev_b32 v2, 4, v0")
    a(f"v_lshlrev_b32 v3, 2, v0")
    a(f"v_mov_b32 v{VE}, {WS_EPOCH}")
    a("s_mul_i32 s9, s5, 80")
    a("s_mul_i32 s10, s3, 20")
    a("s_add_u32 s9, s9, s10")
    a(f"v_lshrrev_b32 v10, 4, v0")
    a(f"v_and_b32 v11, 15, v0")
    RG, C = 10, 11
    a(f"v_add_u32 v{TMP+10}, s9, v{RG}")
    a(f"v_lshlrev_b32 v{TMP+11}, 1, v{TMP+10}")
    a(f"v_lshlrev_b32 v{TMP+1}, 13, v{TMP+10}")
    a(f"v_lshl_add_u32 v{TMP+1}, v{C}, 4, v{TMP+1}")
    a("s_lshl_b32 s10, s4, 8")
    a(f"v_add_u32 v{TMP+1}, s10, v{TMP+1}")
    a("s_cmp_ge_u32 s4, 27")
    a(f"s_cselect_b32 s13, {OOB}, 0")
    a("s_movk_i32 s10, 3456")
    a(f"v_mul_lo_u32 v{TMP+2}, v{TMP+10}, s10")
    a(f"v_lshl_add_u32 v{TMP+2}, v{C}, 3, v{TMP+2}")
    a("s_lshl_b32 s10, s4, 7")
    a("s_add_u32 s10, s10, s13")
    a(f"v_add_u32 v{TMP+2}, s10, v{TMP+2}")
    for i in range(1, 5):
        a(f"s_mov_b32 s{88+i}, {i*32768}")
        if i < 4:
            a(f"s_mov_b32 s{92+i}, {i*13824}")
    a(f"s_mov_b32 s88, {4*13824}")
    a("s_waitcnt lgkmcnt(0)")

    def srd(r, lo, size):
        a(f"s_mov_b32 s{r}, s{lo}")
        a(f"s_mov_b32 s{r+1}, s{lo+1}")
        a(f"s_mov_b32 s{r+2}, {size}")
        a(f"s_mov_b32 s{r+3}, 0x00020000")
    a("s_mov_b32 s56, s36")
    a("s_mov_b32 s57, s37")
    srd(40, 16, 2560)
    a(f"buffer_load_dword v{VE}, v{VE}, s[56:59], 0 offen sc1")
    a(f"buffer_load_dwordx4 v[4:7], v2, s[40:43], 0 offen")
    a(f"buffer_load_dword v8, v3, s[40:43], 0 offen offset:1024")
    a(f"buffer_load_dwordx4 v[12:15], v2, s[40:43], 0 offen offset:1280")
    a(f"buffer_load_dword v16, v3, s[40:43], 0 offen offset:2304")
    srd(44, 22, 5242880)
    for i in range(5):
        so = "0" if i == 0 else f"s{88+i}"
        a(f"buffer_load_dwordx4 v[{WQ+4*i}:{WQ+4*i+3}], v{TMP+1}, s[44:47], {so} offen {wpol}")
    srd(48, 28, 2211840)
    for i in range(5):
        so = "0" if i == 0 else (f"s{92+i}" if i < 4 else "s88")
        a(f"buffer_load_dwordx2 v[{W1+2*i}:{W1+2*i+1}], v{TMP+2}, s[48:51], {so} offen {wpol}")
    for i in range(5):
        for b in range(2):
            a(f"buffer_load_ushort v{XR+2*i+b}, v{TMP+11}, s[40:43], 0 offen offset:{b*1280 + i*8}")
    a("s_waitcnt lgkmcnt(0)")
    a("s_barrier")
    a(f"v_mov_b32 v{TMP+5}, 0")
    a(f"v_mov_b32 v{TMP+6}, {OOB}")
    a(f"v_cmp_lt_u32 vcc, 9, v{C}")
    a(f"v_cndmask_b32 v{TMP+5}, v{TMP+5}, v{TMP+6}, vcc")
    a(f"v_lshl_add_u32 v{TMP+5}, v{C}, 4, v{TMP+5}")
    a("s_mul_i32 s10, s5, 160")
    a(f"v_add_u32 v{TMP+5}, s10, v{TMP+5}")
    a("s_movk_i32 s14, 1280")
    a("s_lshl_b32 s10, s4, 6")
    a("s_lshl_b32 s11, s3, 4")
    a("s_add_u32 s10, s10, s11")
    a(f"v_lshl_add_u32 v{TMP+3}, v{RG}, 2, s10")
    a(f"v_mul_lo_u32 v{TMP+3}, v{TMP+3}, s14")
    a(f"v_add_u32 v{TMP+3}, v{TMP+5}, v{TMP+3}")
    a(f"v_add_u32 v{TMP+3}, s13, v{TMP+3}")
    a("s_lshl_b32 s10, s4, 7")
    a("s_lshl_b32 s11, s3, 5")
    a("s_add_u32 s10, s10, s11")
    a(f"v_lshl_add_u32 v{TMP+4}, v{RG}, 3, s10")
    a(f"v_mul_lo_u32 v{TMP+4}, v{TMP+4}, s14")
    a(f"v_add_u32 v{TMP+4}, v{TMP+5}, v{TMP+4}")
    a("s_movk_i32 s12, 5120")
    srd(52, 30, 2211840)
    for i in range(4):
        a(f"buffer_load_dwordx4 v[{W2+4*i}:{W2+4*i+3}], v{TMP+3}, s[52:55], 0 offen offset:{i*1280} {wpol}")
    srd(60, 24, 5242880)
    for i in range(8):
        so = "0" if i < 4 else "s12"
        a(f"buffer_load_dwordx4 v[{WO+4*i}:{WO+4*i+3}], v{TMP+4}, s[60:63], {so} offen offset:{(i&3)*1280} {wpol}")

    a("s_waitcnt vmcnt(32)")
    a(f"v_readfirstlane_b32 s68, v{VE}")
    a("s_mov_b32 s15, 0xffff0000")
    a("s_add_u32 s68, s68, 1")
    a("s_xor_b32 s69, s68, 0x9e3779b9")
    F = TMP + 12
    srcs = [[4, 5, 6, 7, 8], [12, 13, 14, 15, 16]]
    for b in range(2):
        for d in range(5):
            a(f"v_lshlrev_b32 v{F+10*b+2*d}, 16, v{srcs[b][d]}")
            a(f"v_and_b32 v{F+10*b+2*d+1}, s15, v{srcs[b][d]}")
    S0, S1, Q0, Q1, t0, t1 = 4, 5, 6, 7, 8, 9

    def wave_sum2(r0, r1, sbase):
        for ctrl in ["quad_perm:[1,0,3,2]", "quad_perm:[2,3,0,1]", "row_half_mirror", "row_mirror"]:
            a(f"v_add_f32_dpp v{r0}, v{r0}, v{r0} {ctrl} row_mask:0xf bank_mask:0xf")
            a(f"v_add_f32_dpp v{r1}, v{r1}, v{r1} {ctrl} row_mask:0xf bank_mask:0xf")
        for r in range(4):
            a(f"v_readlane_b32 s{sbase+r}, v{r0}, {16*r}")
            a(f"v_readlane_b32 s{sbase+4+r}, v{r1}, {16*r}")
        a(f"v_mov_b32 v{r0}, s{sbase}")
        a(f"v_mov_b32 v{r1}, s{sbase+4}")
        for r in range(1, 4):
            a(f"v_add_f32 v{r0}, s{sbase+r}, v{r0}")
            a(f"v_add_f32 v{r1}, s{sbase+4+r}, v{r1}")

    for e in range(1, 10):
        for b, S in ((0, S0), (1, S1)):
            if e == 1:
                a(f"v_add_f32 v{S}, v{F+10*b}, v{F+10*b+1}")
            else:
                a(f"v_add_f32 v{S}, v{S}, v{F+10*b+e}")
    wave_sum2(S0, S1, 88)
    a(f"s_mov_b32 s14, 0x{f32bits(1.0/640):08x}")
    a(f"v_mul_f32 v{S0}, s14, v{S0}")
    a(f"v_mul_f32 v{S1}, s14, v{S1}")
    for b, S in ((0, S0), (1, S1)):
        for e in range(10):
            a(f"v_sub_f32 v{F+10*b+e}, v{F+10*b+e}, v{S}")
    for e in range(10):
        for b, Q in ((0, Q0), (1, Q1)):
            if e == 0:
                a(f"v_mul_f32 v{Q}, v{F+10*b}, v{F+10*b}")
            else:
                a(f"v_fma_f32 v{Q}, v{F+10*b+e}, v{F+10*b+e}, v{Q}")
    wave_sum2(Q0, Q1, 88)
    a(f"v_mul_f32 v{Q0}, s14, v{Q0}")
    a(f"v_mul_f32 v{Q1}, s14, v{Q1}")
    a(f"v_cvt_pk_bf16_f32 v{t0}, v{S0}, v{S1}")
    a(f"v_cvt_pk_bf16_f32 v{t1}, v{Q0}, v{Q1}")
    a(f"v_lshlrev_b32 v{S0}, 16, v{t0}")
    a(f"v_and_b32 v{S1}, s15, v{t0}")
    a(f"v_lshlrev_b32 v{Q0}, 16, v{t1}")
    a(f"v_and_b32 v{Q1}, s15, v{t1}")
    a(f"s_mov_b32 s14, 0x{f32bits(1e-5):08x}")
    a(f"v_add_f32 v{Q0}, s14, v{Q0}")
    a(f"v_add_f32 v{Q1}, s14, v{Q1}")
    a(f"v_cvt_pk_bf16_f32 v{t1}, v{Q0}, v{Q1}")
    a(f"v_lshlrev_b32 v{Q0}, 16, v{t1}")
    a(f"v_and_b32 v{Q1}, s15, v{t1}")
    a(f"v_sqrt_f32 v{Q0}, v{Q0}")
    a(f"v_sqrt_f32 v{Q1}, v{Q1}")
    a(f"v_cvt_pk_bf16_f32 v{t1}, v{Q0}, v{Q1}")
    a(f"v_lshlrev_b32 v{Q0}, 16, v{t1}")
    a(f"v_and_b32 v{Q1}, s15, v{t1}")
    a(f"v_rcp_f32 v{Q0}, v{Q0}")
    a(f"v_rcp_f32 v{Q1}, v{Q1}")
    XH = F
    MS = [S0, S1]; RS = [Q0, Q1]
    a("s_waitcnt vmcnt(12)")

    def each(fn):
        for i in range(5):
            for b in range(2):
                fn(XR + 2*i + b, b, i)
    each(lambda r, b, i: a(f"v_lshlrev_b32 v{r}, 16, v{r}"))
    each(lambda r, b, i: a(f"v_sub_f32 v{r}, v{r}, v{MS[b]}"))
    each(lambda r, b, i: a(f"v_cvt_pk_bf16_f32 v{r}, v{r}, 0"))
    each(lambda r, b, i: a(f"v_lshlrev_b32 v{r}, 16, v{r}"))
    each(lambda r, b, i: a(f"v_mul_f32 v{r}, v{r}, v{RS[b]}"))
    each(lambda r, b, i: a(f"v_cvt_pk_bf16_f32 v{r}, v{r}, 0"))
    each(lambda r, b, i: a(f"v_lshlrev_b32 v{XH+2*i+b}, 16, v{r}"))
    AQ = ACC; AH = ACC + 16
    for i in range(5):
        for b in range(2):
            for d in range(4):
                for hl in range(2):
                    acc = AQ + 8*b + 2*d + hl
                    xs = (XR if hl == 0 else XH) + 2*i + b
                    s2 = "0" if i == 0 else f"v{acc}"
                    a(f"v_dot2_f32_bf16 v{acc}, v{WQ+4*i+d}, v{xs}, {s2}")
    for i in range(5):
        for b in range(2):
            for d in range(2):
                for hl in range(2):
                    acc = AH + 4*b + 2*d + hl
                    xs = (XR if hl == 0 else XH) + 2*i + b
                    s2 = "0" if i == 0 else f"v{acc}"
                    a(f"v_dot2_f32_bf16 v{acc}, v{W1+2*i+d}, v{xs}, {s2}")

    def reduce16(base):
        for k in range(8):
            a(f"v_permlane32_swap_b32 v{base+k}, v{base+k+8}")
        for k in range(8):
            a(f"v_add_f32 v{base+k}, v{base+k}, v{base+k+8}")
        for k in range(4):
            a(f"v_permlane16_swap_b32 v{base+k}, v{base+k+4}")
        for k in range(4):
            a(f"v_add_f32 v{base+k}, v{base+k}, v{base+k+4}")

    reduce16(AQ)
    for k in range(4):
        a(f"v_permlane32_swap_b32 v{AH+k}, v{AH+k+4}")
    for k in range(4):
        a(f"v_add_f32 v{AH+k}, v{AH+k}, v{AH+k+4}")
    for k in range(2):
        a(f"v_permlane16_swap_b32 v{AH+k}, v{AH+k+2}")
    for k in range(2):
        a(f"v_add_f32 v{AH+k}, v{AH+k}, v{AH+k+2}")
    a(f"v_lshrrev_b32 v2, 1, v{RG}")
    a(f"v_and_b32 v3, 1, v{RG}")
    a(f"v_lshlrev_b32 v{TMP}, 9, v2")
    a(f"v_lshl_add_u32 v{TMP}, v{C}, 5, v{TMP}")
    a(f"v_lshl_add_u32 v{TMP}, v3, 4, v{TMP}")
    a("s_lshl_b32 s10, s3, 10")
    a(f"v_add_u32 v{TMP}, s10, v{TMP}")
    a(f"ds_write_b128 v{TMP}, v[{AQ}:{AQ+3}] offset:{L_QP}")
    a(f"v_lshlrev_b32 v{TMP+1}, 8, v2")
    a(f"v_lshl_add_u32 v{TMP+1}, v{C}, 4, v{TMP+1}")
    a(f"v_lshl_add_u32 v{TMP+1}, v3, 3, v{TMP+1}")
    a("s_lshl_b32 s10, s3, 9")
    a(f"v_add_u32 v{TMP+1}, s10, v{TMP+1}")
    a(f"ds_write_b64 v{TMP+1}, v[{AH}:{AH+1}] offset:{L_HP}")
    VY = 31
    a("s_movk_i32 s10, 320")
    a(f"v_mul_u32_u24 v{VY}, s10, v2")
    a(f"v_lshl_add_u32 v{VY}, v{C}, 5, v{VY}")
    a(f"v_lshl_add_u32 v{VY}, v3, 4, v{VY}")
    a("s_mul_i32 s10, s3, 640")
    a(f"v_add_u32 v{VY}, s10, v{VY}")
    VZ = 12
    a(f"v_mov_b32 v{VZ}, 0")
    lds_arrive(C1, VZ, 3)
    lds_spin(C1, 4, VZ, 3)
    stamp(1)

    G = TMP

    def check_tags(regs, lbl_retry_cnt, lbl_loop, lbl_done):
        tags_bad(regs)
        a(f"s_cbranch_scc1 {lbl_done}")
        a(f"s_sub_u32 {lbl_retry_cnt}, {lbl_retry_cnt}, 1")
        a(f"s_cmp_eq_u32 {lbl_retry_cnt}, 0")
        a(f"s_cbranch_scc0 {lbl_loop}")

    def preperm():
        a("s_mov_b32 s10, 0x05040100")
        a("s_mov_b32 s11, 0x07060302")
        for q in range(2):
            for d in range(4):
                r0, r1 = W2 + 8*q + d, W2 + 8*q + 4 + d
                a(f"v_perm_b32 v{LO2+4*q+d}, v{r1}, v{r0}, s10")
                a(f"v_perm_b32 v{r1}, v{r1}, v{r0}, s11")
        for e in range(8):
            for t in range(4):
                r0, r1 = WO + 8*t + (e >> 1), WO + 8*t + 4 + (e >> 1)
                a(f"v_perm_b32 v{BOP+4*e+t}, v{r1}, v{r0}, s{10 + (e & 1)}")

    a("s_cmp_eq_u32 s3, 3")
    a("s_cbranch_scc1 L_h1_gather")
    a(f"v_lshlrev_b32 v2, 3, v0")
    a("s_cmp_eq_u32 s3, 2")
    a("s_cbranch_scc1 L_h1_pubh")
    a("s_lshl_b32 s10, s3, 9")
    a(f"v_add_u32 v2, s10, v2")
    for w in range(4):
        a(f"ds_read_b64 v[{G+4+2*w}:{G+5+2*w}], v2 offset:{L_QP + w*1024}")
    a("s_lshl_b32 s11, s3, 10")
    a("s_branch L_h1_pub")
    a.label("L_h1_pubh")
    for w in range(4):
        a(f"ds_read_b64 v[{G+4+2*w}:{G+5+2*w}], v2 offset:{L_HP + w*512}")
    a("s_movk_i32 s11, 2048")
    a.label("L_h1_pub")
    a("s_mul_i32 s10, s6, 3072")
    a("s_add_u32 s10, s10, s11")
    a(f"v_lshl_add_u32 v3, v0, 4, s10")
    set_tag(G)
    a("s_waitcnt lgkmcnt(0)")
    a(f"v_add_f32 v{G}, v{G+4}, v{G+6}")
    a(f"v_add_f32 v{G+1}, v{G+5}, v{G+7}")
    a(f"v_add_f32 v{G+8}, v{G+8}, v{G+10}")
    a(f"v_add_f32 v{G+9}, v{G+9}, v{G+11}")
    a(f"v_add_f32 v{G}, v{G}, v{G+8}")
    a(f"v_add_f32 v{G+1}, v{G+1}, v{G+9}")
    a(f"buffer_store_dwordx4 v[{G}:{G+3}], v3, s[56:59], 0 offen sc1")
    a(f"s_mul_i32 s10, s4, {GSTR}")
    a("s_lshl_b32 s11, s3, 6")
    a("s_add_u32 s10, s10, s11")
    a("s_lshl_b32 s11, s5, 3")
    a("s_add_u32 s10, s10, s11")
    a(f"s_add_u32 s10, s10, {WS_H1F}")
    a("v_mov_b32 v3, s10")
    a("s_mov_b64 exec, 1")
    a(f"buffer_store_dwordx2 v[{G+2}:{G+3}], v3, s[56:59], 0 offen sc1")
    a("s_mov_b64 exec, -1")
    a("s_cmp_eq_u32 s3, 2")
    a("s_cbranch_scc1 L_h1_gather")
    a("s_waitcnt vmcnt(2)")
    preperm()
    stamp(2)
    a("s_branch L_b3")

    a.label("L_h1_gather")
    a("s_lshl_b32 s10, s7, 10")
    a("s_cmp_eq_u32 s3, 2")
    a("s_cselect_b32 s10, 2048, s10")
    a("s_mul_i32 s11, s4, 24576")
    a("s_add_u32 s10, s10, s11")
    a(f"v_lshl_add_u32 v3, v0, 4, s10")
    for jj in range(1, 8):
        a(f"s_mov_b32 s{88+jj}, {jj*3072}")
    a("s_cmp_eq_u32 s3, 2")
    a("s_cbranch_scc1 L_pp2")
    a("s_waitcnt vmcnt(0)")
    a("s_branch L_pp")
    a.label("L_pp2")
    a("s_waitcnt vmcnt(2)")
    a.label("L_pp")
    preperm()
    a("s_cmp_eq_u32 s3, 2")
    a("s_cselect_b32 s10, 2, s7")
    a("s_lshl_b32 s10, s10, 6")
    a(f"s_mul_i32 s11, s4, {GSTR}")
    a("s_add_u32 s10, s10, s11")
    a(f"s_add_u32 s10, s10, {WS_H1F}")
    if "h" not in opts.abl:
        hint_poll("hint1", 10, 0)
    if "g" not in opts.abl:
        a(f"s_mov_b32 s12, {opts.maxpoll}")
        a.label("L_poll1")
        for jj in range(8):
            so = "0" if jj == 0 else f"s{88+jj}"
            a(f"buffer_load_dwordx4 v[{G+4*jj}:{G+4*jj+3}], v3, s[56:59], {so} offen sc1")
        a("s_waitcnt vmcnt(0)")
        if "h" not in opts.abl:
            check_tags([G+4*jj for jj in range(8)], "s12", "L_poll1", "L_poll1_done")
        a.label("L_poll1_done")
    stamp(2)
    for e in range(2):
        a(f"v_add_f32 v{G+e}, v{G+e}, v{G+4+e}")
        a(f"v_add_f32 v{G+8+e}, v{G+8+e}, v{G+12+e}")
        a(f"v_add_f32 v{G+16+e}, v{G+16+e}, v{G+20+e}")
        a(f"v_add_f32 v{G+24+e}, v{G+24+e}, v{G+28+e}")
    for e in range(2):
        a(f"v_add_f32 v{G+e}, v{G+e}, v{G+8+e}")
        a(f"v_add_f32 v{G+16+e}, v{G+16+e}, v{G+24+e}")
    for e in range(2):
        a(f"v_add_f32 v{G+e}, v{G+e}, v{G+16+e}")
    a(f"v_lshlrev_b32 v2, 2, v0")
    a("s_cmp_eq_u32 s3, 2")
    a("s_cbranch_scc0 L_qw")
    a(f"v_max_f32 v{G}, 0, v{G}")
    a(f"v_max_f32 v{G+1}, 0, v{G+1}")
    a(f"v_add_u32 v2, {L_H - L_Q}, v2")
    a.label("L_qw")
    a(f"v_cvt_pk_bf16_f32 v{G}, v{G}, v{G+1}")
    a(f"ds_write_b32 v2, v{G} offset:{L_Q}")
    a("v_mov_b32 v2, s68")
    a("v_mov_b32 v3, s69")
    a(f"ds_write_b64 v{VZ}, v[2:3] offset:{L_TAG}")
    a("s_cmp_eq_u32 s3, 2")
    a(f"s_movk_i32 s10, {QF}")
    a(f"s_movk_i32 s11, {HF}")
    a(f"s_cselect_b32 s10, s11, s10")
    a("v_mov_b32 v2, s10")
    a("v_mov_b32 v3, 1")
    a(f"ds_write_b32 v2, v3")
    a.label("L_b3")
    lds_spin(HF, 1, VZ, 3)
    a("s_lshl_b32 s10, s3, 5")
    a(f"v_lshl_add_u32 v2, v{RG}, 3, s10")
    a(f"ds_read_b64 v[{TMP}:{TMP+1}], v2 offset:{L_H}")
    a(f"ds_read_b64 v[{TMP+2}:{TMP+3}], v2 offset:{L_H+128}")
    a("s_waitcnt lgkmcnt(0)")
    for q in range(2):
        for b in range(2):
            for d in range(4):
                for hl in range(2):
                    acc = AY + 8*b + 2*d + hl
                    w = (LO2 + 4*q + d) if hl == 0 else (W2 + 8*q + 4 + d)
                    s2 = "0" if q == 0 else f"v{acc}"
                    a(f"v_dot2_f32_bf16 v{acc}, v{w}, v{TMP+2*b+q}, {s2}")
    reduce16(AY)
    a(f"s_mov_b32 s10, {LANES10}")
    a(f"s_mov_b32 s11, {LANES10}")
    a("s_mov_b64 exec, s[10:11]")
    a(f"ds_write_b128 v{VY}, v[{AY}:{AY+3}] offset:{L_Y2P}")
    a("s_mov_b64 exec, -1")
    lds_arrive(C4, VZ, 3, rtn=True)
    a("s_cmp_eq_u32 s10, 3")
    a("s_cbranch_scc0 L_noy2")
    a(f"v_lshlrev_b32 v2, 3, v0")
    for w in range(4):
        a(f"ds_read_b64 v[{TMP+8+2*w}:{TMP+9+2*w}], v2 offset:{L_Y2P + w*640}")
    for w in range(4):
        a(f"ds_read_b64 v[{TMP+16+2*w}:{TMP+17+2*w}], v2 offset:{L_Y2P + w*640 + 512}")
    def pair_addr(vdst, vp, vt):
        a(f"v_lshrrev_b32 v{vdst}, 2, v{vp}")
        a(f"v_cmp_lt_u32 vcc, 39, v{vp}")
        a(f"v_mov_b32 v{vt}, 0")
        a(f"v_cndmask_b32 v{vt}, v{vt}, v{TMP+31}, vcc")
        a(f"v_add_u32 v{vdst}, v{vdst}, v{vt}")
        a(f"v_lshlrev_b32 v{vdst}, 11, v{vdst}")
        a(f"v_and_b32 v{vt}, 2, v{vp}")
        a(f"v_lshl_add_u32 v{vdst}, v{vt}, 9, v{vdst}")
        a(f"v_and_b32 v{vt}, 1, v{vp}")
        a(f"v_lshl_add_u32 v{vdst}, v{vt}, 4, v{vdst}")
        a(f"v_add_u32 v{vdst}, s10, v{vdst}")
    a("s_mul_i32 s10, s5, 20480")
    a("s_lshl_b32 s11, s4, 5")
    a("s_add_u32 s10, s10, s11")
    a(f"s_add_u32 s10, s10, {WS_H3B}")
    a(f"v_mov_b32 v{TMP+31}, 70")
    pair_addr(3, 0, TMP + 30)
    a(f"v_add_u32 v{TMP+29}, 64, v0")
    pair_addr(2, TMP + 29, TMP + 30)
    set_tag(TMP)
    set_tag(TMP+4)
    a("s_waitcnt lgkmcnt(0)")
    for e in range(2):
        a(f"v_add_f32 v{TMP+8+e}, v{TMP+8+e}, v{TMP+10+e}")
        a(f"v_add_f32 v{TMP+12+e}, v{TMP+12+e}, v{TMP+14+e}")
        a(f"v_add_f32 v{TMP+e}, v{TMP+8+e}, v{TMP+12+e}")
    a(f"buffer_store_dwordx4 v[{TMP}:{TMP+3}], v3, s[56:59], 0 offen sc1")
    for e in range(2):
        a(f"v_add_f32 v{TMP+16+e}, v{TMP+16+e}, v{TMP+18+e}")
        a(f"v_add_f32 v{TMP+20+e}, v{TMP+20+e}, v{TMP+22+e}")
        a(f"v_add_f32 v{TMP+4+e}, v{TMP+16+e}, v{TMP+20+e}")
    a("s_mov_b64 exec, 0xffff")
    a(f"buffer_store_dwordx4 v[{TMP+4}:{TMP+7}], v2, s[56:59], 0 offen sc1")
    a("s_mov_b64 exec, -1")
    a.label("L_noy2")
    stamp(3)
    MASK = 120
    AOP = 136
    ACC2 = 96
    YR = 104
    VPH, VYW, VY0, VY1 = 13, 14, 15, 16
    GY = 20
    a("v_lshrrev_b32 v2, 1, v0")
    a("v_and_b32 v2, 7, v2")
    for q in range(4):
        for h in range(2):
            a(f"v_cmp_eq_u32 vcc, {2*q+h}, v2")
            a(f"v_cndmask_b32 v{MASK+2*q+h}, 0, -1, vcc")
    a("v_and_b32 v3, 1, v0")
    a("v_lshlrev_b32 v3, 12, v3")
    a("v_lshrrev_b32 v4, 1, v2")
    a("v_lshl_add_u32 v3, v4, 10, v3")
    a(f"v_lshl_add_u32 v3, v{RG}, 6, v3")
    a("v_and_b32 v4, 1, v2")
    a("v_lshl_add_u32 v3, v4, 5, v3")
    a("s_lshl_b32 s10, s4, 13")
    a("s_lshl_b32 s11, s3, 8")
    a("s_add_u32 s10, s10, s11")
    a(f"s_add_u32 s10, s10, {WS_H2}")
    a(f"v_add_u32 v{VPH}, s10, v3")
    a("s_lshl_b32 s10, s3, 10")
    a(f"v_lshl_add_u32 v{VYW}, v0, 4, s10")
    a(f"v_lshlrev_b32 v3, 11, v{C}")
    a(f"v_lshrrev_b32 v4, 1, v{RG}")
    a("v_lshl_add_u32 v3, v4, 10, v3")
    a(f"v_and_b32 v4, 1, v{RG}")
    a("v_lshl_add_u32 v3, v4, 4, v3")
    a("s_mul_i32 s10, s5, 20480")
    a("s_lshl_b32 s11, s4, 5")
    a("s_add_u32 s10, s10, s11")
    a(f"s_add_u32 s10, s10, {WS_H3A}")
    a(f"v_add_u32 v{VY0}, s10, v3")
    a(f"v_lshlrev_b32 v{VY1}, 4, v0")
    set_tag(GY)
    set_tag(GY + 4)
    a("s_cmp_lg_u32 s3, 0")
    a("s_cbranch_scc1 L_noml")
    lds_spin(C2, 8, VZ, 3, sleep=1)
    a(f"ds_read_b128 v[{TMP}:{TMP+3}], v{VZ} offset:{L_ML}")
    a(f"ds_read_b128 v[{TMP+4}:{TMP+7}], v{VZ} offset:{L_ML+16}")
    a(f"ds_read_b128 v[{TMP+8}:{TMP+11}], v{VZ} offset:{L_ML+32}")
    a(f"ds_read_b128 v[{TMP+12}:{TMP+15}], v{VZ} offset:{L_ML+48}")
    GM = TMP + 16
    set_tag(GM)
    a(f"s_mul_i32 s10, s4, {GSTR}")
    a("s_lshl_b32 s11, s5, 4")
    a("s_add_u32 s10, s10, s11")
    a(f"s_add_u32 s10, s10, {WS_ML}")
    a("v_mov_b32 v3, s10")
    a(f"s_mov_b32 s14, 0x{f32bits(LOG2E):08x}")
    a("s_waitcnt lgkmcnt(0)")
    M = GM
    a(f"v_max3_f32 v{M}, v{TMP}, v{TMP+1}, v{TMP+2}")
    a(f"v_max3_f32 v{M}, v{M}, v{TMP+3}, v{TMP+4}")
    a(f"v_max3_f32 v{M}, v{M}, v{TMP+5}, v{TMP+6}")
    a(f"v_max_f32 v{M}, v{M}, v{TMP+7}")
    E8 = TMP + 24
    for w in range(8):
        a(f"v_sub_f32 v{E8+w}, v{TMP+w}, v{M}")
    for w in range(8):
        a(f"v_mul_f32 v{E8+w}, s14, v{E8+w}")
    for w in range(8):
        a(f"v_exp_f32 v{E8+w}, v{E8+w}")
    a("s_mov_b64 exec, 1")
    a(f"ds_write_b128 v{VZ}, v[{E8}:{E8+3}] offset:{L_F}")
    a(f"ds_write_b128 v{VZ}, v[{E8+4}:{E8+7}] offset:{L_F+16}")
    a("v_mov_b32 v4, 1")
    a(f"ds_write_b32 v{VZ}, v4 offset:{FF}")
    a("s_mov_b64 exec, -1")
    Ls = GM + 1
    a(f"v_mul_f32 v{Ls}, v{E8}, v{TMP+8}")
    for w in range(1, 8):
        a(f"v_fma_f32 v{Ls}, v{E8+w}, v{TMP+8+w}, v{Ls}")
    a("s_mov_b64 exec, 1")
    a(f"buffer_store_dwordx4 v[{GM}:{GM+3}], v3, s[56:59], 0 offen sc1")
    a("s_mov_b64 exec, -1")
    a.label("L_noml")
    if "t" in opts.abl:
        a("s_branch L_fin")
    GP = TMP + 28
    VFS = 17
    VML = 18
    a("v_and_b32 v3, 1, v0")
    a("v_lshlrev_b32 v3, 6, v3")
    a("v_lshrrev_b32 v4, 2, v0")
    a("v_and_b32 v4, 3, v4")
    a("v_lshl_add_u32 v3, v4, 4, v3")
    a(f"s_mul_i32 s10, s4, {GSTR}")
    a(f"s_add_u32 s10, s10, {WS_ML}")
    a(f"v_add_u32 v{VML}, s10, v3")
    a(f"s_mul_i32 s9, s4, {GSTR}")
    a(f"s_add_u32 s9, s9, {WS_H2F}")
    a("s_lshl_b32 s10, s5, 3")
    a("s_add_u32 s10, s10, s9")
    a("v_mov_b32 v19, s10")
    lds_spin(C6, 8, VZ, 3, sleep=2)
    a("s_cmp_lg_u32 s3, 0")
    a("s_cbranch_scc1 L_nohint0")
    a("s_mov_b64 exec, 1")
    a(f"buffer_store_dwordx2 v[{GY+2}:{GY+3}], v19, s[56:59], 0 offen sc1")
    a("s_mov_b64 exec, -1")
    a.label("L_nohint0")
    a(f"buffer_load_dwordx4 v[{GP}:{GP+3}], v{VML}, s[56:59], 0 offen sc1")
    a("s_cmp_lg_u32 s3, 0")
    a("s_cbranch_scc1 L_nohint")
    hint_poll("hint2", 9, 1)
    a("v_mov_b32 v3, 1")
    a(f"ds_write_b32 v{VZ}, v3 offset:{HG}")
    a.label("L_nohint")
    lds_spin(HG, 1, VZ, 3)
    a(f"s_mov_b32 s12, {opts.maxpoll}")
    a.label("L_pollml")
    a("s_waitcnt vmcnt(0)")
    tags_bad([GP])
    a("s_cbranch_scc1 L_pollml_done")
    a("s_sleep 2")
    a(f"buffer_load_dwordx4 v[{GP}:{GP+3}], v{VML}, s[56:59], 0 offen sc1")
    a("s_sub_u32 s12, s12, 1")
    a("s_cmp_lg_u32 s12, 0")
    a("s_cbranch_scc1 L_pollml")
    a.label("L_pollml_done")
    stamp(4)
    a(f"s_mov_b32 s9, {160*1024}")
    a(f"s_mov_b32 s14, 0x{f32bits(LOG2E):08x}")
    n2 = opts.npoll2
    assert n2 <= 3
    PS = [[TMP + 8*k, TMP + 8*k + 4] for k in range(n2)]

    def issue2(k):
        a(f"buffer_load_dwordx4 v[{PS[k][0]}:{PS[k][0]+3}], v{VPH}, s[56:59], 0 offen sc1")
        a(f"buffer_load_dwordx4 v[{PS[k][1]}:{PS[k][1]+3}], v{VPH}, s[56:59], 0 offen offset:16 sc1")

    def calc_f():
        a(f"v_max_f32_dpp v5, v{GP}, v{GP} row_ror:4 row_mask:0xf bank_mask:0xf")
        a(f"v_max_f32_dpp v5, v5, v5 row_ror:8 row_mask:0xf bank_mask:0xf")
        a(f"v_sub_f32 v6, v{GP}, v5")
        a(f"v_mul_f32 v6, s14, v6")
        a(f"v_exp_f32 v6, v6")
        a(f"v_mul_f32 v7, v6, v{GP+1}")
        a(f"v_add_f32_dpp v7, v7, v7 row_ror:4 row_mask:0xf bank_mask:0xf")
        a(f"v_add_f32_dpp v7, v7, v7 row_ror:8 row_mask:0xf bank_mask:0xf")
        a(f"v_rcp_f32 v7, v7")
        a(f"v_mul_f32 v{VFS}, v6, v7")
    O4 = [4, 5, 6, 7]
    pipelined_poll("pollH2", n2, PS, issue2, opts.stag2, O4, after_issue=calc_f)
    stamp(5)
    for r in O4:
        a(f"v_mul_f32 v{r}, v{VFS}, v{r}")
    for ctrl in ["row_ror:4", "row_ror:8"]:
        for r in O4:
            a(f"v_add_f32_dpp v{r}, v{r}, v{r} {ctrl} row_mask:0xf bank_mask:0xf")
    D0, D1 = 2, 3
    a(f"v_cvt_pk_bf16_f32 v{D0}, v{O4[0]}, v{O4[1]}")
    a(f"v_cvt_pk_bf16_f32 v{D1}, v{O4[2]}, v{O4[3]}")
    for q in range(4):
        a(f"v_and_b32 v{AOP+4*q}, v{D0}, v{MASK+2*q}")
        a(f"v_and_b32 v{AOP+4*q+1}, v{D1}, v{MASK+2*q}")
        a(f"v_and_b32 v{AOP+4*q+2}, v{D0}, v{MASK+2*q+1}")
        a(f"v_and_b32 v{AOP+4*q+3}, v{D1}, v{MASK+2*q+1}")
    for q in range(4):
        for od in range(2):
            acc = ACC2 + 4*od
            c = "0" if q == 0 else f"v[{acc}:{acc+3}]"
            e = 2*q + od
            a(f"v_mfma_f32_16x16x32_bf16 v[{acc}:{acc+3}], v[{AOP+4*q}:{AOP+4*q+3}], v[{BOP+4*e}:{BOP+4*e+3}], {c}")
    YW = YR
    a(f"v_add_f32 v{YW}, v{ACC2}, v{ACC2+2}")
    a(f"v_add_f32 v{YW+1}, v{ACC2+4}, v{ACC2+6}")
    a(f"v_add_f32 v{YW+2}, v{ACC2+1}, v{ACC2+3}")
    a(f"v_add_f32 v{YW+3}, v{ACC2+5}, v{ACC2+7}")
    a(f"ds_write_b128 v{VYW}, v[{YW}:{YW+3}] offset:{L_Y1P}")
    lds_arrive(C5, VZ, 3, rtn=True)
    stamp(6)
    a("s_cmp_eq_u32 s10, 3")
    a("s_cbranch_scc0 L_fin")
    for w in range(4):
        a(f"ds_read_b128 v[{YR+4*w}:{YR+4*w+3}], v{VY1} offset:{L_Y1P + w*1024}")
    a(f"s_mov_b32 s10, {LANES10}")
    a(f"s_mov_b32 s11, {LANES10}")
    a("s_waitcnt lgkmcnt(2)")
    for e in range(4):
        a(f"v_add_f32 v{YR+e}, v{YR+e}, v{YR+4+e}")
    a("s_waitcnt lgkmcnt(0)")
    for e in range(4):
        a(f"v_add_f32 v{YR+8+e}, v{YR+8+e}, v{YR+12+e}")
    a(f"v_add_f32 v{GY}, v{YR}, v{YR+8}")
    a(f"v_add_f32 v{GY+1}, v{YR+1}, v{YR+9}")
    a(f"v_add_f32 v{GY+4}, v{YR+2}, v{YR+10}")
    a(f"v_add_f32 v{GY+5}, v{YR+3}, v{YR+11}")
    a("s_mov_b64 exec, s[10:11]")
    a(f"buffer_store_dwordx4 v[{GY}:{GY+3}], v{VY0}, s[56:59], 0 offen sc1")
    a(f"buffer_store_dwordx4 v[{GY+4}:{GY+7}], v{VY0}, s[56:59], s9 offen sc1")
    a("s_mov_b64 exec, -1")
    stamp(7)
    a.label("L_fin")
    if stamps:
        a("s_mul_i32 s90, s6, 12")
        a("s_add_u32 s90, s90, s3")
        a("s_lshl_b32 s90, s90, 6")
        a(f"s_add_u32 s90, s90, {WS_STAMP}")
        a("v_mov_b32 v2, s90")
        a("s_waitcnt lgkmcnt(0)")
        for i in range(16):
            a(f"v_mov_b32 v{8+i}, s{ST0+i}")
        a("s_mov_b64 exec, 1")
        for q in range(4):
            a(f"buffer_store_dwordx4 v[{8+4*q}:{11+4*q}], v2, s[56:59], 0 offen offset:{16*q}")
    a.label("L_end")
    a("s_endpgm")

    nv = 168
    out = HEADER
    out += f"; @launch grid=(256,1,1) block=(768,1,1) lds={L_TOTAL}\n"
    out += '.amdgcn_target "amdgcn-amd-amdhsa--gfx950"\n.text\n'
    out += f".globl {KNAME}\n.p2align 8\n.type {KNAME},@function\n{KNAME}:\n"
    out += "\n".join(a.l) + "\n"
    out += f""".section .rodata,"a"
.p2align 6
.amdhsa_kernel {KNAME}
  .amdhsa_next_free_vgpr {nv}
  .amdhsa_next_free_sgpr 96
  .amdhsa_accum_offset {nv}
  .amdhsa_group_segment_fixed_size 0
  .amdhsa_kernarg_size 88
  .amdhsa_user_sgpr_count 2
  .amdhsa_user_sgpr_kernarg_segment_ptr 1
  .amdhsa_system_sgpr_workgroup_id_x 1
.end_amdhsa_kernel
"""
    return out


def main():
    p = argparse.ArgumentParser()
    p.add_argument("-o", default="recurrent_scan__sliding_block_cached__dense_activation_relu__decode.s")
    p.add_argument("--kvpol", default="nt")
    p.add_argument("--wpol", default="nt")
    p.add_argument("--stamps", action="store_true")
    p.add_argument("--maxpoll", type=int, default=20000)
    p.add_argument("--maxspin", type=int, default=2000000)
    p.add_argument("--rotg", type=int, default=1)
    p.add_argument("--rotw", type=int, default=4)
    p.add_argument("--map", default="C")
    p.add_argument("--win", type=int, default=4)
    p.add_argument("--qkv", type=lambda s: [int(x) for x in s.split(",")], default=[1, 1, 1, 1])
    p.add_argument("--fpos", type=int, default=12)
    p.add_argument("--qpos", type=int, default=24)
    p.add_argument("--sched", default="dyn")
    p.add_argument("--kwin", type=int, default=0)
    p.add_argument("--dbgst", action="store_true")
    p.add_argument("--abl", default="")
    p.add_argument("--win2", type=int, default=0)
    p.add_argument("--bpos", type=int, default=3)
    p.add_argument("--hpos", type=int, default=8)
    p.add_argument("--ygate", type=lambda s: tuple(eval(x) for x in s.split(",")), default=(C5, 1))
    p.add_argument("--gate", type=int, default=8)
    p.add_argument("--npoll2", type=int, default=2)
    p.add_argument("--npoll3", type=int, default=4)
    p.add_argument("--stag2", type=int, default=6)
    p.add_argument("--stag3", type=int, default=3)
    o = p.parse_args()
    open(o.o, "w").write(gen(o))
    print("wrote", o.o)


if __name__ == "__main__":
    main()
```

```python
import sys, argparse, struct
from asmh import A
from gen2 import HEADER, KNAME

WS_H1 = 0x0
WS_H2 = 0xC0000
GSTR = 4352
WS_ML = 0x340000
WS_H1F = 0x380000
WS_H2F = 0x300000
WS_H3A = 0x140000
WS_H3B = 0x190000
WS_EPOCH = 0x1F0000
WS_STAMP = 0x200000
WS_SIZE = 0x800000
FOFF = 0x400000

L_QP = 0
L_HP = 4096
L_Q = 6144
L_H = 6400
L_OP = 6656
L_ML = 10752
L_F = 10816
L_TAG = 10848
L_Y2P = 11392
L_Y1P = 13952
L_SYNC = 18048
L_TOTAL = 18176
C1, QF, HF, C2, FF, C3, C4, C5, C6, HG = [L_SYNC + 4 * i for i in range(10)]

LOG2E = 1.4426950408889634
OOB = 0x40000000
LANES10 = "0x03ff03ff"


def f32bits(x):
    return struct.unpack('<I', struct.pack('<f', x))[0]


def gen(opts):
    a = A()
    kvpol = opts.kvpol
    wpol = opts.wpol
    stamps = opts.stamps
    W = opts.win
    ST0 = 72

    def stamp(idx):
        if stamps:
            a(f"s_memrealtime s[{ST0+2*idx}:{ST0+2*idx+1}]")

    uid = [0]

    def lds_spin(off, val, vz, vt, sleep=0):
        uid[0] += 1
        lbl = f"L_spin{uid[0]}"
        a(f"s_mov_b32 s12, {opts.maxspin}")
        a.label(lbl)
        a(f"ds_read_b32 v{vt}, v{vz} offset:{off}")
        a("s_waitcnt lgkmcnt(0)")
        a(f"v_readfirstlane_b32 s10, v{vt}")
        a(f"s_cmp_ge_u32 s10, {val}")
        a(f"s_cbranch_scc1 {lbl}_done")
        if sleep:
            a(f"s_sleep {sleep}")
        a("s_sub_u32 s12, s12, 1")
        a("s_cmp_lg_u32 s12, 0")
        a(f"s_cbranch_scc1 {lbl}")
        a.label(lbl + "_done")

    def lds_arrive(off, vz, vt, rtn=False):
        a(f"v_mov_b32 v{vt}, 1")
        a("s_mov_b64 exec, 1")
        if rtn:
            a(f"ds_add_rtn_u32 v{vt}, v{vz}, v{vt} offset:{off}")
        else:
            a(f"ds_add_u32 v{vz}, v{vt} offset:{off}")
        a("s_mov_b64 exec, -1")
        if rtn:
            a("s_waitcnt lgkmcnt(0)")
            a(f"v_readfirstlane_b32 s10, v{vt}")

    def set_tag(r):
        a(f"v_mov_b32 v{r+2}, s68")
        a(f"v_mov_b32 v{r+3}, s69")

    def tags_bad(regs):
        for n, r in enumerate(regs):
            dst = "s[70:71]" if n == 0 else "vcc"
            a(f"v_cmp_ne_u64 {dst}, v[{r+2}:{r+3}], s[68:69]")
            if n:
                a("s_or_b64 s[70:71], s[70:71], vcc")
        a("s_cmp_eq_u64 s[70:71], 0")

    def pipelined_poll(name, nsets, setregs, issue, stag, res, slow=0, after_issue=None):
        nl = len(setregs[0])
        a(f"s_mov_b32 s12, {opts.maxpoll}")
        a("s_mov_b64 s[38:39], -1")
        for k in range(nsets):
            issue(k)
            if k == 0 and after_issue:
                after_issue()
            if k + 1 < nsets and stag:
                a(f"s_sleep {stag}")
        a.label(f"L_{name}")
        for k in range(nsets):
            a(f"s_waitcnt vmcnt({(nsets-1)*nl})")
            for n, r in enumerate(setregs[k]):
                dst = "s[70:71]" if n == 0 else "vcc"
                a(f"v_cmp_eq_u64 {dst}, v[{r+2}:{r+3}], s[68:69]")
                if n:
                    a("s_and_b64 s[70:71], s[70:71], vcc")
            a("s_and_b64 exec, s[70:71], s[38:39]")
            for n, r in enumerate(setregs[k]):
                a(f"v_mov_b32 v{res[2*n]}, v{r}")
                a(f"v_mov_b32 v{res[2*n+1]}, v{r+1}")
            a("s_andn2_b64 s[38:39], s[38:39], s[70:71]")
            a("s_mov_b64 exec, s[38:39]")
            a(f"s_cbranch_scc0 L_{name}_done")
            if slow:
                a("s_bcnt1_i32_b64 s10, s[38:39]")
                a(f"s_cmp_lt_u32 s10, {slow[0]}")
                uid[0] += 1
                a(f"s_cbranch_scc1 L_fast{uid[0]}")
                a(f"s_sleep {slow[1]}")
                a.label(f"L_fast{uid[0]}")
            issue(k)
            a("s_mov_b64 exec, -1")
        a("s_sub_u32 s12, s12, 1")
        a("s_cmp_lg_u32 s12, 0")
        a(f"s_cbranch_scc1 L_{name}")
        a.label(f"L_{name}_done")
        a("s_mov_b64 exec, -1")

    def hint_poll(name, ws_off_sgpr, sleep):
        a(f"s_add_u32 s14, s56, s{ws_off_sgpr}")
        a("s_addc_u32 s15, s57, 0")
        a(f"s_mov_b32 s12, {opts.maxpoll}")
        a.label(f"L_{name}")
        a("s_load_dwordx16 s[16:31], s[14:15], 0 glc")
        a("s_waitcnt lgkmcnt(0)")
        for i in range(8):
            a(f"s_cmp_eq_u64 s[{16+2*i}:{17+2*i}], s[68:69]")
            a(f"s_cbranch_scc0 L_{name}_no")
        a(f"s_branch L_{name}_done")
        a.label(f"L_{name}_no")
        if sleep:
            a(f"s_sleep {sleep}")
        a("s_sub_u32 s12, s12, 1")
        a("s_cmp_lg_u32 s12, 0")
        a(f"s_cbranch_scc1 L_{name}")
        a.label(f"L_{name}_done")

    a("s_cmp_ge_u32 s2, 256")
    a("s_cbranch_scc1 L_end")
    a("s_load_dwordx16 s[16:31], s[0:1], 0")
    a("s_load_dwordx4 s[32:35], s[0:1], 64")
    a("s_load_dwordx2 s[36:37], s[0:1], 80")
    if stamps:
        for i in range(1, 8):
            a(f"s_mov_b64 s[{ST0+2*i}:{ST0+2*i+1}], 0")
        stamp(0)
    a("v_lshrrev_b32 v1, 6, v0")
    a("v_and_b32 v0, 63, v0")
    if opts.map == "C":
        a("s_and_b32 s4, s2, 7")
        a("s_lshr_b32 s5, s2, 6")
        a("s_lshl_b32 s5, s5, 3")
        a("s_or_b32 s4, s4, s5")
        a("s_lshr_b32 s5, s2, 3")
        a("s_and_b32 s5, s5, 7")
    else:
        a("s_lshr_b32 s4, s2, 3")
        a("s_and_b32 s5, s2, 7")
    a("v_readfirstlane_b32 s3, v1")
    a("s_lshl_b32 s6, s4, 3")
    a("s_or_b32 s6, s6, s5")
    a("s_lshr_b32 s7, s5, 2")
    a("s_and_b32 s8, s5, 3")
    a(f"s_mov_b32 s58, {WS_SIZE}")
    a("s_mov_b32 s59, 0x00020000")
    a("s_cmp_lt_u32 s3, 4")
    a("s_cbranch_scc1 L_aux")

    VOFF, VQ, VT, VS, VACC, VK, VV, VF = 1, 2, 6, 8, 24, 32, 96, 160
    a.c("---- streaming wave ----")
    a("s_sub_u32 s3, s3, 4")
    a("s_lshl_b32 s9, s7, 5")
    a("s_add_u32 s9, s9, s4")
    a("s_lshl_b32 s9, s9, 21")
    a("s_lshl_b32 s10, s8, 17")
    a("s_add_u32 s9, s9, s10")
    a("s_add_u32 s9, s9, 1572864")
    a("s_lshl_b32 s10, s3, 14")
    a(f"v_lshl_add_u32 v{VOFF}, v0, 4, s10")
    a(f"s_mul_i32 s11, s4, {opts.rotg}")
    a(f"s_mul_i32 s12, s3, {opts.rotw}")
    a("s_add_u32 s11, s11, s12")
    a("s_lshl_b32 s11, s11, 10")
    a("s_mov_b32 s42, 131072")
    a("s_mov_b32 s43, 0x00020000")
    a("s_mov_b32 s46, 131072")
    a("s_mov_b32 s47, 0x00020000")
    a("s_cmp_lt_u32 s4, 20")
    a("s_cselect_b32 s13, 1, 0")
    a("s_cmp_lt_u32 s3, 2")
    a("s_cselect_b32 s13, s13, 0")
    a("s_cmp_ge_u32 s4, 10")
    a("s_cselect_b32 s14, 560, 0")
    a("s_lshl_b32 s10, s4, 3")
    a("s_add_u32 s14, s14, s10")
    a("s_mul_i32 s10, s5, 80")
    a("s_add_u32 s14, s14, s10")
    a("s_lshl_b32 s10, s3, 2")
    a("s_add_u32 s14, s14, s10")
    VXV = VK + 63
    a(f"v_and_b32 v{VT}, 1, v0")
    a(f"v_lshlrev_b32 v{VT}, 1, v{VT}")
    a(f"v_lshrrev_b32 v{VT+1}, 5, v0")
    a(f"v_add3_u32 v{VT}, v{VT}, v{VT+1}, s14")
    a(f"v_lshlrev_b32 v{VQ}, 1, v{VT}")
    a("s_waitcnt lgkmcnt(0)")
    a("s_add_u32 s40, s18, s9")
    a("s_addc_u32 s41, s19, 0")
    a("s_add_u32 s44, s20, s9")
    a("s_addc_u32 s45, s21, 0")
    a("s_mov_b32 s56, s36")
    a("s_mov_b32 s57, s37")
    a("s_mov_b32 s48, s16")
    a("s_mov_b32 s49, s17")
    a("s_movk_i32 s50, 2560")
    a("s_mov_b32 s51, 0x00020000")
    a("s_mov_b32 s64, s32")
    a("s_mov_b32 s65, s33")
    a("s_movk_i32 s66, 2560")
    a("s_mov_b32 s67, 0x00020000")
    for i in range(16):
        a(f"s_add_u32 s{16+i}, s11, {i*1024}")
        a(f"s_and_b32 s{16+i}, s{16+i}, 0x3c00")
    a("s_barrier")
    a("s_cmp_eq_u32 s13, 0")
    a("s_cbranch_scc1 L_nox")
    a(f"buffer_load_ushort v{VF+7+0}, v{VQ}, s[48:51], 0 offen")
    a.label("L_nox")
    XV = VF + 7
    PRIO = {int(k): int(v) for k, v in (it.split(":") for it in opts.prio.split(",") if it)}

    def issue(n, static=True):
        if static and n in PRIO:
            a(f"s_setprio {PRIO[n]}")
        if n < 16:
            a(f"buffer_load_dwordx4 v[{VK+4*n}:{VK+4*n+3}], v{VOFF}, s[40:43], s{16+n} offen {kvpol}")
        else:
            i = n - 16
            a(f"buffer_load_dwordx4 v[{VV+4*i}:{VV+4*i+3}], v{VOFF}, s[44:47], s{16+i} offen {kvpol}")

    W2 = opts.win2 or W
    NS = 16 - W2
    slot_i = [0]
    SREM = "s9"

    FLAT = opts.sched in ("flat", "ab")
    AB = opts.sched == "ab"

    def dstamp(idx):
        if opts.dbgst:
            stamp(idx)

    def late_burst():
        a(f"s_cmp_eq_u32 {SREM}, 0")
        a("s_cbranch_scc1 L_nolate")
        for n in range(opts.kwin, 32):
            issue(n)
        dstamp(5)
        a.label("L_nolate")

    def slot():
        k = slot_i[0]
        slot_i[0] += 1
        if AB and k == opts.bpos:
            late_burst()
        if FLAT:
            return
        if k < NS:
            a(f"s_cmp_gt_u32 {SREM}, {k}")
            a(f"s_cbranch_scc0 L_slot{k}_no")
            a(f"s_waitcnt vmcnt({W2-1})")
            issue(16 + 15 - k, False)
            a(f"s_branch L_slot{k}_done")
            a.label(f"L_slot{k}_no")
            a("s_waitcnt vmcnt(0)")
            a.label(f"L_slot{k}_done")
        else:
            a(f"s_waitcnt vmcnt({max(W2 - 1 - (k - NS), 0)})")

    a(f"v_mov_b32 v{VT+1}, 0")
    for n in range(W):
        issue(n)
    if AB:
        KW = opts.kwin
        for n in range(W, KW):
            a(f"s_waitcnt vmcnt({W-1})")
            issue(n)
        a(f"ds_read_b32 v{VT}, v{VT+1} offset:{QF}")
        a(f"s_waitcnt vmcnt({KW - 16})")
        a("s_waitcnt lgkmcnt(0)")
        a(f"v_readfirstlane_b32 {SREM}, v{VT}")
        a(f"s_cmp_lg_u32 {SREM}, 0")
        a(f"s_cbranch_scc1 L_qready")
        for n in range(KW, 32):
            issue(n)
        dstamp(5)
        lds_spin(QF, 1, VT + 1, VT, sleep=1)
        a(f"s_mov_b32 {SREM}, 0")
    elif FLAT:
        for n in range(W, 32):
            if n < opts.kwin:
                a(f"s_waitcnt vmcnt({W-1})")
            issue(n)
        dstamp(5)
        lds_spin(QF, 1, VT + 1, VT, sleep=1)
    else:
        for n in range(W, 16 + W2):
            a(f"s_waitcnt vmcnt({(W if n < 16 else W2) - 1})")
            issue(n)
        dstamp(5)
        if "q" in opts.abl:
            a(f"s_mov_b32 {SREM}, {NS}")
            a(f"s_waitcnt vmcnt({W2})")
            a("s_branch L_qready")
        for n in range(16 + W2, 32):
            a(f"ds_read_b32 v{VT}, v{VT+1} offset:{QF}")
            a(f"s_mov_b32 {SREM}, {32 - n}")
            a(f"s_waitcnt vmcnt({W2-1})")
            a("s_waitcnt lgkmcnt(0)")
            a(f"v_readfirstlane_b32 s10, v{VT}")
            a("s_cmp_lg_u32 s10, 0")
            a(f"s_cbranch_scc1 L_qready")
            issue(n)
        a(f"s_mov_b32 {SREM}, 0")
        a(f"s_waitcnt vmcnt({16 if False else min(W2, 16)})")
        lds_spin(QF, 1, VT + 1, VT, sleep=1)
    a.label("L_qready")
    if opts.qprio >= 0:
        a(f"s_setprio {opts.qprio}")
    a(f"v_and_b32 v{VT}, 15, v0")
    a(f"v_lshlrev_b32 v{VT}, 4, v{VT}")
    a(f"ds_read_b128 v[{VQ}:{VQ+3}], v{VT} offset:{L_Q}")
    a(f"ds_read_b64 v[{VS}:{VS+1}], v{VT+1} offset:{L_TAG}")
    stamp(1)
    a("s_waitcnt lgkmcnt(0)")
    a(f"v_readfirstlane_b32 s68, v{VS}")
    a(f"v_readfirstlane_b32 s69, v{VS+1}")
    _a = a
    class _F:
        def __call__(self, t):
            if "s" in opts.abl and t.startswith("v_") and not t.startswith("v_readlane"):
                return
            _a(t)
        def __getattr__(self, n):
            return getattr(_a, n)
    a = _F()
    for grp in range(4):
        if FLAT and not AB:
            a(f"s_waitcnt vmcnt({16 + 12 - 4*grp})")
        for d in range(4):
            for i in range(4*grp, 4*grp+4):
                src2 = "0" if d == 0 else f"v{VS+i}"
                a(f"v_dot2_f32_bf16 v{VS+i}, v{VK+4*i+d}, v{VQ+d}, {src2}")
    slot()
    for ctrl in ["quad_perm:[1,0,3,2]", "quad_perm:[2,3,0,1]", "row_half_mirror", "row_mirror"]:
        for i in range(16):
            a(f"v_add_f32_dpp v{VS+i}, v{VS+i}, v{VS+i} {ctrl} row_mask:0xf bank_mask:0xf")
    slot()
    a(f"s_mov_b32 s14, 0x{f32bits(128 ** -0.5):08x}")
    a("s_mov_b32 s15, 0xffff0000")
    for rnd in range(2):
        for p in range(8):
            a(f"v_cvt_pk_bf16_f32 v{VK+p}, v{VS+2*p}, v{VS+2*p+1}")
        for p in range(8):
            a(f"v_lshlrev_b32 v{VS+2*p}, 16, v{VK+p}")
            a(f"v_and_b32 v{VS+2*p+1}, s15, v{VK+p}")
        if rnd == 0:
            for i in range(16):
                a(f"v_mul_f32 v{VS+i}, s14, v{VS+i}")
    m = VT
    a(f"v_max3_f32 v{m}, v{VS}, v{VS+1}, v{VS+2}")
    for i in range(3, 15, 2):
        a(f"v_max3_f32 v{m}, v{m}, v{VS+i}, v{VS+i+1}")
    a(f"v_max_f32 v{m}, v{m}, v{VS+15}")
    for r in range(4):
        a(f"v_readlane_b32 s{60+r}, v{m}, {16*r}")
    a(f"v_mov_b32 v{m}, s60")
    a(f"v_max_f32 v{m}, s61, v{m}")
    a(f"v_max_f32 v{m}, s62, v{m}")
    a(f"v_max_f32 v{m}, s63, v{m}")
    slot()
    a(f"s_mov_b32 s14, 0x{f32bits(LOG2E):08x}")
    for i in range(16):
        a(f"v_sub_f32 v{VS+i}, v{VS+i}, v{m}")
    for i in range(16):
        a(f"v_mul_f32 v{VS+i}, s14, v{VS+i}")
    for i in range(16):
        a(f"v_exp_f32 v{VS+i}, v{VS+i}")
    PLO, PHI = VK, VK + 16
    a(f"v_mov_b32 v{VXV}, v{XV}")
    for i in range(16):
        a(f"v_cvt_pk_bf16_f32 v{PLO+i}, v{VS+i}, 0")
    for i in range(16):
        a(f"v_lshlrev_b32 v{PHI+i}, 16, v{PLO+i}")
    lsum = VT + 1
    a(f"v_add_f32 v{lsum}, v{VS}, v{VS+1}")
    for i in range(2, 16):
        a(f"v_add_f32 v{lsum}, v{lsum}, v{VS+i}")
    for r in range(4):
        a(f"v_readlane_b32 s{60+r}, v{lsum}, {16*r}")
    a(f"v_mov_b32 v{lsum}, s60")
    a(f"v_add_f32 v{lsum}, s61, v{lsum}")
    a(f"v_add_f32 v{lsum}, s62, v{lsum}")
    a(f"v_add_f32 v{lsum}, s63, v{lsum}")
    a = _a
    VZ = VQ
    a(f"s_lshl_b32 s10, s3, 2")
    a(f"v_mov_b32 v{VS}, s10")
    a(f"v_mov_b32 v{VZ}, 0")
    a(f"ds_write_b32 v{VS}, v{m} offset:{L_ML}")
    a(f"ds_write_b32 v{VS}, v{lsum} offset:{L_ML+32}")
    lds_arrive(C2, VZ, VS + 1)
    a(f"v_and_b32 v{VS}, 15, v0")
    a(f"v_lshlrev_b32 v{VS}, 5, v{VS}")
    a(f"v_lshrrev_b32 v{VS+1}, 4, v0")
    a(f"v_lshl_add_u32 v{VS}, v{VS+1}, 3, v{VS}")
    a(f"s_lshl_b32 s10, s3, 9")
    a(f"v_add_u32 v{VS}, s10, v{VS}")
    VCA, VPA, GO = VS + 2, VS + 3, VS + 4
    a(f"v_lshlrev_b32 v{VCA}, 3, v0")
    a("s_lshl_b32 s10, s6, 10")
    a(f"s_add_u32 s10, s10, {WS_H2}")
    a(f"v_lshl_add_u32 v{VPA}, v0, 4, s10")
    set_tag(GO)
    order = list(range(W2)) + list(range(15, W2 - 1, -1))
    if FLAT:
        order = list(range(16))
    dstamp(6)
    if AB and opts.bpos >= 3:
        late_burst()
    if FLAT:
        slot_i[0] = 16
    for t in range(16):
        i = order[t]
        while slot_i[0] <= t:
            slot()
        if FLAT:
            a(f"s_waitcnt vmcnt({15 - t})")
        if t == 15:
            dstamp(7)
        if t == opts.hpos:
            lds_arrive(C6, VZ, VS + 8)
        if t == opts.fpos:
            stamp(3)
            lds_spin(FF, 1, VZ, VS + 8, sleep=1)
            a(f"ds_read_b128 v[{VF}:{VF+3}], v{VZ} offset:{L_F}")
            a(f"ds_read_b128 v[{VF+4}:{VF+7}], v{VZ} offset:{L_F+16}")
            a("s_setprio 3")
        for d in range(4):
            s2a = "0" if t == 0 else f"v{VACC+2*d}"
            s2b = "0" if t == 0 else f"v{VACC+2*d+1}"
            a(f"v_dot2_f32_bf16 v{VACC+2*d}, v{VV+4*i+d}, v{PLO+i}, {s2a}")
            a(f"v_dot2_f32_bf16 v{VACC+2*d+1}, v{VV+4*i+d}, v{PHI+i}, {s2b}")
    assert slot_i[0] == 16
    for e in range(4):
        a(f"v_permlane32_swap_b32 v{VACC+e}, v{VACC+e+4}")
    for e in range(4):
        a(f"v_add_f32 v{VACC+e}, v{VACC+e}, v{VACC+e+4}")
    a(f"v_permlane16_swap_b32 v{VACC}, v{VACC+2}")
    a(f"v_permlane16_swap_b32 v{VACC+1}, v{VACC+3}")
    a(f"v_add_f32 v{VACC}, v{VACC}, v{VACC+2}")
    a(f"v_add_f32 v{VACC+1}, v{VACC+1}, v{VACC+3}")
    a(f"ds_write_b64 v{VS}, v[{VACC}:{VACC+1}] offset:{L_OP}")
    lds_arrive(C3, VZ, VS + 8, rtn=True)
    stamp(2)
    a("s_cmp_eq_u32 s10, 7")
    a("s_cbranch_scc0 L_nocomb")
    OPR = VK
    for w in range(8):
        a(f"ds_read_b64 v[{OPR+2*w}:{OPR+2*w+1}], v{VCA} offset:{L_OP + w*512}")
    for w in range(8):
        a(f"s_waitcnt lgkmcnt({7-w})")
        for e in range(2):
            if w == 0:
                a(f"v_mul_f32 v{GO+e}, v{VF}, v{OPR+e}")
            else:
                a(f"v_fma_f32 v{GO+e}, v{VF+w}, v{OPR+2*w+e}, v{GO+e}")
    if opts.fast:
        a(f"s_mov_b32 s10, {FOFF}")
        a(f"buffer_store_dwordx4 v[{GO}:{GO+3}], v{VPA}, s[56:59], s10 offen")
    a(f"buffer_store_dwordx4 v[{GO}:{GO+3}], v{VPA}, s[56:59], 0 offen sc1")
    stamp(4)
    a.label("L_nocomb")
    if "t" in opts.abl:
        a("s_branch L_sfin")
    a("s_cmp_eq_u32 s13, 0")
    a("s_cbranch_scc1 L_sfin")
    a("s_cmp_ge_u32 s4, 10")
    a("s_cselect_b32 s9, 70, 0")
    a("s_add_u32 s9, s9, s4")
    a("s_mul_i32 s10, s5, 10")
    a("s_add_u32 s9, s9, s10")
    a("s_lshl_b32 s9, s9, 1")
    a("s_add_u32 s9, s9, s3")
    a("s_lshl_b32 s9, s9, 10")
    a(f"s_add_u32 s9, s9, {WS_H3A}")
    FA, FO = VS, VS + 1
    FA1 = FA
    a(f"v_lshl_add_u32 v{FA}, v0, 4, s9")
    a(f"s_mov_b32 s11, {WS_H3B - WS_H3A}")
    if opts.y1lay:
        FA1 = VS + 3
        a("s_lshl_b32 s9, s4, 6")
        a("s_mul_i32 s10, s5, 1280")
        a("s_add_u32 s9, s9, s10")
        a("s_lshl_b32 s10, s3, 5")
        a("s_add_u32 s9, s9, s10")
        a(f"s_add_u32 s9, s9, {WS_H3A}")
        a(f"v_lshrrev_b32 v{FA1}, 1, v0")
        a(f"v_mul_u32_u24 v{FA1}, 10240, v{FA1}")
        a(f"v_and_b32 v{VS+2}, 1, v0")
        a(f"v_lshl_add_u32 v{FA1}, v{VS+2}, 4, v{FA1}")
        a(f"v_add_u32 v{FA1}, s9, v{FA1}")
    P = VK

    def reduce_duo(r0):
        for ctrl in ["quad_perm:[2,3,0,1]", "row_ror:4", "row_ror:8"]:
            a(f"v_add_f32_dpp v{r0}, v{r0}, v{r0} {ctrl} row_mask:0xf bank_mask:0xf")
            a(f"v_add_f32_dpp v{r0+1}, v{r0+1}, v{r0+1} {ctrl} row_mask:0xf bank_mask:0xf")
        a(f"v_permlane32_swap_b32 v{r0}, v{r0+1}")
        a(f"v_add_f32 v{r0}, v{r0}, v{r0+1}")
        a(f"v_mov_b32 v{r0+1}, v{r0}")
        a(f"v_permlane16_swap_b32 v{r0}, v{r0+1}")
        a(f"v_add_f32 v{r0}, v{r0}, v{r0+1}")

    RY2, RY1 = P + 4, P + 6
    pipelined_poll("pollY2", 1, [[P]],
                   lambda k: a(f"buffer_load_dwordx4 v[{P}:{P+3}], v{FA}, s[56:59], s11 offen sc1"), 0,
                   [RY2, RY2 + 1], slow=(1, 8))
    n3 = opts.npoll3
    Y1S = [[P + 8 + 4*k] for k in range(n3)]
    a("s_cmp_ge_u32 s4, 10")
    a("s_cselect_b32 s14, 560, 0")
    a("s_lshl_b32 s10, s4, 3")
    a("s_add_u32 s14, s14, s10")
    a("s_mul_i32 s10, s5, 80")
    a("s_add_u32 s14, s14, s10")
    a("s_lshl_b32 s10, s3, 2")
    a("s_add_u32 s14, s14, s10")
    a(f"v_and_b32 v{FO}, 1, v0")
    a(f"v_lshlrev_b32 v{FO}, 1, v{FO}")
    a(f"v_lshrrev_b32 v{FO+1}, 5, v0")
    a(f"v_add3_u32 v{FO}, v{FO}, v{FO+1}, s14")
    a(f"v_lshlrev_b32 v{FO}, 1, v{FO}")
    reduce_duo(RY2)
    Y2 = RY2
    T7 = P
    a(f"v_cvt_pk_bf16_f32 v{Y2}, v{Y2}, 0")
    a(f"v_lshlrev_b32 v{Y2}, 16, v{Y2}")
    a(f"s_mov_b32 s14, 0x{f32bits(-LOG2E):08x}")
    a(f"v_mul_f32 v{T7}, s14, v{Y2}")
    a(f"v_exp_f32 v{T7}, v{T7}")
    a(f"v_add_f32 v{T7}, 1.0, v{T7}")
    a(f"v_rcp_f32 v{T7}, v{T7}")
    a(f"v_mul_f32 v{Y2}, v{Y2}, v{T7}")
    a(f"v_cvt_pk_bf16_f32 v{Y2}, v{Y2}, 0")
    a(f"v_lshlrev_b32 v{Y2}, 16, v{Y2}")
    a(f"v_lshlrev_b32 v{VXV}, 16, v{VXV}")
    if not opts.dbgst:
        stamp(5)
    lds_spin(opts.ygate[0], opts.ygate[1], VZ, VS + 8, sleep=1)
    pipelined_poll("pollY1", n3, Y1S,
                   lambda k: a(f"buffer_load_dwordx4 v[{Y1S[k][0]}:{Y1S[k][0]+3}], v{FA1}, s[56:59], 0 offen sc1"), opts.stag3,
                   [RY1, RY1 + 1], slow=(tuple(int(x) for x in opts.slow3.split(",")) if opts.slow3 else 0))
    if not opts.dbgst:
        stamp(6)
    Y1 = RY1
    reduce_duo(Y1)
    a(f"v_cvt_pk_bf16_f32 v{Y1}, v{Y1}, 0")
    a(f"v_lshlrev_b32 v{Y1}, 16, v{Y1}")
    a(f"v_mul_f32 v{Y1}, v{Y1}, v{Y2}")
    a(f"v_cvt_pk_bf16_f32 v{Y1}, v{Y1}, 0")
    a(f"v_lshlrev_b32 v{Y1}, 16, v{Y1}")
    a(f"v_add_f32 v{Y1}, v{VXV}, v{Y1}")
    a(f"v_cvt_pk_bf16_f32 v{Y1}, v{Y1}, 0")
    a("s_mov_b32 s10, 3")
    a("s_mov_b32 s11, 3")
    a("s_mov_b64 exec, s[10:11]")
    a(f"buffer_store_short v{Y1}, v{FO}, s[64:67], 0 offen")
    a("s_or_b32 s10, s6, s3")
    a("s_cmp_lg_u32 s10, 0")
    a("s_cbranch_scc1 L_noep")
    a("s_mov_b64 exec, 1")
    a(f"v_mov_b32 v{VS+2}, {WS_EPOCH}")
    a(f"v_mov_b32 v{VS+3}, s68")
    a(f"buffer_store_dword v{VS+3}, v{VS+2}, s[56:59], 0 offen sc1")
    a.label("L_noep")
    a("s_mov_b64 exec, -1")
    if not opts.dbgst:
        stamp(7)
    else:
        stamp(4)
    a.label("L_sfin")
    a("s_add_u32 s3, s3, 4")
    a("s_branch L_fin")

    a.label("L_aux")
    a.c("---- aux wave: a = s3 (0..3) ----")
    a("s_setprio 3")
    XR = 20
    VE = 30
    WQ = 32
    W1 = 52
    TMP = 64
    ACC = 96
    W2 = 120
    WO = 136
    LO2 = 96
    AY = 104
    BOP = 32
    a("s_cmp_lg_u32 s3, 0")
    a("s_cbranch_scc1 L_noclr")
    for r in range(4, 8):
        a(f"v_mov_b32 v{r}, 0")
    a(f"ds_write_b128 v4, v[4:7] offset:{L_SYNC}")
    a(f"ds_write_b128 v4, v[4:7] offset:{L_SYNC+16}")
    a(f"ds_write_b128 v4, v[4:7] offset:{L_SYNC+32}")
    a.label("L_noclr")
    a(f"v_lshlrev_b32 v2, 4, v0")
    a(f"v_lshlrev_b32 v3, 2, v0")
    a(f"v_mov_b32 v{VE}, {WS_EPOCH}")
    a("s_mul_i32 s9, s5, 80")
    a("s_mul_i32 s10, s3, 20")
    a("s_add_u32 s9, s9, s10")
    a(f"v_lshrrev_b32 v10, 4, v0")
    a(f"v_and_b32 v11, 15, v0")
    RG, C = 10, 11
    a(f"v_add_u32 v{TMP+10}, s9, v{RG}")
    a(f"v_lshlrev_b32 v{TMP+11}, 1, v{TMP+10}")
    a(f"v_lshlrev_b32 v{TMP+1}, 13, v{TMP+10}")
    a(f"v_lshl_add_u32 v{TMP+1}, v{C}, 4, v{TMP+1}")
    a("s_lshl_b32 s10, s4, 8")
    a(f"v_add_u32 v{TMP+1}, s10, v{TMP+1}")
    a("s_cmp_ge_u32 s4, 27")
    a(f"s_cselect_b32 s13, {OOB}, 0")
    a("s_movk_i32 s10, 3456")
    a(f"v_mul_lo_u32 v{TMP+2}, v{TMP+10}, s10")
    a(f"v_lshl_add_u32 v{TMP+2}, v{C}, 3, v{TMP+2}")
    a("s_lshl_b32 s10, s4, 7")
    a("s_add_u32 s10, s10, s13")
    a(f"v_add_u32 v{TMP+2}, s10, v{TMP+2}")
    for i in range(1, 5):
        a(f"s_mov_b32 s{88+i}, {i*32768}")
        if i < 4:
            a(f"s_mov_b32 s{92+i}, {i*13824}")
    a(f"s_mov_b32 s88, {4*13824}")
    a("s_waitcnt lgkmcnt(0)")

    def srd(r, lo, size):
        a(f"s_mov_b32 s{r}, s{lo}")
        a(f"s_mov_b32 s{r+1}, s{lo+1}")
        a(f"s_mov_b32 s{r+2}, {size}")
        a(f"s_mov_b32 s{r+3}, 0x00020000")
    a("s_mov_b32 s56, s36")
    a("s_mov_b32 s57, s37")
    srd(40, 16, 2560)
    a(f"buffer_load_dword v{VE}, v{VE}, s[56:59], 0 offen sc1")
    a(f"buffer_load_dwordx4 v[4:7], v2, s[40:43], 0 offen")
    a(f"buffer_load_dword v8, v3, s[40:43], 0 offen offset:1024")
    a(f"buffer_load_dwordx4 v[12:15], v2, s[40:43], 0 offen offset:1280")
    a(f"buffer_load_dword v16, v3, s[40:43], 0 offen offset:2304")
    srd(44, 22, 5242880)
    for i in range(5):
        so = "0" if i == 0 else f"s{88+i}"
        a(f"buffer_load_dwordx4 v[{WQ+4*i}:{WQ+4*i+3}], v{TMP+1}, s[44:47], {so} offen {wpol}")
    srd(48, 28, 2211840)
    for i in range(5):
        so = "0" if i == 0 else (f"s{92+i}" if i < 4 else "s88")
        a(f"buffer_load_dwordx2 v[{W1+2*i}:{W1+2*i+1}], v{TMP+2}, s[48:51], {so} offen {wpol}")
    for i in range(5):
        for b in range(2):
            a(f"buffer_load_ushort v{XR+2*i+b}, v{TMP+11}, s[40:43], 0 offen offset:{b*1280 + i*8}")
    a("s_waitcnt lgkmcnt(0)")
    a("s_barrier")
    a(f"v_mov_b32 v{TMP+5}, 0")
    a(f"v_mov_b32 v{TMP+6}, {OOB}")
    a(f"v_cmp_lt_u32 vcc, 9, v{C}")
    a(f"v_cndmask_b32 v{TMP+5}, v{TMP+5}, v{TMP+6}, vcc")
    a(f"v_lshl_add_u32 v{TMP+5}, v{C}, 4, v{TMP+5}")
    a("s_mul_i32 s10, s5, 160")
    a(f"v_add_u32 v{TMP+5}, s10, v{TMP+5}")
    a("s_movk_i32 s14, 1280")
    a("s_lshl_b32 s10, s4, 6")
    a("s_lshl_b32 s11, s3, 4")
    a("s_add_u32 s10, s10, s11")
    a(f"v_lshl_add_u32 v{TMP+3}, v{RG}, 2, s10")
    a(f"v_mul_lo_u32 v{TMP+3}, v{TMP+3}, s14")
    a(f"v_add_u32 v{TMP+3}, v{TMP+5}, v{TMP+3}")
    a(f"v_add_u32 v{TMP+3}, s13, v{TMP+3}")
    a("s_lshl_b32 s10, s4, 7")
    a("s_lshl_b32 s11, s3, 5")
    a("s_add_u32 s10, s10, s11")
    a(f"v_lshl_add_u32 v{TMP+4}, v{RG}, 3, s10")
    a(f"v_mul_lo_u32 v{TMP+4}, v{TMP+4}, s14")
    a(f"v_add_u32 v{TMP+4}, v{TMP+5}, v{TMP+4}")
    a("s_movk_i32 s12, 5120")
    srd(52, 30, 2211840)
    for i in range(4):
        a(f"buffer_load_dwordx4 v[{W2+4*i}:{W2+4*i+3}], v{TMP+3}, s[52:55], 0 offen offset:{i*1280} {wpol}")
    srd(60, 24, 5242880)
    for i in range(8):
        so = "0" if i < 4 else "s12"
        a(f"buffer_load_dwordx4 v[{WO+4*i}:{WO+4*i+3}], v{TMP+4}, s[60:63], {so} offen offset:{(i&3)*1280} {wpol}")

    a("s_waitcnt vmcnt(32)")
    a(f"v_readfirstlane_b32 s68, v{VE}")
    a("s_mov_b32 s15, 0xffff0000")
    a("s_add_u32 s68, s68, 1")
    a("s_xor_b32 s69, s68, 0x9e3779b9")
    F = TMP + 12
    srcs = [[4, 5, 6, 7, 8], [12, 13, 14, 15, 16]]
    for b in range(2):
        for d in range(5):
            a(f"v_lshlrev_b32 v{F+10*b+2*d}, 16, v{srcs[b][d]}")
            a(f"v_and_b32 v{F+10*b+2*d+1}, s15, v{srcs[b][d]}")
    S0, S1, Q0, Q1, t0, t1 = 4, 5, 6, 7, 8, 9

    def wave_sum2(r0, r1, sbase):
        for ctrl in ["quad_perm:[1,0,3,2]", "quad_perm:[2,3,0,1]", "row_half_mirror", "row_mirror"]:
            a(f"v_add_f32_dpp v{r0}, v{r0}, v{r0} {ctrl} row_mask:0xf bank_mask:0xf")
            a(f"v_add_f32_dpp v{r1}, v{r1}, v{r1} {ctrl} row_mask:0xf bank_mask:0xf")
        for r in range(4):
            a(f"v_readlane_b32 s{sbase+r}, v{r0}, {16*r}")
            a(f"v_readlane_b32 s{sbase+4+r}, v{r1}, {16*r}")
        a(f"v_mov_b32 v{r0}, s{sbase}")
        a(f"v_mov_b32 v{r1}, s{sbase+4}")
        for r in range(1, 4):
            a(f"v_add_f32 v{r0}, s{sbase+r}, v{r0}")
            a(f"v_add_f32 v{r1}, s{sbase+4+r}, v{r1}")

    for e in range(1, 10):
        for b, S in ((0, S0), (1, S1)):
            if e == 1:
                a(f"v_add_f32 v{S}, v{F+10*b}, v{F+10*b+1}")
            else:
                a(f"v_add_f32 v{S}, v{S}, v{F+10*b+e}")
    wave_sum2(S0, S1, 88)
    a(f"s_mov_b32 s14, 0x{f32bits(1.0/640):08x}")
    a(f"v_mul_f32 v{S0}, s14, v{S0}")
    a(f"v_mul_f32 v{S1}, s14, v{S1}")
    for b, S in ((0, S0), (1, S1)):
        for e in range(10):
            a(f"v_sub_f32 v{F+10*b+e}, v{F+10*b+e}, v{S}")
    for e in range(10):
        for b, Q in ((0, Q0), (1, Q1)):
            if e == 0:
                a(f"v_mul_f32 v{Q}, v{F+10*b}, v{F+10*b}")
            else:
                a(f"v_fma_f32 v{Q}, v{F+10*b+e}, v{F+10*b+e}, v{Q}")
    wave_sum2(Q0, Q1, 88)
    a(f"v_mul_f32 v{Q0}, s14, v{Q0}")
    a(f"v_mul_f32 v{Q1}, s14, v{Q1}")
    a(f"v_cvt_pk_bf16_f32 v{t0}, v{S0}, v{S1}")
    a(f"v_cvt_pk_bf16_f32 v{t1}, v{Q0}, v{Q1}")
    a(f"v_lshlrev_b32 v{S0}, 16, v{t0}")
    a(f"v_and_b32 v{S1}, s15, v{t0}")
    a(f"v_lshlrev_b32 v{Q0}, 16, v{t1}")
    a(f"v_and_b32 v{Q1}, s15, v{t1}")
    a(f"s_mov_b32 s14, 0x{f32bits(1e-5):08x}")
    a(f"v_add_f32 v{Q0}, s14, v{Q0}")
    a(f"v_add_f32 v{Q1}, s14, v{Q1}")
    a(f"v_cvt_pk_bf16_f32 v{t1}, v{Q0}, v{Q1}")
    a(f"v_lshlrev_b32 v{Q0}, 16, v{t1}")
    a(f"v_and_b32 v{Q1}, s15, v{t1}")
    a(f"v_sqrt_f32 v{Q0}, v{Q0}")
    a(f"v_sqrt_f32 v{Q1}, v{Q1}")
    a(f"v_cvt_pk_bf16_f32 v{t1}, v{Q0}, v{Q1}")
    a(f"v_lshlrev_b32 v{Q0}, 16, v{t1}")
    a(f"v_and_b32 v{Q1}, s15, v{t1}")
    a(f"v_rcp_f32 v{Q0}, v{Q0}")
    a(f"v_rcp_f32 v{Q1}, v{Q1}")
    XH = F
    MS = [S0, S1]; RS = [Q0, Q1]
    a("s_waitcnt vmcnt(12)")

    def each(fn):
        for i in range(5):
            for b in range(2):
                fn(XR + 2*i + b, b, i)
    each(lambda r, b, i: a(f"v_lshlrev_b32 v{r}, 16, v{r}"))
    each(lambda r, b, i: a(f"v_sub_f32 v{r}, v{r}, v{MS[b]}"))
    each(lambda r, b, i: a(f"v_cvt_pk_bf16_f32 v{r}, v{r}, 0"))
    each(lambda r, b, i: a(f"v_lshlrev_b32 v{r}, 16, v{r}"))
    each(lambda r, b, i: a(f"v_mul_f32 v{r}, v{r}, v{RS[b]}"))
    each(lambda r, b, i: a(f"v_cvt_pk_bf16_f32 v{r}, v{r}, 0"))
    each(lambda r, b, i: a(f"v_lshlrev_b32 v{XH+2*i+b}, 16, v{r}"))
    AQ = ACC; AH = ACC + 16
    for i in range(5):
        for b in range(2):
            for d in range(4):
                for hl in range(2):
                    acc = AQ + 8*b + 2*d + hl
                    xs = (XR if hl == 0 else XH) + 2*i + b
                    s2 = "0" if i == 0 else f"v{acc}"
                    a(f"v_dot2_f32_bf16 v{acc}, v{WQ+4*i+d}, v{xs}, {s2}")
    for i in range(5):
        for b in range(2):
            for d in range(2):
                for hl in range(2):
                    acc = AH + 4*b + 2*d + hl
                    xs = (XR if hl == 0 else XH) + 2*i + b
                    s2 = "0" if i == 0 else f"v{acc}"
                    a(f"v_dot2_f32_bf16 v{acc}, v{W1+2*i+d}, v{xs}, {s2}")

    def reduce16(base):
        for k in range(8):
            a(f"v_permlane32_swap_b32 v{base+k}, v{base+k+8}")
        for k in range(8):
            a(f"v_add_f32 v{base+k}, v{base+k}, v{base+k+8}")
        for k in range(4):
            a(f"v_permlane16_swap_b32 v{base+k}, v{base+k+4}")
        for k in range(4):
            a(f"v_add_f32 v{base+k}, v{base+k}, v{base+k+4}")

    reduce16(AQ)
    for k in range(4):
        a(f"v_permlane32_swap_b32 v{AH+k}, v{AH+k+4}")
    for k in range(4):
        a(f"v_add_f32 v{AH+k}, v{AH+k}, v{AH+k+4}")
    for k in range(2):
        a(f"v_permlane16_swap_b32 v{AH+k}, v{AH+k+2}")
    for k in range(2):
        a(f"v_add_f32 v{AH+k}, v{AH+k}, v{AH+k+2}")
    a(f"v_lshrrev_b32 v2, 1, v{RG}")
    a(f"v_and_b32 v3, 1, v{RG}")
    a(f"v_lshlrev_b32 v{TMP}, 9, v2")
    a(f"v_lshl_add_u32 v{TMP}, v{C}, 5, v{TMP}")
    a(f"v_lshl_add_u32 v{TMP}, v3, 4, v{TMP}")
    a("s_lshl_b32 s10, s3, 10")
    a(f"v_add_u32 v{TMP}, s10, v{TMP}")
    a(f"ds_write_b128 v{TMP}, v[{AQ}:{AQ+3}] offset:{L_QP}")
    a(f"v_lshlrev_b32 v{TMP+1}, 8, v2")
    a(f"v_lshl_add_u32 v{TMP+1}, v{C}, 4, v{TMP+1}")
    a(f"v_lshl_add_u32 v{TMP+1}, v3, 3, v{TMP+1}")
    a("s_lshl_b32 s10, s3, 9")
    a(f"v_add_u32 v{TMP+1}, s10, v{TMP+1}")
    a(f"ds_write_b64 v{TMP+1}, v[{AH}:{AH+1}] offset:{L_HP}")
    VY = 31
    a("s_movk_i32 s10, 320")
    a(f"v_mul_u32_u24 v{VY}, s10, v2")
    a(f"v_lshl_add_u32 v{VY}, v{C}, 5, v{VY}")
    a(f"v_lshl_add_u32 v{VY}, v3, 4, v{VY}")
    a("s_mul_i32 s10, s3, 640")
    a(f"v_add_u32 v{VY}, s10, v{VY}")
    VZ = 12
    a(f"v_mov_b32 v{VZ}, 0")
    lds_arrive(C1, VZ, 3)
    lds_spin(C1, 4, VZ, 3)
    stamp(1)

    G = TMP

    def check_tags(regs, lbl_retry_cnt, lbl_loop, lbl_done):
        tags_bad(regs)
        a(f"s_cbranch_scc1 {lbl_done}")
        a(f"s_sub_u32 {lbl_retry_cnt}, {lbl_retry_cnt}, 1")
        a(f"s_cmp_eq_u32 {lbl_retry_cnt}, 0")
        a(f"s_cbranch_scc0 {lbl_loop}")

    def preperm():
        a("s_mov_b32 s10, 0x05040100")
        a("s_mov_b32 s11, 0x07060302")
        for q in range(2):
            for d in range(4):
                r0, r1 = W2 + 8*q + d, W2 + 8*q + 4 + d
                a(f"v_perm_b32 v{LO2+4*q+d}, v{r1}, v{r0}, s10")
                a(f"v_perm_b32 v{r1}, v{r1}, v{r0}, s11")
        for e in range(8):
            for t in range(4):
                r0, r1 = WO + 8*t + (e >> 1), WO + 8*t + 4 + (e >> 1)
                a(f"v_perm_b32 v{BOP+4*e+t}, v{r1}, v{r0}, s{10 + (e & 1)}")

    a("s_cmp_eq_u32 s3, 3")
    a("s_cbranch_scc1 L_h1_gather")
    a(f"v_lshlrev_b32 v2, 3, v0")
    a("s_cmp_eq_u32 s3, 2")
    a("s_cbranch_scc1 L_h1_pubh")
    a("s_lshl_b32 s10, s3, 9")
    a(f"v_add_u32 v2, s10, v2")
    for w in range(4):
        a(f"ds_read_b64 v[{G+4+2*w}:{G+5+2*w}], v2 offset:{L_QP + w*1024}")
    a("s_lshl_b32 s11, s3, 10")
    a("s_branch L_h1_pub")
    a.label("L_h1_pubh")
    for w in range(4):
        a(f"ds_read_b64 v[{G+4+2*w}:{G+5+2*w}], v2 offset:{L_HP + w*512}")
    a("s_movk_i32 s11, 2048")
    a.label("L_h1_pub")
    a("s_mul_i32 s10, s6, 3072")
    a("s_add_u32 s10, s10, s11")
    a(f"v_lshl_add_u32 v3, v0, 4, s10")
    set_tag(G)
    a("s_waitcnt lgkmcnt(0)")
    a(f"v_add_f32 v{G}, v{G+4}, v{G+6}")
    a(f"v_add_f32 v{G+1}, v{G+5}, v{G+7}")
    a(f"v_add_f32 v{G+8}, v{G+8}, v{G+10}")
    a(f"v_add_f32 v{G+9}, v{G+9}, v{G+11}")
    a(f"v_add_f32 v{G}, v{G}, v{G+8}")
    a(f"v_add_f32 v{G+1}, v{G+1}, v{G+9}")
    a(f"buffer_store_dwordx4 v[{G}:{G+3}], v3, s[56:59], 0 offen sc1")
    a(f"s_mul_i32 s10, s4, {GSTR}")
    a("s_lshl_b32 s11, s3, 6")
    a("s_add_u32 s10, s10, s11")
    a("s_lshl_b32 s11, s5, 3")
    a("s_add_u32 s10, s10, s11")
    a(f"s_add_u32 s10, s10, {WS_H1F}")
    a("v_mov_b32 v3, s10")
    a("s_mov_b64 exec, 1")
    a(f"buffer_store_dwordx2 v[{G+2}:{G+3}], v3, s[56:59], 0 offen sc1")
    a("s_mov_b64 exec, -1")
    a("s_cmp_eq_u32 s3, 2")
    a("s_cbranch_scc1 L_h1_gather")
    a("s_waitcnt vmcnt(2)")
    preperm()
    if opts.fast:
        a("s_cmp_lg_u32 s3, 0")
        a("s_cbranch_scc1 L_nopre")
        for r in range(4):
            a(f"v_mov_b32 v{G+r}, 0")
        a("s_lshl_b32 s10, s6, 10")
        a(f"s_add_u32 s10, s10, {WS_H2 + FOFF}")
        a(f"v_lshl_add_u32 v3, v0, 4, s10")
        a(f"buffer_store_dwordx4 v[{G}:{G+3}], v3, s[56:59], 0 offen")
        a(f"s_mul_i32 s10, s4, {GSTR}")
        a("s_lshl_b32 s11, s5, 7")
        a("s_add_u32 s10, s10, s11")
        a(f"s_add_u32 s10, s10, {WS_ML + FOFF}")
        a(f"v_lshl_add_u32 v2, v0, 4, s10")
        a("s_mov_b64 exec, 0xff")
        a(f"buffer_store_dwordx4 v[{G}:{G+3}], v2, s[56:59], 0 offen")
        a("s_mov_b64 exec, -1")
        a.label("L_nopre")
    stamp(2)
    a("s_branch L_b3")

    a.label("L_h1_gather")
    a("s_lshl_b32 s10, s7, 10")
    a("s_cmp_eq_u32 s3, 2")
    a("s_cselect_b32 s10, 2048, s10")
    a("s_mul_i32 s11, s4, 24576")
    a("s_add_u32 s10, s10, s11")
    a(f"v_lshl_add_u32 v3, v0, 4, s10")
    for jj in range(1, 8):
        a(f"s_mov_b32 s{88+jj}, {jj*3072}")
    a("s_cmp_eq_u32 s3, 2")
    a("s_cbranch_scc1 L_pp2")
    a("s_waitcnt vmcnt(0)")
    a("s_branch L_pp")
    a.label("L_pp2")
    a("s_waitcnt vmcnt(2)")
    a.label("L_pp")
    preperm()
    a("s_cmp_eq_u32 s3, 2")
    a("s_cselect_b32 s10, 2, s7")
    a("s_lshl_b32 s10, s10, 6")
    a(f"s_mul_i32 s11, s4, {GSTR}")
    a("s_add_u32 s10, s10, s11")
    a(f"s_add_u32 s10, s10, {WS_H1F}")
    if "h" not in opts.abl:
        hint_poll("hint1", 10, 0)
    if "g" not in opts.abl:
        a(f"s_mov_b32 s12, {opts.maxpoll}")
        a.label("L_poll1")
        for jj in range(8):
            so = "0" if jj == 0 else f"s{88+jj}"
            a(f"buffer_load_dwordx4 v[{G+4*jj}:{G+4*jj+3}], v3, s[56:59], {so} offen sc1")
        a("s_waitcnt vmcnt(0)")
        if "h" not in opts.abl:
            check_tags([G+4*jj for jj in range(8)], "s12", "L_poll1", "L_poll1_done")
        a.label("L_poll1_done")
    stamp(2)
    for e in range(2):
        a(f"v_add_f32 v{G+e}, v{G+e}, v{G+4+e}")
        a(f"v_add_f32 v{G+8+e}, v{G+8+e}, v{G+12+e}")
        a(f"v_add_f32 v{G+16+e}, v{G+16+e}, v{G+20+e}")
        a(f"v_add_f32 v{G+24+e}, v{G+24+e}, v{G+28+e}")
    for e in range(2):
        a(f"v_add_f32 v{G+e}, v{G+e}, v{G+8+e}")
        a(f"v_add_f32 v{G+16+e}, v{G+16+e}, v{G+24+e}")
    for e in range(2):
        a(f"v_add_f32 v{G+e}, v{G+e}, v{G+16+e}")
    a(f"v_lshlrev_b32 v2, 2, v0")
    a("s_cmp_eq_u32 s3, 2")
    a("s_cbranch_scc0 L_qw")
    a(f"v_max_f32 v{G}, 0, v{G}")
    a(f"v_max_f32 v{G+1}, 0, v{G+1}")
    a(f"v_add_u32 v2, {L_H - L_Q}, v2")
    a.label("L_qw")
    a(f"v_cvt_pk_bf16_f32 v{G}, v{G}, v{G+1}")
    a(f"ds_write_b32 v2, v{G} offset:{L_Q}")
    a("v_mov_b32 v2, s68")
    a("v_mov_b32 v3, s69")
    a(f"ds_write_b64 v{VZ}, v[2:3] offset:{L_TAG}")
    a("s_cmp_eq_u32 s3, 2")
    a(f"s_movk_i32 s10, {QF}")
    a(f"s_movk_i32 s11, {HF}")
    a(f"s_cselect_b32 s10, s11, s10")
    a("v_mov_b32 v2, s10")
    a("v_mov_b32 v3, 1")
    a(f"ds_write_b32 v2, v3")
    a.label("L_b3")
    lds_spin(HF, 1, VZ, 3)
    a("s_lshl_b32 s10, s3, 5")
    a(f"v_lshl_add_u32 v2, v{RG}, 3, s10")
    a(f"ds_read_b64 v[{TMP}:{TMP+1}], v2 offset:{L_H}")
    a(f"ds_read_b64 v[{TMP+2}:{TMP+3}], v2 offset:{L_H+128}")
    a("s_waitcnt lgkmcnt(0)")
    for q in range(2):
        for b in range(2):
            for d in range(4):
                for hl in range(2):
                    acc = AY + 8*b + 2*d + hl
                    w = (LO2 + 4*q + d) if hl == 0 else (W2 + 8*q + 4 + d)
                    s2 = "0" if q == 0 else f"v{acc}"
                    a(f"v_dot2_f32_bf16 v{acc}, v{w}, v{TMP+2*b+q}, {s2}")
    reduce16(AY)
    a(f"s_mov_b32 s10, {LANES10}")
    a(f"s_mov_b32 s11, {LANES10}")
    a("s_mov_b64 exec, s[10:11]")
    a(f"ds_write_b128 v{VY}, v[{AY}:{AY+3}] offset:{L_Y2P}")
    a("s_mov_b64 exec, -1")
    lds_arrive(C4, VZ, 3, rtn=True)
    a("s_cmp_eq_u32 s10, 3")
    a("s_cbranch_scc0 L_noy2")
    a(f"v_lshlrev_b32 v2, 3, v0")
    for w in range(4):
        a(f"ds_read_b64 v[{TMP+8+2*w}:{TMP+9+2*w}], v2 offset:{L_Y2P + w*640}")
    for w in range(4):
        a(f"ds_read_b64 v[{TMP+16+2*w}:{TMP+17+2*w}], v2 offset:{L_Y2P + w*640 + 512}")
    def pair_addr(vdst, vp, vt):
        a(f"v_lshrrev_b32 v{vdst}, 2, v{vp}")
        a(f"v_cmp_lt_u32 vcc, 39, v{vp}")
        a(f"v_mov_b32 v{vt}, 0")
        a(f"v_cndmask_b32 v{vt}, v{vt}, v{TMP+31}, vcc")
        a(f"v_add_u32 v{vdst}, v{vdst}, v{vt}")
        a(f"v_lshlrev_b32 v{vdst}, 11, v{vdst}")
        a(f"v_and_b32 v{vt}, 2, v{vp}")
        a(f"v_lshl_add_u32 v{vdst}, v{vt}, 9, v{vdst}")
        a(f"v_and_b32 v{vt}, 1, v{vp}")
        a(f"v_lshl_add_u32 v{vdst}, v{vt}, 4, v{vdst}")
        a(f"v_add_u32 v{vdst}, s10, v{vdst}")
    a("s_mul_i32 s10, s5, 20480")
    a("s_lshl_b32 s11, s4, 5")
    a("s_add_u32 s10, s10, s11")
    a(f"s_add_u32 s10, s10, {WS_H3B}")
    a(f"v_mov_b32 v{TMP+31}, 70")
    pair_addr(3, 0, TMP + 30)
    a(f"v_add_u32 v{TMP+29}, 64, v0")
    pair_addr(2, TMP + 29, TMP + 30)
    set_tag(TMP)
    set_tag(TMP+4)
    a("s_waitcnt lgkmcnt(0)")
    for e in range(2):
        a(f"v_add_f32 v{TMP+8+e}, v{TMP+8+e}, v{TMP+10+e}")
        a(f"v_add_f32 v{TMP+12+e}, v{TMP+12+e}, v{TMP+14+e}")
        a(f"v_add_f32 v{TMP+e}, v{TMP+8+e}, v{TMP+12+e}")
    a(f"buffer_store_dwordx4 v[{TMP}:{TMP+3}], v3, s[56:59], 0 offen sc1")
    for e in range(2):
        a(f"v_add_f32 v{TMP+16+e}, v{TMP+16+e}, v{TMP+18+e}")
        a(f"v_add_f32 v{TMP+20+e}, v{TMP+20+e}, v{TMP+22+e}")
        a(f"v_add_f32 v{TMP+4+e}, v{TMP+16+e}, v{TMP+20+e}")
    a("s_mov_b64 exec, 0xffff")
    a(f"buffer_store_dwordx4 v[{TMP+4}:{TMP+7}], v2, s[56:59], 0 offen sc1")
    a("s_mov_b64 exec, -1")
    a.label("L_noy2")
    stamp(3)
    MASK = 120
    AOP = 136
    ACC2 = 96
    YR = 104
    VPH, VYW, VY0, VY1 = 13, 14, 15, 16
    GY = 20
    a("v_lshrrev_b32 v2, 1, v0")
    a("v_and_b32 v2, 7, v2")
    for q in range(4):
        for h in range(2):
            a(f"v_cmp_eq_u32 vcc, {2*q+h}, v2")
            a(f"v_cndmask_b32 v{MASK+2*q+h}, 0, -1, vcc")
    a("v_and_b32 v3, 1, v0")
    a("v_lshlrev_b32 v3, 12, v3")
    a("v_lshrrev_b32 v4, 1, v2")
    a("v_lshl_add_u32 v3, v4, 10, v3")
    a(f"v_lshl_add_u32 v3, v{RG}, 6, v3")
    a("v_and_b32 v4, 1, v2")
    a("v_lshl_add_u32 v3, v4, 5, v3")
    a("s_lshl_b32 s10, s4, 13")
    a("s_lshl_b32 s11, s3, 8")
    a("s_add_u32 s10, s10, s11")
    a(f"s_add_u32 s10, s10, {WS_H2}")
    a(f"v_add_u32 v{VPH}, s10, v3")
    a("s_lshl_b32 s10, s3, 10")
    a(f"v_lshl_add_u32 v{VYW}, v0, 4, s10")
    a(f"v_lshlrev_b32 v3, 11, v{C}")
    a(f"v_lshrrev_b32 v4, 1, v{RG}")
    a("v_lshl_add_u32 v3, v4, 10, v3")
    a(f"v_and_b32 v4, 1, v{RG}")
    a("v_lshl_add_u32 v3, v4, 4, v3")
    a("s_mul_i32 s10, s5, 20480")
    a("s_lshl_b32 s11, s4, 5")
    a("s_add_u32 s10, s10, s11")
    a(f"s_add_u32 s10, s10, {WS_H3A}")
    a(f"v_add_u32 v{VY0}, s10, v3")
    a(f"v_lshlrev_b32 v{VY1}, 4, v0")
    if opts.y1lay:
        a("s_mul_i32 s10, s4, 10240")
        a("s_mul_i32 s11, s5, 1280")
        a("s_add_u32 s10, s10, s11")
        a(f"s_add_u32 s10, s10, {WS_H3A}")
        a(f"v_lshl_add_u32 v{VY0}, v0, 4, s10")
        a("v_and_b32 v3, 3, v0")
        a("v_lshrrev_b32 v4, 2, v0")
        a("v_and_b32 v4, 15, v4")
        a("v_lshl_add_u32 v3, v3, 4, v4")
        a(f"v_lshlrev_b32 v{VY1}, 4, v3")
    set_tag(GY)
    set_tag(GY + 4)
    a("s_cmp_lg_u32 s3, 0")
    a("s_cbranch_scc1 L_noml")
    lds_spin(C2, 8, VZ, 3, sleep=1)
    a(f"ds_read_b128 v[{TMP}:{TMP+3}], v{VZ} offset:{L_ML}")
    a(f"ds_read_b128 v[{TMP+4}:{TMP+7}], v{VZ} offset:{L_ML+16}")
    a(f"ds_read_b128 v[{TMP+8}:{TMP+11}], v{VZ} offset:{L_ML+32}")
    a(f"ds_read_b128 v[{TMP+12}:{TMP+15}], v{VZ} offset:{L_ML+48}")
    GM = TMP + 16
    set_tag(GM)
    a(f"s_mul_i32 s10, s4, {GSTR}")
    a("s_lshl_b32 s11, s5, 7")
    a("s_add_u32 s10, s10, s11")
    a(f"s_add_u32 s10, s10, {WS_ML}")
    a("v_mov_b32 v3, s10")
    a(f"s_mov_b32 s14, 0x{f32bits(LOG2E):08x}")
    a("s_waitcnt lgkmcnt(0)")
    M = GM
    a(f"v_max3_f32 v{M}, v{TMP}, v{TMP+1}, v{TMP+2}")
    a(f"v_max3_f32 v{M}, v{M}, v{TMP+3}, v{TMP+4}")
    a(f"v_max3_f32 v{M}, v{M}, v{TMP+5}, v{TMP+6}")
    a(f"v_max_f32 v{M}, v{M}, v{TMP+7}")
    E8 = TMP + 24
    for w in range(8):
        a(f"v_sub_f32 v{E8+w}, v{TMP+w}, v{M}")
    for w in range(8):
        a(f"v_mul_f32 v{E8+w}, s14, v{E8+w}")
    for w in range(8):
        a(f"v_exp_f32 v{E8+w}, v{E8+w}")
    a("s_mov_b64 exec, 1")
    a(f"ds_write_b128 v{VZ}, v[{E8}:{E8+3}] offset:{L_F}")
    a(f"ds_write_b128 v{VZ}, v[{E8+4}:{E8+7}] offset:{L_F+16}")
    a("v_mov_b32 v4, 1")
    a(f"ds_write_b32 v{VZ}, v4 offset:{FF}")
    a("s_mov_b64 exec, -1")
    Ls = GM + 1
    a(f"v_mul_f32 v{Ls}, v{E8}, v{TMP+8}")
    for w in range(1, 8):
        a(f"v_fma_f32 v{Ls}, v{E8+w}, v{TMP+8+w}, v{Ls}")
    a("s_mov_b64 exec, 1")
    if opts.fast:
        a(f"s_mov_b32 s10, {FOFF}")
        a(f"buffer_store_dwordx4 v[{GM}:{GM+3}], v3, s[56:59], s10 offen")
    a(f"buffer_store_dwordx4 v[{GM}:{GM+3}], v3, s[56:59], 0 offen sc1")
    a("s_mov_b64 exec, -1")
    if opts.fast and opts.reclaim:
        for r in range(4):
            a(f"v_mov_b32 v{TMP+r}, 0")
        a("s_lshl_b32 s10, s6, 10")
        a(f"s_add_u32 s10, s10, {WS_H2 + FOFF}")
        a(f"v_lshl_add_u32 v3, v0, 4, s10")
        a(f"buffer_store_dwordx4 v[{TMP}:{TMP+3}], v3, s[56:59], 0 offen")
    a.label("L_noml")
    if "t" in opts.abl:
        a("s_branch L_fin")
    GP = TMP + 28
    VFS = 17
    VML = 18
    a("v_and_b32 v3, 1, v0")
    a("v_lshlrev_b32 v3, 9, v3")
    a("v_lshrrev_b32 v4, 2, v0")
    a("v_and_b32 v4, 3, v4")
    a("v_lshl_add_u32 v3, v4, 7, v3")
    a(f"s_mul_i32 s10, s4, {GSTR}")
    a(f"s_add_u32 s10, s10, {WS_ML}")
    a(f"v_add_u32 v{VML}, s10, v3")
    a(f"s_mul_i32 s9, s4, {GSTR}")
    a(f"s_add_u32 s9, s9, {WS_H2F}")
    a("s_lshl_b32 s10, s5, 3")
    a("s_add_u32 s10, s10, s9")
    a("v_mov_b32 v19, s10")
    def calc_f():
        a(f"v_max_f32_dpp v5, v{GP}, v{GP} row_ror:4 row_mask:0xf bank_mask:0xf")
        a(f"v_max_f32_dpp v5, v5, v5 row_ror:8 row_mask:0xf bank_mask:0xf")
        a(f"v_sub_f32 v6, v{GP}, v5")
        a(f"v_mul_f32 v6, s14, v6")
        a(f"v_exp_f32 v6, v6")
        a(f"v_mul_f32 v7, v6, v{GP+1}")
        a(f"v_add_f32_dpp v7, v7, v7 row_ror:4 row_mask:0xf bank_mask:0xf")
        a(f"v_add_f32_dpp v7, v7, v7 row_ror:8 row_mask:0xf bank_mask:0xf")
        a(f"v_rcp_f32 v7, v7")
        a(f"v_mul_f32 v{VFS}, v6, v7")
    SRC = "s13"
    if not opts.fast:
        lds_spin(C6, 8, VZ, 3, sleep=2)
    if opts.fast:
        lds_spin(FF, 1, VZ, 3, sleep=4)
        a(f"s_mov_b32 {SRC}, {FOFF}")
        a(f"s_mov_b32 s12, {opts.maxpoll}")
        a.label("L_pollml")
        a(f"buffer_load_dwordx4 v[{GP}:{GP+3}], v{VML}, s[56:59], {SRC} offen sc1")
        a("s_waitcnt vmcnt(0)")
        tags_bad([GP])
        a("s_cbranch_scc1 L_pollml_done")
        a(f"s_sleep {opts.mlsleep}")
        a(f"s_cmp_lt_u32 s12, {opts.maxpoll - opts.nf}")
        a(f"s_cselect_b32 s10, {FOFF}, 0")
        a(f"s_xor_b32 {SRC}, {SRC}, s10")
        a("s_sub_u32 s12, s12, 1")
        a("s_cmp_lg_u32 s12, 0")
        a("s_cbranch_scc1 L_pollml")
        a.label("L_pollml_done")
        a(f"s_mov_b32 s14, 0x{f32bits(LOG2E):08x}")
        calc_f()
        lds_spin(C6, 8, VZ, 3, sleep=1)
        a(f"s_mov_b32 {SRC}, {FOFF}")
    else:
        a("s_cmp_lg_u32 s3, 0")
        a("s_cbranch_scc1 L_nohint0")
        a("s_mov_b64 exec, 1")
        a(f"buffer_store_dwordx2 v[{GY+2}:{GY+3}], v19, s[56:59], 0 offen sc1")
        a("s_mov_b64 exec, -1")
        a.label("L_nohint0")
        a(f"buffer_load_dwordx4 v[{GP}:{GP+3}], v{VML}, s[56:59], 0 offen sc1")
        a("s_cmp_lg_u32 s3, 0")
        a("s_cbranch_scc1 L_nohint")
        hint_poll("hint2", 9, 1)
        a("v_mov_b32 v3, 1")
        a(f"ds_write_b32 v{VZ}, v3 offset:{HG}")
        a.label("L_nohint")
        lds_spin(HG, 1, VZ, 3)
        a(f"s_mov_b32 s12, {opts.maxpoll}")
        a.label("L_pollml")
        a("s_waitcnt vmcnt(0)")
        tags_bad([GP])
        a("s_cbranch_scc1 L_pollml_done")
        a("s_sleep 2")
        a(f"buffer_load_dwordx4 v[{GP}:{GP+3}], v{VML}, s[56:59], 0 offen sc1")
        a("s_sub_u32 s12, s12, 1")
        a("s_cmp_lg_u32 s12, 0")
        a("s_cbranch_scc1 L_pollml")
        a.label("L_pollml_done")
    stamp(4)
    a(f"s_mov_b32 s9, {640 if opts.y1lay else 160*1024}")
    a(f"s_mov_b32 s14, 0x{f32bits(LOG2E):08x}")
    n2 = opts.npoll2
    assert n2 <= (4 if opts.fast else 3)
    PS = [[TMP + 8*k, TMP + 8*k + 4] for k in range(n2)]

    def issue2(k):
        so = SRC if opts.fast else "0"
        a(f"buffer_load_dwordx4 v[{PS[k][0]}:{PS[k][0]+3}], v{VPH}, s[56:59], {so} offen sc1")
        a(f"buffer_load_dwordx4 v[{PS[k][1]}:{PS[k][1]+3}], v{VPH}, s[56:59], {so} offen offset:16 sc1")
        if opts.fast:
            a(f"s_cmp_lt_u32 s12, {opts.maxpoll - opts.nf}")
            a(f"s_cselect_b32 s10, {FOFF}, 0")
            a(f"s_xor_b32 {SRC}, {SRC}, s10")

    O4 = [4, 5, 6, 7]
    pipelined_poll("pollH2", n2, PS, issue2, opts.stag2, O4, after_issue=(None if opts.fast else calc_f))
    stamp(5)
    for r in O4:
        a(f"v_mul_f32 v{r}, v{VFS}, v{r}")
    for ctrl in ["row_ror:4", "row_ror:8"]:
        for r in O4:
            a(f"v_add_f32_dpp v{r}, v{r}, v{r} {ctrl} row_mask:0xf bank_mask:0xf")
    D0, D1 = 2, 3
    a(f"v_cvt_pk_bf16_f32 v{D0}, v{O4[0]}, v{O4[1]}")
    a(f"v_cvt_pk_bf16_f32 v{D1}, v{O4[2]}, v{O4[3]}")
    for q in range(4):
        a(f"v_and_b32 v{AOP+4*q}, v{D0}, v{MASK+2*q}")
        a(f"v_and_b32 v{AOP+4*q+1}, v{D1}, v{MASK+2*q}")
        a(f"v_and_b32 v{AOP+4*q+2}, v{D0}, v{MASK+2*q+1}")
        a(f"v_and_b32 v{AOP+4*q+3}, v{D1}, v{MASK+2*q+1}")
    for q in range(4):
        for od in range(2):
            acc = ACC2 + 4*od
            c = "0" if q == 0 else f"v[{acc}:{acc+3}]"
            e = 2*q + od
            a(f"v_mfma_f32_16x16x32_bf16 v[{acc}:{acc+3}], v[{AOP+4*q}:{AOP+4*q+3}], v[{BOP+4*e}:{BOP+4*e+3}], {c}")
    YW = YR
    a(f"v_add_f32 v{YW}, v{ACC2}, v{ACC2+2}")
    a(f"v_add_f32 v{YW+1}, v{ACC2+4}, v{ACC2+6}")
    a(f"v_add_f32 v{YW+2}, v{ACC2+1}, v{ACC2+3}")
    a(f"v_add_f32 v{YW+3}, v{ACC2+5}, v{ACC2+7}")
    a(f"ds_write_b128 v{VYW}, v[{YW}:{YW+3}] offset:{L_Y1P}")
    lds_arrive(C5, VZ, 3, rtn=True)
    stamp(6)
    a("s_cmp_eq_u32 s10, 3")
    a("s_cbranch_scc0 L_fin")
    for w in range(4):
        a(f"ds_read_b128 v[{YR+4*w}:{YR+4*w+3}], v{VY1} offset:{L_Y1P + w*1024}")
    if opts.y1lay:
        a("s_mov_b32 s10, -1")
        a("s_mov_b32 s11, 0xff")
    else:
        a(f"s_mov_b32 s10, {LANES10}")
        a(f"s_mov_b32 s11, {LANES10}")
    a("s_waitcnt lgkmcnt(2)")
    for e in range(4):
        a(f"v_add_f32 v{YR+e}, v{YR+e}, v{YR+4+e}")
    a("s_waitcnt lgkmcnt(0)")
    for e in range(4):
        a(f"v_add_f32 v{YR+8+e}, v{YR+8+e}, v{YR+12+e}")
    a(f"v_add_f32 v{GY}, v{YR}, v{YR+8}")
    a(f"v_add_f32 v{GY+1}, v{YR+1}, v{YR+9}")
    a(f"v_add_f32 v{GY+4}, v{YR+2}, v{YR+10}")
    a(f"v_add_f32 v{GY+5}, v{YR+3}, v{YR+11}")
    a("s_mov_b64 exec, s[10:11]")
    a(f"buffer_store_dwordx4 v[{GY}:{GY+3}], v{VY0}, s[56:59], 0 offen sc1")
    a(f"buffer_store_dwordx4 v[{GY+4}:{GY+7}], v{VY0}, s[56:59], s9 offen sc1")
    a("s_mov_b64 exec, -1")
    stamp(7)
    a.label("L_fin")
    if stamps:
        a("s_mul_i32 s90, s6, 12")
        a("s_add_u32 s90, s90, s3")
        a("s_lshl_b32 s90, s90, 6")
        a(f"s_add_u32 s90, s90, {WS_STAMP}")
        a("v_mov_b32 v2, s90")
        a("s_waitcnt lgkmcnt(0)")
        for i in range(16):
            a(f"v_mov_b32 v{8+i}, s{ST0+i}")
        a("s_mov_b64 exec, 1")
        for q in range(4):
            a(f"buffer_store_dwordx4 v[{8+4*q}:{11+4*q}], v2, s[56:59], 0 offen offset:{16*q}")
    a.label("L_end")
    a("s_endpgm")

    nv = 168
    out = HEADER
    out += f"; @launch grid=(256,1,1) block=(768,1,1) lds={L_TOTAL}\n"
    out += '.amdgcn_target "amdgcn-amd-amdhsa--gfx950"\n.text\n'
    out += f".globl {KNAME}\n.p2align 8\n.type {KNAME},@function\n{KNAME}:\n"
    out += "\n".join(a.l) + "\n"
    out += f""".section .rodata,"a"
.p2align 6
.amdhsa_kernel {KNAME}
  .amdhsa_next_free_vgpr {nv}
  .amdhsa_next_free_sgpr 96
  .amdhsa_accum_offset {nv}
  .amdhsa_group_segment_fixed_size 0
  .amdhsa_kernarg_size 88
  .amdhsa_user_sgpr_count 2
  .amdhsa_user_sgpr_kernarg_segment_ptr 1
  .amdhsa_system_sgpr_workgroup_id_x 1
.end_amdhsa_kernel
"""
    return out


def main():
    p = argparse.ArgumentParser()
    p.add_argument("-o", default="recurrent_scan__sliding_block_cached__dense_activation_relu__decode.s")
    p.add_argument("--kvpol", default="nt")
    p.add_argument("--wpol", default="nt")
    p.add_argument("--stamps", action="store_true")
    p.add_argument("--maxpoll", type=int, default=20000)
    p.add_argument("--maxspin", type=int, default=2000000)
    p.add_argument("--rotg", type=int, default=1)
    p.add_argument("--rotw", type=int, default=4)
    p.add_argument("--map", default="C")
    p.add_argument("--win", type=int, default=4)
    p.add_argument("--qkv", type=lambda s: [int(x) for x in s.split(",")], default=[1, 1, 1, 1])
    p.add_argument("--fpos", type=int, default=12)
    p.add_argument("--qpos", type=int, default=24)
    p.add_argument("--sched", default="dyn")
    p.add_argument("--kwin", type=int, default=0)
    p.add_argument("--dbgst", action="store_true")
    p.add_argument("--abl", default="")
    p.add_argument("--win2", type=int, default=0)
    p.add_argument("--bpos", type=int, default=3)
    p.add_argument("--hpos", type=int, default=8)
    p.add_argument("--ygate", type=lambda s: tuple(eval(x) for x in s.split(",")), default=(C5, 1))
    p.add_argument("--gate", type=int, default=8)
    p.add_argument("--npoll2", type=int, default=2)
    p.add_argument("--npoll3", type=int, default=4)
    p.add_argument("--stag2", type=int, default=6)
    p.add_argument("--stag3", type=int, default=3)
    p.add_argument("--prio", default="")
    p.add_argument("--qprio", type=int, default=-1)
    p.add_argument("--fast", action="store_true")
    p.add_argument("--nf", type=int, default=48)
    p.add_argument("--slow3", default="")
    p.add_argument("--mlsleep", type=int, default=4)
    p.add_argument("--reclaim", action="store_true")
    p.add_argument("--y1lay", type=int, default=0)
    o = p.parse_args()
    open(o.o, "w").write(gen(o))
    print("wrote", o.o)


if __name__ == "__main__":
    main()
```

```python
import sys, argparse, struct
from asmh import A
from gen2 import HEADER, KNAME

WS_H1 = 0x0
WS_H2 = 0xC0000
GSTR = 4352
WS_ML = 0x340000
WS_H1F = 0x380000
WS_H2F = 0x300000
WS_H3A = 0x140000
WS_H3B = 0x190000
WS_EPOCH = 0x1F0000
WS_STAMP = 0x200000
WS_SIZE = 0x800000
FOFF = 0x400000

L_QP = 0
L_HP = 4096
L_Q = 6144
L_H = 6400
L_OP = 6656
L_ML = 10752
L_F = 10816
L_TAG = 10848
L_Y2P = 11392
L_Y1P = 13952
L_SYNC = 18048
L_TOTAL = 18176
C1, QF, HF, C2, FF, C3, C4, C5, C6, HG = [L_SYNC + 4 * i for i in range(10)]

LOG2E = 1.4426950408889634
OOB = 0x40000000
LANES10 = "0x03ff03ff"


def f32bits(x):
    return struct.unpack('<I', struct.pack('<f', x))[0]


def gen(opts):
    a = A()
    kvpol = opts.kvpol
    wpol = opts.wpol
    stamps = opts.stamps
    W = opts.win
    ST0 = 72

    def stamp(idx):
        if stamps:
            a(f"s_memrealtime s[{ST0+2*idx}:{ST0+2*idx+1}]")

    uid = [0]

    def lds_spin(off, val, vz, vt, sleep=0):
        uid[0] += 1
        lbl = f"L_spin{uid[0]}"
        a(f"s_mov_b32 s12, {opts.maxspin}")
        a.label(lbl)
        a(f"ds_read_b32 v{vt}, v{vz} offset:{off}")
        a("s_waitcnt lgkmcnt(0)")
        a(f"v_readfirstlane_b32 s10, v{vt}")
        a(f"s_cmp_ge_u32 s10, {val}")
        a(f"s_cbranch_scc1 {lbl}_done")
        if sleep:
            a(f"s_sleep {sleep}")
        a("s_sub_u32 s12, s12, 1")
        a("s_cmp_lg_u32 s12, 0")
        a(f"s_cbranch_scc1 {lbl}")
        a.label(lbl + "_done")

    def lds_arrive(off, vz, vt, rtn=False):
        a(f"v_mov_b32 v{vt}, 1")
        a("s_mov_b64 exec, 1")
        if rtn:
            a(f"ds_add_rtn_u32 v{vt}, v{vz}, v{vt} offset:{off}")
        else:
            a(f"ds_add_u32 v{vz}, v{vt} offset:{off}")
        a("s_mov_b64 exec, -1")
        if rtn:
            a("s_waitcnt lgkmcnt(0)")
            a(f"v_readfirstlane_b32 s10, v{vt}")

    def set_tag(r):
        a(f"v_mov_b32 v{r+2}, s68")
        a(f"v_mov_b32 v{r+3}, s69")

    def tags_bad(regs):
        for n, r in enumerate(regs):
            dst = "s[70:71]" if n == 0 else "vcc"
            a(f"v_cmp_ne_u64 {dst}, v[{r+2}:{r+3}], s[68:69]")
            if n:
                a("s_or_b64 s[70:71], s[70:71], vcc")
        a("s_cmp_eq_u64 s[70:71], 0")

    def pipelined_poll(name, nsets, setregs, issue, stag, res, slow=0, after_issue=None):
        nl = len(setregs[0])
        a(f"s_mov_b32 s12, {opts.maxpoll}")
        a("s_mov_b64 s[38:39], -1")
        for k in range(nsets):
            issue(k)
            if k == 0 and after_issue:
                after_issue()
            if k + 1 < nsets and stag:
                a(f"s_sleep {stag}")
        a.label(f"L_{name}")
        for k in range(nsets):
            a(f"s_waitcnt vmcnt({(nsets-1)*nl})")
            for n, r in enumerate(setregs[k]):
                dst = "s[70:71]" if n == 0 else "vcc"
                a(f"v_cmp_eq_u64 {dst}, v[{r+2}:{r+3}], s[68:69]")
                if n:
                    a("s_and_b64 s[70:71], s[70:71], vcc")
            a("s_and_b64 exec, s[70:71], s[38:39]")
            for n, r in enumerate(setregs[k]):
                a(f"v_mov_b32 v{res[2*n]}, v{r}")
                a(f"v_mov_b32 v{res[2*n+1]}, v{r+1}")
            a("s_andn2_b64 s[38:39], s[38:39], s[70:71]")
            a("s_mov_b64 exec, s[38:39]")
            a(f"s_cbranch_scc0 L_{name}_done")
            if slow:
                a("s_bcnt1_i32_b64 s10, s[38:39]")
                a(f"s_cmp_lt_u32 s10, {slow[0]}")
                uid[0] += 1
                a(f"s_cbranch_scc1 L_fast{uid[0]}")
                a(f"s_sleep {slow[1]}")
                a.label(f"L_fast{uid[0]}")
            issue(k)
            a("s_mov_b64 exec, -1")
        a("s_sub_u32 s12, s12, 1")
        a("s_cmp_lg_u32 s12, 0")
        a(f"s_cbranch_scc1 L_{name}")
        a.label(f"L_{name}_done")
        a("s_mov_b64 exec, -1")

    def hint_poll(name, ws_off_sgpr, sleep):
        a(f"s_add_u32 s14, s56, s{ws_off_sgpr}")
        a("s_addc_u32 s15, s57, 0")
        a(f"s_mov_b32 s12, {opts.maxpoll}")
        a.label(f"L_{name}")
        a("s_load_dwordx16 s[16:31], s[14:15], 0 glc")
        a("s_waitcnt lgkmcnt(0)")
        for i in range(8):
            a(f"s_cmp_eq_u64 s[{16+2*i}:{17+2*i}], s[68:69]")
            a(f"s_cbranch_scc0 L_{name}_no")
        a(f"s_branch L_{name}_done")
        a.label(f"L_{name}_no")
        if sleep:
            a(f"s_sleep {sleep}")
        a("s_sub_u32 s12, s12, 1")
        a("s_cmp_lg_u32 s12, 0")
        a(f"s_cbranch_scc1 L_{name}")
        a.label(f"L_{name}_done")

    a("s_cmp_ge_u32 s2, 256")
    a("s_cbranch_scc1 L_end")
    a("s_load_dwordx16 s[16:31], s[0:1], 0")
    a("s_load_dwordx4 s[32:35], s[0:1], 64")
    a("s_load_dwordx2 s[36:37], s[0:1], 80")
    if stamps:
        for i in range(1, 8):
            a(f"s_mov_b64 s[{ST0+2*i}:{ST0+2*i+1}], 0")
        stamp(0)
    a("v_lshrrev_b32 v1, 6, v0")
    a("v_and_b32 v0, 63, v0")
    if opts.map == "C":
        a("s_and_b32 s4, s2, 7")
        a("s_lshr_b32 s5, s2, 6")
        a("s_lshl_b32 s5, s5, 3")
        a("s_or_b32 s4, s4, s5")
        a("s_lshr_b32 s5, s2, 3")
        a("s_and_b32 s5, s5, 7")
    else:
        a("s_lshr_b32 s4, s2, 3")
        a("s_and_b32 s5, s2, 7")
    a("v_readfirstlane_b32 s3, v1")
    a("s_lshl_b32 s6, s4, 3")
    a("s_or_b32 s6, s6, s5")
    a("s_lshr_b32 s7, s5, 2")
    a("s_and_b32 s8, s5, 3")
    a(f"s_mov_b32 s58, {WS_SIZE}")
    a("s_mov_b32 s59, 0x00020000")
    a("s_cmp_lt_u32 s3, 4")
    a("s_cbranch_scc1 L_aux")

    VOFF, VQ, VT, VS, VACC, VK, VV, VF = 1, 2, 6, 8, 24, 32, 96, 160
    a.c("---- streaming wave ----")
    a("s_sub_u32 s3, s3, 4")
    a("s_lshl_b32 s9, s7, 5")
    a("s_add_u32 s9, s9, s4")
    a("s_lshl_b32 s9, s9, 21")
    a("s_lshl_b32 s10, s8, 17")
    a("s_add_u32 s9, s9, s10")
    a("s_add_u32 s9, s9, 1572864")
    a("s_lshl_b32 s10, s3, 14")
    a(f"v_lshl_add_u32 v{VOFF}, v0, 4, s10")
    a(f"s_mul_i32 s11, s4, {opts.rotg}")
    a(f"s_mul_i32 s12, s3, {opts.rotw}")
    a("s_add_u32 s11, s11, s12")
    a("s_lshl_b32 s11, s11, 10")
    a("s_mov_b32 s42, 131072")
    a("s_mov_b32 s43, 0x00020000")
    a("s_mov_b32 s46, 131072")
    a("s_mov_b32 s47, 0x00020000")
    a("s_cmp_lt_u32 s4, 20")
    a("s_cselect_b32 s13, 1, 0")
    a("s_cmp_lt_u32 s3, 2")
    a("s_cselect_b32 s13, s13, 0")
    a("s_cmp_ge_u32 s4, 10")
    a("s_cselect_b32 s14, 560, 0")
    a("s_lshl_b32 s10, s4, 3")
    a("s_add_u32 s14, s14, s10")
    a("s_mul_i32 s10, s5, 80")
    a("s_add_u32 s14, s14, s10")
    a("s_lshl_b32 s10, s3, 2")
    a("s_add_u32 s14, s14, s10")
    VXV = VK + 63
    a(f"v_and_b32 v{VT}, 1, v0")
    a(f"v_lshlrev_b32 v{VT}, 1, v{VT}")
    a(f"v_lshrrev_b32 v{VT+1}, 5, v0")
    a(f"v_add3_u32 v{VT}, v{VT}, v{VT+1}, s14")
    a(f"v_lshlrev_b32 v{VQ}, 1, v{VT}")
    a("s_waitcnt lgkmcnt(0)")
    a("s_add_u32 s40, s18, s9")
    a("s_addc_u32 s41, s19, 0")
    a("s_add_u32 s44, s20, s9")
    a("s_addc_u32 s45, s21, 0")
    a("s_mov_b32 s56, s36")
    a("s_mov_b32 s57, s37")
    a("s_mov_b32 s48, s16")
    a("s_mov_b32 s49, s17")
    a("s_movk_i32 s50, 2560")
    a("s_mov_b32 s51, 0x00020000")
    a("s_mov_b32 s64, s32")
    a("s_mov_b32 s65, s33")
    a("s_movk_i32 s66, 2560")
    a("s_mov_b32 s67, 0x00020000")
    for i in range(16):
        a(f"s_add_u32 s{16+i}, s11, {i*1024}")
        a(f"s_and_b32 s{16+i}, s{16+i}, 0x3c00")
    a("s_barrier")
    a("s_cmp_eq_u32 s13, 0")
    a("s_cbranch_scc1 L_nox")
    a(f"buffer_load_ushort v{VF+7+0}, v{VQ}, s[48:51], 0 offen")
    a.label("L_nox")
    XV = VF + 7
    PRIO = {int(k): int(v) for k, v in (it.split(":") for it in opts.prio.split(",") if it)}

    def issue(n, static=True):
        if static and n in PRIO:
            a(f"s_setprio {PRIO[n]}")
        if n < 16:
            a(f"buffer_load_dwordx4 v[{VK+4*n}:{VK+4*n+3}], v{VOFF}, s[40:43], s{16+n} offen {kvpol}")
        else:
            i = n - 16
            a(f"buffer_load_dwordx4 v[{VV+4*i}:{VV+4*i+3}], v{VOFF}, s[44:47], s{16+i} offen {kvpol}")

    W2 = opts.win2 or W
    NS = 16 - W2
    slot_i = [0]
    SREM = "s9"

    FLAT = opts.sched in ("flat", "ab")
    AB = opts.sched == "ab"

    def dstamp(idx):
        if opts.dbgst:
            stamp(idx)

    def late_burst():
        a(f"s_cmp_eq_u32 {SREM}, 0")
        a("s_cbranch_scc1 L_nolate")
        for n in range(opts.kwin, 32):
            issue(n)
        dstamp(5)
        a.label("L_nolate")

    def slot():
        k = slot_i[0]
        slot_i[0] += 1
        if AB and k == opts.bpos:
            late_burst()
        if FLAT:
            return
        if k < NS:
            a(f"s_cmp_gt_u32 {SREM}, {k}")
            a(f"s_cbranch_scc0 L_slot{k}_no")
            a(f"s_waitcnt vmcnt({W2-1})")
            issue(16 + 15 - k, False)
            a(f"s_branch L_slot{k}_done")
            a.label(f"L_slot{k}_no")
            a("s_waitcnt vmcnt(0)")
            a.label(f"L_slot{k}_done")
        else:
            a(f"s_waitcnt vmcnt({max(W2 - 1 - (k - NS), 0)})")

    a(f"v_mov_b32 v{VT+1}, 0")
    for n in range(W):
        issue(n)
    if AB:
        KW = opts.kwin
        for n in range(W, KW):
            a(f"s_waitcnt vmcnt({W-1})")
            issue(n)
        a(f"ds_read_b32 v{VT}, v{VT+1} offset:{QF}")
        a(f"s_waitcnt vmcnt({KW - 16})")
        a("s_waitcnt lgkmcnt(0)")
        a(f"v_readfirstlane_b32 {SREM}, v{VT}")
        a(f"s_cmp_lg_u32 {SREM}, 0")
        a(f"s_cbranch_scc1 L_qready")
        for n in range(KW, 32):
            issue(n)
        dstamp(5)
        lds_spin(QF, 1, VT + 1, VT, sleep=1)
        a(f"s_mov_b32 {SREM}, 0")
    elif FLAT:
        for n in range(W, 32):
            if n < opts.kwin:
                a(f"s_waitcnt vmcnt({W-1})")
            issue(n)
        dstamp(5)
        lds_spin(QF, 1, VT + 1, VT, sleep=1)
    else:
        for n in range(W, 16 + W2):
            a(f"s_waitcnt vmcnt({(W if n < 16 else W2) - 1})")
            issue(n)
        dstamp(5)
        if "q" in opts.abl:
            a(f"s_mov_b32 {SREM}, {NS}")
            a(f"s_waitcnt vmcnt({W2})")
            a("s_branch L_qready")
        for n in range(16 + W2, 32):
            a(f"ds_read_b32 v{VT}, v{VT+1} offset:{QF}")
            a(f"s_mov_b32 {SREM}, {32 - n}")
            a(f"s_waitcnt vmcnt({W2-1})")
            a("s_waitcnt lgkmcnt(0)")
            a(f"v_readfirstlane_b32 s10, v{VT}")
            a("s_cmp_lg_u32 s10, 0")
            a(f"s_cbranch_scc1 L_qready")
            issue(n)
        a(f"s_mov_b32 {SREM}, 0")
        a(f"s_waitcnt vmcnt({16 if False else min(W2, 16)})")
        lds_spin(QF, 1, VT + 1, VT, sleep=1)
    a.label("L_qready")
    if opts.qprio >= 0:
        a(f"s_setprio {opts.qprio}")
    a(f"v_and_b32 v{VT}, 15, v0")
    a(f"v_lshlrev_b32 v{VT}, 4, v{VT}")
    a(f"ds_read_b128 v[{VQ}:{VQ+3}], v{VT} offset:{L_Q}")
    a(f"ds_read_b64 v[{VS}:{VS+1}], v{VT+1} offset:{L_TAG}")
    stamp(1)
    a("s_waitcnt lgkmcnt(0)")
    a(f"v_readfirstlane_b32 s68, v{VS}")
    a(f"v_readfirstlane_b32 s69, v{VS+1}")
    _a = a
    class _F:
        def __call__(self, t):
            if "s" in opts.abl and t.startswith("v_") and not t.startswith("v_readlane"):
                return
            _a(t)
        def __getattr__(self, n):
            return getattr(_a, n)
    a = _F()
    for grp in range(4):
        if FLAT and not AB:
            a(f"s_waitcnt vmcnt({16 + 12 - 4*grp})")
        for d in range(4):
            for i in range(4*grp, 4*grp+4):
                src2 = "0" if d == 0 else f"v{VS+i}"
                a(f"v_dot2_f32_bf16 v{VS+i}, v{VK+4*i+d}, v{VQ+d}, {src2}")
    slot()
    for ctrl in ["quad_perm:[1,0,3,2]", "quad_perm:[2,3,0,1]", "row_half_mirror", "row_mirror"]:
        for i in range(16):
            a(f"v_add_f32_dpp v{VS+i}, v{VS+i}, v{VS+i} {ctrl} row_mask:0xf bank_mask:0xf")
    slot()
    a(f"s_mov_b32 s14, 0x{f32bits(128 ** -0.5):08x}")
    a("s_mov_b32 s15, 0xffff0000")
    for rnd in range(2):
        for p in range(8):
            a(f"v_cvt_pk_bf16_f32 v{VK+p}, v{VS+2*p}, v{VS+2*p+1}")
        for p in range(8):
            a(f"v_lshlrev_b32 v{VS+2*p}, 16, v{VK+p}")
            a(f"v_and_b32 v{VS+2*p+1}, s15, v{VK+p}")
        if rnd == 0:
            for i in range(16):
                a(f"v_mul_f32 v{VS+i}, s14, v{VS+i}")
    m = VT
    a(f"v_max3_f32 v{m}, v{VS}, v{VS+1}, v{VS+2}")
    for i in range(3, 15, 2):
        a(f"v_max3_f32 v{m}, v{m}, v{VS+i}, v{VS+i+1}")
    a(f"v_max_f32 v{m}, v{m}, v{VS+15}")
    for r in range(4):
        a(f"v_readlane_b32 s{60+r}, v{m}, {16*r}")
    a(f"v_mov_b32 v{m}, s60")
    a(f"v_max_f32 v{m}, s61, v{m}")
    a(f"v_max_f32 v{m}, s62, v{m}")
    a(f"v_max_f32 v{m}, s63, v{m}")
    slot()
    a(f"s_mov_b32 s14, 0x{f32bits(LOG2E):08x}")
    for i in range(16):
        a(f"v_sub_f32 v{VS+i}, v{VS+i}, v{m}")
    for i in range(16):
        a(f"v_mul_f32 v{VS+i}, s14, v{VS+i}")
    for i in range(16):
        a(f"v_exp_f32 v{VS+i}, v{VS+i}")
    PLO, PHI = VK, VK + 16
    a(f"v_mov_b32 v{VXV}, v{XV}")
    for i in range(16):
        a(f"v_cvt_pk_bf16_f32 v{PLO+i}, v{VS+i}, 0")
    for i in range(16):
        a(f"v_lshlrev_b32 v{PHI+i}, 16, v{PLO+i}")
    lsum = VT + 1
    a(f"v_add_f32 v{lsum}, v{VS}, v{VS+1}")
    for i in range(2, 16):
        a(f"v_add_f32 v{lsum}, v{lsum}, v{VS+i}")
    for r in range(4):
        a(f"v_readlane_b32 s{60+r}, v{lsum}, {16*r}")
    a(f"v_mov_b32 v{lsum}, s60")
    a(f"v_add_f32 v{lsum}, s61, v{lsum}")
    a(f"v_add_f32 v{lsum}, s62, v{lsum}")
    a(f"v_add_f32 v{lsum}, s63, v{lsum}")
    a = _a
    VZ = VQ
    a(f"s_lshl_b32 s10, s3, 2")
    a(f"v_mov_b32 v{VS}, s10")
    a(f"v_mov_b32 v{VZ}, 0")
    a(f"ds_write_b32 v{VS}, v{m} offset:{L_ML}")
    a(f"ds_write_b32 v{VS}, v{lsum} offset:{L_ML+32}")
    lds_arrive(C2, VZ, VS + 1)
    a(f"v_and_b32 v{VS}, 15, v0")
    a(f"v_lshlrev_b32 v{VS}, 5, v{VS}")
    a(f"v_lshrrev_b32 v{VS+1}, 4, v0")
    a(f"v_lshl_add_u32 v{VS}, v{VS+1}, 3, v{VS}")
    a(f"s_lshl_b32 s10, s3, 9")
    a(f"v_add_u32 v{VS}, s10, v{VS}")
    VCA, VPA, GO = VS + 2, VS + 3, VS + 4
    a(f"v_lshlrev_b32 v{VCA}, 3, v0")
    a("s_lshl_b32 s10, s6, 10")
    a(f"s_add_u32 s10, s10, {WS_H2}")
    a(f"v_lshl_add_u32 v{VPA}, v0, 4, s10")
    set_tag(GO)
    order = list(range(W2)) + list(range(15, W2 - 1, -1))
    if FLAT:
        order = list(range(16))
    dstamp(6)
    if AB and opts.bpos >= 3:
        late_burst()
    if FLAT:
        slot_i[0] = 16
    for t in range(16):
        i = order[t]
        while slot_i[0] <= t:
            slot()
        if FLAT:
            a(f"s_waitcnt vmcnt({15 - t})")
        if t == 15:
            dstamp(7)
        if t == opts.hpos:
            lds_arrive(C6, VZ, VS + 8)
        if t == opts.fpos:
            stamp(3)
            lds_spin(FF, 1, VZ, VS + 8, sleep=1)
            a(f"ds_read_b128 v[{VF}:{VF+3}], v{VZ} offset:{L_F}")
            a(f"ds_read_b128 v[{VF+4}:{VF+7}], v{VZ} offset:{L_F+16}")
            a("s_setprio 3")
        for d in range(4):
            s2a = "0" if t == 0 else f"v{VACC+2*d}"
            s2b = "0" if t == 0 else f"v{VACC+2*d+1}"
            a(f"v_dot2_f32_bf16 v{VACC+2*d}, v{VV+4*i+d}, v{PLO+i}, {s2a}")
            a(f"v_dot2_f32_bf16 v{VACC+2*d+1}, v{VV+4*i+d}, v{PHI+i}, {s2b}")
    assert slot_i[0] == 16
    for e in range(4):
        a(f"v_permlane32_swap_b32 v{VACC+e}, v{VACC+e+4}")
    for e in range(4):
        a(f"v_add_f32 v{VACC+e}, v{VACC+e}, v{VACC+e+4}")
    a(f"v_permlane16_swap_b32 v{VACC}, v{VACC+2}")
    a(f"v_permlane16_swap_b32 v{VACC+1}, v{VACC+3}")
    a(f"v_add_f32 v{VACC}, v{VACC}, v{VACC+2}")
    a(f"v_add_f32 v{VACC+1}, v{VACC+1}, v{VACC+3}")
    a(f"ds_write_b64 v{VS}, v[{VACC}:{VACC+1}] offset:{L_OP}")
    lds_arrive(C3, VZ, VS + 8, rtn=True)
    stamp(2)
    a("s_cmp_eq_u32 s10, 7")
    a("s_cbranch_scc0 L_nocomb")
    OPR = VK
    for w in range(8):
        a(f"ds_read_b64 v[{OPR+2*w}:{OPR+2*w+1}], v{VCA} offset:{L_OP + w*512}")
    for w in range(8):
        a(f"s_waitcnt lgkmcnt({7-w})")
        for e in range(2):
            if w == 0:
                a(f"v_mul_f32 v{GO+e}, v{VF}, v{OPR+e}")
            else:
                a(f"v_fma_f32 v{GO+e}, v{VF+w}, v{OPR+2*w+e}, v{GO+e}")
    if opts.fast:
        a(f"s_mov_b32 s10, {FOFF}")
        a(f"buffer_store_dwordx4 v[{GO}:{GO+3}], v{VPA}, s[56:59], s10 offen")
    a(f"buffer_store_dwordx4 v[{GO}:{GO+3}], v{VPA}, s[56:59], 0 offen sc1")
    stamp(4)
    a.label("L_nocomb")
    if "t" in opts.abl:
        a("s_branch L_sfin")
    a("s_cmp_eq_u32 s13, 0")
    a("s_cbranch_scc1 L_sfin")
    a("s_cmp_ge_u32 s4, 10")
    a("s_cselect_b32 s9, 70, 0")
    a("s_add_u32 s9, s9, s4")
    a("s_mul_i32 s10, s5, 10")
    a("s_add_u32 s9, s9, s10")
    a("s_lshl_b32 s9, s9, 1")
    a("s_add_u32 s9, s9, s3")
    a("s_lshl_b32 s9, s9, 10")
    a(f"s_add_u32 s9, s9, {WS_H3A}")
    FA, FO = VS, VS + 1
    FA1 = FA
    a(f"v_lshl_add_u32 v{FA}, v0, 4, s9")
    a(f"s_mov_b32 s11, {WS_H3B - WS_H3A}")
    if opts.y1lay:
        FA1 = VS + 3
        a("s_lshl_b32 s9, s4, 6")
        a("s_mul_i32 s10, s5, 1280")
        a("s_add_u32 s9, s9, s10")
        a("s_lshl_b32 s10, s3, 5")
        a("s_add_u32 s9, s9, s10")
        a(f"s_add_u32 s9, s9, {WS_H3A}")
        a(f"v_lshrrev_b32 v{FA1}, 1, v0")
        a(f"v_mul_u32_u24 v{FA1}, 10240, v{FA1}")
        a(f"v_and_b32 v{VS+2}, 1, v0")
        a(f"v_lshl_add_u32 v{FA1}, v{VS+2}, 4, v{FA1}")
        a(f"v_add_u32 v{FA1}, s9, v{FA1}")
    P = VK

    def reduce_duo(r0):
        for ctrl in ["quad_perm:[2,3,0,1]", "row_ror:4", "row_ror:8"]:
            a(f"v_add_f32_dpp v{r0}, v{r0}, v{r0} {ctrl} row_mask:0xf bank_mask:0xf")
            a(f"v_add_f32_dpp v{r0+1}, v{r0+1}, v{r0+1} {ctrl} row_mask:0xf bank_mask:0xf")
        a(f"v_permlane32_swap_b32 v{r0}, v{r0+1}")
        a(f"v_add_f32 v{r0}, v{r0}, v{r0+1}")
        a(f"v_mov_b32 v{r0+1}, v{r0}")
        a(f"v_permlane16_swap_b32 v{r0}, v{r0+1}")
        a(f"v_add_f32 v{r0}, v{r0}, v{r0+1}")

    RY2, RY1 = P + 4, P + 6
    pipelined_poll("pollY2", 1, [[P]],
                   lambda k: a(f"buffer_load_dwordx4 v[{P}:{P+3}], v{FA1 if opts.y2lay else FA}, s[56:59], s11 offen sc1"), 0,
                   [RY2, RY2 + 1], slow=(1, 8))
    n3 = opts.npoll3
    Y1S = [[P + 8 + 4*k] for k in range(n3)]
    a("s_cmp_ge_u32 s4, 10")
    a("s_cselect_b32 s14, 560, 0")
    a("s_lshl_b32 s10, s4, 3")
    a("s_add_u32 s14, s14, s10")
    a("s_mul_i32 s10, s5, 80")
    a("s_add_u32 s14, s14, s10")
    a("s_lshl_b32 s10, s3, 2")
    a("s_add_u32 s14, s14, s10")
    a(f"v_and_b32 v{FO}, 1, v0")
    a(f"v_lshlrev_b32 v{FO}, 1, v{FO}")
    a(f"v_lshrrev_b32 v{FO+1}, 5, v0")
    a(f"v_add3_u32 v{FO}, v{FO}, v{FO+1}, s14")
    a(f"v_lshlrev_b32 v{FO}, 1, v{FO}")
    reduce_duo(RY2)
    Y2 = RY2
    T7 = P
    a(f"v_cvt_pk_bf16_f32 v{Y2}, v{Y2}, 0")
    a(f"v_lshlrev_b32 v{Y2}, 16, v{Y2}")
    a(f"s_mov_b32 s14, 0x{f32bits(-LOG2E):08x}")
    a(f"v_mul_f32 v{T7}, s14, v{Y2}")
    a(f"v_exp_f32 v{T7}, v{T7}")
    a(f"v_add_f32 v{T7}, 1.0, v{T7}")
    a(f"v_rcp_f32 v{T7}, v{T7}")
    a(f"v_mul_f32 v{Y2}, v{Y2}, v{T7}")
    a(f"v_cvt_pk_bf16_f32 v{Y2}, v{Y2}, 0")
    a(f"v_lshlrev_b32 v{Y2}, 16, v{Y2}")
    a(f"v_lshlrev_b32 v{VXV}, 16, v{VXV}")
    if not opts.dbgst:
        stamp(5)
    lds_spin(opts.ygate[0], opts.ygate[1], VZ, VS + 8, sleep=1)
    pipelined_poll("pollY1", n3, Y1S,
                   lambda k: a(f"buffer_load_dwordx4 v[{Y1S[k][0]}:{Y1S[k][0]+3}], v{FA1}, s[56:59], 0 offen sc1"), opts.stag3,
                   [RY1, RY1 + 1], slow=(tuple(int(x) for x in opts.slow3.split(",")) if opts.slow3 else 0))
    if not opts.dbgst:
        stamp(6)
    Y1 = RY1
    reduce_duo(Y1)
    a(f"v_cvt_pk_bf16_f32 v{Y1}, v{Y1}, 0")
    a(f"v_lshlrev_b32 v{Y1}, 16, v{Y1}")
    a(f"v_mul_f32 v{Y1}, v{Y1}, v{Y2}")
    a(f"v_cvt_pk_bf16_f32 v{Y1}, v{Y1}, 0")
    a(f"v_lshlrev_b32 v{Y1}, 16, v{Y1}")
    a(f"v_add_f32 v{Y1}, v{VXV}, v{Y1}")
    a(f"v_cvt_pk_bf16_f32 v{Y1}, v{Y1}, 0")
    a("s_mov_b32 s10, 3")
    a("s_mov_b32 s11, 3")
    a("s_mov_b64 exec, s[10:11]")
    a(f"buffer_store_short v{Y1}, v{FO}, s[64:67], 0 offen")
    a("s_or_b32 s10, s6, s3")
    a("s_cmp_lg_u32 s10, 0")
    a("s_cbranch_scc1 L_noep")
    a("s_mov_b64 exec, 1")
    a(f"v_mov_b32 v{VS+2}, {WS_EPOCH}")
    a(f"v_mov_b32 v{VS+3}, s68")
    a(f"buffer_store_dword v{VS+3}, v{VS+2}, s[56:59], 0 offen sc1")
    a.label("L_noep")
    a("s_mov_b64 exec, -1")
    if not opts.dbgst:
        stamp(7)
    else:
        stamp(4)
    a.label("L_sfin")
    a("s_add_u32 s3, s3, 4")
    a("s_branch L_fin")

    a.label("L_aux")
    a.c("---- aux wave: a = s3 (0..3) ----")
    a("s_setprio 3")
    XR = 20
    VE = 30
    WQ = 32
    W1 = 52
    TMP = 64
    ACC = 96
    W2 = 120
    WO = 136
    LO2 = 96
    AY = 104
    BOP = 32
    a("s_cmp_lg_u32 s3, 0")
    a("s_cbranch_scc1 L_noclr")
    for r in range(4, 8):
        a(f"v_mov_b32 v{r}, 0")
    a(f"ds_write_b128 v4, v[4:7] offset:{L_SYNC}")
    a(f"ds_write_b128 v4, v[4:7] offset:{L_SYNC+16}")
    a(f"ds_write_b128 v4, v[4:7] offset:{L_SYNC+32}")
    a.label("L_noclr")
    a(f"v_lshlrev_b32 v2, 4, v0")
    a(f"v_lshlrev_b32 v3, 2, v0")
    a(f"v_mov_b32 v{VE}, {WS_EPOCH}")
    a("s_mul_i32 s9, s5, 80")
    a("s_mul_i32 s10, s3, 20")
    a("s_add_u32 s9, s9, s10")
    a(f"v_lshrrev_b32 v10, 4, v0")
    a(f"v_and_b32 v11, 15, v0")
    RG, C = 10, 11
    a(f"v_add_u32 v{TMP+10}, s9, v{RG}")
    a(f"v_lshlrev_b32 v{TMP+11}, 1, v{TMP+10}")
    a(f"v_lshlrev_b32 v{TMP+1}, 13, v{TMP+10}")
    a(f"v_lshl_add_u32 v{TMP+1}, v{C}, 4, v{TMP+1}")
    a("s_lshl_b32 s10, s4, 8")
    a(f"v_add_u32 v{TMP+1}, s10, v{TMP+1}")
    a(f"s_cmp_ge_u32 s4, {0 if 'f' in opts.abl else 27}")
    a(f"s_cselect_b32 s13, {OOB}, 0")
    if 'w' in opts.abl:
        a(f"v_add_u32 v{TMP+1}, {OOB}, v{TMP+1}")
    if 'B' in opts.abl:
        a(f"s_cmp_lt_u32 s2, {opts.bhi*64}")
        a(f"s_cselect_b32 s10, {OOB}, 0")
        a("s_bitcmp1_b32 s2, 2")
        a("s_cselect_b32 s10, s10, 0")
        a(f"v_add_u32 v{TMP+1}, s10, v{TMP+1}")
    a("s_movk_i32 s10, 3456")
    a(f"v_mul_lo_u32 v{TMP+2}, v{TMP+10}, s10")
    a(f"v_lshl_add_u32 v{TMP+2}, v{C}, 3, v{TMP+2}")
    a("s_lshl_b32 s10, s4, 7")
    a("s_add_u32 s10, s10, s13")
    a(f"v_add_u32 v{TMP+2}, s10, v{TMP+2}")
    for i in range(1, 5):
        a(f"s_mov_b32 s{88+i}, {i*32768}")
        if i < 4:
            a(f"s_mov_b32 s{92+i}, {i*13824}")
    a(f"s_mov_b32 s88, {4*13824}")
    a("s_waitcnt lgkmcnt(0)")

    def srd(r, lo, size):
        a(f"s_mov_b32 s{r}, s{lo}")
        a(f"s_mov_b32 s{r+1}, s{lo+1}")
        a(f"s_mov_b32 s{r+2}, {size}")
        a(f"s_mov_b32 s{r+3}, 0x00020000")
    a("s_mov_b32 s56, s36")
    a("s_mov_b32 s57, s37")
    srd(40, 16, 2560)
    a(f"buffer_load_dword v{VE}, v{VE}, s[56:59], 0 offen sc1")
    a(f"buffer_load_dwordx4 v[4:7], v2, s[40:43], 0 offen")
    a(f"buffer_load_dword v8, v3, s[40:43], 0 offen offset:1024")
    a(f"buffer_load_dwordx4 v[12:15], v2, s[40:43], 0 offen offset:1280")
    a(f"buffer_load_dword v16, v3, s[40:43], 0 offen offset:2304")
    srd(44, 22, 5242880)
    for i in range(5):
        so = "0" if i == 0 else f"s{88+i}"
        a(f"buffer_load_dwordx4 v[{WQ+4*i}:{WQ+4*i+3}], v{TMP+1}, s[44:47], {so} offen {wpol}")
    if 'B' in opts.abl:
        a("s_cmp_eq_u32 s8, 1")
        a(f"s_cmp_lt_u32 s2, {opts.bhi*64}")
        a("s_cbranch_scc0 L_nob")
        a("s_bitcmp1_b32 s2, 2")
        a("s_cbranch_scc1 L_nob")
        a(f"v_add_u32 v{TMP+7}, 1024, v{TMP+1}")
        for i in range(5):
            so = "0" if i == 0 else f"s{88+i}"
            a(f"buffer_load_dwordx4 v[{ACC+4*i}:{ACC+4*i+3}], v{TMP+7}, s[44:47], {so} offen {wpol}")
        a.label("L_nob")
    srd(48, 28, 2211840)
    for i in range(5):
        so = "0" if i == 0 else (f"s{92+i}" if i < 4 else "s88")
        a(f"buffer_load_dwordx2 v[{W1+2*i}:{W1+2*i+1}], v{TMP+2}, s[48:51], {so} offen {wpol}")
    for i in range(5):
        for b in range(2):
            a(f"buffer_load_ushort v{XR+2*i+b}, v{TMP+11}, s[40:43], 0 offen offset:{b*1280 + i*8}")
    a("s_waitcnt lgkmcnt(0)")
    a("s_barrier")
    a(f"v_mov_b32 v{TMP+5}, 0")
    a(f"v_mov_b32 v{TMP+6}, {OOB}")
    a(f"v_cmp_lt_u32 vcc, 9, v{C}")
    a(f"v_cndmask_b32 v{TMP+5}, v{TMP+5}, v{TMP+6}, vcc")
    a(f"v_lshl_add_u32 v{TMP+5}, v{C}, 4, v{TMP+5}")
    a("s_mul_i32 s10, s5, 160")
    a(f"v_add_u32 v{TMP+5}, s10, v{TMP+5}")
    a("s_movk_i32 s14, 1280")
    a("s_lshl_b32 s10, s4, 6")
    a("s_lshl_b32 s11, s3, 4")
    a("s_add_u32 s10, s10, s11")
    a(f"v_lshl_add_u32 v{TMP+3}, v{RG}, 2, s10")
    a(f"v_mul_lo_u32 v{TMP+3}, v{TMP+3}, s14")
    a(f"v_add_u32 v{TMP+3}, v{TMP+5}, v{TMP+3}")
    a(f"v_add_u32 v{TMP+3}, s13, v{TMP+3}")
    a("s_lshl_b32 s10, s4, 7")
    a("s_lshl_b32 s11, s3, 5")
    a("s_add_u32 s10, s10, s11")
    a(f"v_lshl_add_u32 v{TMP+4}, v{RG}, 3, s10")
    a(f"v_mul_lo_u32 v{TMP+4}, v{TMP+4}, s14")
    a(f"v_add_u32 v{TMP+4}, v{TMP+5}, v{TMP+4}")
    if 'o' in opts.abl:
        a(f"v_add_u32 v{TMP+4}, {OOB}, v{TMP+4}")
    a("s_movk_i32 s12, 5120")
    srd(52, 30, 2211840)
    for i in range(4):
        a(f"buffer_load_dwordx4 v[{W2+4*i}:{W2+4*i+3}], v{TMP+3}, s[52:55], 0 offen offset:{i*1280} {wpol}")
    srd(60, 24, 5242880)
    for i in range(8):
        so = "0" if i < 4 else "s12"
        a(f"buffer_load_dwordx4 v[{WO+4*i}:{WO+4*i+3}], v{TMP+4}, s[60:63], {so} offen offset:{(i&3)*1280} {wpol}")

    a("s_waitcnt vmcnt(32)")
    a(f"v_readfirstlane_b32 s68, v{VE}")
    a("s_mov_b32 s15, 0xffff0000")
    a("s_add_u32 s68, s68, 1")
    a("s_xor_b32 s69, s68, 0x9e3779b9")
    F = TMP + 12
    srcs = [[4, 5, 6, 7, 8], [12, 13, 14, 15, 16]]
    for b in range(2):
        for d in range(5):
            a(f"v_lshlrev_b32 v{F+10*b+2*d}, 16, v{srcs[b][d]}")
            a(f"v_and_b32 v{F+10*b+2*d+1}, s15, v{srcs[b][d]}")
    S0, S1, Q0, Q1, t0, t1 = 4, 5, 6, 7, 8, 9

    def wave_sum2(r0, r1, sbase):
        for ctrl in ["quad_perm:[1,0,3,2]", "quad_perm:[2,3,0,1]", "row_half_mirror", "row_mirror"]:
            a(f"v_add_f32_dpp v{r0}, v{r0}, v{r0} {ctrl} row_mask:0xf bank_mask:0xf")
            a(f"v_add_f32_dpp v{r1}, v{r1}, v{r1} {ctrl} row_mask:0xf bank_mask:0xf")
        for r in range(4):
            a(f"v_readlane_b32 s{sbase+r}, v{r0}, {16*r}")
            a(f"v_readlane_b32 s{sbase+4+r}, v{r1}, {16*r}")
        a(f"v_mov_b32 v{r0}, s{sbase}")
        a(f"v_mov_b32 v{r1}, s{sbase+4}")
        for r in range(1, 4):
            a(f"v_add_f32 v{r0}, s{sbase+r}, v{r0}")
            a(f"v_add_f32 v{r1}, s{sbase+4+r}, v{r1}")

    for e in range(1, 10):
        for b, S in ((0, S0), (1, S1)):
            if e == 1:
                a(f"v_add_f32 v{S}, v{F+10*b}, v{F+10*b+1}")
            else:
                a(f"v_add_f32 v{S}, v{S}, v{F+10*b+e}")
    wave_sum2(S0, S1, 88)
    a(f"s_mov_b32 s14, 0x{f32bits(1.0/640):08x}")
    a(f"v_mul_f32 v{S0}, s14, v{S0}")
    a(f"v_mul_f32 v{S1}, s14, v{S1}")
    for b, S in ((0, S0), (1, S1)):
        for e in range(10):
            a(f"v_sub_f32 v{F+10*b+e}, v{F+10*b+e}, v{S}")
    for e in range(10):
        for b, Q in ((0, Q0), (1, Q1)):
            if e == 0:
                a(f"v_mul_f32 v{Q}, v{F+10*b}, v{F+10*b}")
            else:
                a(f"v_fma_f32 v{Q}, v{F+10*b+e}, v{F+10*b+e}, v{Q}")
    wave_sum2(Q0, Q1, 88)
    a(f"v_mul_f32 v{Q0}, s14, v{Q0}")
    a(f"v_mul_f32 v{Q1}, s14, v{Q1}")
    a(f"v_cvt_pk_bf16_f32 v{t0}, v{S0}, v{S1}")
    a(f"v_cvt_pk_bf16_f32 v{t1}, v{Q0}, v{Q1}")
    a(f"v_lshlrev_b32 v{S0}, 16, v{t0}")
    a(f"v_and_b32 v{S1}, s15, v{t0}")
    a(f"v_lshlrev_b32 v{Q0}, 16, v{t1}")
    a(f"v_and_b32 v{Q1}, s15, v{t1}")
    a(f"s_mov_b32 s14, 0x{f32bits(1e-5):08x}")
    a(f"v_add_f32 v{Q0}, s14, v{Q0}")
    a(f"v_add_f32 v{Q1}, s14, v{Q1}")
    a(f"v_cvt_pk_bf16_f32 v{t1}, v{Q0}, v{Q1}")
    a(f"v_lshlrev_b32 v{Q0}, 16, v{t1}")
    a(f"v_and_b32 v{Q1}, s15, v{t1}")
    a(f"v_sqrt_f32 v{Q0}, v{Q0}")
    a(f"v_sqrt_f32 v{Q1}, v{Q1}")
    a(f"v_cvt_pk_bf16_f32 v{t1}, v{Q0}, v{Q1}")
    a(f"v_lshlrev_b32 v{Q0}, 16, v{t1}")
    a(f"v_and_b32 v{Q1}, s15, v{t1}")
    a(f"v_rcp_f32 v{Q0}, v{Q0}")
    a(f"v_rcp_f32 v{Q1}, v{Q1}")
    XH = F
    MS = [S0, S1]; RS = [Q0, Q1]
    a("s_waitcnt vmcnt(12)")

    def each(fn):
        for i in range(5):
            for b in range(2):
                fn(XR + 2*i + b, b, i)
    each(lambda r, b, i: a(f"v_lshlrev_b32 v{r}, 16, v{r}"))
    each(lambda r, b, i: a(f"v_sub_f32 v{r}, v{r}, v{MS[b]}"))
    each(lambda r, b, i: a(f"v_cvt_pk_bf16_f32 v{r}, v{r}, 0"))
    each(lambda r, b, i: a(f"v_lshlrev_b32 v{r}, 16, v{r}"))
    each(lambda r, b, i: a(f"v_mul_f32 v{r}, v{r}, v{RS[b]}"))
    each(lambda r, b, i: a(f"v_cvt_pk_bf16_f32 v{r}, v{r}, 0"))
    each(lambda r, b, i: a(f"v_lshlrev_b32 v{XH+2*i+b}, 16, v{r}"))
    AQ = ACC; AH = ACC + 16
    for i in range(5):
        for b in range(2):
            for d in range(4):
                for hl in range(2):
                    acc = AQ + 8*b + 2*d + hl
                    xs = (XR if hl == 0 else XH) + 2*i + b
                    s2 = "0" if i == 0 else f"v{acc}"
                    a(f"v_dot2_f32_bf16 v{acc}, v{WQ+4*i+d}, v{xs}, {s2}")
    for i in range(5):
        for b in range(2):
            for d in range(2):
                for hl in range(2):
                    acc = AH + 4*b + 2*d + hl
                    xs = (XR if hl == 0 else XH) + 2*i + b
                    s2 = "0" if i == 0 else f"v{acc}"
                    a(f"v_dot2_f32_bf16 v{acc}, v{W1+2*i+d}, v{xs}, {s2}")

    def reduce16(base):
        for k in range(8):
            a(f"v_permlane32_swap_b32 v{base+k}, v{base+k+8}")
        for k in range(8):
            a(f"v_add_f32 v{base+k}, v{base+k}, v{base+k+8}")
        for k in range(4):
            a(f"v_permlane16_swap_b32 v{base+k}, v{base+k+4}")
        for k in range(4):
            a(f"v_add_f32 v{base+k}, v{base+k}, v{base+k+4}")

    reduce16(AQ)
    for k in range(4):
        a(f"v_permlane32_swap_b32 v{AH+k}, v{AH+k+4}")
    for k in range(4):
        a(f"v_add_f32 v{AH+k}, v{AH+k}, v{AH+k+4}")
    for k in range(2):
        a(f"v_permlane16_swap_b32 v{AH+k}, v{AH+k+2}")
    for k in range(2):
        a(f"v_add_f32 v{AH+k}, v{AH+k}, v{AH+k+2}")
    a(f"v_lshrrev_b32 v2, 1, v{RG}")
    a(f"v_and_b32 v3, 1, v{RG}")
    a(f"v_lshlrev_b32 v{TMP}, 9, v2")
    a(f"v_lshl_add_u32 v{TMP}, v{C}, 5, v{TMP}")
    a(f"v_lshl_add_u32 v{TMP}, v3, 4, v{TMP}")
    a("s_lshl_b32 s10, s3, 10")
    a(f"v_add_u32 v{TMP}, s10, v{TMP}")
    a(f"ds_write_b128 v{TMP}, v[{AQ}:{AQ+3}] offset:{L_QP}")
    a(f"v_lshlrev_b32 v{TMP+1}, 8, v2")
    a(f"v_lshl_add_u32 v{TMP+1}, v{C}, 4, v{TMP+1}")
    a(f"v_lshl_add_u32 v{TMP+1}, v3, 3, v{TMP+1}")
    a("s_lshl_b32 s10, s3, 9")
    a(f"v_add_u32 v{TMP+1}, s10, v{TMP+1}")
    a(f"ds_write_b64 v{TMP+1}, v[{AH}:{AH+1}] offset:{L_HP}")
    VY = 31
    a("s_movk_i32 s10, 320")
    a(f"v_mul_u32_u24 v{VY}, s10, v2")
    a(f"v_lshl_add_u32 v{VY}, v{C}, 5, v{VY}")
    a(f"v_lshl_add_u32 v{VY}, v3, 4, v{VY}")
    a("s_mul_i32 s10, s3, 640")
    a(f"v_add_u32 v{VY}, s10, v{VY}")
    VZ = 12
    a(f"v_mov_b32 v{VZ}, 0")
    lds_arrive(C1, VZ, 3)
    lds_spin(C1, 4, VZ, 3)
    stamp(1)

    G = TMP

    def check_tags(regs, lbl_retry_cnt, lbl_loop, lbl_done):
        tags_bad(regs)
        a(f"s_cbranch_scc1 {lbl_done}")
        a(f"s_sub_u32 {lbl_retry_cnt}, {lbl_retry_cnt}, 1")
        a(f"s_cmp_eq_u32 {lbl_retry_cnt}, 0")
        a(f"s_cbranch_scc0 {lbl_loop}")

    def preperm():
        a("s_mov_b32 s10, 0x05040100")
        a("s_mov_b32 s11, 0x07060302")
        for q in range(2):
            for d in range(4):
                r0, r1 = W2 + 8*q + d, W2 + 8*q + 4 + d
                a(f"v_perm_b32 v{LO2+4*q+d}, v{r1}, v{r0}, s10")
                a(f"v_perm_b32 v{r1}, v{r1}, v{r0}, s11")
        for e in range(8):
            for t in range(4):
                r0, r1 = WO + 8*t + (e >> 1), WO + 8*t + 4 + (e >> 1)
                a(f"v_perm_b32 v{BOP+4*e+t}, v{r1}, v{r0}, s{10 + (e & 1)}")

    a("s_cmp_eq_u32 s3, 3")
    a("s_cbranch_scc1 L_h1_gather")
    if 'F' in opts.abl:
        a("s_cmp_eq_u32 s3, 2")
        a("s_cbranch_scc0 L_now2skip")
        a("s_waitcnt vmcnt(0)")
        preperm()
        a("s_branch L_b3")
        a.label("L_now2skip")
    a(f"v_lshlrev_b32 v2, 3, v0")
    a("s_cmp_eq_u32 s3, 2")
    a("s_cbranch_scc1 L_h1_pubh")
    a("s_lshl_b32 s10, s3, 9")
    a(f"v_add_u32 v2, s10, v2")
    for w in range(4):
        a(f"ds_read_b64 v[{G+4+2*w}:{G+5+2*w}], v2 offset:{L_QP + w*1024}")
    a("s_lshl_b32 s11, s3, 10")
    a("s_branch L_h1_pub")
    a.label("L_h1_pubh")
    for w in range(4):
        a(f"ds_read_b64 v[{G+4+2*w}:{G+5+2*w}], v2 offset:{L_HP + w*512}")
    a("s_movk_i32 s11, 2048")
    a.label("L_h1_pub")
    a("s_mul_i32 s10, s6, 3072")
    a("s_add_u32 s10, s10, s11")
    a(f"v_lshl_add_u32 v3, v0, 4, s10")
    set_tag(G)
    a("s_waitcnt lgkmcnt(0)")
    a(f"v_add_f32 v{G}, v{G+4}, v{G+6}")
    a(f"v_add_f32 v{G+1}, v{G+5}, v{G+7}")
    a(f"v_add_f32 v{G+8}, v{G+8}, v{G+10}")
    a(f"v_add_f32 v{G+9}, v{G+9}, v{G+11}")
    a(f"v_add_f32 v{G}, v{G}, v{G+8}")
    a(f"v_add_f32 v{G+1}, v{G+1}, v{G+9}")
    if opts.h1f:
        a(f"s_mov_b32 s10, {FOFF}")
        a(f"buffer_store_dwordx4 v[{G}:{G+3}], v3, s[56:59], s10 offen")
    a(f"buffer_store_dwordx4 v[{G}:{G+3}], v3, s[56:59], 0 offen sc1")
    a(f"s_mul_i32 s10, s4, {GSTR}")
    a("s_lshl_b32 s11, s3, 6")
    a("s_add_u32 s10, s10, s11")
    a("s_lshl_b32 s11, s5, 3")
    a("s_add_u32 s10, s10, s11")
    a(f"s_add_u32 s10, s10, {WS_H1F}")
    a("v_mov_b32 v3, s10")
    a("s_mov_b64 exec, 1")
    a(f"buffer_store_dwordx2 v[{G+2}:{G+3}], v3, s[56:59], 0 offen sc1")
    a("s_mov_b64 exec, -1")
    a("s_cmp_eq_u32 s3, 2")
    a("s_cbranch_scc1 L_h1_gather")
    a(f"s_waitcnt vmcnt({3 if opts.h1f else 2})")
    preperm()
    if opts.fast:
        a("s_cmp_lg_u32 s3, 0")
        a("s_cbranch_scc1 L_nopre")
        for r in range(4):
            a(f"v_mov_b32 v{G+r}, 0")
        a("s_lshl_b32 s10, s6, 10")
        a(f"s_add_u32 s10, s10, {WS_H2 + FOFF}")
        a(f"v_lshl_add_u32 v3, v0, 4, s10")
        a(f"buffer_store_dwordx4 v[{G}:{G+3}], v3, s[56:59], 0 offen")
        a(f"s_mul_i32 s10, s4, {GSTR}")
        a("s_lshl_b32 s11, s5, 7")
        a("s_add_u32 s10, s10, s11")
        a(f"s_add_u32 s10, s10, {WS_ML + FOFF}")
        a(f"v_lshl_add_u32 v2, v0, 4, s10")
        a("s_mov_b64 exec, 0xff")
        a(f"buffer_store_dwordx4 v[{G}:{G+3}], v2, s[56:59], 0 offen")
        a("s_mov_b64 exec, -1")
        a.label("L_nopre")
    stamp(2)
    a("s_branch L_b3")

    a.label("L_h1_gather")
    a("s_lshl_b32 s10, s7, 10")
    a("s_cmp_eq_u32 s3, 2")
    a("s_cselect_b32 s10, 2048, s10")
    a("s_mul_i32 s11, s4, 24576")
    a("s_add_u32 s10, s10, s11")
    a(f"v_lshl_add_u32 v3, v0, 4, s10")
    for jj in range(1, 8):
        a(f"s_mov_b32 s{88+jj}, {jj*3072}")
    a("s_cmp_eq_u32 s3, 2")
    a("s_cbranch_scc1 L_pp2")
    a("s_waitcnt vmcnt(0)")
    a("s_branch L_pp")
    a.label("L_pp2")
    a(f"s_waitcnt vmcnt({3 if opts.h1f else 2})")
    a.label("L_pp")
    preperm()
    a("s_cmp_eq_u32 s3, 2")
    a("s_cselect_b32 s10, 2, s7")
    a("s_lshl_b32 s10, s10, 6")
    a(f"s_mul_i32 s11, s4, {GSTR}")
    a("s_add_u32 s10, s10, s11")
    a(f"s_add_u32 s10, s10, {WS_H1F}")
    if "h" not in opts.abl:
        hint_poll("hint1", 10, 0)
    if "g" not in opts.abl:
        a(f"s_mov_b32 s12, {opts.maxpoll}")
        if opts.h1f:
            a(f"v_add_u32 v3, {FOFF}, v3")
            a(f"s_mov_b32 s13, {FOFF}")
        a.label("L_poll1")
        for jj in range(8):
            so = "0" if jj == 0 else f"s{88+jj}"
            a(f"buffer_load_dwordx4 v[{G+4*jj}:{G+4*jj+3}], v3, s[56:59], {so} offen sc1")
        a("s_waitcnt vmcnt(0)")
        if opts.h1f:
            tags_bad([G+4*jj for jj in range(8)])
            a("s_cbranch_scc1 L_poll1_done")
            a("v_subrev_u32 v3, s13, v3")
            a("s_mov_b32 s13, 0")
            a("s_sub_u32 s12, s12, 1")
            a("s_cmp_eq_u32 s12, 0")
            a("s_cbranch_scc0 L_poll1")
        elif "h" not in opts.abl:
            check_tags([G+4*jj for jj in range(8)], "s12", "L_poll1", "L_poll1_done")
        a.label("L_poll1_done")
    stamp(2)
    for e in range(2):
        a(f"v_add_f32 v{G+e}, v{G+e}, v{G+4+e}")
        a(f"v_add_f32 v{G+8+e}, v{G+8+e}, v{G+12+e}")
        a(f"v_add_f32 v{G+16+e}, v{G+16+e}, v{G+20+e}")
        a(f"v_add_f32 v{G+24+e}, v{G+24+e}, v{G+28+e}")
    for e in range(2):
        a(f"v_add_f32 v{G+e}, v{G+e}, v{G+8+e}")
        a(f"v_add_f32 v{G+16+e}, v{G+16+e}, v{G+24+e}")
    for e in range(2):
        a(f"v_add_f32 v{G+e}, v{G+e}, v{G+16+e}")
    a(f"v_lshlrev_b32 v2, 2, v0")
    a("s_cmp_eq_u32 s3, 2")
    a("s_cbranch_scc0 L_qw")
    a(f"v_max_f32 v{G}, 0, v{G}")
    a(f"v_max_f32 v{G+1}, 0, v{G+1}")
    a(f"v_add_u32 v2, {L_H - L_Q}, v2")
    a.label("L_qw")
    a(f"v_cvt_pk_bf16_f32 v{G}, v{G}, v{G+1}")
    a(f"ds_write_b32 v2, v{G} offset:{L_Q}")
    a("v_mov_b32 v2, s68")
    a("v_mov_b32 v3, s69")
    a(f"ds_write_b64 v{VZ}, v[2:3] offset:{L_TAG}")
    a("s_cmp_eq_u32 s3, 2")
    a(f"s_movk_i32 s10, {QF}")
    a(f"s_movk_i32 s11, {HF}")
    a(f"s_cselect_b32 s10, s11, s10")
    a("v_mov_b32 v2, s10")
    a("v_mov_b32 v3, 1")
    a(f"ds_write_b32 v2, v3")
    a.label("L_b3")
    if 'F' in opts.abl:
        a("s_branch L_noy2")
    lds_spin(HF, 1, VZ, 3)
    a("s_lshl_b32 s10, s3, 5")
    a(f"v_lshl_add_u32 v2, v{RG}, 3, s10")
    a(f"ds_read_b64 v[{TMP}:{TMP+1}], v2 offset:{L_H}")
    a(f"ds_read_b64 v[{TMP+2}:{TMP+3}], v2 offset:{L_H+128}")
    a("s_waitcnt lgkmcnt(0)")
    for q in range(2):
        for b in range(2):
            for d in range(4):
                for hl in range(2):
                    acc = AY + 8*b + 2*d + hl
                    w = (LO2 + 4*q + d) if hl == 0 else (W2 + 8*q + 4 + d)
                    s2 = "0" if q == 0 else f"v{acc}"
                    a(f"v_dot2_f32_bf16 v{acc}, v{w}, v{TMP+2*b+q}, {s2}")
    reduce16(AY)
    a(f"s_mov_b32 s10, {LANES10}")
    a(f"s_mov_b32 s11, {LANES10}")
    a("s_mov_b64 exec, s[10:11]")
    a(f"ds_write_b128 v{VY}, v[{AY}:{AY+3}] offset:{L_Y2P}")
    a("s_mov_b64 exec, -1")
    lds_arrive(C4, VZ, 3, rtn=True)
    a("s_cmp_eq_u32 s10, 3")
    a("s_cbranch_scc0 L_noy2")
    a(f"v_lshlrev_b32 v2, 3, v0")
    for w in range(4):
        a(f"ds_read_b64 v[{TMP+8+2*w}:{TMP+9+2*w}], v2 offset:{L_Y2P + w*640}")
    for w in range(4):
        a(f"ds_read_b64 v[{TMP+16+2*w}:{TMP+17+2*w}], v2 offset:{L_Y2P + w*640 + 512}")
    def pair_addr(vdst, vp, vt):
        a(f"v_lshrrev_b32 v{vdst}, 2, v{vp}")
        a(f"v_cmp_lt_u32 vcc, 39, v{vp}")
        a(f"v_mov_b32 v{vt}, 0")
        a(f"v_cndmask_b32 v{vt}, v{vt}, v{TMP+31}, vcc")
        a(f"v_add_u32 v{vdst}, v{vdst}, v{vt}")
        a(f"v_lshlrev_b32 v{vdst}, 11, v{vdst}")
        a(f"v_and_b32 v{vt}, 2, v{vp}")
        a(f"v_lshl_add_u32 v{vdst}, v{vt}, 9, v{vdst}")
        a(f"v_and_b32 v{vt}, 1, v{vp}")
        a(f"v_lshl_add_u32 v{vdst}, v{vt}, 4, v{vdst}")
        a(f"v_add_u32 v{vdst}, s10, v{vdst}")
    if opts.y2lay:
        a("s_mul_i32 s10, s4, 10240")
        a("s_mul_i32 s11, s5, 1280")
        a("s_add_u32 s10, s10, s11")
        a(f"s_add_u32 s10, s10, {WS_H3B}")
        a("v_lshl_add_u32 v3, v0, 4, s10")
        a("v_add_u32 v2, 1024, v3")
    else:
        a("s_mul_i32 s10, s5, 20480")
        a("s_lshl_b32 s11, s4, 5")
        a("s_add_u32 s10, s10, s11")
        a(f"s_add_u32 s10, s10, {WS_H3B}")
        a(f"v_mov_b32 v{TMP+31}, 70")
        pair_addr(3, 0, TMP + 30)
        a(f"v_add_u32 v{TMP+29}, 64, v0")
        pair_addr(2, TMP + 29, TMP + 30)
    set_tag(TMP)
    set_tag(TMP+4)
    a("s_waitcnt lgkmcnt(0)")
    for e in range(2):
        a(f"v_add_f32 v{TMP+8+e}, v{TMP+8+e}, v{TMP+10+e}")
        a(f"v_add_f32 v{TMP+12+e}, v{TMP+12+e}, v{TMP+14+e}")
        a(f"v_add_f32 v{TMP+e}, v{TMP+8+e}, v{TMP+12+e}")
    if 'y' not in opts.abl:
        a(f"buffer_store_dwordx4 v[{TMP}:{TMP+3}], v3, s[56:59], 0 offen sc1")
    for e in range(2):
        a(f"v_add_f32 v{TMP+16+e}, v{TMP+16+e}, v{TMP+18+e}")
        a(f"v_add_f32 v{TMP+20+e}, v{TMP+20+e}, v{TMP+22+e}")
        a(f"v_add_f32 v{TMP+4+e}, v{TMP+16+e}, v{TMP+20+e}")
    a("s_mov_b64 exec, 0xffff")
    if 'y' not in opts.abl:
        a(f"buffer_store_dwordx4 v[{TMP+4}:{TMP+7}], v2, s[56:59], 0 offen sc1")
    a("s_mov_b64 exec, -1")
    a.label("L_noy2")
    stamp(3)
    MASK = 120
    AOP = 136
    ACC2 = 96
    YR = 104
    VPH, VYW, VY0, VY1 = 13, 14, 15, 16
    GY = 20
    a("v_lshrrev_b32 v2, 1, v0")
    a("v_and_b32 v2, 7, v2")
    for q in range(4):
        for h in range(2):
            a(f"v_cmp_eq_u32 vcc, {2*q+h}, v2")
            a(f"v_cndmask_b32 v{MASK+2*q+h}, 0, -1, vcc")
    a("v_and_b32 v3, 1, v0")
    a("v_lshlrev_b32 v3, 12, v3")
    a("v_lshrrev_b32 v4, 1, v2")
    a("v_lshl_add_u32 v3, v4, 10, v3")
    a(f"v_lshl_add_u32 v3, v{RG}, 6, v3")
    a("v_and_b32 v4, 1, v2")
    a("v_lshl_add_u32 v3, v4, 5, v3")
    a("s_lshl_b32 s10, s4, 13")
    a("s_lshl_b32 s11, s3, 8")
    a("s_add_u32 s10, s10, s11")
    a(f"s_add_u32 s10, s10, {WS_H2}")
    a(f"v_add_u32 v{VPH}, s10, v3")
    a("s_lshl_b32 s10, s3, 10")
    a(f"v_lshl_add_u32 v{VYW}, v0, 4, s10")
    a(f"v_lshlrev_b32 v3, 11, v{C}")
    a(f"v_lshrrev_b32 v4, 1, v{RG}")
    a("v_lshl_add_u32 v3, v4, 10, v3")
    a(f"v_and_b32 v4, 1, v{RG}")
    a("v_lshl_add_u32 v3, v4, 4, v3")
    a("s_mul_i32 s10, s5, 20480")
    a("s_lshl_b32 s11, s4, 5")
    a("s_add_u32 s10, s10, s11")
    a(f"s_add_u32 s10, s10, {WS_H3A}")
    a(f"v_add_u32 v{VY0}, s10, v3")
    a(f"v_lshlrev_b32 v{VY1}, 4, v0")
    if opts.y1lay:
        a("s_mul_i32 s10, s4, 10240")
        a("s_mul_i32 s11, s5, 1280")
        a("s_add_u32 s10, s10, s11")
        a(f"s_add_u32 s10, s10, {WS_H3A}")
        a(f"v_lshl_add_u32 v{VY0}, v0, 4, s10")
        a("v_and_b32 v3, 3, v0")
        a("v_lshrrev_b32 v4, 2, v0")
        a("v_and_b32 v4, 15, v4")
        a("v_lshl_add_u32 v3, v3, 4, v4")
        a(f"v_lshlrev_b32 v{VY1}, 4, v3")
    set_tag(GY)
    set_tag(GY + 4)
    a("s_cmp_lg_u32 s3, 0")
    a("s_cbranch_scc1 L_noml")
    lds_spin(C2, 8, VZ, 3, sleep=1)
    a(f"ds_read_b128 v[{TMP}:{TMP+3}], v{VZ} offset:{L_ML}")
    a(f"ds_read_b128 v[{TMP+4}:{TMP+7}], v{VZ} offset:{L_ML+16}")
    a(f"ds_read_b128 v[{TMP+8}:{TMP+11}], v{VZ} offset:{L_ML+32}")
    a(f"ds_read_b128 v[{TMP+12}:{TMP+15}], v{VZ} offset:{L_ML+48}")
    GM = TMP + 16
    set_tag(GM)
    a(f"s_mul_i32 s10, s4, {GSTR}")
    a("s_lshl_b32 s11, s5, 7")
    a("s_add_u32 s10, s10, s11")
    a(f"s_add_u32 s10, s10, {WS_ML}")
    a("v_mov_b32 v3, s10")
    a(f"s_mov_b32 s14, 0x{f32bits(LOG2E):08x}")
    a("s_waitcnt lgkmcnt(0)")
    M = GM
    a(f"v_max3_f32 v{M}, v{TMP}, v{TMP+1}, v{TMP+2}")
    a(f"v_max3_f32 v{M}, v{M}, v{TMP+3}, v{TMP+4}")
    a(f"v_max3_f32 v{M}, v{M}, v{TMP+5}, v{TMP+6}")
    a(f"v_max_f32 v{M}, v{M}, v{TMP+7}")
    E8 = TMP + 24
    for w in range(8):
        a(f"v_sub_f32 v{E8+w}, v{TMP+w}, v{M}")
    for w in range(8):
        a(f"v_mul_f32 v{E8+w}, s14, v{E8+w}")
    for w in range(8):
        a(f"v_exp_f32 v{E8+w}, v{E8+w}")
    a("s_mov_b64 exec, 1")
    a(f"ds_write_b128 v{VZ}, v[{E8}:{E8+3}] offset:{L_F}")
    a(f"ds_write_b128 v{VZ}, v[{E8+4}:{E8+7}] offset:{L_F+16}")
    a("v_mov_b32 v4, 1")
    a(f"ds_write_b32 v{VZ}, v4 offset:{FF}")
    a("s_mov_b64 exec, -1")
    Ls = GM + 1
    a(f"v_mul_f32 v{Ls}, v{E8}, v{TMP+8}")
    for w in range(1, 8):
        a(f"v_fma_f32 v{Ls}, v{E8+w}, v{TMP+8+w}, v{Ls}")
    a("s_mov_b64 exec, 1")
    if opts.fast:
        a(f"s_mov_b32 s10, {FOFF}")
        a(f"buffer_store_dwordx4 v[{GM}:{GM+3}], v3, s[56:59], s10 offen")
    a(f"buffer_store_dwordx4 v[{GM}:{GM+3}], v3, s[56:59], 0 offen sc1")
    a("s_mov_b64 exec, -1")
    if opts.fast and opts.reclaim:
        for r in range(4):
            a(f"v_mov_b32 v{TMP+r}, 0")
        a("s_lshl_b32 s10, s6, 10")
        a(f"s_add_u32 s10, s10, {WS_H2 + FOFF}")
        a(f"v_lshl_add_u32 v3, v0, 4, s10")
        a(f"buffer_store_dwordx4 v[{TMP}:{TMP+3}], v3, s[56:59], 0 offen")
    a.label("L_noml")
    if "t" in opts.abl:
        a("s_branch L_fin")
    GP = TMP + 28
    VFS = 17
    VML = 18
    a("v_and_b32 v3, 1, v0")
    a("v_lshlrev_b32 v3, 9, v3")
    a("v_lshrrev_b32 v4, 2, v0")
    a("v_and_b32 v4, 3, v4")
    a("v_lshl_add_u32 v3, v4, 7, v3")
    a(f"s_mul_i32 s10, s4, {GSTR}")
    a(f"s_add_u32 s10, s10, {WS_ML}")
    a(f"v_add_u32 v{VML}, s10, v3")
    a(f"s_mul_i32 s9, s4, {GSTR}")
    a(f"s_add_u32 s9, s9, {WS_H2F}")
    a("s_lshl_b32 s10, s5, 3")
    a("s_add_u32 s10, s10, s9")
    a("v_mov_b32 v19, s10")
    def calc_f():
        a(f"v_max_f32_dpp v5, v{GP}, v{GP} row_ror:4 row_mask:0xf bank_mask:0xf")
        a(f"v_max_f32_dpp v5, v5, v5 row_ror:8 row_mask:0xf bank_mask:0xf")
        a(f"v_sub_f32 v6, v{GP}, v5")
        a(f"v_mul_f32 v6, s14, v6")
        a(f"v_exp_f32 v6, v6")
        a(f"v_mul_f32 v7, v6, v{GP+1}")
        a(f"v_add_f32_dpp v7, v7, v7 row_ror:4 row_mask:0xf bank_mask:0xf")
        a(f"v_add_f32_dpp v7, v7, v7 row_ror:8 row_mask:0xf bank_mask:0xf")
        a(f"v_rcp_f32 v7, v7")
        a(f"v_mul_f32 v{VFS}, v6, v7")
    SRC = "s13"
    if not opts.fast:
        lds_spin(C6, 8, VZ, 3, sleep=2)
    if opts.fast:
        lds_spin(FF, 1, VZ, 3, sleep=4)
        a(f"s_mov_b32 {SRC}, {FOFF}")
        a(f"s_mov_b32 s12, {opts.maxpoll}")
        a.label("L_pollml")
        a(f"buffer_load_dwordx4 v[{GP}:{GP+3}], v{VML}, s[56:59], {SRC} offen sc1")
        a("s_waitcnt vmcnt(0)")
        tags_bad([GP])
        a("s_cbranch_scc1 L_pollml_done")
        a(f"s_sleep {opts.mlsleep}")
        a(f"s_cmp_lt_u32 s12, {opts.maxpoll - opts.nf}")
        a(f"s_cselect_b32 s10, {FOFF}, 0")
        a(f"s_xor_b32 {SRC}, {SRC}, s10")
        a("s_sub_u32 s12, s12, 1")
        a("s_cmp_lg_u32 s12, 0")
        a("s_cbranch_scc1 L_pollml")
        a.label("L_pollml_done")
        a(f"s_mov_b32 s14, 0x{f32bits(LOG2E):08x}")
        calc_f()
        lds_spin(C6, 8, VZ, 3, sleep=1)
        a(f"s_mov_b32 {SRC}, {FOFF}")
    else:
        a("s_cmp_lg_u32 s3, 0")
        a("s_cbranch_scc1 L_nohint0")
        a("s_mov_b64 exec, 1")
        a(f"buffer_store_dwordx2 v[{GY+2}:{GY+3}], v19, s[56:59], 0 offen sc1")
        a("s_mov_b64 exec, -1")
        a.label("L_nohint0")
        a(f"buffer_load_dwordx4 v[{GP}:{GP+3}], v{VML}, s[56:59], 0 offen sc1")
        a("s_cmp_lg_u32 s3, 0")
        a("s_cbranch_scc1 L_nohint")
        hint_poll("hint2", 9, 1)
        a("v_mov_b32 v3, 1")
        a(f"ds_write_b32 v{VZ}, v3 offset:{HG}")
        a.label("L_nohint")
        lds_spin(HG, 1, VZ, 3)
        a(f"s_mov_b32 s12, {opts.maxpoll}")
        a.label("L_pollml")
        a("s_waitcnt vmcnt(0)")
        tags_bad([GP])
        a("s_cbranch_scc1 L_pollml_done")
        a("s_sleep 2")
        a(f"buffer_load_dwordx4 v[{GP}:{GP+3}], v{VML}, s[56:59], 0 offen sc1")
        a("s_sub_u32 s12, s12, 1")
        a("s_cmp_lg_u32 s12, 0")
        a("s_cbranch_scc1 L_pollml")
        a.label("L_pollml_done")
    stamp(4)
    a(f"s_mov_b32 s9, {640 if opts.y1lay else 160*1024}")
    a(f"s_mov_b32 s14, 0x{f32bits(LOG2E):08x}")
    n2 = opts.npoll2
    assert n2 <= (4 if opts.fast else 3)
    PS = [[TMP + 8*k, TMP + 8*k + 4] for k in range(n2)]

    def issue2(k):
        so = SRC if opts.fast else "0"
        a(f"buffer_load_dwordx4 v[{PS[k][0]}:{PS[k][0]+3}], v{VPH}, s[56:59], {so} offen sc1")
        a(f"buffer_load_dwordx4 v[{PS[k][1]}:{PS[k][1]+3}], v{VPH}, s[56:59], {so} offen offset:16 sc1")
        if opts.fast:
            a(f"s_cmp_lt_u32 s12, {opts.maxpoll - opts.nf}")
            a(f"s_cselect_b32 s10, {FOFF}, 0")
            a(f"s_xor_b32 {SRC}, {SRC}, s10")

    O4 = [4, 5, 6, 7]
    pipelined_poll("pollH2", n2, PS, issue2, opts.stag2, O4, after_issue=(None if opts.fast else calc_f))
    stamp(5)
    for r in O4:
        a(f"v_mul_f32 v{r}, v{VFS}, v{r}")
    for ctrl in ["row_ror:4", "row_ror:8"]:
        for r in O4:
            a(f"v_add_f32_dpp v{r}, v{r}, v{r} {ctrl} row_mask:0xf bank_mask:0xf")
    D0, D1 = 2, 3
    a(f"v_cvt_pk_bf16_f32 v{D0}, v{O4[0]}, v{O4[1]}")
    a(f"v_cvt_pk_bf16_f32 v{D1}, v{O4[2]}, v{O4[3]}")
    for q in range(4):
        a(f"v_and_b32 v{AOP+4*q}, v{D0}, v{MASK+2*q}")
        a(f"v_and_b32 v{AOP+4*q+1}, v{D1}, v{MASK+2*q}")
        a(f"v_and_b32 v{AOP+4*q+2}, v{D0}, v{MASK+2*q+1}")
        a(f"v_and_b32 v{AOP+4*q+3}, v{D1}, v{MASK+2*q+1}")
    for q in range(4):
        for od in range(2):
            acc = ACC2 + 4*od
            c = "0" if q == 0 else f"v[{acc}:{acc+3}]"
            e = 2*q + od
            a(f"v_mfma_f32_16x16x32_bf16 v[{acc}:{acc+3}], v[{AOP+4*q}:{AOP+4*q+3}], v[{BOP+4*e}:{BOP+4*e+3}], {c}")
    YW = YR
    a(f"v_add_f32 v{YW}, v{ACC2}, v{ACC2+2}")
    a(f"v_add_f32 v{YW+1}, v{ACC2+4}, v{ACC2+6}")
    a(f"v_add_f32 v{YW+2}, v{ACC2+1}, v{ACC2+3}")
    a(f"v_add_f32 v{YW+3}, v{ACC2+5}, v{ACC2+7}")
    a(f"ds_write_b128 v{VYW}, v[{YW}:{YW+3}] offset:{L_Y1P}")
    lds_arrive(C5, VZ, 3, rtn=True)
    stamp(6)
    a("s_cmp_eq_u32 s10, 3")
    a("s_cbranch_scc0 L_fin")
    for w in range(4):
        a(f"ds_read_b128 v[{YR+4*w}:{YR+4*w+3}], v{VY1} offset:{L_Y1P + w*1024}")
    if opts.y1lay:
        a("s_mov_b32 s10, -1")
        a("s_mov_b32 s11, 0xff")
    else:
        a(f"s_mov_b32 s10, {LANES10}")
        a(f"s_mov_b32 s11, {LANES10}")
    a("s_waitcnt lgkmcnt(2)")
    for e in range(4):
        a(f"v_add_f32 v{YR+e}, v{YR+e}, v{YR+4+e}")
    a("s_waitcnt lgkmcnt(0)")
    for e in range(4):
        a(f"v_add_f32 v{YR+8+e}, v{YR+8+e}, v{YR+12+e}")
    a(f"v_add_f32 v{GY}, v{YR}, v{YR+8}")
    a(f"v_add_f32 v{GY+1}, v{YR+1}, v{YR+9}")
    a(f"v_add_f32 v{GY+4}, v{YR+2}, v{YR+10}")
    a(f"v_add_f32 v{GY+5}, v{YR+3}, v{YR+11}")
    a("s_mov_b64 exec, s[10:11]")
    a(f"buffer_store_dwordx4 v[{GY}:{GY+3}], v{VY0}, s[56:59], 0 offen sc1")
    a(f"buffer_store_dwordx4 v[{GY+4}:{GY+7}], v{VY0}, s[56:59], s9 offen sc1")
    a("s_mov_b64 exec, -1")
    stamp(7)
    a.label("L_fin")
    if stamps:
        a("s_mul_i32 s90, s6, 12")
        a("s_add_u32 s90, s90, s3")
        a("s_lshl_b32 s90, s90, 6")
        a(f"s_add_u32 s90, s90, {WS_STAMP}")
        a("v_mov_b32 v2, s90")
        a("s_waitcnt lgkmcnt(0)")
        for i in range(16):
            a(f"v_mov_b32 v{8+i}, s{ST0+i}")
        a("s_mov_b64 exec, 1")
        for q in range(4):
            a(f"buffer_store_dwordx4 v[{8+4*q}:{11+4*q}], v2, s[56:59], 0 offen offset:{16*q}")
    a.label("L_end")
    a("s_endpgm")

    nv = 168
    out = HEADER
    out += f"; @launch grid=(256,1,1) block=(768,1,1) lds={L_TOTAL}\n"
    out += '.amdgcn_target "amdgcn-amd-amdhsa--gfx950"\n.text\n'
    out += f".globl {KNAME}\n.p2align 8\n.type {KNAME},@function\n{KNAME}:\n"
    out += "\n".join(a.l) + "\n"
    out += f""".section .rodata,"a"
.p2align 6
.amdhsa_kernel {KNAME}
  .amdhsa_next_free_vgpr {nv}
  .amdhsa_next_free_sgpr 96
  .amdhsa_accum_offset {nv}
  .amdhsa_group_segment_fixed_size 0
  .amdhsa_kernarg_size 88
  .amdhsa_user_sgpr_count 2
  .amdhsa_user_sgpr_kernarg_segment_ptr 1
  .amdhsa_system_sgpr_workgroup_id_x 1
.end_amdhsa_kernel
"""
    return out


def main():
    p = argparse.ArgumentParser()
    p.add_argument("-o", default="recurrent_scan__sliding_block_cached__dense_activation_relu__decode.s")
    p.add_argument("--kvpol", default="nt")
    p.add_argument("--wpol", default="nt")
    p.add_argument("--stamps", action="store_true")
    p.add_argument("--maxpoll", type=int, default=20000)
    p.add_argument("--maxspin", type=int, default=2000000)
    p.add_argument("--rotg", type=int, default=1)
    p.add_argument("--rotw", type=int, default=4)
    p.add_argument("--map", default="C")
    p.add_argument("--win", type=int, default=4)
    p.add_argument("--qkv", type=lambda s: [int(x) for x in s.split(",")], default=[1, 1, 1, 1])
    p.add_argument("--fpos", type=int, default=12)
    p.add_argument("--qpos", type=int, default=24)
    p.add_argument("--sched", default="dyn")
    p.add_argument("--kwin", type=int, default=0)
    p.add_argument("--dbgst", action="store_true")
    p.add_argument("--abl", default="")
    p.add_argument("--win2", type=int, default=0)
    p.add_argument("--bpos", type=int, default=3)
    p.add_argument("--hpos", type=int, default=8)
    p.add_argument("--ygate", type=lambda s: tuple(eval(x) for x in s.split(",")), default=(C5, 1))
    p.add_argument("--gate", type=int, default=8)
    p.add_argument("--npoll2", type=int, default=2)
    p.add_argument("--npoll3", type=int, default=4)
    p.add_argument("--stag2", type=int, default=6)
    p.add_argument("--stag3", type=int, default=3)
    p.add_argument("--prio", default="")
    p.add_argument("--qprio", type=int, default=-1)
    p.add_argument("--fast", action="store_true")
    p.add_argument("--nf", type=int, default=48)
    p.add_argument("--slow3", default="")
    p.add_argument("--mlsleep", type=int, default=4)
    p.add_argument("--reclaim", action="store_true")
    p.add_argument("--y1lay", type=int, default=0)
    p.add_argument("--y2lay", type=int, default=0)
    p.add_argument("--h1f", type=int, default=0)
    p.add_argument("--bhi", type=int, default=2)
    o = p.parse_args()
    open(o.o, "w").write(gen(o))
    print("wrote", o.o)


if __name__ == "__main__":
    main()
```

```python
import sys, argparse, struct
from asmh import A
from gen2 import HEADER, KNAME

WS_H1 = 0x0
WS_H2 = 0xC0000
GSTR = 4352
WS_ML = 0x340000
WS_H1F = 0x380000
WS_H2F = 0x300000
WS_H3A = 0x140000
WS_H3B = 0x190000
WS_EPOCH = 0x1F0000
WS_STAMP = 0x200000
WS_SIZE = 0x800000
FOFF = 0x400000

L_QP = 0
L_HP = 4096
L_Q = 6144
L_H = 6400
L_OP = 6656
L_ML = 10752
L_F = 10816
L_TAG = 10848
L_Y2P = 11392
L_Y1P = 13952
L_SYNC = 18048
L_TOTAL = 18176
C1, QF, HF, C2, FF, C3, C4, C5, C6, HG = [L_SYNC + 4 * i for i in range(10)]

LOG2E = 1.4426950408889634
OOB = 0x40000000
LANES10 = "0x03ff03ff"


def f32bits(x):
    return struct.unpack('<I', struct.pack('<f', x))[0]


def gen(opts):
    a = A()
    kvpol = opts.kvpol
    wpol = opts.wpol
    stamps = opts.stamps
    W = opts.win
    ST0 = 72

    def stamp(idx):
        if stamps:
            a(f"s_memrealtime s[{ST0+2*idx}:{ST0+2*idx+1}]")

    uid = [0]

    def lds_spin(off, val, vz, vt, sleep=0):
        uid[0] += 1
        lbl = f"L_spin{uid[0]}"
        a(f"s_mov_b32 s12, {opts.maxspin}")
        a.label(lbl)
        a(f"ds_read_b32 v{vt}, v{vz} offset:{off}")
        a("s_waitcnt lgkmcnt(0)")
        a(f"v_readfirstlane_b32 s10, v{vt}")
        a(f"s_cmp_ge_u32 s10, {val}")
        a(f"s_cbranch_scc1 {lbl}_done")
        if sleep:
            a(f"s_sleep {sleep}")
        a("s_sub_u32 s12, s12, 1")
        a("s_cmp_lg_u32 s12, 0")
        a(f"s_cbranch_scc1 {lbl}")
        a.label(lbl + "_done")

    def lds_arrive(off, vz, vt, rtn=False):
        a(f"v_mov_b32 v{vt}, 1")
        a("s_mov_b64 exec, 1")
        if rtn:
            a(f"ds_add_rtn_u32 v{vt}, v{vz}, v{vt} offset:{off}")
        else:
            a(f"ds_add_u32 v{vz}, v{vt} offset:{off}")
        a("s_mov_b64 exec, -1")
        if rtn:
            a("s_waitcnt lgkmcnt(0)")
            a(f"v_readfirstlane_b32 s10, v{vt}")

    def set_tag(r):
        a(f"v_mov_b32 v{r+2}, s68")
        a(f"v_mov_b32 v{r+3}, s69")

    def tags_bad(regs):
        for n, r in enumerate(regs):
            dst = "s[70:71]" if n == 0 else "vcc"
            a(f"v_cmp_ne_u64 {dst}, v[{r+2}:{r+3}], s[68:69]")
            if n:
                a("s_or_b64 s[70:71], s[70:71], vcc")
        a("s_cmp_eq_u64 s[70:71], 0")

    def pipelined_poll(name, nsets, setregs, issue, stag, res, slow=0, after_issue=None):
        nl = len(setregs[0])
        a(f"s_mov_b32 s12, {opts.maxpoll}")
        a("s_mov_b64 s[38:39], -1")
        for k in range(nsets):
            issue(k)
            if k == 0 and after_issue:
                after_issue()
            if k + 1 < nsets and stag:
                a(f"s_sleep {stag}")
        a.label(f"L_{name}")
        for k in range(nsets):
            a(f"s_waitcnt vmcnt({(nsets-1)*nl})")
            for n, r in enumerate(setregs[k]):
                dst = "s[70:71]" if n == 0 else "vcc"
                a(f"v_cmp_eq_u64 {dst}, v[{r+2}:{r+3}], s[68:69]")
                if n:
                    a("s_and_b64 s[70:71], s[70:71], vcc")
            a("s_and_b64 exec, s[70:71], s[38:39]")
            for n, r in enumerate(setregs[k]):
                a(f"v_mov_b32 v{res[2*n]}, v{r}")
                a(f"v_mov_b32 v{res[2*n+1]}, v{r+1}")
            a("s_andn2_b64 s[38:39], s[38:39], s[70:71]")
            a("s_mov_b64 exec, s[38:39]")
            a(f"s_cbranch_scc0 L_{name}_done")
            if slow:
                a("s_bcnt1_i32_b64 s10, s[38:39]")
                a(f"s_cmp_lt_u32 s10, {slow[0]}")
                uid[0] += 1
                a(f"s_cbranch_scc1 L_fast{uid[0]}")
                a(f"s_sleep {slow[1]}")
                a.label(f"L_fast{uid[0]}")
            issue(k)
            a("s_mov_b64 exec, -1")
        a("s_sub_u32 s12, s12, 1")
        a("s_cmp_lg_u32 s12, 0")
        a(f"s_cbranch_scc1 L_{name}")
        a.label(f"L_{name}_done")
        a("s_mov_b64 exec, -1")

    def hint_poll(name, ws_off_sgpr, sleep):
        a(f"s_add_u32 s14, s56, s{ws_off_sgpr}")
        a("s_addc_u32 s15, s57, 0")
        a(f"s_mov_b32 s12, {opts.maxpoll}")
        a.label(f"L_{name}")
        a("s_load_dwordx16 s[16:31], s[14:15], 0 glc")
        a("s_waitcnt lgkmcnt(0)")
        for i in range(8):
            a(f"s_cmp_eq_u64 s[{16+2*i}:{17+2*i}], s[68:69]")
            a(f"s_cbranch_scc0 L_{name}_no")
        a(f"s_branch L_{name}_done")
        a.label(f"L_{name}_no")
        if sleep:
            a(f"s_sleep {sleep}")
        a("s_sub_u32 s12, s12, 1")
        a("s_cmp_lg_u32 s12, 0")
        a(f"s_cbranch_scc1 L_{name}")
        a.label(f"L_{name}_done")

    a("s_cmp_ge_u32 s2, 256")
    a("s_cbranch_scc1 L_end")
    a("s_load_dwordx16 s[16:31], s[0:1], 0")
    a("s_load_dwordx4 s[32:35], s[0:1], 64")
    a("s_load_dwordx2 s[36:37], s[0:1], 80")
    if stamps:
        for i in range(1, 8):
            a(f"s_mov_b64 s[{ST0+2*i}:{ST0+2*i+1}], 0")
        stamp(0)
    a("v_lshrrev_b32 v1, 6, v0")
    a("v_and_b32 v0, 63, v0")
    if opts.map == "C":
        a("s_and_b32 s4, s2, 7")
        a("s_lshr_b32 s5, s2, 6")
        a("s_lshl_b32 s5, s5, 3")
        a("s_or_b32 s4, s4, s5")
        a("s_lshr_b32 s5, s2, 3")
        a("s_and_b32 s5, s5, 7")
    else:
        a("s_lshr_b32 s4, s2, 3")
        a("s_and_b32 s5, s2, 7")
    a("v_readfirstlane_b32 s3, v1")
    a("s_lshl_b32 s6, s4, 3")
    a("s_or_b32 s6, s6, s5")
    a("s_lshr_b32 s7, s5, 2")
    a("s_and_b32 s8, s5, 3")
    a(f"s_mov_b32 s58, {WS_SIZE}")
    a("s_mov_b32 s59, 0x00020000")
    a("s_cmp_lt_u32 s3, 4")
    a("s_cbranch_scc1 L_aux")

    VOFF, VQ, VT, VS, VACC, VK, VV, VF = 1, 2, 6, 8, 24, 32, 96, 160
    a.c("---- streaming wave ----")
    a("s_sub_u32 s3, s3, 4")
    a("s_lshl_b32 s9, s7, 5")
    a("s_add_u32 s9, s9, s4")
    a("s_lshl_b32 s9, s9, 21")
    a("s_lshl_b32 s10, s8, 17")
    a("s_add_u32 s9, s9, s10")
    a("s_add_u32 s9, s9, 1572864")
    a("s_lshl_b32 s10, s3, 14")
    a(f"v_lshl_add_u32 v{VOFF}, v0, 4, s10")
    a(f"s_mul_i32 s11, s4, {opts.rotg}")
    a(f"s_mul_i32 s12, s3, {opts.rotw}")
    a("s_add_u32 s11, s11, s12")
    a("s_lshl_b32 s11, s11, 10")
    a("s_mov_b32 s42, 131072")
    a("s_mov_b32 s43, 0x00020000")
    a("s_mov_b32 s46, 131072")
    a("s_mov_b32 s47, 0x00020000")
    a("s_cmp_lt_u32 s4, 20")
    a("s_cselect_b32 s13, 1, 0")
    a("s_cmp_lt_u32 s3, 2")
    a("s_cselect_b32 s13, s13, 0")
    a("s_cmp_ge_u32 s4, 10")
    a("s_cselect_b32 s14, 560, 0")
    a("s_lshl_b32 s10, s4, 3")
    a("s_add_u32 s14, s14, s10")
    a("s_mul_i32 s10, s5, 80")
    a("s_add_u32 s14, s14, s10")
    a("s_lshl_b32 s10, s3, 2")
    a("s_add_u32 s14, s14, s10")
    VXV = VK + 63
    a(f"v_and_b32 v{VT}, 1, v0")
    a(f"v_lshlrev_b32 v{VT}, 1, v{VT}")
    a(f"v_lshrrev_b32 v{VT+1}, 5, v0")
    a(f"v_add3_u32 v{VT}, v{VT}, v{VT+1}, s14")
    a(f"v_lshlrev_b32 v{VQ}, 1, v{VT}")
    a("s_waitcnt lgkmcnt(0)")
    if "e" in opts.abl:
        stamp(5)
    a("s_add_u32 s40, s18, s9")
    a("s_addc_u32 s41, s19, 0")
    a("s_add_u32 s44, s20, s9")
    a("s_addc_u32 s45, s21, 0")
    a("s_mov_b32 s56, s36")
    a("s_mov_b32 s57, s37")
    a("s_mov_b32 s48, s16")
    a("s_mov_b32 s49, s17")
    a("s_movk_i32 s50, 2560")
    a("s_mov_b32 s51, 0x00020000")
    a("s_mov_b32 s64, s32")
    a("s_mov_b32 s65, s33")
    a("s_movk_i32 s66, 2560")
    a("s_mov_b32 s67, 0x00020000")
    for i in range(16):
        a(f"s_add_u32 s{16+i}, s11, {i*1024}")
        a(f"s_and_b32 s{16+i}, s{16+i}, 0x3c00")
    a("s_barrier")
    if "e" in opts.abl:
        stamp(6)
    a("s_cmp_eq_u32 s13, 0")
    a("s_cbranch_scc1 L_nox")
    a(f"buffer_load_ushort v{VF+7+0}, v{VQ}, s[48:51], 0 offen")
    a.label("L_nox")
    XV = VF + 7
    PRIO = {int(k): int(v) for k, v in (it.split(":") for it in opts.prio.split(",") if it)}

    def issue(n, static=True):
        if static and n in PRIO:
            a(f"s_setprio {PRIO[n]}")
        if n < 16:
            a(f"buffer_load_dwordx4 v[{VK+4*n}:{VK+4*n+3}], v{VOFF}, s[40:43], s{16+n} offen {kvpol}")
        else:
            i = n - 16
            a(f"buffer_load_dwordx4 v[{VV+4*i}:{VV+4*i+3}], v{VOFF}, s[44:47], s{16+i} offen {kvpol}")

    W2 = opts.win2 or W
    NS = 16 - W2
    slot_i = [0]
    SREM = "s9"

    FLAT = opts.sched in ("flat", "ab")
    AB = opts.sched == "ab"

    def dstamp(idx):
        if opts.dbgst:
            stamp(idx)

    def late_burst():
        a(f"s_cmp_eq_u32 {SREM}, 0")
        a("s_cbranch_scc1 L_nolate")
        for n in range(opts.kwin, 32):
            issue(n)
        dstamp(5)
        a.label("L_nolate")

    def slot():
        k = slot_i[0]
        slot_i[0] += 1
        if AB and k == opts.bpos:
            late_burst()
        if FLAT:
            return
        if k < NS:
            a(f"s_cmp_gt_u32 {SREM}, {k}")
            a(f"s_cbranch_scc0 L_slot{k}_no")
            a(f"s_waitcnt vmcnt({W2-1})")
            issue(16 + 15 - k, False)
            a(f"s_branch L_slot{k}_done")
            a.label(f"L_slot{k}_no")
            a("s_waitcnt vmcnt(0)")
            a.label(f"L_slot{k}_done")
        else:
            a(f"s_waitcnt vmcnt({max(W2 - 1 - (k - NS), 0)})")

    a(f"v_mov_b32 v{VT+1}, 0")
    for n in range(W):
        issue(n)
    if AB:
        KW = opts.kwin
        for n in range(W, KW):
            a(f"s_waitcnt vmcnt({W-1})")
            issue(n)
        a(f"ds_read_b32 v{VT}, v{VT+1} offset:{QF}")
        a(f"s_waitcnt vmcnt({KW - 16})")
        a("s_waitcnt lgkmcnt(0)")
        a(f"v_readfirstlane_b32 {SREM}, v{VT}")
        a(f"s_cmp_lg_u32 {SREM}, 0")
        a(f"s_cbranch_scc1 L_qready")
        for n in range(KW, 32):
            issue(n)
        dstamp(5)
        lds_spin(QF, 1, VT + 1, VT, sleep=1)
        a(f"s_mov_b32 {SREM}, 0")
    elif FLAT:
        for n in range(W, 32):
            if n < opts.kwin:
                a(f"s_waitcnt vmcnt({W-1})")
            issue(n)
        dstamp(5)
        lds_spin(QF, 1, VT + 1, VT, sleep=1)
    else:
        for n in range(W, 16 + W2):
            a(f"s_waitcnt vmcnt({(W if n < 16 else W2) - 1})")
            if "e" in opts.abl and n == W:
                stamp(7)
            if "e" in opts.abl and n == W + 4:
                stamp(4)
            issue(n)
        dstamp(5)
        if "q" in opts.abl:
            a(f"s_mov_b32 {SREM}, {NS}")
            a(f"s_waitcnt vmcnt({W2})")
            a("s_branch L_qready")
        for n in range(16 + W2, 32):
            a(f"ds_read_b32 v{VT}, v{VT+1} offset:{QF}")
            a(f"s_mov_b32 {SREM}, {32 - n}")
            a(f"s_waitcnt vmcnt({W2-1})")
            a("s_waitcnt lgkmcnt(0)")
            a(f"v_readfirstlane_b32 s10, v{VT}")
            a("s_cmp_lg_u32 s10, 0")
            a(f"s_cbranch_scc1 L_qready")
            issue(n)
        a(f"s_mov_b32 {SREM}, 0")
        a(f"s_waitcnt vmcnt({16 if False else min(W2, 16)})")
        lds_spin(QF, 1, VT + 1, VT, sleep=1)
    a.label("L_qready")
    if opts.qprio >= 0:
        a(f"s_setprio {opts.qprio}")
    a(f"v_and_b32 v{VT}, 15, v0")
    a(f"v_lshlrev_b32 v{VT}, 4, v{VT}")
    a(f"ds_read_b128 v[{VQ}:{VQ+3}], v{VT} offset:{L_Q}")
    a(f"ds_read_b64 v[{VS}:{VS+1}], v{VT+1} offset:{L_TAG}")
    stamp(1)
    a("s_waitcnt lgkmcnt(0)")
    a(f"v_readfirstlane_b32 s68, v{VS}")
    a(f"v_readfirstlane_b32 s69, v{VS+1}")
    _a = a
    class _F:
        def __call__(self, t):
            if "s" in opts.abl and t.startswith("v_") and not t.startswith("v_readlane"):
                return
            _a(t)
        def __getattr__(self, n):
            return getattr(_a, n)
    a = _F()
    for grp in range(4):
        if FLAT and not AB:
            a(f"s_waitcnt vmcnt({16 + 12 - 4*grp})")
        for d in range(4):
            for i in range(4*grp, 4*grp+4):
                src2 = "0" if d == 0 else f"v{VS+i}"
                a(f"v_dot2_f32_bf16 v{VS+i}, v{VK+4*i+d}, v{VQ+d}, {src2}")
    slot()
    for ctrl in ["quad_perm:[1,0,3,2]", "quad_perm:[2,3,0,1]", "row_half_mirror", "row_mirror"]:
        for i in range(16):
            a(f"v_add_f32_dpp v{VS+i}, v{VS+i}, v{VS+i} {ctrl} row_mask:0xf bank_mask:0xf")
    slot()
    a(f"s_mov_b32 s14, 0x{f32bits(128 ** -0.5):08x}")
    a("s_mov_b32 s15, 0xffff0000")
    for rnd in range(2):
        for p in range(8):
            a(f"v_cvt_pk_bf16_f32 v{VK+p}, v{VS+2*p}, v{VS+2*p+1}")
        for p in range(8):
            a(f"v_lshlrev_b32 v{VS+2*p}, 16, v{VK+p}")
            a(f"v_and_b32 v{VS+2*p+1}, s15, v{VK+p}")
        if rnd == 0:
            for i in range(16):
                a(f"v_mul_f32 v{VS+i}, s14, v{VS+i}")
    m = VT
    a(f"v_max3_f32 v{m}, v{VS}, v{VS+1}, v{VS+2}")
    for i in range(3, 15, 2):
        a(f"v_max3_f32 v{m}, v{m}, v{VS+i}, v{VS+i+1}")
    a(f"v_max_f32 v{m}, v{m}, v{VS+15}")
    for r in range(4):
        a(f"v_readlane_b32 s{60+r}, v{m}, {16*r}")
    a(f"v_mov_b32 v{m}, s60")
    a(f"v_max_f32 v{m}, s61, v{m}")
    a(f"v_max_f32 v{m}, s62, v{m}")
    a(f"v_max_f32 v{m}, s63, v{m}")
    slot()
    a(f"s_mov_b32 s14, 0x{f32bits(LOG2E):08x}")
    for i in range(16):
        a(f"v_sub_f32 v{VS+i}, v{VS+i}, v{m}")
    for i in range(16):
        a(f"v_mul_f32 v{VS+i}, s14, v{VS+i}")
    for i in range(16):
        a(f"v_exp_f32 v{VS+i}, v{VS+i}")
    PLO, PHI = VK, VK + 16
    a(f"v_mov_b32 v{VXV}, v{XV}")
    for i in range(16):
        a(f"v_cvt_pk_bf16_f32 v{PLO+i}, v{VS+i}, 0")
    for i in range(16):
        a(f"v_lshlrev_b32 v{PHI+i}, 16, v{PLO+i}")
    lsum = VT + 1
    a(f"v_add_f32 v{lsum}, v{VS}, v{VS+1}")
    for i in range(2, 16):
        a(f"v_add_f32 v{lsum}, v{lsum}, v{VS+i}")
    for r in range(4):
        a(f"v_readlane_b32 s{60+r}, v{lsum}, {16*r}")
    a(f"v_mov_b32 v{lsum}, s60")
    a(f"v_add_f32 v{lsum}, s61, v{lsum}")
    a(f"v_add_f32 v{lsum}, s62, v{lsum}")
    a(f"v_add_f32 v{lsum}, s63, v{lsum}")
    a = _a
    VZ = VQ
    a(f"s_lshl_b32 s10, s3, 2")
    a(f"v_mov_b32 v{VS}, s10")
    a(f"v_mov_b32 v{VZ}, 0")
    a(f"ds_write_b32 v{VS}, v{m} offset:{L_ML}")
    a(f"ds_write_b32 v{VS}, v{lsum} offset:{L_ML+32}")
    lds_arrive(C2, VZ, VS + 1)
    a(f"v_and_b32 v{VS}, 15, v0")
    a(f"v_lshlrev_b32 v{VS}, 5, v{VS}")
    a(f"v_lshrrev_b32 v{VS+1}, 4, v0")
    a(f"v_lshl_add_u32 v{VS}, v{VS+1}, 3, v{VS}")
    a(f"s_lshl_b32 s10, s3, 9")
    a(f"v_add_u32 v{VS}, s10, v{VS}")
    VCA, VPA, GO = VS + 2, VS + 3, VS + 4
    a(f"v_lshlrev_b32 v{VCA}, 3, v0")
    a("s_lshl_b32 s10, s6, 10")
    a(f"s_add_u32 s10, s10, {WS_H2}")
    a(f"v_lshl_add_u32 v{VPA}, v0, 4, s10")
    set_tag(GO)
    order = list(range(W2)) + list(range(15, W2 - 1, -1))
    if FLAT:
        order = list(range(16))
    dstamp(6)
    if AB and opts.bpos >= 3:
        late_burst()
    if FLAT:
        slot_i[0] = 16
    for t in range(16):
        i = order[t]
        while slot_i[0] <= t:
            slot()
        if FLAT:
            a(f"s_waitcnt vmcnt({15 - t})")
        if t == 15:
            dstamp(7)
        if t == opts.hpos:
            lds_arrive(C6, VZ, VS + 8)
        if t == opts.fpos:
            stamp(3)
            lds_spin(FF, 1, VZ, VS + 8, sleep=1)
            a(f"ds_read_b128 v[{VF}:{VF+3}], v{VZ} offset:{L_F}")
            a(f"ds_read_b128 v[{VF+4}:{VF+7}], v{VZ} offset:{L_F+16}")
            a("s_setprio 3")
        for d in range(4):
            s2a = "0" if t == 0 else f"v{VACC+2*d}"
            s2b = "0" if t == 0 else f"v{VACC+2*d+1}"
            a(f"v_dot2_f32_bf16 v{VACC+2*d}, v{VV+4*i+d}, v{PLO+i}, {s2a}")
            a(f"v_dot2_f32_bf16 v{VACC+2*d+1}, v{VV+4*i+d}, v{PHI+i}, {s2b}")
    assert slot_i[0] == 16
    for e in range(4):
        a(f"v_permlane32_swap_b32 v{VACC+e}, v{VACC+e+4}")
    for e in range(4):
        a(f"v_add_f32 v{VACC+e}, v{VACC+e}, v{VACC+e+4}")
    a(f"v_permlane16_swap_b32 v{VACC}, v{VACC+2}")
    a(f"v_permlane16_swap_b32 v{VACC+1}, v{VACC+3}")
    a(f"v_add_f32 v{VACC}, v{VACC}, v{VACC+2}")
    a(f"v_add_f32 v{VACC+1}, v{VACC+1}, v{VACC+3}")
    a(f"ds_write_b64 v{VS}, v[{VACC}:{VACC+1}] offset:{L_OP}")
    lds_arrive(C3, VZ, VS + 8, rtn=True)
    stamp(2)
    a("s_cmp_eq_u32 s10, 7")
    a("s_cbranch_scc0 L_nocomb")
    OPR = VK
    for w in range(8):
        a(f"ds_read_b64 v[{OPR+2*w}:{OPR+2*w+1}], v{VCA} offset:{L_OP + w*512}")
    for w in range(8):
        a(f"s_waitcnt lgkmcnt({7-w})")
        for e in range(2):
            if w == 0:
                a(f"v_mul_f32 v{GO+e}, v{VF}, v{OPR+e}")
            else:
                a(f"v_fma_f32 v{GO+e}, v{VF+w}, v{OPR+2*w+e}, v{GO+e}")
    if opts.fast:
        a(f"s_mov_b32 s10, {FOFF}")
        a(f"buffer_store_dwordx4 v[{GO}:{GO+3}], v{VPA}, s[56:59], s10 offen")
    a(f"buffer_store_dwordx4 v[{GO}:{GO+3}], v{VPA}, s[56:59], 0 offen sc1")
    stamp(4)
    a.label("L_nocomb")
    if "t" in opts.abl:
        a("s_branch L_sfin")
    a("s_cmp_eq_u32 s13, 0")
    a("s_cbranch_scc1 L_sfin")
    a("s_cmp_ge_u32 s4, 10")
    a("s_cselect_b32 s9, 70, 0")
    a("s_add_u32 s9, s9, s4")
    a("s_mul_i32 s10, s5, 10")
    a("s_add_u32 s9, s9, s10")
    a("s_lshl_b32 s9, s9, 1")
    a("s_add_u32 s9, s9, s3")
    a("s_lshl_b32 s9, s9, 10")
    a(f"s_add_u32 s9, s9, {WS_H3A}")
    FA, FO = VS, VS + 1
    FA1 = FA
    a(f"v_lshl_add_u32 v{FA}, v0, 4, s9")
    a(f"s_mov_b32 s11, {WS_H3B - WS_H3A}")
    if opts.y1lay:
        FA1 = VS + 3
        a("s_lshl_b32 s9, s4, 6")
        a("s_mul_i32 s10, s5, 1280")
        a("s_add_u32 s9, s9, s10")
        a("s_lshl_b32 s10, s3, 5")
        a("s_add_u32 s9, s9, s10")
        a(f"s_add_u32 s9, s9, {WS_H3A}")
        a(f"v_lshrrev_b32 v{FA1}, 1, v0")
        a(f"v_mul_u32_u24 v{FA1}, 10240, v{FA1}")
        a(f"v_and_b32 v{VS+2}, 1, v0")
        a(f"v_lshl_add_u32 v{FA1}, v{VS+2}, 4, v{FA1}")
        a(f"v_add_u32 v{FA1}, s9, v{FA1}")
    P = VK

    def reduce_duo(r0):
        for ctrl in ["quad_perm:[2,3,0,1]", "row_ror:4", "row_ror:8"]:
            a(f"v_add_f32_dpp v{r0}, v{r0}, v{r0} {ctrl} row_mask:0xf bank_mask:0xf")
            a(f"v_add_f32_dpp v{r0+1}, v{r0+1}, v{r0+1} {ctrl} row_mask:0xf bank_mask:0xf")
        a(f"v_permlane32_swap_b32 v{r0}, v{r0+1}")
        a(f"v_add_f32 v{r0}, v{r0}, v{r0+1}")
        a(f"v_mov_b32 v{r0+1}, v{r0}")
        a(f"v_permlane16_swap_b32 v{r0}, v{r0+1}")
        a(f"v_add_f32 v{r0}, v{r0}, v{r0+1}")

    RY2, RY1 = P + 4, P + 6
    pipelined_poll("pollY2", 1, [[P]],
                   lambda k: a(f"buffer_load_dwordx4 v[{P}:{P+3}], v{FA1 if opts.y2lay else FA}, s[56:59], s11 offen sc1"), 0,
                   [RY2, RY2 + 1], slow=(1, 8))
    n3 = opts.npoll3
    Y1S = [[P + 8 + 4*k] for k in range(n3)]
    a("s_cmp_ge_u32 s4, 10")
    a("s_cselect_b32 s14, 560, 0")
    a("s_lshl_b32 s10, s4, 3")
    a("s_add_u32 s14, s14, s10")
    a("s_mul_i32 s10, s5, 80")
    a("s_add_u32 s14, s14, s10")
    a("s_lshl_b32 s10, s3, 2")
    a("s_add_u32 s14, s14, s10")
    a(f"v_and_b32 v{FO}, 1, v0")
    a(f"v_lshlrev_b32 v{FO}, 1, v{FO}")
    a(f"v_lshrrev_b32 v{FO+1}, 5, v0")
    a(f"v_add3_u32 v{FO}, v{FO}, v{FO+1}, s14")
    a(f"v_lshlrev_b32 v{FO}, 1, v{FO}")
    reduce_duo(RY2)
    Y2 = RY2
    T7 = P
    a(f"v_cvt_pk_bf16_f32 v{Y2}, v{Y2}, 0")
    a(f"v_lshlrev_b32 v{Y2}, 16, v{Y2}")
    a(f"s_mov_b32 s14, 0x{f32bits(-LOG2E):08x}")
    a(f"v_mul_f32 v{T7}, s14, v{Y2}")
    a(f"v_exp_f32 v{T7}, v{T7}")
    a(f"v_add_f32 v{T7}, 1.0, v{T7}")
    a(f"v_rcp_f32 v{T7}, v{T7}")
    a(f"v_mul_f32 v{Y2}, v{Y2}, v{T7}")
    a(f"v_cvt_pk_bf16_f32 v{Y2}, v{Y2}, 0")
    a(f"v_lshlrev_b32 v{Y2}, 16, v{Y2}")
    a(f"v_lshlrev_b32 v{VXV}, 16, v{VXV}")
    if not opts.dbgst:
        stamp(5)
    lds_spin(opts.ygate[0], opts.ygate[1], VZ, VS + 8, sleep=1)
    pipelined_poll("pollY1", n3, Y1S,
                   lambda k: a(f"buffer_load_dwordx4 v[{Y1S[k][0]}:{Y1S[k][0]+3}], v{FA1}, s[56:59], 0 offen sc1"), opts.stag3,
                   [RY1, RY1 + 1], slow=(tuple(int(x) for x in opts.slow3.split(",")) if opts.slow3 else 0))
    if not opts.dbgst:
        stamp(6)
    Y1 = RY1
    reduce_duo(Y1)
    a(f"v_cvt_pk_bf16_f32 v{Y1}, v{Y1}, 0")
    a(f"v_lshlrev_b32 v{Y1}, 16, v{Y1}")
    a(f"v_mul_f32 v{Y1}, v{Y1}, v{Y2}")
    a(f"v_cvt_pk_bf16_f32 v{Y1}, v{Y1}, 0")
    a(f"v_lshlrev_b32 v{Y1}, 16, v{Y1}")
    a(f"v_add_f32 v{Y1}, v{VXV}, v{Y1}")
    a(f"v_cvt_pk_bf16_f32 v{Y1}, v{Y1}, 0")
    a("s_mov_b32 s10, 3")
    a("s_mov_b32 s11, 3")
    a("s_mov_b64 exec, s[10:11]")
    a(f"buffer_store_short v{Y1}, v{FO}, s[64:67], 0 offen")
    a("s_or_b32 s10, s6, s3")
    a("s_cmp_lg_u32 s10, 0")
    a("s_cbranch_scc1 L_noep")
    a("s_mov_b64 exec, 1")
    a(f"v_mov_b32 v{VS+2}, {WS_EPOCH}")
    a(f"v_mov_b32 v{VS+3}, s68")
    a(f"buffer_store_dword v{VS+3}, v{VS+2}, s[56:59], 0 offen sc1")
    a.label("L_noep")
    a("s_mov_b64 exec, -1")
    if not opts.dbgst:
        stamp(7)
    else:
        stamp(4)
    a.label("L_sfin")
    a("s_add_u32 s3, s3, 4")
    a("s_branch L_fin")

    a.label("L_aux")
    a.c("---- aux wave: a = s3 (0..3) ----")
    a("s_setprio 3")
    XR = 20
    VE = 30
    WQ = 32
    W1 = 52
    TMP = 64
    ACC = 96
    W2 = 120
    WO = 136
    LO2 = 96
    AY = 104
    BOP = 32
    a("s_cmp_lg_u32 s3, 0")
    a("s_cbranch_scc1 L_noclr")
    for r in range(4, 8):
        a(f"v_mov_b32 v{r}, 0")
    a(f"ds_write_b128 v4, v[4:7] offset:{L_SYNC}")
    a(f"ds_write_b128 v4, v[4:7] offset:{L_SYNC+16}")
    a(f"ds_write_b128 v4, v[4:7] offset:{L_SYNC+32}")
    a.label("L_noclr")
    a(f"v_lshlrev_b32 v2, 4, v0")
    a(f"v_lshlrev_b32 v3, 2, v0")
    a(f"v_mov_b32 v{VE}, {WS_EPOCH}")
    a("s_mul_i32 s9, s5, 80")
    a("s_mul_i32 s10, s3, 20")
    a("s_add_u32 s9, s9, s10")
    a(f"v_lshrrev_b32 v10, 4, v0")
    a(f"v_and_b32 v11, 15, v0")
    RG, C = 10, 11
    a(f"v_add_u32 v{TMP+10}, s9, v{RG}")
    a(f"v_lshlrev_b32 v{TMP+11}, 1, v{TMP+10}")
    a(f"v_lshlrev_b32 v{TMP+1}, 13, v{TMP+10}")
    a(f"v_lshl_add_u32 v{TMP+1}, v{C}, 4, v{TMP+1}")
    a("s_lshl_b32 s10, s4, 8")
    a(f"v_add_u32 v{TMP+1}, s10, v{TMP+1}")
    a(f"s_cmp_ge_u32 s4, {0 if 'f' in opts.abl else 27}")
    a(f"s_cselect_b32 s13, {OOB}, 0")
    if 'w' in opts.abl:
        a(f"v_add_u32 v{TMP+1}, {OOB}, v{TMP+1}")
    if 'B' in opts.abl:
        a(f"s_cmp_lt_u32 s2, {opts.bhi*64}")
        a(f"s_cselect_b32 s10, {OOB}, 0")
        a("s_bitcmp1_b32 s2, 2")
        a("s_cselect_b32 s10, s10, 0")
        a(f"v_add_u32 v{TMP+1}, s10, v{TMP+1}")
    a("s_movk_i32 s10, 3456")
    a(f"v_mul_lo_u32 v{TMP+2}, v{TMP+10}, s10")
    a(f"v_lshl_add_u32 v{TMP+2}, v{C}, 3, v{TMP+2}")
    a("s_lshl_b32 s10, s4, 7")
    a("s_add_u32 s10, s10, s13")
    a(f"v_add_u32 v{TMP+2}, s10, v{TMP+2}")
    for i in range(1, 5):
        a(f"s_mov_b32 s{88+i}, {i*32768}")
        if i < 4:
            a(f"s_mov_b32 s{92+i}, {i*13824}")
    a(f"s_mov_b32 s88, {4*13824}")
    a("s_waitcnt lgkmcnt(0)")

    def srd(r, lo, size):
        a(f"s_mov_b32 s{r}, s{lo}")
        a(f"s_mov_b32 s{r+1}, s{lo+1}")
        a(f"s_mov_b32 s{r+2}, {size}")
        a(f"s_mov_b32 s{r+3}, 0x00020000")
    a("s_mov_b32 s56, s36")
    a("s_mov_b32 s57, s37")
    srd(40, 16, 2560)
    a(f"buffer_load_dword v{VE}, v{VE}, s[56:59], 0 offen sc1")
    a(f"buffer_load_dwordx4 v[4:7], v2, s[40:43], 0 offen")
    a(f"buffer_load_dword v8, v3, s[40:43], 0 offen offset:1024")
    a(f"buffer_load_dwordx4 v[12:15], v2, s[40:43], 0 offen offset:1280")
    a(f"buffer_load_dword v16, v3, s[40:43], 0 offen offset:2304")
    srd(44, 22, 5242880)
    for i in range(5):
        so = "0" if i == 0 else f"s{88+i}"
        a(f"buffer_load_dwordx4 v[{WQ+4*i}:{WQ+4*i+3}], v{TMP+1}, s[44:47], {so} offen {wpol}")
    if 'B' in opts.abl:
        a("s_cmp_eq_u32 s8, 1")
        a(f"s_cmp_lt_u32 s2, {opts.bhi*64}")
        a("s_cbranch_scc0 L_nob")
        a("s_bitcmp1_b32 s2, 2")
        a("s_cbranch_scc1 L_nob")
        a(f"v_add_u32 v{TMP+7}, 1024, v{TMP+1}")
        for i in range(5):
            so = "0" if i == 0 else f"s{88+i}"
            a(f"buffer_load_dwordx4 v[{ACC+4*i}:{ACC+4*i+3}], v{TMP+7}, s[44:47], {so} offen {wpol}")
        a.label("L_nob")
    srd(48, 28, 2211840)
    for i in range(5):
        so = "0" if i == 0 else (f"s{92+i}" if i < 4 else "s88")
        a(f"buffer_load_dwordx2 v[{W1+2*i}:{W1+2*i+1}], v{TMP+2}, s[48:51], {so} offen {wpol}")
    for i in range(5):
        for b in range(2):
            a(f"buffer_load_ushort v{XR+2*i+b}, v{TMP+11}, s[40:43], 0 offen offset:{b*1280 + i*8}")
    a("s_waitcnt lgkmcnt(0)")
    a("s_barrier")
    a(f"v_mov_b32 v{TMP+5}, 0")
    a(f"v_mov_b32 v{TMP+6}, {OOB}")
    a(f"v_cmp_lt_u32 vcc, 9, v{C}")
    a(f"v_cndmask_b32 v{TMP+5}, v{TMP+5}, v{TMP+6}, vcc")
    a(f"v_lshl_add_u32 v{TMP+5}, v{C}, 4, v{TMP+5}")
    a("s_mul_i32 s10, s5, 160")
    a(f"v_add_u32 v{TMP+5}, s10, v{TMP+5}")
    a("s_movk_i32 s14, 1280")
    a("s_lshl_b32 s10, s4, 6")
    a("s_lshl_b32 s11, s3, 4")
    a("s_add_u32 s10, s10, s11")
    a(f"v_lshl_add_u32 v{TMP+3}, v{RG}, 2, s10")
    a(f"v_mul_lo_u32 v{TMP+3}, v{TMP+3}, s14")
    a(f"v_add_u32 v{TMP+3}, v{TMP+5}, v{TMP+3}")
    a(f"v_add_u32 v{TMP+3}, s13, v{TMP+3}")
    a("s_lshl_b32 s10, s4, 7")
    a("s_lshl_b32 s11, s3, 5")
    a("s_add_u32 s10, s10, s11")
    a(f"v_lshl_add_u32 v{TMP+4}, v{RG}, 3, s10")
    a(f"v_mul_lo_u32 v{TMP+4}, v{TMP+4}, s14")
    a(f"v_add_u32 v{TMP+4}, v{TMP+5}, v{TMP+4}")
    if 'o' in opts.abl:
        a(f"v_add_u32 v{TMP+4}, {OOB}, v{TMP+4}")
    a("s_movk_i32 s12, 5120")
    srd(52, 30, 2211840)
    for i in range(4):
        a(f"buffer_load_dwordx4 v[{W2+4*i}:{W2+4*i+3}], v{TMP+3}, s[52:55], 0 offen offset:{i*1280} {wpol}")
    srd(60, 24, 5242880)
    for i in range(8):
        so = "0" if i < 4 else "s12"
        a(f"buffer_load_dwordx4 v[{WO+4*i}:{WO+4*i+3}], v{TMP+4}, s[60:63], {so} offen offset:{(i&3)*1280} {wpol}")

    a("s_waitcnt vmcnt(32)")
    a(f"v_readfirstlane_b32 s68, v{VE}")
    a("s_mov_b32 s15, 0xffff0000")
    a("s_add_u32 s68, s68, 1")
    a("s_xor_b32 s69, s68, 0x9e3779b9")
    F = TMP + 12
    srcs = [[4, 5, 6, 7, 8], [12, 13, 14, 15, 16]]
    for b in range(2):
        for d in range(5):
            a(f"v_lshlrev_b32 v{F+10*b+2*d}, 16, v{srcs[b][d]}")
            a(f"v_and_b32 v{F+10*b+2*d+1}, s15, v{srcs[b][d]}")
    S0, S1, Q0, Q1, t0, t1 = 4, 5, 6, 7, 8, 9

    def wave_sum2(r0, r1, sbase):
        for ctrl in ["quad_perm:[1,0,3,2]", "quad_perm:[2,3,0,1]", "row_half_mirror", "row_mirror"]:
            a(f"v_add_f32_dpp v{r0}, v{r0}, v{r0} {ctrl} row_mask:0xf bank_mask:0xf")
            a(f"v_add_f32_dpp v{r1}, v{r1}, v{r1} {ctrl} row_mask:0xf bank_mask:0xf")
        for r in range(4):
            a(f"v_readlane_b32 s{sbase+r}, v{r0}, {16*r}")
            a(f"v_readlane_b32 s{sbase+4+r}, v{r1}, {16*r}")
        a(f"v_mov_b32 v{r0}, s{sbase}")
        a(f"v_mov_b32 v{r1}, s{sbase+4}")
        for r in range(1, 4):
            a(f"v_add_f32 v{r0}, s{sbase+r}, v{r0}")
            a(f"v_add_f32 v{r1}, s{sbase+4+r}, v{r1}")

    for e in range(1, 10):
        for b, S in ((0, S0), (1, S1)):
            if e == 1:
                a(f"v_add_f32 v{S}, v{F+10*b}, v{F+10*b+1}")
            else:
                a(f"v_add_f32 v{S}, v{S}, v{F+10*b+e}")
    wave_sum2(S0, S1, 88)
    a(f"s_mov_b32 s14, 0x{f32bits(1.0/640):08x}")
    a(f"v_mul_f32 v{S0}, s14, v{S0}")
    a(f"v_mul_f32 v{S1}, s14, v{S1}")
    for b, S in ((0, S0), (1, S1)):
        for e in range(10):
            a(f"v_sub_f32 v{F+10*b+e}, v{F+10*b+e}, v{S}")
    for e in range(10):
        for b, Q in ((0, Q0), (1, Q1)):
            if e == 0:
                a(f"v_mul_f32 v{Q}, v{F+10*b}, v{F+10*b}")
            else:
                a(f"v_fma_f32 v{Q}, v{F+10*b+e}, v{F+10*b+e}, v{Q}")
    wave_sum2(Q0, Q1, 88)
    a(f"v_mul_f32 v{Q0}, s14, v{Q0}")
    a(f"v_mul_f32 v{Q1}, s14, v{Q1}")
    a(f"v_cvt_pk_bf16_f32 v{t0}, v{S0}, v{S1}")
    a(f"v_cvt_pk_bf16_f32 v{t1}, v{Q0}, v{Q1}")
    a(f"v_lshlrev_b32 v{S0}, 16, v{t0}")
    a(f"v_and_b32 v{S1}, s15, v{t0}")
    a(f"v_lshlrev_b32 v{Q0}, 16, v{t1}")
    a(f"v_and_b32 v{Q1}, s15, v{t1}")
    a(f"s_mov_b32 s14, 0x{f32bits(1e-5):08x}")
    a(f"v_add_f32 v{Q0}, s14, v{Q0}")
    a(f"v_add_f32 v{Q1}, s14, v{Q1}")
    a(f"v_cvt_pk_bf16_f32 v{t1}, v{Q0}, v{Q1}")
    a(f"v_lshlrev_b32 v{Q0}, 16, v{t1}")
    a(f"v_and_b32 v{Q1}, s15, v{t1}")
    a(f"v_sqrt_f32 v{Q0}, v{Q0}")
    a(f"v_sqrt_f32 v{Q1}, v{Q1}")
    a(f"v_cvt_pk_bf16_f32 v{t1}, v{Q0}, v{Q1}")
    a(f"v_lshlrev_b32 v{Q0}, 16, v{t1}")
    a(f"v_and_b32 v{Q1}, s15, v{t1}")
    a(f"v_rcp_f32 v{Q0}, v{Q0}")
    a(f"v_rcp_f32 v{Q1}, v{Q1}")
    XH = F
    MS = [S0, S1]; RS = [Q0, Q1]
    a("s_waitcnt vmcnt(12)")

    def each(fn):
        for i in range(5):
            for b in range(2):
                fn(XR + 2*i + b, b, i)
    each(lambda r, b, i: a(f"v_lshlrev_b32 v{r}, 16, v{r}"))
    each(lambda r, b, i: a(f"v_sub_f32 v{r}, v{r}, v{MS[b]}"))
    each(lambda r, b, i: a(f"v_cvt_pk_bf16_f32 v{r}, v{r}, 0"))
    each(lambda r, b, i: a(f"v_lshlrev_b32 v{r}, 16, v{r}"))
    each(lambda r, b, i: a(f"v_mul_f32 v{r}, v{r}, v{RS[b]}"))
    each(lambda r, b, i: a(f"v_cvt_pk_bf16_f32 v{r}, v{r}, 0"))
    each(lambda r, b, i: a(f"v_lshlrev_b32 v{XH+2*i+b}, 16, v{r}"))
    AQ = ACC; AH = ACC + 16
    for i in range(5):
        for b in range(2):
            for d in range(4):
                for hl in range(2):
                    acc = AQ + 8*b + 2*d + hl
                    xs = (XR if hl == 0 else XH) + 2*i + b
                    s2 = "0" if i == 0 else f"v{acc}"
                    a(f"v_dot2_f32_bf16 v{acc}, v{WQ+4*i+d}, v{xs}, {s2}")
    for i in range(5):
        for b in range(2):
            for d in range(2):
                for hl in range(2):
                    acc = AH + 4*b + 2*d + hl
                    xs = (XR if hl == 0 else XH) + 2*i + b
                    s2 = "0" if i == 0 else f"v{acc}"
                    a(f"v_dot2_f32_bf16 v{acc}, v{W1+2*i+d}, v{xs}, {s2}")

    def reduce16(base):
        for k in range(8):
            a(f"v_permlane32_swap_b32 v{base+k}, v{base+k+8}")
        for k in range(8):
            a(f"v_add_f32 v{base+k}, v{base+k}, v{base+k+8}")
        for k in range(4):
            a(f"v_permlane16_swap_b32 v{base+k}, v{base+k+4}")
        for k in range(4):
            a(f"v_add_f32 v{base+k}, v{base+k}, v{base+k+4}")

    reduce16(AQ)
    for k in range(4):
        a(f"v_permlane32_swap_b32 v{AH+k}, v{AH+k+4}")
    for k in range(4):
        a(f"v_add_f32 v{AH+k}, v{AH+k}, v{AH+k+4}")
    for k in range(2):
        a(f"v_permlane16_swap_b32 v{AH+k}, v{AH+k+2}")
    for k in range(2):
        a(f"v_add_f32 v{AH+k}, v{AH+k}, v{AH+k+2}")
    a(f"v_lshrrev_b32 v2, 1, v{RG}")
    a(f"v_and_b32 v3, 1, v{RG}")
    a(f"v_lshlrev_b32 v{TMP}, 9, v2")
    a(f"v_lshl_add_u32 v{TMP}, v{C}, 5, v{TMP}")
    a(f"v_lshl_add_u32 v{TMP}, v3, 4, v{TMP}")
    a("s_lshl_b32 s10, s3, 10")
    a(f"v_add_u32 v{TMP}, s10, v{TMP}")
    a(f"ds_write_b128 v{TMP}, v[{AQ}:{AQ+3}] offset:{L_QP}")
    a(f"v_lshlrev_b32 v{TMP+1}, 8, v2")
    a(f"v_lshl_add_u32 v{TMP+1}, v{C}, 4, v{TMP+1}")
    a(f"v_lshl_add_u32 v{TMP+1}, v3, 3, v{TMP+1}")
    a("s_lshl_b32 s10, s3, 9")
    a(f"v_add_u32 v{TMP+1}, s10, v{TMP+1}")
    a(f"ds_write_b64 v{TMP+1}, v[{AH}:{AH+1}] offset:{L_HP}")
    VY = 31
    a("s_movk_i32 s10, 320")
    a(f"v_mul_u32_u24 v{VY}, s10, v2")
    a(f"v_lshl_add_u32 v{VY}, v{C}, 5, v{VY}")
    a(f"v_lshl_add_u32 v{VY}, v3, 4, v{VY}")
    a("s_mul_i32 s10, s3, 640")
    a(f"v_add_u32 v{VY}, s10, v{VY}")
    VZ = 12
    a(f"v_mov_b32 v{VZ}, 0")
    lds_arrive(C1, VZ, 3)
    lds_spin(C1, 4, VZ, 3)
    stamp(1)

    G = TMP

    def check_tags(regs, lbl_retry_cnt, lbl_loop, lbl_done):
        tags_bad(regs)
        a(f"s_cbranch_scc1 {lbl_done}")
        a(f"s_sub_u32 {lbl_retry_cnt}, {lbl_retry_cnt}, 1")
        a(f"s_cmp_eq_u32 {lbl_retry_cnt}, 0")
        a(f"s_cbranch_scc0 {lbl_loop}")

    def preperm():
        a("s_mov_b32 s10, 0x05040100")
        a("s_mov_b32 s11, 0x07060302")
        for q in range(2):
            for d in range(4):
                r0, r1 = W2 + 8*q + d, W2 + 8*q + 4 + d
                a(f"v_perm_b32 v{LO2+4*q+d}, v{r1}, v{r0}, s10")
                a(f"v_perm_b32 v{r1}, v{r1}, v{r0}, s11")
        for e in range(8):
            for t in range(4):
                r0, r1 = WO + 8*t + (e >> 1), WO + 8*t + 4 + (e >> 1)
                a(f"v_perm_b32 v{BOP+4*e+t}, v{r1}, v{r0}, s{10 + (e & 1)}")

    a("s_cmp_eq_u32 s3, 3")
    a("s_cbranch_scc1 L_h1_gather")
    if 'F' in opts.abl:
        a("s_cmp_eq_u32 s3, 2")
        a("s_cbranch_scc0 L_now2skip")
        a("s_waitcnt vmcnt(0)")
        preperm()
        a("s_branch L_b3")
        a.label("L_now2skip")
    a(f"v_lshlrev_b32 v2, 3, v0")
    a("s_cmp_eq_u32 s3, 2")
    a("s_cbranch_scc1 L_h1_pubh")
    a("s_lshl_b32 s10, s3, 9")
    a(f"v_add_u32 v2, s10, v2")
    for w in range(4):
        a(f"ds_read_b64 v[{G+4+2*w}:{G+5+2*w}], v2 offset:{L_QP + w*1024}")
    a("s_lshl_b32 s11, s3, 10")
    a("s_branch L_h1_pub")
    a.label("L_h1_pubh")
    for w in range(4):
        a(f"ds_read_b64 v[{G+4+2*w}:{G+5+2*w}], v2 offset:{L_HP + w*512}")
    a("s_movk_i32 s11, 2048")
    a.label("L_h1_pub")
    a("s_mul_i32 s10, s6, 3072")
    a("s_add_u32 s10, s10, s11")
    a(f"v_lshl_add_u32 v3, v0, 4, s10")
    set_tag(G)
    a("s_waitcnt lgkmcnt(0)")
    a(f"v_add_f32 v{G}, v{G+4}, v{G+6}")
    a(f"v_add_f32 v{G+1}, v{G+5}, v{G+7}")
    a(f"v_add_f32 v{G+8}, v{G+8}, v{G+10}")
    a(f"v_add_f32 v{G+9}, v{G+9}, v{G+11}")
    a(f"v_add_f32 v{G}, v{G}, v{G+8}")
    a(f"v_add_f32 v{G+1}, v{G+1}, v{G+9}")
    if opts.h1f:
        a(f"s_mov_b32 s10, {FOFF}")
        a(f"buffer_store_dwordx4 v[{G}:{G+3}], v3, s[56:59], s10 offen")
    a(f"buffer_store_dwordx4 v[{G}:{G+3}], v3, s[56:59], 0 offen sc1")
    a(f"s_mul_i32 s10, s4, {GSTR}")
    a("s_lshl_b32 s11, s3, 6")
    a("s_add_u32 s10, s10, s11")
    a("s_lshl_b32 s11, s5, 3")
    a("s_add_u32 s10, s10, s11")
    a(f"s_add_u32 s10, s10, {WS_H1F}")
    a("v_mov_b32 v3, s10")
    a("s_mov_b64 exec, 1")
    a(f"buffer_store_dwordx2 v[{G+2}:{G+3}], v3, s[56:59], 0 offen sc1")
    a("s_mov_b64 exec, -1")
    a("s_cmp_eq_u32 s3, 2")
    a("s_cbranch_scc1 L_h1_gather")
    a(f"s_waitcnt vmcnt({3 if opts.h1f else 2})")
    preperm()
    if opts.fast:
        a("s_cmp_lg_u32 s3, 0")
        a("s_cbranch_scc1 L_nopre")
        for r in range(4):
            a(f"v_mov_b32 v{G+r}, 0")
        a("s_lshl_b32 s10, s6, 10")
        a(f"s_add_u32 s10, s10, {WS_H2 + FOFF}")
        a(f"v_lshl_add_u32 v3, v0, 4, s10")
        if opts.preld:
            a(f"buffer_load_dwordx4 v[{G}:{G+3}], v3, s[56:59], 0 offen")
        else:
            a(f"buffer_store_dwordx4 v[{G}:{G+3}], v3, s[56:59], 0 offen")
        a(f"s_mul_i32 s10, s4, {GSTR}")
        a("s_lshl_b32 s11, s5, 7")
        a("s_add_u32 s10, s10, s11")
        a(f"s_add_u32 s10, s10, {WS_ML + FOFF}")
        a(f"v_lshl_add_u32 v2, v0, 4, s10")
        a("s_mov_b64 exec, 0xff")
        if opts.preld:
            a(f"buffer_load_dwordx4 v[{G+4}:{G+7}], v2, s[56:59], 0 offen")
        else:
            a(f"buffer_store_dwordx4 v[{G}:{G+3}], v2, s[56:59], 0 offen")
        a("s_mov_b64 exec, -1")
        if opts.preld:
            a("s_waitcnt vmcnt(0)")
        a.label("L_nopre")
    stamp(2)
    a("s_branch L_b3")

    a.label("L_h1_gather")
    a("s_lshl_b32 s10, s7, 10")
    a("s_cmp_eq_u32 s3, 2")
    a("s_cselect_b32 s10, 2048, s10")
    a("s_mul_i32 s11, s4, 24576")
    a("s_add_u32 s10, s10, s11")
    a(f"v_lshl_add_u32 v3, v0, 4, s10")
    for jj in range(1, 8):
        a(f"s_mov_b32 s{88+jj}, {jj*3072}")
    a("s_cmp_eq_u32 s3, 2")
    a("s_cbranch_scc1 L_pp2")
    a("s_waitcnt vmcnt(0)")
    a("s_branch L_pp")
    a.label("L_pp2")
    a(f"s_waitcnt vmcnt({3 if opts.h1f else 2})")
    a.label("L_pp")
    preperm()
    a("s_cmp_eq_u32 s3, 2")
    a("s_cselect_b32 s10, 2, s7")
    a("s_lshl_b32 s10, s10, 6")
    a(f"s_mul_i32 s11, s4, {GSTR}")
    a("s_add_u32 s10, s10, s11")
    a(f"s_add_u32 s10, s10, {WS_H1F}")
    if "h" not in opts.abl:
        hint_poll("hint1", 10, 0)
    if "g" not in opts.abl:
        a(f"s_mov_b32 s12, {opts.maxpoll}")
        if opts.h1f:
            a(f"v_add_u32 v3, {FOFF}, v3")
            a(f"s_mov_b32 s13, {FOFF}")
        a.label("L_poll1")
        for jj in range(8):
            so = "0" if jj == 0 else f"s{88+jj}"
            a(f"buffer_load_dwordx4 v[{G+4*jj}:{G+4*jj+3}], v3, s[56:59], {so} offen sc1")
        a("s_waitcnt vmcnt(0)")
        if opts.h1f:
            tags_bad([G+4*jj for jj in range(8)])
            a("s_cbranch_scc1 L_poll1_done")
            a("v_subrev_u32 v3, s13, v3")
            a("s_mov_b32 s13, 0")
            a("s_sub_u32 s12, s12, 1")
            a("s_cmp_eq_u32 s12, 0")
            a("s_cbranch_scc0 L_poll1")
        elif "h" not in opts.abl:
            check_tags([G+4*jj for jj in range(8)], "s12", "L_poll1", "L_poll1_done")
        a.label("L_poll1_done")
    stamp(2)
    for e in range(2):
        a(f"v_add_f32 v{G+e}, v{G+e}, v{G+4+e}")
        a(f"v_add_f32 v{G+8+e}, v{G+8+e}, v{G+12+e}")
        a(f"v_add_f32 v{G+16+e}, v{G+16+e}, v{G+20+e}")
        a(f"v_add_f32 v{G+24+e}, v{G+24+e}, v{G+28+e}")
    for e in range(2):
        a(f"v_add_f32 v{G+e}, v{G+e}, v{G+8+e}")
        a(f"v_add_f32 v{G+16+e}, v{G+16+e}, v{G+24+e}")
    for e in range(2):
        a(f"v_add_f32 v{G+e}, v{G+e}, v{G+16+e}")
    a(f"v_lshlrev_b32 v2, 2, v0")
    a("s_cmp_eq_u32 s3, 2")
    a("s_cbranch_scc0 L_qw")
    a(f"v_max_f32 v{G}, 0, v{G}")
    a(f"v_max_f32 v{G+1}, 0, v{G+1}")
    a(f"v_add_u32 v2, {L_H - L_Q}, v2")
    a.label("L_qw")
    a(f"v_cvt_pk_bf16_f32 v{G}, v{G}, v{G+1}")
    a(f"ds_write_b32 v2, v{G} offset:{L_Q}")
    a("v_mov_b32 v2, s68")
    a("v_mov_b32 v3, s69")
    a(f"ds_write_b64 v{VZ}, v[2:3] offset:{L_TAG}")
    a("s_cmp_eq_u32 s3, 2")
    a(f"s_movk_i32 s10, {QF}")
    a(f"s_movk_i32 s11, {HF}")
    a(f"s_cselect_b32 s10, s11, s10")
    a("v_mov_b32 v2, s10")
    a("v_mov_b32 v3, 1")
    a(f"ds_write_b32 v2, v3")
    a.label("L_b3")
    if 'F' in opts.abl:
        a("s_branch L_noy2")
    lds_spin(HF, 1, VZ, 3)
    a("s_lshl_b32 s10, s3, 5")
    a(f"v_lshl_add_u32 v2, v{RG}, 3, s10")
    a(f"ds_read_b64 v[{TMP}:{TMP+1}], v2 offset:{L_H}")
    a(f"ds_read_b64 v[{TMP+2}:{TMP+3}], v2 offset:{L_H+128}")
    a("s_waitcnt lgkmcnt(0)")
    for q in range(2):
        for b in range(2):
            for d in range(4):
                for hl in range(2):
                    acc = AY + 8*b + 2*d + hl
                    w = (LO2 + 4*q + d) if hl == 0 else (W2 + 8*q + 4 + d)
                    s2 = "0" if q == 0 else f"v{acc}"
                    a(f"v_dot2_f32_bf16 v{acc}, v{w}, v{TMP+2*b+q}, {s2}")
    reduce16(AY)
    a(f"s_mov_b32 s10, {LANES10}")
    a(f"s_mov_b32 s11, {LANES10}")
    a("s_mov_b64 exec, s[10:11]")
    a(f"ds_write_b128 v{VY}, v[{AY}:{AY+3}] offset:{L_Y2P}")
    a("s_mov_b64 exec, -1")
    lds_arrive(C4, VZ, 3, rtn=True)
    a("s_cmp_eq_u32 s10, 3")
    a("s_cbranch_scc0 L_noy2")
    a(f"v_lshlrev_b32 v2, 3, v0")
    for w in range(4):
        a(f"ds_read_b64 v[{TMP+8+2*w}:{TMP+9+2*w}], v2 offset:{L_Y2P + w*640}")
    for w in range(4):
        a(f"ds_read_b64 v[{TMP+16+2*w}:{TMP+17+2*w}], v2 offset:{L_Y2P + w*640 + 512}")
    def pair_addr(vdst, vp, vt):
        a(f"v_lshrrev_b32 v{vdst}, 2, v{vp}")
        a(f"v_cmp_lt_u32 vcc, 39, v{vp}")
        a(f"v_mov_b32 v{vt}, 0")
        a(f"v_cndmask_b32 v{vt}, v{vt}, v{TMP+31}, vcc")
        a(f"v_add_u32 v{vdst}, v{vdst}, v{vt}")
        a(f"v_lshlrev_b32 v{vdst}, 11, v{vdst}")
        a(f"v_and_b32 v{vt}, 2, v{vp}")
        a(f"v_lshl_add_u32 v{vdst}, v{vt}, 9, v{vdst}")
        a(f"v_and_b32 v{vt}, 1, v{vp}")
        a(f"v_lshl_add_u32 v{vdst}, v{vt}, 4, v{vdst}")
        a(f"v_add_u32 v{vdst}, s10, v{vdst}")
    if opts.y2lay:
        a("s_mul_i32 s10, s4, 10240")
        a("s_mul_i32 s11, s5, 1280")
        a("s_add_u32 s10, s10, s11")
        a(f"s_add_u32 s10, s10, {WS_H3B}")
        a("v_lshl_add_u32 v3, v0, 4, s10")
        a("v_add_u32 v2, 1024, v3")
    else:
        a("s_mul_i32 s10, s5, 20480")
        a("s_lshl_b32 s11, s4, 5")
        a("s_add_u32 s10, s10, s11")
        a(f"s_add_u32 s10, s10, {WS_H3B}")
        a(f"v_mov_b32 v{TMP+31}, 70")
        pair_addr(3, 0, TMP + 30)
        a(f"v_add_u32 v{TMP+29}, 64, v0")
        pair_addr(2, TMP + 29, TMP + 30)
    set_tag(TMP)
    set_tag(TMP+4)
    a("s_waitcnt lgkmcnt(0)")
    for e in range(2):
        a(f"v_add_f32 v{TMP+8+e}, v{TMP+8+e}, v{TMP+10+e}")
        a(f"v_add_f32 v{TMP+12+e}, v{TMP+12+e}, v{TMP+14+e}")
        a(f"v_add_f32 v{TMP+e}, v{TMP+8+e}, v{TMP+12+e}")
    if 'y' not in opts.abl:
        a(f"buffer_store_dwordx4 v[{TMP}:{TMP+3}], v3, s[56:59], 0 offen sc1")
    for e in range(2):
        a(f"v_add_f32 v{TMP+16+e}, v{TMP+16+e}, v{TMP+18+e}")
        a(f"v_add_f32 v{TMP+20+e}, v{TMP+20+e}, v{TMP+22+e}")
        a(f"v_add_f32 v{TMP+4+e}, v{TMP+16+e}, v{TMP+20+e}")
    a("s_mov_b64 exec, 0xffff")
    if 'y' not in opts.abl:
        a(f"buffer_store_dwordx4 v[{TMP+4}:{TMP+7}], v2, s[56:59], 0 offen sc1")
    a("s_mov_b64 exec, -1")
    a.label("L_noy2")
    stamp(3)
    MASK = 120
    AOP = 136
    ACC2 = 96
    YR = 104
    VPH, VYW, VY0, VY1 = 13, 14, 15, 16
    GY = 20
    a("v_lshrrev_b32 v2, 1, v0")
    a("v_and_b32 v2, 7, v2")
    for q in range(4):
        for h in range(2):
            a(f"v_cmp_eq_u32 vcc, {2*q+h}, v2")
            a(f"v_cndmask_b32 v{MASK+2*q+h}, 0, -1, vcc")
    a("v_and_b32 v3, 1, v0")
    a("v_lshlrev_b32 v3, 12, v3")
    a("v_lshrrev_b32 v4, 1, v2")
    a("v_lshl_add_u32 v3, v4, 10, v3")
    a(f"v_lshl_add_u32 v3, v{RG}, 6, v3")
    a("v_and_b32 v4, 1, v2")
    a("v_lshl_add_u32 v3, v4, 5, v3")
    a("s_lshl_b32 s10, s4, 13")
    a("s_lshl_b32 s11, s3, 8")
    a("s_add_u32 s10, s10, s11")
    a(f"s_add_u32 s10, s10, {WS_H2}")
    a(f"v_add_u32 v{VPH}, s10, v3")
    a("s_lshl_b32 s10, s3, 10")
    a(f"v_lshl_add_u32 v{VYW}, v0, 4, s10")
    a(f"v_lshlrev_b32 v3, 11, v{C}")
    a(f"v_lshrrev_b32 v4, 1, v{RG}")
    a("v_lshl_add_u32 v3, v4, 10, v3")
    a(f"v_and_b32 v4, 1, v{RG}")
    a("v_lshl_add_u32 v3, v4, 4, v3")
    a("s_mul_i32 s10, s5, 20480")
    a("s_lshl_b32 s11, s4, 5")
    a("s_add_u32 s10, s10, s11")
    a(f"s_add_u32 s10, s10, {WS_H3A}")
    a(f"v_add_u32 v{VY0}, s10, v3")
    a(f"v_lshlrev_b32 v{VY1}, 4, v0")
    if opts.y1lay:
        a("s_mul_i32 s10, s4, 10240")
        a("s_mul_i32 s11, s5, 1280")
        a("s_add_u32 s10, s10, s11")
        a(f"s_add_u32 s10, s10, {WS_H3A}")
        a(f"v_lshl_add_u32 v{VY0}, v0, 4, s10")
        a("v_and_b32 v3, 3, v0")
        a("v_lshrrev_b32 v4, 2, v0")
        a("v_and_b32 v4, 15, v4")
        a("v_lshl_add_u32 v3, v3, 4, v4")
        a(f"v_lshlrev_b32 v{VY1}, 4, v3")
    set_tag(GY)
    set_tag(GY + 4)
    a("s_cmp_lg_u32 s3, 0")
    a("s_cbranch_scc1 L_noml")
    lds_spin(C2, 8, VZ, 3, sleep=1)
    a(f"ds_read_b128 v[{TMP}:{TMP+3}], v{VZ} offset:{L_ML}")
    a(f"ds_read_b128 v[{TMP+4}:{TMP+7}], v{VZ} offset:{L_ML+16}")
    a(f"ds_read_b128 v[{TMP+8}:{TMP+11}], v{VZ} offset:{L_ML+32}")
    a(f"ds_read_b128 v[{TMP+12}:{TMP+15}], v{VZ} offset:{L_ML+48}")
    GM = TMP + 16
    set_tag(GM)
    a(f"s_mul_i32 s10, s4, {GSTR}")
    a("s_lshl_b32 s11, s5, 7")
    a("s_add_u32 s10, s10, s11")
    a(f"s_add_u32 s10, s10, {WS_ML}")
    a("v_mov_b32 v3, s10")
    a(f"s_mov_b32 s14, 0x{f32bits(LOG2E):08x}")
    a("s_waitcnt lgkmcnt(0)")
    M = GM
    a(f"v_max3_f32 v{M}, v{TMP}, v{TMP+1}, v{TMP+2}")
    a(f"v_max3_f32 v{M}, v{M}, v{TMP+3}, v{TMP+4}")
    a(f"v_max3_f32 v{M}, v{M}, v{TMP+5}, v{TMP+6}")
    a(f"v_max_f32 v{M}, v{M}, v{TMP+7}")
    E8 = TMP + 24
    for w in range(8):
        a(f"v_sub_f32 v{E8+w}, v{TMP+w}, v{M}")
    for w in range(8):
        a(f"v_mul_f32 v{E8+w}, s14, v{E8+w}")
    for w in range(8):
        a(f"v_exp_f32 v{E8+w}, v{E8+w}")
    a("s_mov_b64 exec, 1")
    a(f"ds_write_b128 v{VZ}, v[{E8}:{E8+3}] offset:{L_F}")
    a(f"ds_write_b128 v{VZ}, v[{E8+4}:{E8+7}] offset:{L_F+16}")
    a("v_mov_b32 v4, 1")
    a(f"ds_write_b32 v{VZ}, v4 offset:{FF}")
    a("s_mov_b64 exec, -1")
    Ls = GM + 1
    a(f"v_mul_f32 v{Ls}, v{E8}, v{TMP+8}")
    for w in range(1, 8):
        a(f"v_fma_f32 v{Ls}, v{E8+w}, v{TMP+8+w}, v{Ls}")
    a("s_mov_b64 exec, 1")
    if opts.fast:
        a(f"s_mov_b32 s10, {FOFF}")
        a(f"buffer_store_dwordx4 v[{GM}:{GM+3}], v3, s[56:59], s10 offen")
    a(f"buffer_store_dwordx4 v[{GM}:{GM+3}], v3, s[56:59], 0 offen sc1")
    a("s_mov_b64 exec, -1")
    if opts.fast and opts.reclaim:
        for r in range(4):
            a(f"v_mov_b32 v{TMP+r}, 0")
        a("s_lshl_b32 s10, s6, 10")
        a(f"s_add_u32 s10, s10, {WS_H2 + FOFF}")
        a(f"v_lshl_add_u32 v3, v0, 4, s10")
        a(f"buffer_store_dwordx4 v[{TMP}:{TMP+3}], v3, s[56:59], 0 offen")
    a.label("L_noml")
    if "t" in opts.abl:
        a("s_branch L_fin")
    GP = TMP + 28
    VFS = 17
    VML = 18
    a("v_and_b32 v3, 1, v0")
    a("v_lshlrev_b32 v3, 9, v3")
    a("v_lshrrev_b32 v4, 2, v0")
    a("v_and_b32 v4, 3, v4")
    a("v_lshl_add_u32 v3, v4, 7, v3")
    a(f"s_mul_i32 s10, s4, {GSTR}")
    a(f"s_add_u32 s10, s10, {WS_ML}")
    a(f"v_add_u32 v{VML}, s10, v3")
    a(f"s_mul_i32 s9, s4, {GSTR}")
    a(f"s_add_u32 s9, s9, {WS_H2F}")
    a("s_lshl_b32 s10, s5, 3")
    a("s_add_u32 s10, s10, s9")
    a("v_mov_b32 v19, s10")
    def calc_f():
        a(f"v_max_f32_dpp v5, v{GP}, v{GP} row_ror:4 row_mask:0xf bank_mask:0xf")
        a(f"v_max_f32_dpp v5, v5, v5 row_ror:8 row_mask:0xf bank_mask:0xf")
        a(f"v_sub_f32 v6, v{GP}, v5")
        a(f"v_mul_f32 v6, s14, v6")
        a(f"v_exp_f32 v6, v6")
        a(f"v_mul_f32 v7, v6, v{GP+1}")
        a(f"v_add_f32_dpp v7, v7, v7 row_ror:4 row_mask:0xf bank_mask:0xf")
        a(f"v_add_f32_dpp v7, v7, v7 row_ror:8 row_mask:0xf bank_mask:0xf")
        a(f"v_rcp_f32 v7, v7")
        a(f"v_mul_f32 v{VFS}, v6, v7")
    SRC = "s13"
    if not opts.fast:
        lds_spin(C6, 8, VZ, 3, sleep=2)
    if opts.fast:
        lds_spin(FF, 1, VZ, 3, sleep=4)
        a(f"s_mov_b32 {SRC}, {FOFF}")
        a(f"s_mov_b32 s12, {opts.maxpoll}")
        a.label("L_pollml")
        a(f"buffer_load_dwordx4 v[{GP}:{GP+3}], v{VML}, s[56:59], {SRC} offen sc1")
        a("s_waitcnt vmcnt(0)")
        tags_bad([GP])
        a("s_cbranch_scc1 L_pollml_done")
        a(f"s_sleep {opts.mlsleep}")
        a(f"s_cmp_lt_u32 s12, {opts.maxpoll - opts.nf}")
        a(f"s_cselect_b32 s10, {FOFF}, 0")
        a(f"s_xor_b32 {SRC}, {SRC}, s10")
        a("s_sub_u32 s12, s12, 1")
        a("s_cmp_lg_u32 s12, 0")
        a("s_cbranch_scc1 L_pollml")
        a.label("L_pollml_done")
        a(f"s_mov_b32 s14, 0x{f32bits(LOG2E):08x}")
        calc_f()
        lds_spin(C6, 8, VZ, 3, sleep=1)
        a(f"s_mov_b32 {SRC}, {FOFF}")
    else:
        a("s_cmp_lg_u32 s3, 0")
        a("s_cbranch_scc1 L_nohint0")
        a("s_mov_b64 exec, 1")
        a(f"buffer_store_dwordx2 v[{GY+2}:{GY+3}], v19, s[56:59], 0 offen sc1")
        a("s_mov_b64 exec, -1")
        a.label("L_nohint0")
        a(f"buffer_load_dwordx4 v[{GP}:{GP+3}], v{VML}, s[56:59], 0 offen sc1")
        a("s_cmp_lg_u32 s3, 0")
        a("s_cbranch_scc1 L_nohint")
        hint_poll("hint2", 9, 1)
        a("v_mov_b32 v3, 1")
        a(f"ds_write_b32 v{VZ}, v3 offset:{HG}")
        a.label("L_nohint")
        lds_spin(HG, 1, VZ, 3)
        a(f"s_mov_b32 s12, {opts.maxpoll}")
        a.label("L_pollml")
        a("s_waitcnt vmcnt(0)")
        tags_bad([GP])
        a("s_cbranch_scc1 L_pollml_done")
        a("s_sleep 2")
        a(f"buffer_load_dwordx4 v[{GP}:{GP+3}], v{VML}, s[56:59], 0 offen sc1")
        a("s_sub_u32 s12, s12, 1")
        a("s_cmp_lg_u32 s12, 0")
        a("s_cbranch_scc1 L_pollml")
        a.label("L_pollml_done")
    stamp(4)
    a(f"s_mov_b32 s9, {640 if opts.y1lay else 160*1024}")
    a(f"s_mov_b32 s14, 0x{f32bits(LOG2E):08x}")
    n2 = opts.npoll2
    assert n2 <= (4 if opts.fast else 3)
    PS = [[TMP + 8*k, TMP + 8*k + 4] for k in range(n2)]

    def issue2(k):
        so = SRC if opts.fast else "0"
        a(f"buffer_load_dwordx4 v[{PS[k][0]}:{PS[k][0]+3}], v{VPH}, s[56:59], {so} offen sc1")
        a(f"buffer_load_dwordx4 v[{PS[k][1]}:{PS[k][1]+3}], v{VPH}, s[56:59], {so} offen offset:16 sc1")
        if opts.fast:
            a(f"s_cmp_lt_u32 s12, {opts.maxpoll - opts.nf}")
            a(f"s_cselect_b32 s10, {FOFF}, 0")
            a(f"s_xor_b32 {SRC}, {SRC}, s10")

    O4 = [4, 5, 6, 7]
    pipelined_poll("pollH2", n2, PS, issue2, opts.stag2, O4, after_issue=(None if opts.fast else calc_f))
    stamp(5)
    for r in O4:
        a(f"v_mul_f32 v{r}, v{VFS}, v{r}")
    for ctrl in ["row_ror:4", "row_ror:8"]:
        for r in O4:
            a(f"v_add_f32_dpp v{r}, v{r}, v{r} {ctrl} row_mask:0xf bank_mask:0xf")
    D0, D1 = 2, 3
    a(f"v_cvt_pk_bf16_f32 v{D0}, v{O4[0]}, v{O4[1]}")
    a(f"v_cvt_pk_bf16_f32 v{D1}, v{O4[2]}, v{O4[3]}")
    for q in range(4):
        a(f"v_and_b32 v{AOP+4*q}, v{D0}, v{MASK+2*q}")
        a(f"v_and_b32 v{AOP+4*q+1}, v{D1}, v{MASK+2*q}")
        a(f"v_and_b32 v{AOP+4*q+2}, v{D0}, v{MASK+2*q+1}")
        a(f"v_and_b32 v{AOP+4*q+3}, v{D1}, v{MASK+2*q+1}")
    for q in range(4):
        for od in range(2):
            acc = ACC2 + 4*od
            c = "0" if q == 0 else f"v[{acc}:{acc+3}]"
            e = 2*q + od
            a(f"v_mfma_f32_16x16x32_bf16 v[{acc}:{acc+3}], v[{AOP+4*q}:{AOP+4*q+3}], v[{BOP+4*e}:{BOP+4*e+3}], {c}")
    YW = YR
    a(f"v_add_f32 v{YW}, v{ACC2}, v{ACC2+2}")
    a(f"v_add_f32 v{YW+1}, v{ACC2+4}, v{ACC2+6}")
    a(f"v_add_f32 v{YW+2}, v{ACC2+1}, v{ACC2+3}")
    a(f"v_add_f32 v{YW+3}, v{ACC2+5}, v{ACC2+7}")
    a(f"ds_write_b128 v{VYW}, v[{YW}:{YW+3}] offset:{L_Y1P}")
    lds_arrive(C5, VZ, 3, rtn=True)
    stamp(6)
    a("s_cmp_eq_u32 s10, 3")
    a("s_cbranch_scc0 L_fin")
    for w in range(4):
        a(f"ds_read_b128 v[{YR+4*w}:{YR+4*w+3}], v{VY1} offset:{L_Y1P + w*1024}")
    if opts.y1lay:
        a("s_mov_b32 s10, -1")
        a("s_mov_b32 s11, 0xff")
    else:
        a(f"s_mov_b32 s10, {LANES10}")
        a(f"s_mov_b32 s11, {LANES10}")
    a("s_waitcnt lgkmcnt(2)")
    for e in range(4):
        a(f"v_add_f32 v{YR+e}, v{YR+e}, v{YR+4+e}")
    a("s_waitcnt lgkmcnt(0)")
    for e in range(4):
        a(f"v_add_f32 v{YR+8+e}, v{YR+8+e}, v{YR+12+e}")
    a(f"v_add_f32 v{GY}, v{YR}, v{YR+8}")
    a(f"v_add_f32 v{GY+1}, v{YR+1}, v{YR+9}")
    a(f"v_add_f32 v{GY+4}, v{YR+2}, v{YR+10}")
    a(f"v_add_f32 v{GY+5}, v{YR+3}, v{YR+11}")
    a("s_mov_b64 exec, s[10:11]")
    a(f"buffer_store_dwordx4 v[{GY}:{GY+3}], v{VY0}, s[56:59], 0 offen sc1")
    a(f"buffer_store_dwordx4 v[{GY+4}:{GY+7}], v{VY0}, s[56:59], s9 offen sc1")
    a("s_mov_b64 exec, -1")
    stamp(7)
    a.label("L_fin")
    if stamps:
        a("s_mul_i32 s90, s6, 12")
        a("s_add_u32 s90, s90, s3")
        a("s_lshl_b32 s90, s90, 6")
        a(f"s_add_u32 s90, s90, {WS_STAMP}")
        a("v_mov_b32 v2, s90")
        a("s_waitcnt lgkmcnt(0)")
        for i in range(16):
            a(f"v_mov_b32 v{8+i}, s{ST0+i}")
        a("s_mov_b64 exec, 1")
        for q in range(4):
            a(f"buffer_store_dwordx4 v[{8+4*q}:{11+4*q}], v2, s[56:59], 0 offen offset:{16*q}")
    a.label("L_end")
    a("s_endpgm")

    nv = 168
    out = HEADER
    out += f"; @launch grid=(256,1,1) block=(768,1,1) lds={L_TOTAL}\n"
    out += '.amdgcn_target "amdgcn-amd-amdhsa--gfx950"\n.text\n'
    out += f".globl {KNAME}\n.p2align 8\n.type {KNAME},@function\n{KNAME}:\n"
    out += "\n".join(a.l) + "\n"
    out += f""".section .rodata,"a"
.p2align 6
.amdhsa_kernel {KNAME}
  .amdhsa_next_free_vgpr {nv}
  .amdhsa_next_free_sgpr 96
  .amdhsa_accum_offset {nv}
  .amdhsa_group_segment_fixed_size 0
  .amdhsa_kernarg_size 88
  .amdhsa_user_sgpr_count 2
  .amdhsa_user_sgpr_kernarg_segment_ptr 1
  .amdhsa_system_sgpr_workgroup_id_x 1
.end_amdhsa_kernel
"""
    return out


def main():
    p = argparse.ArgumentParser()
    p.add_argument("-o", default="recurrent_scan__sliding_block_cached__dense_activation_relu__decode.s")
    p.add_argument("--kvpol", default="nt")
    p.add_argument("--wpol", default="nt")
    p.add_argument("--stamps", action="store_true")
    p.add_argument("--maxpoll", type=int, default=20000)
    p.add_argument("--maxspin", type=int, default=2000000)
    p.add_argument("--rotg", type=int, default=1)
    p.add_argument("--rotw", type=int, default=4)
    p.add_argument("--map", default="C")
    p.add_argument("--win", type=int, default=4)
    p.add_argument("--qkv", type=lambda s: [int(x) for x in s.split(",")], default=[1, 1, 1, 1])
    p.add_argument("--fpos", type=int, default=12)
    p.add_argument("--qpos", type=int, default=24)
    p.add_argument("--sched", default="dyn")
    p.add_argument("--kwin", type=int, default=0)
    p.add_argument("--dbgst", action="store_true")
    p.add_argument("--abl", default="")
    p.add_argument("--win2", type=int, default=0)
    p.add_argument("--bpos", type=int, default=3)
    p.add_argument("--hpos", type=int, default=8)
    p.add_argument("--ygate", type=lambda s: tuple(eval(x) for x in s.split(",")), default=(C5, 1))
    p.add_argument("--gate", type=int, default=8)
    p.add_argument("--npoll2", type=int, default=2)
    p.add_argument("--npoll3", type=int, default=4)
    p.add_argument("--stag2", type=int, default=6)
    p.add_argument("--stag3", type=int, default=3)
    p.add_argument("--prio", default="")
    p.add_argument("--qprio", type=int, default=-1)
    p.add_argument("--fast", action="store_true")
    p.add_argument("--nf", type=int, default=48)
    p.add_argument("--slow3", default="")
    p.add_argument("--mlsleep", type=int, default=4)
    p.add_argument("--reclaim", action="store_true")
    p.add_argument("--y1lay", type=int, default=0)
    p.add_argument("--y2lay", type=int, default=0)
    p.add_argument("--preld", type=int, default=0)
    p.add_argument("--h1f", type=int, default=0)
    p.add_argument("--bhi", type=int, default=2)
    o = p.parse_args()
    open(o.o, "w").write(gen(o))
    print("wrote", o.o)


if __name__ == "__main__":
    main()
```

```python
import sys, argparse, struct
from asmh import A
from gen2 import HEADER, KNAME

WS_H1 = 0x0
WS_H2 = 0xC0000
GSTR = 4352
WS_ML = 0x340000
WS_H1F = 0x380000
WS_H2F = 0x300000
WS_H3A = 0x140000
WS_H3B = 0x190000
WS_EPOCH = 0x1F0000
WS_STAMP = 0x200000
WS_SIZE = 0x800000
FOFF = 0x400000

L_QP = 0
L_HP = 4096
L_Q = 6144
L_H = 6400
L_OP = 6656
L_ML = 10752
L_F = 10816
L_TAG = 10848
L_Y2P = 11392
L_Y1P = 13952
L_SYNC = 18048
L_TOTAL = 18176
C1, QF, HF, C2, FF, C3, C4, C5, C6, HG = [L_SYNC + 4 * i for i in range(10)]

LOG2E = 1.4426950408889634
OOB = 0x40000000
LANES10 = "0x03ff03ff"


def f32bits(x):
    return struct.unpack('<I', struct.pack('<f', x))[0]


def gen(opts):
    a = A()
    kvpol = opts.kvpol
    wpol = opts.wpol
    stamps = opts.stamps
    W = opts.win
    ST0 = 72

    def stamp(idx):
        if stamps:
            a(f"s_memrealtime s[{ST0+2*idx}:{ST0+2*idx+1}]")

    uid = [0]

    def lds_spin(off, val, vz, vt, sleep=0):
        uid[0] += 1
        lbl = f"L_spin{uid[0]}"
        a(f"s_mov_b32 s12, {opts.maxspin}")
        a.label(lbl)
        a(f"ds_read_b32 v{vt}, v{vz} offset:{off}")
        a("s_waitcnt lgkmcnt(0)")
        a(f"v_readfirstlane_b32 s10, v{vt}")
        a(f"s_cmp_ge_u32 s10, {val}")
        a(f"s_cbranch_scc1 {lbl}_done")
        if sleep:
            a(f"s_sleep {sleep}")
        a("s_sub_u32 s12, s12, 1")
        a("s_cmp_lg_u32 s12, 0")
        a(f"s_cbranch_scc1 {lbl}")
        a.label(lbl + "_done")

    def lds_arrive(off, vz, vt, rtn=False):
        a(f"v_mov_b32 v{vt}, 1")
        a("s_mov_b64 exec, 1")
        if rtn:
            a(f"ds_add_rtn_u32 v{vt}, v{vz}, v{vt} offset:{off}")
        else:
            a(f"ds_add_u32 v{vz}, v{vt} offset:{off}")
        a("s_mov_b64 exec, -1")
        if rtn:
            a("s_waitcnt lgkmcnt(0)")
            a(f"v_readfirstlane_b32 s10, v{vt}")

    def set_tag(r):
        a(f"v_mov_b32 v{r+2}, s68")
        a(f"v_mov_b32 v{r+3}, s69")

    def tags_bad(regs):
        for n, r in enumerate(regs):
            dst = "s[70:71]" if n == 0 else "vcc"
            a(f"v_cmp_ne_u64 {dst}, v[{r+2}:{r+3}], s[68:69]")
            if n:
                a("s_or_b64 s[70:71], s[70:71], vcc")
        a("s_cmp_eq_u64 s[70:71], 0")

    def pipelined_poll(name, nsets, setregs, issue, stag, res, slow=0, after_issue=None):
        nl = len(setregs[0])
        a(f"s_mov_b32 s12, {opts.maxpoll}")
        a("s_mov_b64 s[38:39], -1")
        for k in range(nsets):
            issue(k)
            if k == 0 and after_issue:
                after_issue()
            if k + 1 < nsets and stag:
                a(f"s_sleep {stag}")
        a.label(f"L_{name}")
        for k in range(nsets):
            a(f"s_waitcnt vmcnt({(nsets-1)*nl})")
            for n, r in enumerate(setregs[k]):
                dst = "s[70:71]" if n == 0 else "vcc"
                a(f"v_cmp_eq_u64 {dst}, v[{r+2}:{r+3}], s[68:69]")
                if n:
                    a("s_and_b64 s[70:71], s[70:71], vcc")
            a("s_and_b64 exec, s[70:71], s[38:39]")
            for n, r in enumerate(setregs[k]):
                a(f"v_mov_b32 v{res[2*n]}, v{r}")
                a(f"v_mov_b32 v{res[2*n+1]}, v{r+1}")
            a("s_andn2_b64 s[38:39], s[38:39], s[70:71]")
            a("s_mov_b64 exec, s[38:39]")
            a(f"s_cbranch_scc0 L_{name}_done")
            if slow:
                a("s_bcnt1_i32_b64 s10, s[38:39]")
                a(f"s_cmp_lt_u32 s10, {slow[0]}")
                uid[0] += 1
                a(f"s_cbranch_scc1 L_fast{uid[0]}")
                a(f"s_sleep {slow[1]}")
                a.label(f"L_fast{uid[0]}")
            issue(k)
            a("s_mov_b64 exec, -1")
        a("s_sub_u32 s12, s12, 1")
        a("s_cmp_lg_u32 s12, 0")
        a(f"s_cbranch_scc1 L_{name}")
        a.label(f"L_{name}_done")
        a("s_mov_b64 exec, -1")

    def hint_poll(name, ws_off_sgpr, sleep):
        a(f"s_add_u32 s14, s56, s{ws_off_sgpr}")
        a("s_addc_u32 s15, s57, 0")
        a(f"s_mov_b32 s12, {opts.maxpoll}")
        a.label(f"L_{name}")
        a("s_load_dwordx16 s[16:31], s[14:15], 0 glc")
        a("s_waitcnt lgkmcnt(0)")
        for i in range(8):
            a(f"s_cmp_eq_u64 s[{16+2*i}:{17+2*i}], s[68:69]")
            a(f"s_cbranch_scc0 L_{name}_no")
        a(f"s_branch L_{name}_done")
        a.label(f"L_{name}_no")
        if sleep:
            a(f"s_sleep {sleep}")
        a("s_sub_u32 s12, s12, 1")
        a("s_cmp_lg_u32 s12, 0")
        a(f"s_cbranch_scc1 L_{name}")
        a.label(f"L_{name}_done")

    a("s_cmp_ge_u32 s2, 256")
    a("s_cbranch_scc1 L_end")
    a("s_load_dwordx16 s[16:31], s[0:1], 0")
    a("s_load_dwordx4 s[32:35], s[0:1], 64")
    a("s_load_dwordx2 s[36:37], s[0:1], 80")
    if stamps:
        for i in range(1, 8):
            a(f"s_mov_b64 s[{ST0+2*i}:{ST0+2*i+1}], 0")
        stamp(0)
    a("v_lshrrev_b32 v1, 6, v0")
    a("v_and_b32 v0, 63, v0")
    if opts.map == "C":
        a("s_and_b32 s4, s2, 7")
        a("s_lshr_b32 s5, s2, 6")
        a("s_lshl_b32 s5, s5, 3")
        a("s_or_b32 s4, s4, s5")
        a("s_lshr_b32 s5, s2, 3")
        a("s_and_b32 s5, s5, 7")
    else:
        a("s_lshr_b32 s4, s2, 3")
        a("s_and_b32 s5, s2, 7")
    a("v_readfirstlane_b32 s3, v1")
    a("s_lshl_b32 s6, s4, 3")
    a("s_or_b32 s6, s6, s5")
    a("s_lshr_b32 s7, s5, 2")
    a("s_and_b32 s8, s5, 3")
    a(f"s_mov_b32 s58, {WS_SIZE}")
    a("s_mov_b32 s59, 0x00020000")
    a("s_cmp_lt_u32 s3, 4")
    a("s_cbranch_scc1 L_aux")

    VOFF, VQ, VT, VS, VACC, VK, VV, VF = 1, 2, 6, 8, 24, 32, 96, 160
    a.c("---- streaming wave ----")
    a("s_sub_u32 s3, s3, 4")
    a("s_lshl_b32 s9, s7, 5")
    a("s_add_u32 s9, s9, s4")
    a("s_lshl_b32 s9, s9, 21")
    a("s_lshl_b32 s10, s8, 17")
    a("s_add_u32 s9, s9, s10")
    a("s_add_u32 s9, s9, 1572864")
    a("s_lshl_b32 s10, s3, 14")
    a(f"v_lshl_add_u32 v{VOFF}, v0, 4, s10")
    a(f"s_mul_i32 s11, s4, {opts.rotg}")
    a(f"s_mul_i32 s12, s3, {opts.rotw}")
    a("s_add_u32 s11, s11, s12")
    a("s_lshl_b32 s11, s11, 10")
    a("s_mov_b32 s42, 131072")
    a("s_mov_b32 s43, 0x00020000")
    a("s_mov_b32 s46, 131072")
    a("s_mov_b32 s47, 0x00020000")
    a("s_cmp_lt_u32 s4, 20")
    a("s_cselect_b32 s13, 1, 0")
    a("s_cmp_lt_u32 s3, 2")
    a("s_cselect_b32 s13, s13, 0")
    a("s_cmp_ge_u32 s4, 10")
    a("s_cselect_b32 s14, 560, 0")
    a("s_lshl_b32 s10, s4, 3")
    a("s_add_u32 s14, s14, s10")
    a("s_mul_i32 s10, s5, 80")
    a("s_add_u32 s14, s14, s10")
    a("s_lshl_b32 s10, s3, 2")
    a("s_add_u32 s14, s14, s10")
    VXV = VK + 63
    a(f"v_and_b32 v{VT}, 1, v0")
    a(f"v_lshlrev_b32 v{VT}, 1, v{VT}")
    a(f"v_lshrrev_b32 v{VT+1}, 5, v0")
    a(f"v_add3_u32 v{VT}, v{VT}, v{VT+1}, s14")
    a(f"v_lshlrev_b32 v{VQ}, 1, v{VT}")
    a("s_waitcnt lgkmcnt(0)")
    a("s_add_u32 s40, s18, s9")
    a("s_addc_u32 s41, s19, 0")
    a("s_add_u32 s44, s20, s9")
    a("s_addc_u32 s45, s21, 0")
    a("s_mov_b32 s56, s36")
    a("s_mov_b32 s57, s37")
    a("s_mov_b32 s48, s16")
    a("s_mov_b32 s49, s17")
    a("s_movk_i32 s50, 2560")
    a("s_mov_b32 s51, 0x00020000")
    a("s_mov_b32 s64, s32")
    a("s_mov_b32 s65, s33")
    a("s_movk_i32 s66, 2560")
    a("s_mov_b32 s67, 0x00020000")
    for i in range(16):
        a(f"s_add_u32 s{16+i}, s11, {i*1024}")
        a(f"s_and_b32 s{16+i}, s{16+i}, 0x3c00")
    a("s_barrier")
    a("s_cmp_eq_u32 s13, 0")
    a("s_cbranch_scc1 L_nox")
    a(f"buffer_load_ushort v{VF+7+0}, v{VQ}, s[48:51], 0 offen")
    a.label("L_nox")
    XV = VF + 7
    PRIO = {int(k): int(v) for k, v in (it.split(":") for it in opts.prio.split(",") if it)}

    def issue(n, static=True):
        if static and n in PRIO:
            a(f"s_setprio {PRIO[n]}")
        if n < 16:
            a(f"buffer_load_dwordx4 v[{VK+4*n}:{VK+4*n+3}], v{VOFF}, s[40:43], s{16+n} offen {kvpol}")
        else:
            i = n - 16
            a(f"buffer_load_dwordx4 v[{VV+4*i}:{VV+4*i+3}], v{VOFF}, s[44:47], s{16+i} offen {kvpol}")

    W2 = opts.win2 or W
    NS = 16 - W2
    slot_i = [0]
    SREM = "s9"

    FLAT = opts.sched in ("flat", "ab")
    AB = opts.sched == "ab"

    def dstamp(idx):
        if opts.dbgst:
            stamp(idx)

    def late_burst():
        a(f"s_cmp_eq_u32 {SREM}, 0")
        a("s_cbranch_scc1 L_nolate")
        for n in range(opts.kwin, 32):
            issue(n)
        dstamp(5)
        a.label("L_nolate")

    def slot():
        k = slot_i[0]
        slot_i[0] += 1
        if AB and k == opts.bpos:
            late_burst()
        if FLAT:
            return
        if k < NS:
            a(f"s_cmp_gt_u32 {SREM}, {k}")
            a(f"s_cbranch_scc0 L_slot{k}_no")
            a(f"s_waitcnt vmcnt({W2-1})")
            issue(16 + 15 - k, False)
            a(f"s_branch L_slot{k}_done")
            a.label(f"L_slot{k}_no")
            a("s_waitcnt vmcnt(0)")
            a.label(f"L_slot{k}_done")
        else:
            a(f"s_waitcnt vmcnt({max(W2 - 1 - (k - NS), 0)})")

    a(f"v_mov_b32 v{VT+1}, 0")
    for n in range(W):
        issue(n)
    if AB:
        KW = opts.kwin
        for n in range(W, KW):
            a(f"s_waitcnt vmcnt({W-1})")
            issue(n)
        a(f"ds_read_b32 v{VT}, v{VT+1} offset:{QF}")
        a(f"s_waitcnt vmcnt({KW - 16})")
        a("s_waitcnt lgkmcnt(0)")
        a(f"v_readfirstlane_b32 {SREM}, v{VT}")
        a(f"s_cmp_lg_u32 {SREM}, 0")
        a(f"s_cbranch_scc1 L_qready")
        for n in range(KW, 32):
            issue(n)
        dstamp(5)
        lds_spin(QF, 1, VT + 1, VT, sleep=1)
        a(f"s_mov_b32 {SREM}, 0")
    elif FLAT:
        for n in range(W, 32):
            if n < opts.kwin:
                a(f"s_waitcnt vmcnt({W-1})")
            issue(n)
        dstamp(5)
        lds_spin(QF, 1, VT + 1, VT, sleep=1)
    else:
        for n in range(W, 16 + W2):
            a(f"s_waitcnt vmcnt({(W if n < 16 else W2) - 1})")
            issue(n)
        dstamp(5)
        if "q" in opts.abl:
            a(f"s_mov_b32 {SREM}, {NS}")
            a(f"s_waitcnt vmcnt({W2})")
            a("s_branch L_qready")
        for n in range(16 + W2, 32):
            a(f"ds_read_b32 v{VT}, v{VT+1} offset:{QF}")
            a(f"s_mov_b32 {SREM}, {32 - n}")
            a(f"s_waitcnt vmcnt({W2-1})")
            a("s_waitcnt lgkmcnt(0)")
            a(f"v_readfirstlane_b32 s10, v{VT}")
            a("s_cmp_lg_u32 s10, 0")
            a(f"s_cbranch_scc1 L_qready")
            issue(n)
        a(f"s_mov_b32 {SREM}, 0")
        a(f"s_waitcnt vmcnt({16 if False else min(W2, 16)})")
        lds_spin(QF, 1, VT + 1, VT, sleep=1)
    a.label("L_qready")
    if opts.qprio >= 0:
        a(f"s_setprio {opts.qprio}")
    a(f"v_and_b32 v{VT}, 15, v0")
    a(f"v_lshlrev_b32 v{VT}, 4, v{VT}")
    a(f"ds_read_b128 v[{VQ}:{VQ+3}], v{VT} offset:{L_Q}")
    a(f"ds_read_b64 v[{VS}:{VS+1}], v{VT+1} offset:{L_TAG}")
    stamp(1)
    a("s_waitcnt lgkmcnt(0)")
    a(f"v_readfirstlane_b32 s68, v{VS}")
    a(f"v_readfirstlane_b32 s69, v{VS+1}")
    _a = a
    class _F:
        def __call__(self, t):
            if "s" in opts.abl and t.startswith("v_") and not t.startswith("v_readlane"):
                return
            _a(t)
        def __getattr__(self, n):
            return getattr(_a, n)
    a = _F()
    for grp in range(4):
        if FLAT and not AB:
            a(f"s_waitcnt vmcnt({16 + 12 - 4*grp})")
        for d in range(4):
            for i in range(4*grp, 4*grp+4):
                src2 = "0" if d == 0 else f"v{VS+i}"
                a(f"v_dot2_f32_bf16 v{VS+i}, v{VK+4*i+d}, v{VQ+d}, {src2}")
    slot()
    for ctrl in ["quad_perm:[1,0,3,2]", "quad_perm:[2,3,0,1]", "row_half_mirror", "row_mirror"]:
        for i in range(16):
            a(f"v_add_f32_dpp v{VS+i}, v{VS+i}, v{VS+i} {ctrl} row_mask:0xf bank_mask:0xf")
    slot()
    a(f"s_mov_b32 s14, 0x{f32bits(128 ** -0.5):08x}")
    a("s_mov_b32 s15, 0xffff0000")
    for rnd in range(2):
        for p in range(8):
            a(f"v_cvt_pk_bf16_f32 v{VK+p}, v{VS+2*p}, v{VS+2*p+1}")
        for p in range(8):
            a(f"v_lshlrev_b32 v{VS+2*p}, 16, v{VK+p}")
            a(f"v_and_b32 v{VS+2*p+1}, s15, v{VK+p}")
        if rnd == 0:
            for i in range(16):
                a(f"v_mul_f32 v{VS+i}, s14, v{VS+i}")
    m = VT
    a(f"v_max3_f32 v{m}, v{VS}, v{VS+1}, v{VS+2}")
    for i in range(3, 15, 2):
        a(f"v_max3_f32 v{m}, v{m}, v{VS+i}, v{VS+i+1}")
    a(f"v_max_f32 v{m}, v{m}, v{VS+15}")
    for r in range(4):
        a(f"v_readlane_b32 s{60+r}, v{m}, {16*r}")
    a(f"v_mov_b32 v{m}, s60")
    a(f"v_max_f32 v{m}, s61, v{m}")
    a(f"v_max_f32 v{m}, s62, v{m}")
    a(f"v_max_f32 v{m}, s63, v{m}")
    slot()
    a(f"s_mov_b32 s14, 0x{f32bits(LOG2E):08x}")
    for i in range(16):
        a(f"v_sub_f32 v{VS+i}, v{VS+i}, v{m}")
    for i in range(16):
        a(f"v_mul_f32 v{VS+i}, s14, v{VS+i}")
    for i in range(16):
        a(f"v_exp_f32 v{VS+i}, v{VS+i}")
    PLO, PHI = VK, VK + 16
    a(f"v_mov_b32 v{VXV}, v{XV}")
    for i in range(16):
        a(f"v_cvt_pk_bf16_f32 v{PLO+i}, v{VS+i}, 0")
    for i in range(16):
        a(f"v_lshlrev_b32 v{PHI+i}, 16, v{PLO+i}")
    lsum = VT + 1
    a(f"v_add_f32 v{lsum}, v{VS}, v{VS+1}")
    for i in range(2, 16):
        a(f"v_add_f32 v{lsum}, v{lsum}, v{VS+i}")
    for r in range(4):
        a(f"v_readlane_b32 s{60+r}, v{lsum}, {16*r}")
    a(f"v_mov_b32 v{lsum}, s60")
    a(f"v_add_f32 v{lsum}, s61, v{lsum}")
    a(f"v_add_f32 v{lsum}, s62, v{lsum}")
    a(f"v_add_f32 v{lsum}, s63, v{lsum}")
    a = _a
    VZ = VQ
    a(f"s_lshl_b32 s10, s3, 2")
    a(f"v_mov_b32 v{VS}, s10")
    a(f"v_mov_b32 v{VZ}, 0")
    a(f"ds_write_b32 v{VS}, v{m} offset:{L_ML}")
    a(f"ds_write_b32 v{VS}, v{lsum} offset:{L_ML+32}")
    lds_arrive(C2, VZ, VS + 1)
    a(f"v_and_b32 v{VS}, 15, v0")
    a(f"v_lshlrev_b32 v{VS}, 5, v{VS}")
    a(f"v_lshrrev_b32 v{VS+1}, 4, v0")
    a(f"v_lshl_add_u32 v{VS}, v{VS+1}, 3, v{VS}")
    a(f"s_lshl_b32 s10, s3, 9")
    a(f"v_add_u32 v{VS}, s10, v{VS}")
    VCA, VPA, GO = VS + 2, VS + 3, VS + 4
    a(f"v_lshlrev_b32 v{VCA}, 3, v0")
    a("s_lshl_b32 s10, s6, 10")
    a(f"s_add_u32 s10, s10, {WS_H2}")
    a(f"v_lshl_add_u32 v{VPA}, v0, 4, s10")
    set_tag(GO)
    order = list(range(W2)) + list(range(15, W2 - 1, -1))
    if FLAT:
        order = list(range(16))
    dstamp(6)
    if AB and opts.bpos >= 3:
        late_burst()
    if FLAT:
        slot_i[0] = 16
    for t in range(16):
        i = order[t]
        while slot_i[0] <= t:
            slot()
        if FLAT:
            a(f"s_waitcnt vmcnt({15 - t})")
        if t == 15:
            dstamp(7)
        if t == opts.hpos:
            lds_arrive(C6, VZ, VS + 8)
        if t == opts.fpos:
            stamp(3)
            lds_spin(FF, 1, VZ, VS + 8, sleep=1)
            a(f"ds_read_b128 v[{VF}:{VF+3}], v{VZ} offset:{L_F}")
            a(f"ds_read_b128 v[{VF+4}:{VF+7}], v{VZ} offset:{L_F+16}")
            a("s_setprio 3")
        for d in range(4):
            s2a = "0" if t == 0 else f"v{VACC+2*d}"
            s2b = "0" if t == 0 else f"v{VACC+2*d+1}"
            a(f"v_dot2_f32_bf16 v{VACC+2*d}, v{VV+4*i+d}, v{PLO+i}, {s2a}")
            a(f"v_dot2_f32_bf16 v{VACC+2*d+1}, v{VV+4*i+d}, v{PHI+i}, {s2b}")
    assert slot_i[0] == 16
    for e in range(4):
        a(f"v_permlane32_swap_b32 v{VACC+e}, v{VACC+e+4}")
    for e in range(4):
        a(f"v_add_f32 v{VACC+e}, v{VACC+e}, v{VACC+e+4}")
    a(f"v_permlane16_swap_b32 v{VACC}, v{VACC+2}")
    a(f"v_permlane16_swap_b32 v{VACC+1}, v{VACC+3}")
    a(f"v_add_f32 v{VACC}, v{VACC}, v{VACC+2}")
    a(f"v_add_f32 v{VACC+1}, v{VACC+1}, v{VACC+3}")
    a(f"ds_write_b64 v{VS}, v[{VACC}:{VACC+1}] offset:{L_OP}")
    lds_arrive(C3, VZ, VS + 8, rtn=True)
    stamp(2)
    a("s_cmp_eq_u32 s10, 7")
    a("s_cbranch_scc0 L_nocomb")
    OPR = VK
    for w in range(8):
        a(f"ds_read_b64 v[{OPR+2*w}:{OPR+2*w+1}], v{VCA} offset:{L_OP + w*512}")
    for w in range(8):
        a(f"s_waitcnt lgkmcnt({7-w})")
        for e in range(2):
            if w == 0:
                a(f"v_mul_f32 v{GO+e}, v{VF}, v{OPR+e}")
            else:
                a(f"v_fma_f32 v{GO+e}, v{VF+w}, v{OPR+2*w+e}, v{GO+e}")
    if opts.fast:
        a(f"s_mov_b32 s10, {FOFF}")
        a(f"buffer_store_dwordx4 v[{GO}:{GO+3}], v{VPA}, s[56:59], s10 offen")
    a(f"buffer_store_dwordx4 v[{GO}:{GO+3}], v{VPA}, s[56:59], 0 offen sc1")
    stamp(4)
    a.label("L_nocomb")
    if "t" in opts.abl:
        a("s_branch L_sfin")
    a("s_cmp_eq_u32 s13, 0")
    a("s_cbranch_scc1 L_sfin")
    a("s_cmp_ge_u32 s4, 10")
    a("s_cselect_b32 s9, 70, 0")
    a("s_add_u32 s9, s9, s4")
    a("s_mul_i32 s10, s5, 10")
    a("s_add_u32 s9, s9, s10")
    a("s_lshl_b32 s9, s9, 1")
    a("s_add_u32 s9, s9, s3")
    a("s_lshl_b32 s9, s9, 10")
    a(f"s_add_u32 s9, s9, {WS_H3A}")
    FA, FO = VS, VS + 1
    FA1 = FA
    a(f"v_lshl_add_u32 v{FA}, v0, 4, s9")
    a(f"s_mov_b32 s11, {WS_H3B - WS_H3A}")
    if opts.y1lay:
        FA1 = VS + 3
        a("s_lshl_b32 s9, s4, 6")
        a("s_mul_i32 s10, s5, 1280")
        a("s_add_u32 s9, s9, s10")
        a("s_lshl_b32 s10, s3, 5")
        a("s_add_u32 s9, s9, s10")
        a(f"s_add_u32 s9, s9, {WS_H3A}")
        a(f"v_lshrrev_b32 v{FA1}, 1, v0")
        a(f"v_mul_u32_u24 v{FA1}, 10240, v{FA1}")
        a(f"v_and_b32 v{VS+2}, 1, v0")
        a(f"v_lshl_add_u32 v{FA1}, v{VS+2}, 4, v{FA1}")
        a(f"v_add_u32 v{FA1}, s9, v{FA1}")
    P = VK

    def reduce_duo(r0):
        for ctrl in ["quad_perm:[2,3,0,1]", "row_ror:4", "row_ror:8"]:
            a(f"v_add_f32_dpp v{r0}, v{r0}, v{r0} {ctrl} row_mask:0xf bank_mask:0xf")
            a(f"v_add_f32_dpp v{r0+1}, v{r0+1}, v{r0+1} {ctrl} row_mask:0xf bank_mask:0xf")
        a(f"v_permlane32_swap_b32 v{r0}, v{r0+1}")
        a(f"v_add_f32 v{r0}, v{r0}, v{r0+1}")
        a(f"v_mov_b32 v{r0+1}, v{r0}")
        a(f"v_permlane16_swap_b32 v{r0}, v{r0+1}")
        a(f"v_add_f32 v{r0}, v{r0}, v{r0+1}")

    RY2, RY1 = P + 4, P + 6
    pipelined_poll("pollY2", 1, [[P]],
                   lambda k: a(f"buffer_load_dwordx4 v[{P}:{P+3}], v{FA1 if opts.y2lay else FA}, s[56:59], s11 offen sc1"), 0,
                   [RY2, RY2 + 1], slow=(1, 8))
    n3 = opts.npoll3
    Y1S = [[P + 8 + 4*k] for k in range(n3)]
    a("s_cmp_ge_u32 s4, 10")
    a("s_cselect_b32 s14, 560, 0")
    a("s_lshl_b32 s10, s4, 3")
    a("s_add_u32 s14, s14, s10")
    a("s_mul_i32 s10, s5, 80")
    a("s_add_u32 s14, s14, s10")
    a("s_lshl_b32 s10, s3, 2")
    a("s_add_u32 s14, s14, s10")
    a(f"v_and_b32 v{FO}, 1, v0")
    a(f"v_lshlrev_b32 v{FO}, 1, v{FO}")
    a(f"v_lshrrev_b32 v{FO+1}, 5, v0")
    a(f"v_add3_u32 v{FO}, v{FO}, v{FO+1}, s14")
    a(f"v_lshlrev_b32 v{FO}, 1, v{FO}")
    reduce_duo(RY2)
    Y2 = RY2
    T7 = P
    a(f"v_cvt_pk_bf16_f32 v{Y2}, v{Y2}, 0")
    a(f"v_lshlrev_b32 v{Y2}, 16, v{Y2}")
    a(f"s_mov_b32 s14, 0x{f32bits(-LOG2E):08x}")
    a(f"v_mul_f32 v{T7}, s14, v{Y2}")
    a(f"v_exp_f32 v{T7}, v{T7}")
    a(f"v_add_f32 v{T7}, 1.0, v{T7}")
    a(f"v_rcp_f32 v{T7}, v{T7}")
    a(f"v_mul_f32 v{Y2}, v{Y2}, v{T7}")
    a(f"v_cvt_pk_bf16_f32 v{Y2}, v{Y2}, 0")
    a(f"v_lshlrev_b32 v{Y2}, 16, v{Y2}")
    a(f"v_lshlrev_b32 v{VXV}, 16, v{VXV}")
    if not opts.dbgst:
        stamp(5)
    lds_spin(opts.ygate[0], opts.ygate[1], VZ, VS + 8, sleep=1)
    pipelined_poll("pollY1", n3, Y1S,
                   lambda k: a(f"buffer_load_dwordx4 v[{Y1S[k][0]}:{Y1S[k][0]+3}], v{FA1}, s[56:59], 0 offen sc1"), opts.stag3,
                   [RY1, RY1 + 1], slow=(tuple(int(x) for x in opts.slow3.split(",")) if opts.slow3 else 0))
    if not opts.dbgst:
        stamp(6)
    Y1 = RY1
    reduce_duo(Y1)
    a(f"v_cvt_pk_bf16_f32 v{Y1}, v{Y1}, 0")
    a(f"v_lshlrev_b32 v{Y1}, 16, v{Y1}")
    a(f"v_mul_f32 v{Y1}, v{Y1}, v{Y2}")
    a(f"v_cvt_pk_bf16_f32 v{Y1}, v{Y1}, 0")
    a(f"v_lshlrev_b32 v{Y1}, 16, v{Y1}")
    a(f"v_add_f32 v{Y1}, v{VXV}, v{Y1}")
    a(f"v_cvt_pk_bf16_f32 v{Y1}, v{Y1}, 0")
    a("s_mov_b32 s10, 3")
    a("s_mov_b32 s11, 3")
    a("s_mov_b64 exec, s[10:11]")
    a(f"buffer_store_short v{Y1}, v{FO}, s[64:67], 0 offen")
    a("s_or_b32 s10, s6, s3")
    a("s_cmp_lg_u32 s10, 0")
    a("s_cbranch_scc1 L_noep")
    a("s_mov_b64 exec, 1")
    a(f"v_mov_b32 v{VS+2}, {WS_EPOCH}")
    a(f"v_mov_b32 v{VS+3}, s68")
    a(f"buffer_store_dword v{VS+3}, v{VS+2}, s[56:59], 0 offen sc1")
    a.label("L_noep")
    a("s_mov_b64 exec, -1")
    if not opts.dbgst:
        stamp(7)
    else:
        stamp(4)
    a.label("L_sfin")
    a("s_add_u32 s3, s3, 4")
    a("s_branch L_fin")

    a.label("L_aux")
    a.c("---- aux wave: a = s3 (0..3) ----")
    a("s_setprio 3")
    XR = 20
    VE = 30
    WQ = 32
    W1 = 52
    TMP = 64
    ACC = 96
    W2 = 120
    WO = 136
    LO2 = 96
    AY = 104
    BOP = 32
    a("s_cmp_lg_u32 s3, 0")
    a("s_cbranch_scc1 L_noclr")
    for r in range(4, 8):
        a(f"v_mov_b32 v{r}, 0")
    a(f"ds_write_b128 v4, v[4:7] offset:{L_SYNC}")
    a(f"ds_write_b128 v4, v[4:7] offset:{L_SYNC+16}")
    a(f"ds_write_b128 v4, v[4:7] offset:{L_SYNC+32}")
    a.label("L_noclr")
    a(f"v_lshlrev_b32 v2, 4, v0")
    a(f"v_lshlrev_b32 v3, 2, v0")
    a(f"v_mov_b32 v{VE}, {WS_EPOCH}")
    a("s_mul_i32 s9, s5, 80")
    a("s_mul_i32 s10, s3, 20")
    a("s_add_u32 s9, s9, s10")
    a(f"v_lshrrev_b32 v10, 4, v0")
    a(f"v_and_b32 v11, 15, v0")
    RG, C = 10, 11
    a(f"v_add_u32 v{TMP+10}, s9, v{RG}")
    a(f"v_lshlrev_b32 v{TMP+11}, 1, v{TMP+10}")
    a(f"v_lshlrev_b32 v{TMP+1}, 13, v{TMP+10}")
    a(f"v_lshl_add_u32 v{TMP+1}, v{C}, 4, v{TMP+1}")
    a("s_lshl_b32 s10, s4, 8")
    a(f"v_add_u32 v{TMP+1}, s10, v{TMP+1}")
    a(f"s_cmp_ge_u32 s4, {0 if 'f' in opts.abl else 27}")
    a(f"s_cselect_b32 s13, {OOB}, 0")
    if 'w' in opts.abl:
        a(f"v_add_u32 v{TMP+1}, {OOB}, v{TMP+1}")
    if 'B' in opts.abl:
        a(f"s_cmp_lt_u32 s2, {opts.bhi*64}")
        a(f"s_cselect_b32 s10, {OOB}, 0")
        a("s_bitcmp1_b32 s2, 2")
        a("s_cselect_b32 s10, s10, 0")
        a(f"v_add_u32 v{TMP+1}, s10, v{TMP+1}")
    a("s_movk_i32 s10, 3456")
    a(f"v_mul_lo_u32 v{TMP+2}, v{TMP+10}, s10")
    a(f"v_lshl_add_u32 v{TMP+2}, v{C}, 3, v{TMP+2}")
    a("s_lshl_b32 s10, s4, 7")
    a("s_add_u32 s10, s10, s13")
    a(f"v_add_u32 v{TMP+2}, s10, v{TMP+2}")
    for i in range(1, 5):
        a(f"s_mov_b32 s{88+i}, {i*32768}")
        if i < 4:
            a(f"s_mov_b32 s{92+i}, {i*13824}")
    a(f"s_mov_b32 s88, {4*13824}")
    a("s_waitcnt lgkmcnt(0)")

    def srd(r, lo, size):
        a(f"s_mov_b32 s{r}, s{lo}")
        a(f"s_mov_b32 s{r+1}, s{lo+1}")
        a(f"s_mov_b32 s{r+2}, {size}")
        a(f"s_mov_b32 s{r+3}, 0x00020000")
    a("s_mov_b32 s56, s36")
    a("s_mov_b32 s57, s37")
    srd(40, 16, 2560)
    a(f"buffer_load_dword v{VE}, v{VE}, s[56:59], 0 offen sc1")
    a(f"buffer_load_dwordx4 v[4:7], v2, s[40:43], 0 offen")
    a(f"buffer_load_dword v8, v3, s[40:43], 0 offen offset:1024")
    a(f"buffer_load_dwordx4 v[12:15], v2, s[40:43], 0 offen offset:1280")
    a(f"buffer_load_dword v16, v3, s[40:43], 0 offen offset:2304")
    srd(44, 22, 5242880)
    for i in range(5):
        so = "0" if i == 0 else f"s{88+i}"
        a(f"buffer_load_dwordx4 v[{WQ+4*i}:{WQ+4*i+3}], v{TMP+1}, s[44:47], {so} offen {wpol}")
    if 'B' in opts.abl:
        a("s_cmp_eq_u32 s8, 1")
        a(f"s_cmp_lt_u32 s2, {opts.bhi*64}")
        a("s_cbranch_scc0 L_nob")
        a("s_bitcmp1_b32 s2, 2")
        a("s_cbranch_scc1 L_nob")
        a(f"v_add_u32 v{TMP+7}, 1024, v{TMP+1}")
        for i in range(5):
            so = "0" if i == 0 else f"s{88+i}"
            a(f"buffer_load_dwordx4 v[{ACC+4*i}:{ACC+4*i+3}], v{TMP+7}, s[44:47], {so} offen {wpol}")
        a.label("L_nob")
    srd(48, 28, 2211840)
    for i in range(5):
        so = "0" if i == 0 else (f"s{92+i}" if i < 4 else "s88")
        a(f"buffer_load_dwordx2 v[{W1+2*i}:{W1+2*i+1}], v{TMP+2}, s[48:51], {so} offen {wpol}")
    for i in range(5):
        for b in range(2):
            a(f"buffer_load_ushort v{XR+2*i+b}, v{TMP+11}, s[40:43], 0 offen offset:{b*1280 + i*8}")
    a("s_waitcnt lgkmcnt(0)")
    a("s_barrier")
    a(f"v_mov_b32 v{TMP+5}, 0")
    a(f"v_mov_b32 v{TMP+6}, {OOB}")
    a(f"v_cmp_lt_u32 vcc, 9, v{C}")
    a(f"v_cndmask_b32 v{TMP+5}, v{TMP+5}, v{TMP+6}, vcc")
    a(f"v_lshl_add_u32 v{TMP+5}, v{C}, 4, v{TMP+5}")
    a("s_mul_i32 s10, s5, 160")
    a(f"v_add_u32 v{TMP+5}, s10, v{TMP+5}")
    a("s_movk_i32 s14, 1280")
    a("s_lshl_b32 s10, s4, 6")
    a("s_lshl_b32 s11, s3, 4")
    a("s_add_u32 s10, s10, s11")
    a(f"v_lshl_add_u32 v{TMP+3}, v{RG}, 2, s10")
    a(f"v_mul_lo_u32 v{TMP+3}, v{TMP+3}, s14")
    a(f"v_add_u32 v{TMP+3}, v{TMP+5}, v{TMP+3}")
    a(f"v_add_u32 v{TMP+3}, s13, v{TMP+3}")
    a("s_lshl_b32 s10, s4, 7")
    a("s_lshl_b32 s11, s3, 5")
    a("s_add_u32 s10, s10, s11")
    a(f"v_lshl_add_u32 v{TMP+4}, v{RG}, 3, s10")
    a(f"v_mul_lo_u32 v{TMP+4}, v{TMP+4}, s14")
    a(f"v_add_u32 v{TMP+4}, v{TMP+5}, v{TMP+4}")
    if 'o' in opts.abl:
        a(f"v_add_u32 v{TMP+4}, {OOB}, v{TMP+4}")
    a("s_movk_i32 s12, 5120")
    srd(52, 30, 2211840)
    for i in range(4):
        a(f"buffer_load_dwordx4 v[{W2+4*i}:{W2+4*i+3}], v{TMP+3}, s[52:55], 0 offen offset:{i*1280} {wpol}")
    srd(60, 24, 5242880)
    for i in range(8):
        so = "0" if i < 4 else "s12"
        a(f"buffer_load_dwordx4 v[{WO+4*i}:{WO+4*i+3}], v{TMP+4}, s[60:63], {so} offen offset:{(i&3)*1280} {wpol}")

    a("s_waitcnt vmcnt(32)")
    a(f"v_readfirstlane_b32 s68, v{VE}")
    a("s_mov_b32 s15, 0xffff0000")
    a("s_add_u32 s68, s68, 1")
    a("s_xor_b32 s69, s68, 0x9e3779b9")
    F = TMP + 12
    srcs = [[4, 5, 6, 7, 8], [12, 13, 14, 15, 16]]
    for b in range(2):
        for d in range(5):
            a(f"v_lshlrev_b32 v{F+10*b+2*d}, 16, v{srcs[b][d]}")
            a(f"v_and_b32 v{F+10*b+2*d+1}, s15, v{srcs[b][d]}")
    S0, S1, Q0, Q1, t0, t1 = 4, 5, 6, 7, 8, 9

    def wave_sum2(r0, r1, sbase):
        for ctrl in ["quad_perm:[1,0,3,2]", "quad_perm:[2,3,0,1]", "row_half_mirror", "row_mirror"]:
            a(f"v_add_f32_dpp v{r0}, v{r0}, v{r0} {ctrl} row_mask:0xf bank_mask:0xf")
            a(f"v_add_f32_dpp v{r1}, v{r1}, v{r1} {ctrl} row_mask:0xf bank_mask:0xf")
        for r in range(4):
            a(f"v_readlane_b32 s{sbase+r}, v{r0}, {16*r}")
            a(f"v_readlane_b32 s{sbase+4+r}, v{r1}, {16*r}")
        a(f"v_mov_b32 v{r0}, s{sbase}")
        a(f"v_mov_b32 v{r1}, s{sbase+4}")
        for r in range(1, 4):
            a(f"v_add_f32 v{r0}, s{sbase+r}, v{r0}")
            a(f"v_add_f32 v{r1}, s{sbase+4+r}, v{r1}")

    for e in range(1, 10):
        for b, S in ((0, S0), (1, S1)):
            if e == 1:
                a(f"v_add_f32 v{S}, v{F+10*b}, v{F+10*b+1}")
            else:
                a(f"v_add_f32 v{S}, v{S}, v{F+10*b+e}")
    wave_sum2(S0, S1, 88)
    a(f"s_mov_b32 s14, 0x{f32bits(1.0/640):08x}")
    a(f"v_mul_f32 v{S0}, s14, v{S0}")
    a(f"v_mul_f32 v{S1}, s14, v{S1}")
    for b, S in ((0, S0), (1, S1)):
        for e in range(10):
            a(f"v_sub_f32 v{F+10*b+e}, v{F+10*b+e}, v{S}")
    for e in range(10):
        for b, Q in ((0, Q0), (1, Q1)):
            if e == 0:
                a(f"v_mul_f32 v{Q}, v{F+10*b}, v{F+10*b}")
            else:
                a(f"v_fma_f32 v{Q}, v{F+10*b+e}, v{F+10*b+e}, v{Q}")
    wave_sum2(Q0, Q1, 88)
    a(f"v_mul_f32 v{Q0}, s14, v{Q0}")
    a(f"v_mul_f32 v{Q1}, s14, v{Q1}")
    a(f"v_cvt_pk_bf16_f32 v{t0}, v{S0}, v{S1}")
    a(f"v_cvt_pk_bf16_f32 v{t1}, v{Q0}, v{Q1}")
    a(f"v_lshlrev_b32 v{S0}, 16, v{t0}")
    a(f"v_and_b32 v{S1}, s15, v{t0}")
    a(f"v_lshlrev_b32 v{Q0}, 16, v{t1}")
    a(f"v_and_b32 v{Q1}, s15, v{t1}")
    a(f"s_mov_b32 s14, 0x{f32bits(1e-5):08x}")
    a(f"v_add_f32 v{Q0}, s14, v{Q0}")
    a(f"v_add_f32 v{Q1}, s14, v{Q1}")
    a(f"v_cvt_pk_bf16_f32 v{t1}, v{Q0}, v{Q1}")
    a(f"v_lshlrev_b32 v{Q0}, 16, v{t1}")
    a(f"v_and_b32 v{Q1}, s15, v{t1}")
    a(f"v_sqrt_f32 v{Q0}, v{Q0}")
    a(f"v_sqrt_f32 v{Q1}, v{Q1}")
    a(f"v_cvt_pk_bf16_f32 v{t1}, v{Q0}, v{Q1}")
    a(f"v_lshlrev_b32 v{Q0}, 16, v{t1}")
    a(f"v_and_b32 v{Q1}, s15, v{t1}")
    a(f"v_rcp_f32 v{Q0}, v{Q0}")
    a(f"v_rcp_f32 v{Q1}, v{Q1}")
    XH = F
    MS = [S0, S1]; RS = [Q0, Q1]
    a("s_waitcnt vmcnt(12)")

    def each(fn):
        for i in range(5):
            for b in range(2):
                fn(XR + 2*i + b, b, i)
    each(lambda r, b, i: a(f"v_lshlrev_b32 v{r}, 16, v{r}"))
    each(lambda r, b, i: a(f"v_sub_f32 v{r}, v{r}, v{MS[b]}"))
    each(lambda r, b, i: a(f"v_cvt_pk_bf16_f32 v{r}, v{r}, 0"))
    each(lambda r, b, i: a(f"v_lshlrev_b32 v{r}, 16, v{r}"))
    each(lambda r, b, i: a(f"v_mul_f32 v{r}, v{r}, v{RS[b]}"))
    each(lambda r, b, i: a(f"v_cvt_pk_bf16_f32 v{r}, v{r}, 0"))
    each(lambda r, b, i: a(f"v_lshlrev_b32 v{XH+2*i+b}, 16, v{r}"))
    AQ = ACC; AH = ACC + 16
    for i in range(5):
        for b in range(2):
            for d in range(4):
                for hl in range(2):
                    acc = AQ + 8*b + 2*d + hl
                    xs = (XR if hl == 0 else XH) + 2*i + b
                    s2 = "0" if i == 0 else f"v{acc}"
                    a(f"v_dot2_f32_bf16 v{acc}, v{WQ+4*i+d}, v{xs}, {s2}")
    for i in range(5):
        for b in range(2):
            for d in range(2):
                for hl in range(2):
                    acc = AH + 4*b + 2*d + hl
                    xs = (XR if hl == 0 else XH) + 2*i + b
                    s2 = "0" if i == 0 else f"v{acc}"
                    a(f"v_dot2_f32_bf16 v{acc}, v{W1+2*i+d}, v{xs}, {s2}")

    def reduce16(base):
        for k in range(8):
            a(f"v_permlane32_swap_b32 v{base+k}, v{base+k+8}")
        for k in range(8):
            a(f"v_add_f32 v{base+k}, v{base+k}, v{base+k+8}")
        for k in range(4):
            a(f"v_permlane16_swap_b32 v{base+k}, v{base+k+4}")
        for k in range(4):
            a(f"v_add_f32 v{base+k}, v{base+k}, v{base+k+4}")

    reduce16(AQ)
    for k in range(4):
        a(f"v_permlane32_swap_b32 v{AH+k}, v{AH+k+4}")
    for k in range(4):
        a(f"v_add_f32 v{AH+k}, v{AH+k}, v{AH+k+4}")
    for k in range(2):
        a(f"v_permlane16_swap_b32 v{AH+k}, v{AH+k+2}")
    for k in range(2):
        a(f"v_add_f32 v{AH+k}, v{AH+k}, v{AH+k+2}")
    a(f"v_lshrrev_b32 v2, 1, v{RG}")
    a(f"v_and_b32 v3, 1, v{RG}")
    a(f"v_lshlrev_b32 v{TMP}, 9, v2")
    a(f"v_lshl_add_u32 v{TMP}, v{C}, 5, v{TMP}")
    a(f"v_lshl_add_u32 v{TMP}, v3, 4, v{TMP}")
    a("s_lshl_b32 s10, s3, 10")
    a(f"v_add_u32 v{TMP}, s10, v{TMP}")
    a(f"ds_write_b128 v{TMP}, v[{AQ}:{AQ+3}] offset:{L_QP}")
    a(f"v_lshlrev_b32 v{TMP+1}, 8, v2")
    a(f"v_lshl_add_u32 v{TMP+1}, v{C}, 4, v{TMP+1}")
    a(f"v_lshl_add_u32 v{TMP+1}, v3, 3, v{TMP+1}")
    a("s_lshl_b32 s10, s3, 9")
    a(f"v_add_u32 v{TMP+1}, s10, v{TMP+1}")
    a(f"ds_write_b64 v{TMP+1}, v[{AH}:{AH+1}] offset:{L_HP}")
    VY = 31
    a("s_movk_i32 s10, 320")
    a(f"v_mul_u32_u24 v{VY}, s10, v2")
    a(f"v_lshl_add_u32 v{VY}, v{C}, 5, v{VY}")
    a(f"v_lshl_add_u32 v{VY}, v3, 4, v{VY}")
    a("s_mul_i32 s10, s3, 640")
    a(f"v_add_u32 v{VY}, s10, v{VY}")
    VZ = 12
    a(f"v_mov_b32 v{VZ}, 0")
    lds_arrive(C1, VZ, 3)
    lds_spin(C1, 4, VZ, 3)
    stamp(1)

    G = TMP

    def check_tags(regs, lbl_retry_cnt, lbl_loop, lbl_done):
        tags_bad(regs)
        a(f"s_cbranch_scc1 {lbl_done}")
        a(f"s_sub_u32 {lbl_retry_cnt}, {lbl_retry_cnt}, 1")
        a(f"s_cmp_eq_u32 {lbl_retry_cnt}, 0")
        a(f"s_cbranch_scc0 {lbl_loop}")

    def preperm():
        a("s_mov_b32 s10, 0x05040100")
        a("s_mov_b32 s11, 0x07060302")
        for q in range(2):
            for d in range(4):
                r0, r1 = W2 + 8*q + d, W2 + 8*q + 4 + d
                a(f"v_perm_b32 v{LO2+4*q+d}, v{r1}, v{r0}, s10")
                a(f"v_perm_b32 v{r1}, v{r1}, v{r0}, s11")
        for e in range(8):
            for t in range(4):
                r0, r1 = WO + 8*t + (e >> 1), WO + 8*t + 4 + (e >> 1)
                a(f"v_perm_b32 v{BOP+4*e+t}, v{r1}, v{r0}, s{10 + (e & 1)}")

    a("s_cmp_eq_u32 s3, 3")
    a("s_cbranch_scc1 L_h1_gather")
    if 'F' in opts.abl:
        a("s_cmp_eq_u32 s3, 2")
        a("s_cbranch_scc0 L_now2skip")
        a("s_waitcnt vmcnt(0)")
        preperm()
        a("s_branch L_b3")
        a.label("L_now2skip")
    a(f"v_lshlrev_b32 v2, 3, v0")
    a("s_cmp_eq_u32 s3, 2")
    a("s_cbranch_scc1 L_h1_pubh")
    a("s_lshl_b32 s10, s3, 9")
    a(f"v_add_u32 v2, s10, v2")
    for w in range(4):
        a(f"ds_read_b64 v[{G+4+2*w}:{G+5+2*w}], v2 offset:{L_QP + w*1024}")
    a("s_lshl_b32 s11, s3, 10")
    a("s_branch L_h1_pub")
    a.label("L_h1_pubh")
    for w in range(4):
        a(f"ds_read_b64 v[{G+4+2*w}:{G+5+2*w}], v2 offset:{L_HP + w*512}")
    a("s_movk_i32 s11, 2048")
    a.label("L_h1_pub")
    a("s_mul_i32 s10, s6, 3072")
    a("s_add_u32 s10, s10, s11")
    a(f"v_lshl_add_u32 v3, v0, 4, s10")
    set_tag(G)
    a("s_waitcnt lgkmcnt(0)")
    a(f"v_add_f32 v{G}, v{G+4}, v{G+6}")
    a(f"v_add_f32 v{G+1}, v{G+5}, v{G+7}")
    a(f"v_add_f32 v{G+8}, v{G+8}, v{G+10}")
    a(f"v_add_f32 v{G+9}, v{G+9}, v{G+11}")
    a(f"v_add_f32 v{G}, v{G}, v{G+8}")
    a(f"v_add_f32 v{G+1}, v{G+1}, v{G+9}")
    if opts.h1f:
        a(f"s_mov_b32 s10, {FOFF}")
        a(f"buffer_store_dwordx4 v[{G}:{G+3}], v3, s[56:59], s10 offen")
    a(f"buffer_store_dwordx4 v[{G}:{G+3}], v3, s[56:59], 0 offen sc1")
    a(f"s_mul_i32 s10, s4, {GSTR}")
    a("s_lshl_b32 s11, s3, 6")
    a("s_add_u32 s10, s10, s11")
    a("s_lshl_b32 s11, s5, 3")
    a("s_add_u32 s10, s10, s11")
    a(f"s_add_u32 s10, s10, {WS_H1F}")
    a("v_mov_b32 v3, s10")
    a("s_mov_b64 exec, 1")
    a(f"buffer_store_dwordx2 v[{G+2}:{G+3}], v3, s[56:59], 0 offen sc1")
    a("s_mov_b64 exec, -1")
    a("s_cmp_eq_u32 s3, 2")
    a("s_cbranch_scc1 L_h1_gather")
    a(f"s_waitcnt vmcnt({3 if opts.h1f else 2})")
    preperm()
    if opts.fast:
        a("s_cmp_lg_u32 s3, 0")
        a("s_cbranch_scc1 L_nopre")
        for r in range(4):
            a(f"v_mov_b32 v{G+r}, 0")
        a("s_lshl_b32 s10, s6, 10")
        a(f"s_add_u32 s10, s10, {WS_H2 + FOFF}")
        a(f"v_lshl_add_u32 v3, v0, 4, s10")
        if opts.preld:
            a(f"buffer_load_dwordx4 v[{G}:{G+3}], v3, s[56:59], 0 offen")
        else:
            a(f"buffer_store_dwordx4 v[{G}:{G+3}], v3, s[56:59], 0 offen")
        a(f"s_mul_i32 s10, s4, {GSTR}")
        a("s_lshl_b32 s11, s5, 7")
        a("s_add_u32 s10, s10, s11")
        a(f"s_add_u32 s10, s10, {WS_ML + FOFF}")
        a(f"v_lshl_add_u32 v2, v0, 4, s10")
        a("s_mov_b64 exec, 0xff")
        if opts.preld:
            a(f"buffer_load_dwordx4 v[{G+4}:{G+7}], v2, s[56:59], 0 offen")
        else:
            a(f"buffer_store_dwordx4 v[{G}:{G+3}], v2, s[56:59], 0 offen")
        a("s_mov_b64 exec, -1")
        if opts.preld:
            a("s_waitcnt vmcnt(0)")
        a.label("L_nopre")
    stamp(2)
    a("s_branch L_b3")

    a.label("L_h1_gather")
    a("s_lshl_b32 s10, s7, 10")
    a("s_cmp_eq_u32 s3, 2")
    a("s_cselect_b32 s10, 2048, s10")
    a("s_mul_i32 s11, s4, 24576")
    a("s_add_u32 s10, s10, s11")
    a(f"v_lshl_add_u32 v3, v0, 4, s10")
    for jj in range(1, 8):
        a(f"s_mov_b32 s{88+jj}, {jj*3072}")
    a("s_cmp_eq_u32 s3, 2")
    a("s_cbranch_scc1 L_pp2")
    a("s_waitcnt vmcnt(0)")
    a("s_branch L_pp")
    a.label("L_pp2")
    a(f"s_waitcnt vmcnt({3 if opts.h1f else 2})")
    a.label("L_pp")
    preperm()
    a("s_cmp_eq_u32 s3, 2")
    a("s_cselect_b32 s10, 2, s7")
    a("s_lshl_b32 s10, s10, 6")
    a(f"s_mul_i32 s11, s4, {GSTR}")
    a("s_add_u32 s10, s10, s11")
    a(f"s_add_u32 s10, s10, {WS_H1F}")
    if "h" not in opts.abl:
        hint_poll("hint1", 10, 0)
    if "g" not in opts.abl:
        a(f"s_mov_b32 s12, {opts.maxpoll}")
        if opts.h1f:
            a(f"v_add_u32 v3, {FOFF}, v3")
            a(f"s_mov_b32 s13, {FOFF}")
        a.label("L_poll1")
        for jj in range(8):
            so = "0" if jj == 0 else f"s{88+jj}"
            a(f"buffer_load_dwordx4 v[{G+4*jj}:{G+4*jj+3}], v3, s[56:59], {so} offen sc1")
        a("s_waitcnt vmcnt(0)")
        if opts.h1f:
            tags_bad([G+4*jj for jj in range(8)])
            a("s_cbranch_scc1 L_poll1_done")
            a("v_subrev_u32 v3, s13, v3")
            a("s_mov_b32 s13, 0")
            a("s_sub_u32 s12, s12, 1")
            a("s_cmp_eq_u32 s12, 0")
            a("s_cbranch_scc0 L_poll1")
        elif "h" not in opts.abl:
            check_tags([G+4*jj for jj in range(8)], "s12", "L_poll1", "L_poll1_done")
        a.label("L_poll1_done")
    stamp(2)
    for e in range(2):
        a(f"v_add_f32 v{G+e}, v{G+e}, v{G+4+e}")
        a(f"v_add_f32 v{G+8+e}, v{G+8+e}, v{G+12+e}")
        a(f"v_add_f32 v{G+16+e}, v{G+16+e}, v{G+20+e}")
        a(f"v_add_f32 v{G+24+e}, v{G+24+e}, v{G+28+e}")
    for e in range(2):
        a(f"v_add_f32 v{G+e}, v{G+e}, v{G+8+e}")
        a(f"v_add_f32 v{G+16+e}, v{G+16+e}, v{G+24+e}")
    for e in range(2):
        a(f"v_add_f32 v{G+e}, v{G+e}, v{G+16+e}")
    a(f"v_lshlrev_b32 v2, 2, v0")
    a("s_cmp_eq_u32 s3, 2")
    a("s_cbranch_scc0 L_qw")
    a(f"v_max_f32 v{G}, 0, v{G}")
    a(f"v_max_f32 v{G+1}, 0, v{G+1}")
    a(f"v_add_u32 v2, {L_H - L_Q}, v2")
    a.label("L_qw")
    a(f"v_cvt_pk_bf16_f32 v{G}, v{G}, v{G+1}")
    a(f"ds_write_b32 v2, v{G} offset:{L_Q}")
    a("v_mov_b32 v2, s68")
    a("v_mov_b32 v3, s69")
    a(f"ds_write_b64 v{VZ}, v[2:3] offset:{L_TAG}")
    a("s_cmp_eq_u32 s3, 2")
    a(f"s_movk_i32 s10, {QF}")
    a(f"s_movk_i32 s11, {HF}")
    a(f"s_cselect_b32 s10, s11, s10")
    a("v_mov_b32 v2, s10")
    a("v_mov_b32 v3, 1")
    a(f"ds_write_b32 v2, v3")
    a.label("L_b3")
    if 'F' in opts.abl:
        a("s_branch L_noy2")
    lds_spin(HF, 1, VZ, 3)
    a("s_lshl_b32 s10, s3, 5")
    a(f"v_lshl_add_u32 v2, v{RG}, 3, s10")
    a(f"ds_read_b64 v[{TMP}:{TMP+1}], v2 offset:{L_H}")
    a(f"ds_read_b64 v[{TMP+2}:{TMP+3}], v2 offset:{L_H+128}")
    a("s_waitcnt lgkmcnt(0)")
    for q in range(2):
        for b in range(2):
            for d in range(4):
                for hl in range(2):
                    acc = AY + 8*b + 2*d + hl
                    w = (LO2 + 4*q + d) if hl == 0 else (W2 + 8*q + 4 + d)
                    s2 = "0" if q == 0 else f"v{acc}"
                    a(f"v_dot2_f32_bf16 v{acc}, v{w}, v{TMP+2*b+q}, {s2}")
    reduce16(AY)
    a(f"s_mov_b32 s10, {LANES10}")
    a(f"s_mov_b32 s11, {LANES10}")
    a("s_mov_b64 exec, s[10:11]")
    a(f"ds_write_b128 v{VY}, v[{AY}:{AY+3}] offset:{L_Y2P}")
    a("s_mov_b64 exec, -1")
    lds_arrive(C4, VZ, 3, rtn=True)
    a("s_cmp_eq_u32 s10, 3")
    a("s_cbranch_scc0 L_noy2")
    a(f"v_lshlrev_b32 v2, 3, v0")
    for w in range(4):
        a(f"ds_read_b64 v[{TMP+8+2*w}:{TMP+9+2*w}], v2 offset:{L_Y2P + w*640}")
    for w in range(4):
        a(f"ds_read_b64 v[{TMP+16+2*w}:{TMP+17+2*w}], v2 offset:{L_Y2P + w*640 + 512}")
    def pair_addr(vdst, vp, vt):
        a(f"v_lshrrev_b32 v{vdst}, 2, v{vp}")
        a(f"v_cmp_lt_u32 vcc, 39, v{vp}")
        a(f"v_mov_b32 v{vt}, 0")
        a(f"v_cndmask_b32 v{vt}, v{vt}, v{TMP+31}, vcc")
        a(f"v_add_u32 v{vdst}, v{vdst}, v{vt}")
        a(f"v_lshlrev_b32 v{vdst}, 11, v{vdst}")
        a(f"v_and_b32 v{vt}, 2, v{vp}")
        a(f"v_lshl_add_u32 v{vdst}, v{vt}, 9, v{vdst}")
        a(f"v_and_b32 v{vt}, 1, v{vp}")
        a(f"v_lshl_add_u32 v{vdst}, v{vt}, 4, v{vdst}")
        a(f"v_add_u32 v{vdst}, s10, v{vdst}")
    if opts.y2lay:
        a("s_mul_i32 s10, s4, 10240")
        a("s_mul_i32 s11, s5, 1280")
        a("s_add_u32 s10, s10, s11")
        a(f"s_add_u32 s10, s10, {WS_H3B}")
        a("v_lshl_add_u32 v3, v0, 4, s10")
        a("v_add_u32 v2, 1024, v3")
    else:
        a("s_mul_i32 s10, s5, 20480")
        a("s_lshl_b32 s11, s4, 5")
        a("s_add_u32 s10, s10, s11")
        a(f"s_add_u32 s10, s10, {WS_H3B}")
        a(f"v_mov_b32 v{TMP+31}, 70")
        pair_addr(3, 0, TMP + 30)
        a(f"v_add_u32 v{TMP+29}, 64, v0")
        pair_addr(2, TMP + 29, TMP + 30)
    set_tag(TMP)
    set_tag(TMP+4)
    a("s_waitcnt lgkmcnt(0)")
    for e in range(2):
        a(f"v_add_f32 v{TMP+8+e}, v{TMP+8+e}, v{TMP+10+e}")
        a(f"v_add_f32 v{TMP+12+e}, v{TMP+12+e}, v{TMP+14+e}")
        a(f"v_add_f32 v{TMP+e}, v{TMP+8+e}, v{TMP+12+e}")
    if 'y' not in opts.abl:
        a(f"buffer_store_dwordx4 v[{TMP}:{TMP+3}], v3, s[56:59], 0 offen sc1")
    for e in range(2):
        a(f"v_add_f32 v{TMP+16+e}, v{TMP+16+e}, v{TMP+18+e}")
        a(f"v_add_f32 v{TMP+20+e}, v{TMP+20+e}, v{TMP+22+e}")
        a(f"v_add_f32 v{TMP+4+e}, v{TMP+16+e}, v{TMP+20+e}")
    a("s_mov_b64 exec, 0xffff")
    if 'y' not in opts.abl:
        a(f"buffer_store_dwordx4 v[{TMP+4}:{TMP+7}], v2, s[56:59], 0 offen sc1")
    a("s_mov_b64 exec, -1")
    a.label("L_noy2")
    stamp(3)
    MASK = 120
    AOP = 136
    ACC2 = 96
    YR = 104
    VPH, VYW, VY0, VY1 = 13, 14, 15, 16
    GY = 20
    a("v_lshrrev_b32 v2, 1, v0")
    a("v_and_b32 v2, 7, v2")
    for q in range(4):
        for h in range(2):
            a(f"v_cmp_eq_u32 vcc, {2*q+h}, v2")
            a(f"v_cndmask_b32 v{MASK+2*q+h}, 0, -1, vcc")
    a("v_and_b32 v3, 1, v0")
    a("v_lshlrev_b32 v3, 12, v3")
    a("v_lshrrev_b32 v4, 1, v2")
    a("v_lshl_add_u32 v3, v4, 10, v3")
    a(f"v_lshl_add_u32 v3, v{RG}, 6, v3")
    a("v_and_b32 v4, 1, v2")
    a("v_lshl_add_u32 v3, v4, 5, v3")
    a("s_lshl_b32 s10, s4, 13")
    a("s_lshl_b32 s11, s3, 8")
    a("s_add_u32 s10, s10, s11")
    a(f"s_add_u32 s10, s10, {WS_H2}")
    a(f"v_add_u32 v{VPH}, s10, v3")
    a("s_lshl_b32 s10, s3, 10")
    a(f"v_lshl_add_u32 v{VYW}, v0, 4, s10")
    a(f"v_lshlrev_b32 v3, 11, v{C}")
    a(f"v_lshrrev_b32 v4, 1, v{RG}")
    a("v_lshl_add_u32 v3, v4, 10, v3")
    a(f"v_and_b32 v4, 1, v{RG}")
    a("v_lshl_add_u32 v3, v4, 4, v3")
    a("s_mul_i32 s10, s5, 20480")
    a("s_lshl_b32 s11, s4, 5")
    a("s_add_u32 s10, s10, s11")
    a(f"s_add_u32 s10, s10, {WS_H3A}")
    a(f"v_add_u32 v{VY0}, s10, v3")
    a(f"v_lshlrev_b32 v{VY1}, 4, v0")
    if opts.y1lay:
        a("s_mul_i32 s10, s4, 10240")
        a("s_mul_i32 s11, s5, 1280")
        a("s_add_u32 s10, s10, s11")
        a(f"s_add_u32 s10, s10, {WS_H3A}")
        a(f"v_lshl_add_u32 v{VY0}, v0, 4, s10")
        a("v_and_b32 v3, 3, v0")
        a("v_lshrrev_b32 v4, 2, v0")
        a("v_and_b32 v4, 15, v4")
        a("v_lshl_add_u32 v3, v3, 4, v4")
        a(f"v_lshlrev_b32 v{VY1}, 4, v3")
    set_tag(GY)
    set_tag(GY + 4)
    a("s_cmp_lg_u32 s3, 0")
    a("s_cbranch_scc1 L_noml")
    lds_spin(C2, 8, VZ, 3, sleep=1)
    a(f"ds_read_b128 v[{TMP}:{TMP+3}], v{VZ} offset:{L_ML}")
    a(f"ds_read_b128 v[{TMP+4}:{TMP+7}], v{VZ} offset:{L_ML+16}")
    a(f"ds_read_b128 v[{TMP+8}:{TMP+11}], v{VZ} offset:{L_ML+32}")
    a(f"ds_read_b128 v[{TMP+12}:{TMP+15}], v{VZ} offset:{L_ML+48}")
    GM = TMP + 16
    set_tag(GM)
    a(f"s_mul_i32 s10, s4, {GSTR}")
    a("s_lshl_b32 s11, s5, 7")
    a("s_add_u32 s10, s10, s11")
    a(f"s_add_u32 s10, s10, {WS_ML}")
    a("v_mov_b32 v3, s10")
    a(f"s_mov_b32 s14, 0x{f32bits(LOG2E):08x}")
    a("s_waitcnt lgkmcnt(0)")
    M = GM
    a(f"v_max3_f32 v{M}, v{TMP}, v{TMP+1}, v{TMP+2}")
    a(f"v_max3_f32 v{M}, v{M}, v{TMP+3}, v{TMP+4}")
    a(f"v_max3_f32 v{M}, v{M}, v{TMP+5}, v{TMP+6}")
    a(f"v_max_f32 v{M}, v{M}, v{TMP+7}")
    E8 = TMP + 24
    for w in range(8):
        a(f"v_sub_f32 v{E8+w}, v{TMP+w}, v{M}")
    for w in range(8):
        a(f"v_mul_f32 v{E8+w}, s14, v{E8+w}")
    for w in range(8):
        a(f"v_exp_f32 v{E8+w}, v{E8+w}")
    a("s_mov_b64 exec, 1")
    a(f"ds_write_b128 v{VZ}, v[{E8}:{E8+3}] offset:{L_F}")
    a(f"ds_write_b128 v{VZ}, v[{E8+4}:{E8+7}] offset:{L_F+16}")
    a("v_mov_b32 v4, 1")
    a(f"ds_write_b32 v{VZ}, v4 offset:{FF}")
    a("s_mov_b64 exec, -1")
    Ls = GM + 1
    a(f"v_mul_f32 v{Ls}, v{E8}, v{TMP+8}")
    for w in range(1, 8):
        a(f"v_fma_f32 v{Ls}, v{E8+w}, v{TMP+8+w}, v{Ls}")
    a("s_mov_b64 exec, 1")
    if opts.fast:
        a(f"s_mov_b32 s10, {FOFF}")
        a(f"buffer_store_dwordx4 v[{GM}:{GM+3}], v3, s[56:59], s10 offen")
    a(f"buffer_store_dwordx4 v[{GM}:{GM+3}], v3, s[56:59], 0 offen sc1")
    a("s_mov_b64 exec, -1")
    if opts.fast and opts.reclaim:
        for r in range(4):
            a(f"v_mov_b32 v{TMP+r}, 0")
        a("s_lshl_b32 s10, s6, 10")
        a(f"s_add_u32 s10, s10, {WS_H2 + FOFF}")
        a(f"v_lshl_add_u32 v3, v0, 4, s10")
        a(f"buffer_store_dwordx4 v[{TMP}:{TMP+3}], v3, s[56:59], 0 offen")
    a.label("L_noml")
    if "t" in opts.abl:
        a("s_branch L_fin")
    GP = TMP + 28
    VFS = 17
    VML = 18
    a("v_and_b32 v3, 1, v0")
    a("v_lshlrev_b32 v3, 9, v3")
    a("v_lshrrev_b32 v4, 2, v0")
    a("v_and_b32 v4, 3, v4")
    a("v_lshl_add_u32 v3, v4, 7, v3")
    a(f"s_mul_i32 s10, s4, {GSTR}")
    a(f"s_add_u32 s10, s10, {WS_ML}")
    a(f"v_add_u32 v{VML}, s10, v3")
    a(f"s_mul_i32 s9, s4, {GSTR}")
    a(f"s_add_u32 s9, s9, {WS_H2F}")
    a("s_lshl_b32 s10, s5, 3")
    a("s_add_u32 s10, s10, s9")
    a("v_mov_b32 v19, s10")
    def calc_f():
        a(f"v_max_f32_dpp v5, v{GP}, v{GP} row_ror:4 row_mask:0xf bank_mask:0xf")
        a(f"v_max_f32_dpp v5, v5, v5 row_ror:8 row_mask:0xf bank_mask:0xf")
        a(f"v_sub_f32 v6, v{GP}, v5")
        a(f"v_mul_f32 v6, s14, v6")
        a(f"v_exp_f32 v6, v6")
        a(f"v_mul_f32 v7, v6, v{GP+1}")
        a(f"v_add_f32_dpp v7, v7, v7 row_ror:4 row_mask:0xf bank_mask:0xf")
        a(f"v_add_f32_dpp v7, v7, v7 row_ror:8 row_mask:0xf bank_mask:0xf")
        a(f"v_rcp_f32 v7, v7")
        a(f"v_mul_f32 v{VFS}, v6, v7")
    SRC = "s13"
    if not opts.fast:
        lds_spin(C6, 8, VZ, 3, sleep=2)
    if opts.fast:
        lds_spin(FF, 1, VZ, 3, sleep=4)
        a(f"s_mov_b32 {SRC}, {FOFF}")
        a(f"s_mov_b32 s12, {opts.maxpoll}")
        a.label("L_pollml")
        a(f"buffer_load_dwordx4 v[{GP}:{GP+3}], v{VML}, s[56:59], {SRC} offen sc1")
        a("s_waitcnt vmcnt(0)")
        tags_bad([GP])
        a("s_cbranch_scc1 L_pollml_done")
        a(f"s_sleep {opts.mlsleep}")
        a(f"s_cmp_lt_u32 s12, {opts.maxpoll - opts.nf}")
        a(f"s_cselect_b32 s10, {FOFF}, 0")
        a(f"s_xor_b32 {SRC}, {SRC}, s10")
        a("s_sub_u32 s12, s12, 1")
        a("s_cmp_lg_u32 s12, 0")
        a("s_cbranch_scc1 L_pollml")
        a.label("L_pollml_done")
        a(f"s_mov_b32 s14, 0x{f32bits(LOG2E):08x}")
        calc_f()
        lds_spin(C6, 8, VZ, 3, sleep=1)
        a(f"s_mov_b32 {SRC}, {FOFF}")
    else:
        a("s_cmp_lg_u32 s3, 0")
        a("s_cbranch_scc1 L_nohint0")
        a("s_mov_b64 exec, 1")
        a(f"buffer_store_dwordx2 v[{GY+2}:{GY+3}], v19, s[56:59], 0 offen sc1")
        a("s_mov_b64 exec, -1")
        a.label("L_nohint0")
        a(f"buffer_load_dwordx4 v[{GP}:{GP+3}], v{VML}, s[56:59], 0 offen sc1")
        a("s_cmp_lg_u32 s3, 0")
        a("s_cbranch_scc1 L_nohint")
        hint_poll("hint2", 9, 1)
        a("v_mov_b32 v3, 1")
        a(f"ds_write_b32 v{VZ}, v3 offset:{HG}")
        a.label("L_nohint")
        lds_spin(HG, 1, VZ, 3)
        a(f"s_mov_b32 s12, {opts.maxpoll}")
        a.label("L_pollml")
        a("s_waitcnt vmcnt(0)")
        tags_bad([GP])
        a("s_cbranch_scc1 L_pollml_done")
        a("s_sleep 2")
        a(f"buffer_load_dwordx4 v[{GP}:{GP+3}], v{VML}, s[56:59], 0 offen sc1")
        a("s_sub_u32 s12, s12, 1")
        a("s_cmp_lg_u32 s12, 0")
        a("s_cbranch_scc1 L_pollml")
        a.label("L_pollml_done")
    stamp(4)
    a(f"s_mov_b32 s9, {640 if opts.y1lay else 160*1024}")
    a(f"s_mov_b32 s14, 0x{f32bits(LOG2E):08x}")
    n2 = opts.npoll2
    assert n2 <= (4 if opts.fast else 3)
    PS = [[TMP + 8*k, TMP + 8*k + 4] for k in range(n2)]

    def issue2(k):
        so = SRC if opts.fast else "0"
        a(f"buffer_load_dwordx4 v[{PS[k][0]}:{PS[k][0]+3}], v{VPH}, s[56:59], {so} offen sc1")
        a(f"buffer_load_dwordx4 v[{PS[k][1]}:{PS[k][1]+3}], v{VPH}, s[56:59], {so} offen offset:16 sc1")
        if opts.fast:
            a(f"s_cmp_lt_u32 s12, {opts.maxpoll - opts.nf}")
            a(f"s_cselect_b32 s10, {FOFF}, 0")
            a(f"s_xor_b32 {SRC}, {SRC}, s10")

    O4 = [4, 5, 6, 7]
    pipelined_poll("pollH2", n2, PS, issue2, opts.stag2, O4, after_issue=(None if opts.fast else calc_f))
    stamp(5)
    for r in O4:
        a(f"v_mul_f32 v{r}, v{VFS}, v{r}")
    for ctrl in ["row_ror:4", "row_ror:8"]:
        for r in O4:
            a(f"v_add_f32_dpp v{r}, v{r}, v{r} {ctrl} row_mask:0xf bank_mask:0xf")
    D0, D1 = 2, 3
    a(f"v_cvt_pk_bf16_f32 v{D0}, v{O4[0]}, v{O4[1]}")
    a(f"v_cvt_pk_bf16_f32 v{D1}, v{O4[2]}, v{O4[3]}")
    for q in range(4):
        a(f"v_and_b32 v{AOP+4*q}, v{D0}, v{MASK+2*q}")
        a(f"v_and_b32 v{AOP+4*q+1}, v{D1}, v{MASK+2*q}")
        a(f"v_and_b32 v{AOP+4*q+2}, v{D0}, v{MASK+2*q+1}")
        a(f"v_and_b32 v{AOP+4*q+3}, v{D1}, v{MASK+2*q+1}")
    for q in range(4):
        for od in range(2):
            acc = ACC2 + 4*od
            c = "0" if q == 0 else f"v[{acc}:{acc+3}]"
            e = 2*q + od
            a(f"v_mfma_f32_16x16x32_bf16 v[{acc}:{acc+3}], v[{AOP+4*q}:{AOP+4*q+3}], v[{BOP+4*e}:{BOP+4*e+3}], {c}")
    YW = YR
    a(f"v_add_f32 v{YW}, v{ACC2}, v{ACC2+2}")
    a(f"v_add_f32 v{YW+1}, v{ACC2+4}, v{ACC2+6}")
    a(f"v_add_f32 v{YW+2}, v{ACC2+1}, v{ACC2+3}")
    a(f"v_add_f32 v{YW+3}, v{ACC2+5}, v{ACC2+7}")
    a(f"ds_write_b128 v{VYW}, v[{YW}:{YW+3}] offset:{L_Y1P}")
    lds_arrive(C5, VZ, 3, rtn=True)
    stamp(6)
    a("s_cmp_eq_u32 s10, 3")
    a("s_cbranch_scc0 L_fin")
    for w in range(4):
        a(f"ds_read_b128 v[{YR+4*w}:{YR+4*w+3}], v{VY1} offset:{L_Y1P + w*1024}")
    if opts.y1lay:
        a("s_mov_b32 s10, -1")
        a("s_mov_b32 s11, 0xff")
    else:
        a(f"s_mov_b32 s10, {LANES10}")
        a(f"s_mov_b32 s11, {LANES10}")
    a("s_waitcnt lgkmcnt(2)")
    for e in range(4):
        a(f"v_add_f32 v{YR+e}, v{YR+e}, v{YR+4+e}")
    a("s_waitcnt lgkmcnt(0)")
    for e in range(4):
        a(f"v_add_f32 v{YR+8+e}, v{YR+8+e}, v{YR+12+e}")
    a(f"v_add_f32 v{GY}, v{YR}, v{YR+8}")
    a(f"v_add_f32 v{GY+1}, v{YR+1}, v{YR+9}")
    a(f"v_add_f32 v{GY+4}, v{YR+2}, v{YR+10}")
    a(f"v_add_f32 v{GY+5}, v{YR+3}, v{YR+11}")
    a("s_mov_b64 exec, s[10:11]")
    a(f"buffer_store_dwordx4 v[{GY}:{GY+3}], v{VY0}, s[56:59], 0 offen sc1")
    a(f"buffer_store_dwordx4 v[{GY+4}:{GY+7}], v{VY0}, s[56:59], s9 offen sc1")
    a("s_mov_b64 exec, -1")
    stamp(7)
    a.label("L_fin")
    if stamps:
        a("s_mul_i32 s90, s6, 12")
        a("s_add_u32 s90, s90, s3")
        a("s_lshl_b32 s90, s90, 6")
        a(f"s_add_u32 s90, s90, {WS_STAMP}")
        a("v_mov_b32 v2, s90")
        a("s_waitcnt lgkmcnt(0)")
        for i in range(16):
            a(f"v_mov_b32 v{8+i}, s{ST0+i}")
        a("s_mov_b64 exec, 1")
        for q in range(4):
            a(f"buffer_store_dwordx4 v[{8+4*q}:{11+4*q}], v2, s[56:59], 0 offen offset:{16*q}")
    a.label("L_end")
    a("s_endpgm")

    nv = 168
    out = HEADER
    out += f"; @launch grid=(256,1,1) block=(768,1,1) lds={L_TOTAL}\n"
    out += '.amdgcn_target "amdgcn-amd-amdhsa--gfx950"\n.text\n'
    out += f".globl {KNAME}\n.p2align 8\n.type {KNAME},@function\n{KNAME}:\n"
    out += "\n".join(a.l) + "\n"
    out += f""".section .rodata,"a"
.p2align 6
.amdhsa_kernel {KNAME}
  .amdhsa_next_free_vgpr {nv}
  .amdhsa_next_free_sgpr 96
  .amdhsa_accum_offset {nv}
  .amdhsa_group_segment_fixed_size 0
  .amdhsa_kernarg_size 88
  .amdhsa_user_sgpr_count 2
  .amdhsa_user_sgpr_kernarg_segment_ptr 1
  .amdhsa_system_sgpr_workgroup_id_x 1
.end_amdhsa_kernel
"""
    return out


def main():
    p = argparse.ArgumentParser()
    p.add_argument("-o", default="recurrent_scan__sliding_block_cached__dense_activation_relu__decode.s")
    p.add_argument("--kvpol", default="nt")
    p.add_argument("--wpol", default="nt")
    p.add_argument("--stamps", action="store_true")
    p.add_argument("--maxpoll", type=int, default=20000)
    p.add_argument("--maxspin", type=int, default=2000000)
    p.add_argument("--rotg", type=int, default=1)
    p.add_argument("--rotw", type=int, default=4)
    p.add_argument("--map", default="C")
    p.add_argument("--win", type=int, default=4)
    p.add_argument("--qkv", type=lambda s: [int(x) for x in s.split(",")], default=[1, 1, 1, 1])
    p.add_argument("--fpos", type=int, default=12)
    p.add_argument("--qpos", type=int, default=24)
    p.add_argument("--sched", default="dyn")
    p.add_argument("--kwin", type=int, default=0)
    p.add_argument("--dbgst", action="store_true")
    p.add_argument("--abl", default="")
    p.add_argument("--win2", type=int, default=0)
    p.add_argument("--bpos", type=int, default=3)
    p.add_argument("--hpos", type=int, default=8)
    p.add_argument("--ygate", type=lambda s: tuple(eval(x) for x in s.split(",")), default=(C5, 1))
    p.add_argument("--gate", type=int, default=8)
    p.add_argument("--npoll2", type=int, default=2)
    p.add_argument("--npoll3", type=int, default=4)
    p.add_argument("--stag2", type=int, default=6)
    p.add_argument("--stag3", type=int, default=3)
    p.add_argument("--prio", default="")
    p.add_argument("--qprio", type=int, default=-1)
    p.add_argument("--fast", action="store_true")
    p.add_argument("--nf", type=int, default=48)
    p.add_argument("--slow3", default="")
    p.add_argument("--mlsleep", type=int, default=4)
    p.add_argument("--reclaim", action="store_true")
    p.add_argument("--y1lay", type=int, default=0)
    p.add_argument("--y2lay", type=int, default=0)
    p.add_argument("--preld", type=int, default=0)
    p.add_argument("--h1f", type=int, default=0)
    p.add_argument("--bhi", type=int, default=2)
    o = p.parse_args()
    open(o.o, "w").write(gen(o))
    print("wrote", o.o)


if __name__ == "__main__":
    main()
```

```python
import sys, argparse, struct
from asmh import A
from gen2 import HEADER, KNAME

WS_H1 = 0x0
WS_H2 = 0xC0000
GSTR = 4352
WS_ML = 0x340000
WS_H1F = 0x380000
WS_H2F = 0x300000
WS_H3A = 0x140000
WS_H3B = 0x190000
WS_EPOCH = 0x1F0000
WS_STAMP = 0x200000
WS_SIZE = 0x800000
FOFF = 0x400000

L_QP = 0
L_HP = 4096
L_Q = 6144
L_H = 6400
L_OP = 6656
L_ML = 10752
L_F = 10816
L_TAG = 10848
L_Y2P = 11392
L_Y1P = 13952
L_SYNC = 18048
L_TOTAL = 18176
C1, QF, HF, C2, FF, C3, C4, C5, C6, HG = [L_SYNC + 4 * i for i in range(10)]

LOG2E = 1.4426950408889634
OOB = 0x40000000
LANES10 = "0x03ff03ff"


def f32bits(x):
    return struct.unpack('<I', struct.pack('<f', x))[0]


def gen(opts):
    a = A()
    kvpol = opts.kvpol
    wpol = opts.wpol
    stamps = opts.stamps
    W = opts.win
    ST0 = 72

    def stamp(idx):
        if stamps:
            a(f"s_memrealtime s[{ST0+2*idx}:{ST0+2*idx+1}]")

    uid = [0]

    def lds_spin(off, val, vz, vt, sleep=0):
        uid[0] += 1
        lbl = f"L_spin{uid[0]}"
        a(f"s_mov_b32 s12, {opts.maxspin}")
        a.label(lbl)
        a(f"ds_read_b32 v{vt}, v{vz} offset:{off}")
        a("s_waitcnt lgkmcnt(0)")
        a(f"v_readfirstlane_b32 s10, v{vt}")
        a(f"s_cmp_ge_u32 s10, {val}")
        a(f"s_cbranch_scc1 {lbl}_done")
        if sleep:
            a(f"s_sleep {sleep}")
        a("s_sub_u32 s12, s12, 1")
        a("s_cmp_lg_u32 s12, 0")
        a(f"s_cbranch_scc1 {lbl}")
        a.label(lbl + "_done")

    def lds_arrive(off, vz, vt, rtn=False):
        a(f"v_mov_b32 v{vt}, 1")
        a("s_mov_b64 exec, 1")
        if rtn:
            a(f"ds_add_rtn_u32 v{vt}, v{vz}, v{vt} offset:{off}")
        else:
            a(f"ds_add_u32 v{vz}, v{vt} offset:{off}")
        a("s_mov_b64 exec, -1")
        if rtn:
            a("s_waitcnt lgkmcnt(0)")
            a(f"v_readfirstlane_b32 s10, v{vt}")

    def set_tag(r):
        a(f"v_mov_b32 v{r+2}, s68")
        a(f"v_mov_b32 v{r+3}, s69")

    def tags_bad(regs):
        for n, r in enumerate(regs):
            dst = "s[70:71]" if n == 0 else "vcc"
            a(f"v_cmp_ne_u64 {dst}, v[{r+2}:{r+3}], s[68:69]")
            if n:
                a("s_or_b64 s[70:71], s[70:71], vcc")
        a("s_cmp_eq_u64 s[70:71], 0")

    def pipelined_poll(name, nsets, setregs, issue, stag, res, slow=0, after_issue=None):
        nl = len(setregs[0])
        a(f"s_mov_b32 s12, {opts.maxpoll}")
        a("s_mov_b64 s[38:39], -1")
        for k in range(nsets):
            issue(k)
            if k == 0 and after_issue:
                after_issue()
            if k + 1 < nsets and stag:
                a(f"s_sleep {stag}")
        a.label(f"L_{name}")
        for k in range(nsets):
            a(f"s_waitcnt vmcnt({(nsets-1)*nl})")
            for n, r in enumerate(setregs[k]):
                dst = "s[70:71]" if n == 0 else "vcc"
                a(f"v_cmp_eq_u64 {dst}, v[{r+2}:{r+3}], s[68:69]")
                if n:
                    a("s_and_b64 s[70:71], s[70:71], vcc")
            a("s_and_b64 exec, s[70:71], s[38:39]")
            for n, r in enumerate(setregs[k]):
                a(f"v_mov_b32 v{res[2*n]}, v{r}")
                a(f"v_mov_b32 v{res[2*n+1]}, v{r+1}")
            a("s_andn2_b64 s[38:39], s[38:39], s[70:71]")
            a("s_mov_b64 exec, s[38:39]")
            a(f"s_cbranch_scc0 L_{name}_done")
            if slow:
                a("s_bcnt1_i32_b64 s10, s[38:39]")
                a(f"s_cmp_lt_u32 s10, {slow[0]}")
                uid[0] += 1
                a(f"s_cbranch_scc1 L_fast{uid[0]}")
                a(f"s_sleep {slow[1]}")
                a.label(f"L_fast{uid[0]}")
            issue(k)
            a("s_mov_b64 exec, -1")
        a("s_sub_u32 s12, s12, 1")
        a("s_cmp_lg_u32 s12, 0")
        a(f"s_cbranch_scc1 L_{name}")
        a.label(f"L_{name}_done")
        a("s_mov_b64 exec, -1")

    def hint_poll(name, ws_off_sgpr, sleep):
        a(f"s_add_u32 s14, s56, s{ws_off_sgpr}")
        a("s_addc_u32 s15, s57, 0")
        a(f"s_mov_b32 s12, {opts.maxpoll}")
        a.label(f"L_{name}")
        a("s_load_dwordx16 s[16:31], s[14:15], 0 glc")
        a("s_waitcnt lgkmcnt(0)")
        for i in range(8):
            a(f"s_cmp_eq_u64 s[{16+2*i}:{17+2*i}], s[68:69]")
            a(f"s_cbranch_scc0 L_{name}_no")
        a(f"s_branch L_{name}_done")
        a.label(f"L_{name}_no")
        if sleep:
            a(f"s_sleep {sleep}")
        a("s_sub_u32 s12, s12, 1")
        a("s_cmp_lg_u32 s12, 0")
        a(f"s_cbranch_scc1 L_{name}")
        a.label(f"L_{name}_done")

    a("s_cmp_ge_u32 s2, 256")
    a("s_cbranch_scc1 L_end")
    a("s_load_dwordx16 s[16:31], s[0:1], 0")
    a("s_load_dwordx4 s[32:35], s[0:1], 64")
    a("s_load_dwordx2 s[36:37], s[0:1], 80")
    if stamps:
        for i in range(1, 8):
            a(f"s_mov_b64 s[{ST0+2*i}:{ST0+2*i+1}], 0")
        stamp(0)
    a("v_lshrrev_b32 v1, 6, v0")
    a("v_and_b32 v0, 63, v0")
    if opts.map == "C":
        a("s_and_b32 s4, s2, 7")
        a("s_lshr_b32 s5, s2, 6")
        a("s_lshl_b32 s5, s5, 3")
        a("s_or_b32 s4, s4, s5")
        a("s_lshr_b32 s5, s2, 3")
        a("s_and_b32 s5, s5, 7")
    else:
        a("s_lshr_b32 s4, s2, 3")
        a("s_and_b32 s5, s2, 7")
    a("v_readfirstlane_b32 s3, v1")
    a("s_lshl_b32 s6, s4, 3")
    a("s_or_b32 s6, s6, s5")
    a("s_lshr_b32 s7, s5, 2")
    a("s_and_b32 s8, s5, 3")
    a(f"s_mov_b32 s58, {WS_SIZE}")
    a("s_mov_b32 s59, 0x00020000")
    a("s_cmp_lt_u32 s3, 4")
    a("s_cbranch_scc1 L_aux")

    VOFF, VQ, VT, VS, VACC, VK, VV, VF = 1, 2, 6, 8, 24, 32, 96, 160
    a.c("---- streaming wave ----")
    a("s_sub_u32 s3, s3, 4")
    a("s_lshl_b32 s9, s7, 5")
    a("s_add_u32 s9, s9, s4")
    a("s_lshl_b32 s9, s9, 21")
    a("s_lshl_b32 s10, s8, 17")
    a("s_add_u32 s9, s9, s10")
    a("s_add_u32 s9, s9, 1572864")
    a("s_lshl_b32 s10, s3, 14")
    a(f"v_lshl_add_u32 v{VOFF}, v0, 4, s10")
    a(f"s_mul_i32 s11, s4, {opts.rotg}")
    a(f"s_mul_i32 s12, s3, {opts.rotw}")
    a("s_add_u32 s11, s11, s12")
    a("s_lshl_b32 s11, s11, 10")
    a("s_mov_b32 s42, 131072")
    a("s_mov_b32 s43, 0x00020000")
    a("s_mov_b32 s46, 131072")
    a("s_mov_b32 s47, 0x00020000")
    a("s_cmp_lt_u32 s4, 20")
    a("s_cselect_b32 s13, 1, 0")
    a("s_cmp_lt_u32 s3, 2")
    a("s_cselect_b32 s13, s13, 0")
    a("s_cmp_ge_u32 s4, 10")
    a("s_cselect_b32 s14, 560, 0")
    a("s_lshl_b32 s10, s4, 3")
    a("s_add_u32 s14, s14, s10")
    a("s_mul_i32 s10, s5, 80")
    a("s_add_u32 s14, s14, s10")
    a("s_lshl_b32 s10, s3, 2")
    a("s_add_u32 s14, s14, s10")
    VXV = VK + 63
    a(f"v_and_b32 v{VT}, 1, v0")
    a(f"v_lshlrev_b32 v{VT}, 1, v{VT}")
    a(f"v_lshrrev_b32 v{VT+1}, 5, v0")
    a(f"v_add3_u32 v{VT}, v{VT}, v{VT+1}, s14")
    a(f"v_lshlrev_b32 v{VQ}, 1, v{VT}")
    a("s_waitcnt lgkmcnt(0)")
    if "e" in opts.abl:
        stamp(5)
    a("s_add_u32 s40, s18, s9")
    a("s_addc_u32 s41, s19, 0")
    a("s_add_u32 s44, s20, s9")
    a("s_addc_u32 s45, s21, 0")
    a("s_mov_b32 s56, s36")
    a("s_mov_b32 s57, s37")
    a("s_mov_b32 s48, s16")
    a("s_mov_b32 s49, s17")
    a("s_movk_i32 s50, 2560")
    a("s_mov_b32 s51, 0x00020000")
    a("s_mov_b32 s64, s32")
    a("s_mov_b32 s65, s33")
    a("s_movk_i32 s66, 2560")
    a("s_mov_b32 s67, 0x00020000")
    for i in range(16):
        a(f"s_add_u32 s{16+i}, s11, {i*1024}")
        a(f"s_and_b32 s{16+i}, s{16+i}, 0x3c00")
    a("s_barrier")
    if "e" in opts.abl:
        stamp(6)
    a("s_cmp_eq_u32 s13, 0")
    a("s_cbranch_scc1 L_nox")
    a(f"buffer_load_ushort v{VF+7+0}, v{VQ}, s[48:51], 0 offen")
    a.label("L_nox")
    XV = VF + 7
    PRIO = {int(k): int(v) for k, v in (it.split(":") for it in opts.prio.split(",") if it)}

    def issue(n, static=True):
        if static and n in PRIO:
            a(f"s_setprio {PRIO[n]}")
        if n < 16:
            a(f"buffer_load_dwordx4 v[{VK+4*n}:{VK+4*n+3}], v{VOFF}, s[40:43], s{16+n} offen {kvpol}")
        else:
            i = n - 16
            a(f"buffer_load_dwordx4 v[{VV+4*i}:{VV+4*i+3}], v{VOFF}, s[44:47], s{16+i} offen {kvpol}")

    W2 = opts.win2 or W
    NS = 16 - W2
    slot_i = [0]
    SREM = "s9"

    FLAT = opts.sched in ("flat", "ab")
    AB = opts.sched == "ab"

    def dstamp(idx):
        if opts.dbgst:
            stamp(idx)

    def late_burst():
        a(f"s_cmp_eq_u32 {SREM}, 0")
        a("s_cbranch_scc1 L_nolate")
        for n in range(opts.kwin, 32):
            issue(n)
        dstamp(5)
        a.label("L_nolate")

    def slot():
        k = slot_i[0]
        slot_i[0] += 1
        if AB and k == opts.bpos:
            late_burst()
        if FLAT:
            return
        if opts.burst >= 0 and k > opts.burst:
            a(f"s_cmp_eq_u32 {SREM}, {NS}")
            a(f"s_cbranch_scc1 L_slot{k}_full")
            a("s_waitcnt vmcnt(0)")
            a.label(f"L_slot{k}_full")
            a(f"s_waitcnt vmcnt({15 - k})")
            return
        if opts.burst >= 0 and k == opts.burst:
            a(f"s_cmp_eq_u32 {SREM}, {NS}")
            a(f"s_cbranch_scc1 L_slot{k}_full")
            for kk in range(k, NS):
                a(f"s_cmp_gt_u32 {SREM}, {kk}")
                a(f"s_cbranch_scc0 L_slot{k}_no")
                issue(16 + 15 - kk, False)
            a.label(f"L_slot{k}_no")
            a("s_waitcnt vmcnt(0)")
            a(f"s_branch L_slot{k}_done")
            a.label(f"L_slot{k}_full")
            a(f"s_waitcnt vmcnt({W2-1})")
            for kk in range(k, NS):
                issue(16 + 15 - kk, False)
            a.label(f"L_slot{k}_done")
            return
        if k < NS:
            a(f"s_cmp_gt_u32 {SREM}, {k}")
            a(f"s_cbranch_scc0 L_slot{k}_no")
            a(f"s_waitcnt vmcnt({W2-1})")
            issue(16 + 15 - k, False)
            a(f"s_branch L_slot{k}_done")
            a.label(f"L_slot{k}_no")
            a("s_waitcnt vmcnt(0)")
            a.label(f"L_slot{k}_done")
        else:
            a(f"s_waitcnt vmcnt({max(W2 - 1 - (k - NS), 0)})")

    a(f"v_mov_b32 v{VT+1}, 0")
    for n in range(W):
        issue(n)
    if AB:
        KW = opts.kwin
        for n in range(W, KW):
            a(f"s_waitcnt vmcnt({W-1})")
            issue(n)
        a(f"ds_read_b32 v{VT}, v{VT+1} offset:{QF}")
        a(f"s_waitcnt vmcnt({KW - 16})")
        a("s_waitcnt lgkmcnt(0)")
        a(f"v_readfirstlane_b32 {SREM}, v{VT}")
        a(f"s_cmp_lg_u32 {SREM}, 0")
        a(f"s_cbranch_scc1 L_qready")
        for n in range(KW, 32):
            issue(n)
        dstamp(5)
        lds_spin(QF, 1, VT + 1, VT, sleep=1)
        a(f"s_mov_b32 {SREM}, 0")
    elif FLAT:
        for n in range(W, 32):
            if n < opts.kwin:
                a(f"s_waitcnt vmcnt({W-1})")
            issue(n)
        dstamp(5)
        lds_spin(QF, 1, VT + 1, VT, sleep=1)
    else:
        for n in range(W, 16 + W2):
            if opts.winy and n < 16:
                a("s_cmp_ge_u32 s3, 4")
                a(f"s_waitcnt vmcnt({opts.winy - 1})")
                a(f"s_cbranch_scc1 L_wy{n}")
                a(f"s_waitcnt vmcnt({W - 1})")
                a.label(f"L_wy{n}")
            else:
                a(f"s_waitcnt vmcnt({(W if n < 16 else W2) - 1})")
            if "e" in opts.abl and n == W:
                stamp(7)
            if "e" in opts.abl and n == W + 4:
                stamp(4)
            issue(n)
        dstamp(5)
        if "q" in opts.abl:
            a(f"s_mov_b32 {SREM}, {NS}")
            a(f"s_waitcnt vmcnt({W2})")
            a("s_branch L_qready")
        for n in range(16 + W2, 32):
            a(f"ds_read_b32 v{VT}, v{VT+1} offset:{QF}")
            a(f"s_mov_b32 {SREM}, {32 - n}")
            a(f"s_waitcnt vmcnt({W2-1})")
            a("s_waitcnt lgkmcnt(0)")
            a(f"v_readfirstlane_b32 s10, v{VT}")
            a("s_cmp_lg_u32 s10, 0")
            a(f"s_cbranch_scc1 L_qready")
            issue(n)
        a(f"s_mov_b32 {SREM}, 0")
        a(f"s_waitcnt vmcnt({16 if False else min(W2, 16)})")
        lds_spin(QF, 1, VT + 1, VT, sleep=1)
    a.label("L_qready")
    if opts.qprio >= 0:
        a(f"s_setprio {opts.qprio}")
    a(f"v_and_b32 v{VT}, 15, v0")
    a(f"v_lshlrev_b32 v{VT}, 4, v{VT}")
    a(f"ds_read_b128 v[{VQ}:{VQ+3}], v{VT} offset:{L_Q}")
    a(f"ds_read_b64 v[{VS}:{VS+1}], v{VT+1} offset:{L_TAG}")
    stamp(1)
    a("s_waitcnt lgkmcnt(0)")
    a(f"v_readfirstlane_b32 s68, v{VS}")
    a(f"v_readfirstlane_b32 s69, v{VS+1}")
    _a = a
    class _F:
        def __call__(self, t):
            if "s" in opts.abl and t.startswith("v_") and not t.startswith("v_readlane"):
                return
            _a(t)
        def __getattr__(self, n):
            return getattr(_a, n)
    a = _F()
    for grp in range(4):
        if FLAT and not AB:
            a(f"s_waitcnt vmcnt({16 + 12 - 4*grp})")
        for d in range(4):
            for i in range(4*grp, 4*grp+4):
                src2 = "0" if d == 0 else f"v{VS+i}"
                a(f"v_dot2_f32_bf16 v{VS+i}, v{VK+4*i+d}, v{VQ+d}, {src2}")
    slot()
    for ctrl in ["quad_perm:[1,0,3,2]", "quad_perm:[2,3,0,1]", "row_half_mirror", "row_mirror"]:
        for i in range(16):
            a(f"v_add_f32_dpp v{VS+i}, v{VS+i}, v{VS+i} {ctrl} row_mask:0xf bank_mask:0xf")
    slot()
    a(f"s_mov_b32 s14, 0x{f32bits(128 ** -0.5):08x}")
    a("s_mov_b32 s15, 0xffff0000")
    for rnd in range(2):
        for p in range(8):
            a(f"v_cvt_pk_bf16_f32 v{VK+p}, v{VS+2*p}, v{VS+2*p+1}")
        for p in range(8):
            a(f"v_lshlrev_b32 v{VS+2*p}, 16, v{VK+p}")
            a(f"v_and_b32 v{VS+2*p+1}, s15, v{VK+p}")
        if rnd == 0:
            for i in range(16):
                a(f"v_mul_f32 v{VS+i}, s14, v{VS+i}")
    m = VT
    a(f"v_max3_f32 v{m}, v{VS}, v{VS+1}, v{VS+2}")
    for i in range(3, 15, 2):
        a(f"v_max3_f32 v{m}, v{m}, v{VS+i}, v{VS+i+1}")
    a(f"v_max_f32 v{m}, v{m}, v{VS+15}")
    for r in range(4):
        a(f"v_readlane_b32 s{60+r}, v{m}, {16*r}")
    a(f"v_mov_b32 v{m}, s60")
    a(f"v_max_f32 v{m}, s61, v{m}")
    a(f"v_max_f32 v{m}, s62, v{m}")
    a(f"v_max_f32 v{m}, s63, v{m}")
    slot()
    a(f"s_mov_b32 s14, 0x{f32bits(LOG2E):08x}")
    for i in range(16):
        a(f"v_sub_f32 v{VS+i}, v{VS+i}, v{m}")
    for i in range(16):
        a(f"v_mul_f32 v{VS+i}, s14, v{VS+i}")
    for i in range(16):
        a(f"v_exp_f32 v{VS+i}, v{VS+i}")
    PLO, PHI = VK, VK + 16
    a(f"v_mov_b32 v{VXV}, v{XV}")
    for i in range(16):
        a(f"v_cvt_pk_bf16_f32 v{PLO+i}, v{VS+i}, 0")
    for i in range(16):
        a(f"v_lshlrev_b32 v{PHI+i}, 16, v{PLO+i}")
    lsum = VT + 1
    a(f"v_add_f32 v{lsum}, v{VS}, v{VS+1}")
    for i in range(2, 16):
        a(f"v_add_f32 v{lsum}, v{lsum}, v{VS+i}")
    for r in range(4):
        a(f"v_readlane_b32 s{60+r}, v{lsum}, {16*r}")
    a(f"v_mov_b32 v{lsum}, s60")
    a(f"v_add_f32 v{lsum}, s61, v{lsum}")
    a(f"v_add_f32 v{lsum}, s62, v{lsum}")
    a(f"v_add_f32 v{lsum}, s63, v{lsum}")
    a = _a
    VZ = VQ
    a(f"s_lshl_b32 s10, s3, 2")
    a(f"v_mov_b32 v{VS}, s10")
    a(f"v_mov_b32 v{VZ}, 0")
    a(f"ds_write_b32 v{VS}, v{m} offset:{L_ML}")
    a(f"ds_write_b32 v{VS}, v{lsum} offset:{L_ML+32}")
    lds_arrive(C2, VZ, VS + 1)
    a(f"v_and_b32 v{VS}, 15, v0")
    a(f"v_lshlrev_b32 v{VS}, 5, v{VS}")
    a(f"v_lshrrev_b32 v{VS+1}, 4, v0")
    a(f"v_lshl_add_u32 v{VS}, v{VS+1}, 3, v{VS}")
    a(f"s_lshl_b32 s10, s3, 9")
    a(f"v_add_u32 v{VS}, s10, v{VS}")
    VCA, VPA, GO = VS + 2, VS + 3, VS + 4
    a(f"v_lshlrev_b32 v{VCA}, 3, v0")
    a("s_lshl_b32 s10, s6, 10")
    a(f"s_add_u32 s10, s10, {WS_H2}")
    a(f"v_lshl_add_u32 v{VPA}, v0, 4, s10")
    set_tag(GO)
    order = list(range(W2)) + list(range(15, W2 - 1, -1))
    if FLAT:
        order = list(range(16))
    dstamp(6)
    if AB and opts.bpos >= 3:
        late_burst()
    if FLAT:
        slot_i[0] = 16
    for t in range(16):
        i = order[t]
        while slot_i[0] <= t:
            slot()
        if FLAT:
            a(f"s_waitcnt vmcnt({15 - t})")
        if t == 15:
            dstamp(7)
        if t == opts.wpos:
            lds_arrive(HG, VZ, VS + 8)
        if t == opts.hpos:
            lds_arrive(C6, VZ, VS + 8)
        if t == opts.fpos:
            stamp(3)
            lds_spin(FF, 1, VZ, VS + 8, sleep=1)
            a(f"ds_read_b128 v[{VF}:{VF+3}], v{VZ} offset:{L_F}")
            a(f"ds_read_b128 v[{VF+4}:{VF+7}], v{VZ} offset:{L_F+16}")
            a("s_setprio 3")
        for d in range(4):
            s2a = "0" if t == 0 else f"v{VACC+2*d}"
            s2b = "0" if t == 0 else f"v{VACC+2*d+1}"
            a(f"v_dot2_f32_bf16 v{VACC+2*d}, v{VV+4*i+d}, v{PLO+i}, {s2a}")
            a(f"v_dot2_f32_bf16 v{VACC+2*d+1}, v{VV+4*i+d}, v{PHI+i}, {s2b}")
    assert slot_i[0] == 16
    for e in range(4):
        a(f"v_permlane32_swap_b32 v{VACC+e}, v{VACC+e+4}")
    for e in range(4):
        a(f"v_add_f32 v{VACC+e}, v{VACC+e}, v{VACC+e+4}")
    a(f"v_permlane16_swap_b32 v{VACC}, v{VACC+2}")
    a(f"v_permlane16_swap_b32 v{VACC+1}, v{VACC+3}")
    a(f"v_add_f32 v{VACC}, v{VACC}, v{VACC+2}")
    a(f"v_add_f32 v{VACC+1}, v{VACC+1}, v{VACC+3}")
    a(f"ds_write_b64 v{VS}, v[{VACC}:{VACC+1}] offset:{L_OP}")
    lds_arrive(C3, VZ, VS + 8, rtn=True)
    stamp(2)
    a("s_cmp_eq_u32 s10, 7")
    a("s_cbranch_scc0 L_nocomb")
    OPR = VK
    for w in range(8):
        a(f"ds_read_b64 v[{OPR+2*w}:{OPR+2*w+1}], v{VCA} offset:{L_OP + w*512}")
    for w in range(8):
        a(f"s_waitcnt lgkmcnt({7-w})")
        for e in range(2):
            if w == 0:
                a(f"v_mul_f32 v{GO+e}, v{VF}, v{OPR+e}")
            else:
                a(f"v_fma_f32 v{GO+e}, v{VF+w}, v{OPR+2*w+e}, v{GO+e}")
    if opts.fast:
        a(f"s_mov_b32 s10, {FOFF}")
        a(f"buffer_store_dwordx4 v[{GO}:{GO+3}], v{VPA}, s[56:59], s10 offen")
    a(f"buffer_store_dwordx4 v[{GO}:{GO+3}], v{VPA}, s[56:59], 0 offen sc1")
    stamp(4)
    a.label("L_nocomb")
    if "t" in opts.abl:
        a("s_branch L_sfin")
    a("s_cmp_eq_u32 s13, 0")
    a("s_cbranch_scc1 L_sfin")
    a("s_cmp_ge_u32 s4, 10")
    a("s_cselect_b32 s9, 70, 0")
    a("s_add_u32 s9, s9, s4")
    a("s_mul_i32 s10, s5, 10")
    a("s_add_u32 s9, s9, s10")
    a("s_lshl_b32 s9, s9, 1")
    a("s_add_u32 s9, s9, s3")
    a("s_lshl_b32 s9, s9, 10")
    a(f"s_add_u32 s9, s9, {WS_H3A}")
    FA, FO = VS, VS + 1
    FA1 = FA
    a(f"v_lshl_add_u32 v{FA}, v0, 4, s9")
    a(f"s_mov_b32 s11, {WS_H3B - WS_H3A}")
    if opts.y1lay:
        FA1 = VS + 3
        a("s_lshl_b32 s9, s4, 6")
        a("s_mul_i32 s10, s5, 1280")
        a("s_add_u32 s9, s9, s10")
        a("s_lshl_b32 s10, s3, 5")
        a("s_add_u32 s9, s9, s10")
        a(f"s_add_u32 s9, s9, {WS_H3A}")
        a(f"v_lshrrev_b32 v{FA1}, 1, v0")
        a(f"v_mul_u32_u24 v{FA1}, 10240, v{FA1}")
        a(f"v_and_b32 v{VS+2}, 1, v0")
        a(f"v_lshl_add_u32 v{FA1}, v{VS+2}, 4, v{FA1}")
        a(f"v_add_u32 v{FA1}, s9, v{FA1}")
    P = VK

    def reduce_duo(r0):
        for ctrl in ["quad_perm:[2,3,0,1]", "row_ror:4", "row_ror:8"]:
            a(f"v_add_f32_dpp v{r0}, v{r0}, v{r0} {ctrl} row_mask:0xf bank_mask:0xf")
            a(f"v_add_f32_dpp v{r0+1}, v{r0+1}, v{r0+1} {ctrl} row_mask:0xf bank_mask:0xf")
        a(f"v_permlane32_swap_b32 v{r0}, v{r0+1}")
        a(f"v_add_f32 v{r0}, v{r0}, v{r0+1}")
        a(f"v_mov_b32 v{r0+1}, v{r0}")
        a(f"v_permlane16_swap_b32 v{r0}, v{r0+1}")
        a(f"v_add_f32 v{r0}, v{r0}, v{r0+1}")

    RY2, RY1 = P + 4, P + 6
    pipelined_poll("pollY2", 1, [[P]],
                   lambda k: a(f"buffer_load_dwordx4 v[{P}:{P+3}], v{FA1 if opts.y2lay else FA}, s[56:59], s11 offen sc1"), 0,
                   [RY2, RY2 + 1], slow=(1, 8))
    n3 = opts.npoll3
    Y1S = [[P + 8 + 4*k] for k in range(n3)]
    a("s_cmp_ge_u32 s4, 10")
    a("s_cselect_b32 s14, 560, 0")
    a("s_lshl_b32 s10, s4, 3")
    a("s_add_u32 s14, s14, s10")
    a("s_mul_i32 s10, s5, 80")
    a("s_add_u32 s14, s14, s10")
    a("s_lshl_b32 s10, s3, 2")
    a("s_add_u32 s14, s14, s10")
    a(f"v_and_b32 v{FO}, 1, v0")
    a(f"v_lshlrev_b32 v{FO}, 1, v{FO}")
    a(f"v_lshrrev_b32 v{FO+1}, 5, v0")
    a(f"v_add3_u32 v{FO}, v{FO}, v{FO+1}, s14")
    a(f"v_lshlrev_b32 v{FO}, 1, v{FO}")
    reduce_duo(RY2)
    Y2 = RY2
    T7 = P
    a(f"v_cvt_pk_bf16_f32 v{Y2}, v{Y2}, 0")
    a(f"v_lshlrev_b32 v{Y2}, 16, v{Y2}")
    a(f"s_mov_b32 s14, 0x{f32bits(-LOG2E):08x}")
    a(f"v_mul_f32 v{T7}, s14, v{Y2}")
    a(f"v_exp_f32 v{T7}, v{T7}")
    a(f"v_add_f32 v{T7}, 1.0, v{T7}")
    a(f"v_rcp_f32 v{T7}, v{T7}")
    a(f"v_mul_f32 v{Y2}, v{Y2}, v{T7}")
    a(f"v_cvt_pk_bf16_f32 v{Y2}, v{Y2}, 0")
    a(f"v_lshlrev_b32 v{Y2}, 16, v{Y2}")
    a(f"v_lshlrev_b32 v{VXV}, 16, v{VXV}")
    if not opts.dbgst:
        stamp(5)
    lds_spin(opts.ygate[0], opts.ygate[1], VZ, VS + 8, sleep=1)
    pipelined_poll("pollY1", n3, Y1S,
                   lambda k: a(f"buffer_load_dwordx4 v[{Y1S[k][0]}:{Y1S[k][0]+3}], v{FA1}, s[56:59], 0 offen sc1"), opts.stag3,
                   [RY1, RY1 + 1], slow=(tuple(int(x) for x in opts.slow3.split(",")) if opts.slow3 else 0))
    if not opts.dbgst:
        stamp(6)
    Y1 = RY1
    reduce_duo(Y1)
    a(f"v_cvt_pk_bf16_f32 v{Y1}, v{Y1}, 0")
    a(f"v_lshlrev_b32 v{Y1}, 16, v{Y1}")
    a(f"v_mul_f32 v{Y1}, v{Y1}, v{Y2}")
    a(f"v_cvt_pk_bf16_f32 v{Y1}, v{Y1}, 0")
    a(f"v_lshlrev_b32 v{Y1}, 16, v{Y1}")
    a(f"v_add_f32 v{Y1}, v{VXV}, v{Y1}")
    a(f"v_cvt_pk_bf16_f32 v{Y1}, v{Y1}, 0")
    a("s_mov_b32 s10, 3")
    a("s_mov_b32 s11, 3")
    a("s_mov_b64 exec, s[10:11]")
    a(f"buffer_store_short v{Y1}, v{FO}, s[64:67], 0 offen")
    a("s_or_b32 s10, s6, s3")
    a("s_cmp_lg_u32 s10, 0")
    a("s_cbranch_scc1 L_noep")
    a("s_mov_b64 exec, 1")
    a(f"v_mov_b32 v{VS+2}, {WS_EPOCH}")
    a(f"v_mov_b32 v{VS+3}, s68")
    a(f"buffer_store_dword v{VS+3}, v{VS+2}, s[56:59], 0 offen sc1")
    a.label("L_noep")
    a("s_mov_b64 exec, -1")
    if not opts.dbgst:
        stamp(7)
    else:
        stamp(4)
    a.label("L_sfin")
    a("s_add_u32 s3, s3, 4")
    a("s_branch L_fin")

    a.label("L_aux")
    a.c("---- aux wave: a = s3 (0..3) ----")
    a("s_setprio 3")
    XR = 20
    VE = 30
    WQ = 32
    W1 = 52
    TMP = 64
    ACC = 96
    W2 = 120
    WO = 136
    LO2 = 96
    AY = 104
    BOP = 32
    a("s_cmp_lg_u32 s3, 0")
    a("s_cbranch_scc1 L_noclr")
    for r in range(4, 8):
        a(f"v_mov_b32 v{r}, 0")
    a(f"ds_write_b128 v4, v[4:7] offset:{L_SYNC}")
    a(f"ds_write_b128 v4, v[4:7] offset:{L_SYNC+16}")
    a(f"ds_write_b128 v4, v[4:7] offset:{L_SYNC+32}")
    a.label("L_noclr")
    a(f"v_lshlrev_b32 v2, 4, v0")
    a(f"v_lshlrev_b32 v3, 2, v0")
    a(f"v_mov_b32 v{VE}, {WS_EPOCH}")
    a("s_mul_i32 s9, s5, 80")
    a("s_mul_i32 s10, s3, 20")
    a("s_add_u32 s9, s9, s10")
    a(f"v_lshrrev_b32 v10, 4, v0")
    a(f"v_and_b32 v11, 15, v0")
    RG, C = 10, 11
    a(f"v_add_u32 v{TMP+10}, s9, v{RG}")
    a(f"v_lshlrev_b32 v{TMP+11}, 1, v{TMP+10}")
    a(f"v_lshlrev_b32 v{TMP+1}, 13, v{TMP+10}")
    a(f"v_lshl_add_u32 v{TMP+1}, v{C}, 4, v{TMP+1}")
    a("s_lshl_b32 s10, s4, 8")
    a(f"v_add_u32 v{TMP+1}, s10, v{TMP+1}")
    a(f"s_cmp_ge_u32 s4, {0 if 'f' in opts.abl else 27}")
    a(f"s_cselect_b32 s13, {OOB}, 0")
    if 'w' in opts.abl:
        a(f"v_add_u32 v{TMP+1}, {OOB}, v{TMP+1}")
    if 'B' in opts.abl:
        a(f"s_cmp_lt_u32 s2, {opts.bhi*64}")
        a(f"s_cselect_b32 s10, {OOB}, 0")
        a("s_bitcmp1_b32 s2, 2")
        a("s_cselect_b32 s10, s10, 0")
        a(f"v_add_u32 v{TMP+1}, s10, v{TMP+1}")
    a("s_movk_i32 s10, 3456")
    a(f"v_mul_lo_u32 v{TMP+2}, v{TMP+10}, s10")
    a(f"v_lshl_add_u32 v{TMP+2}, v{C}, 3, v{TMP+2}")
    a("s_lshl_b32 s10, s4, 7")
    a("s_add_u32 s10, s10, s13")
    a(f"v_add_u32 v{TMP+2}, s10, v{TMP+2}")
    for i in range(1, 5):
        a(f"s_mov_b32 s{88+i}, {i*32768}")
        if i < 4:
            a(f"s_mov_b32 s{92+i}, {i*13824}")
    a(f"s_mov_b32 s88, {4*13824}")
    a("s_waitcnt lgkmcnt(0)")

    def srd(r, lo, size):
        a(f"s_mov_b32 s{r}, s{lo}")
        a(f"s_mov_b32 s{r+1}, s{lo+1}")
        a(f"s_mov_b32 s{r+2}, {size}")
        a(f"s_mov_b32 s{r+3}, 0x00020000")
    a("s_mov_b32 s56, s36")
    a("s_mov_b32 s57, s37")
    srd(40, 16, 2560)
    a(f"buffer_load_dword v{VE}, v{VE}, s[56:59], 0 offen sc1")
    a(f"buffer_load_dwordx4 v[4:7], v2, s[40:43], 0 offen")
    a(f"buffer_load_dword v8, v3, s[40:43], 0 offen offset:1024")
    a(f"buffer_load_dwordx4 v[12:15], v2, s[40:43], 0 offen offset:1280")
    a(f"buffer_load_dword v16, v3, s[40:43], 0 offen offset:2304")
    srd(44, 22, 5242880)
    for i in range(5):
        so = "0" if i == 0 else f"s{88+i}"
        a(f"buffer_load_dwordx4 v[{WQ+4*i}:{WQ+4*i+3}], v{TMP+1}, s[44:47], {so} offen {wpol}")
    if 'B' in opts.abl:
        a("s_cmp_eq_u32 s8, 1")
        a(f"s_cmp_lt_u32 s2, {opts.bhi*64}")
        a("s_cbranch_scc0 L_nob")
        a("s_bitcmp1_b32 s2, 2")
        a("s_cbranch_scc1 L_nob")
        a(f"v_add_u32 v{TMP+7}, 1024, v{TMP+1}")
        for i in range(5):
            so = "0" if i == 0 else f"s{88+i}"
            a(f"buffer_load_dwordx4 v[{ACC+4*i}:{ACC+4*i+3}], v{TMP+7}, s[44:47], {so} offen {wpol}")
        a.label("L_nob")
    srd(48, 28, 2211840)
    for i in range(5):
        so = "0" if i == 0 else (f"s{92+i}" if i < 4 else "s88")
        a(f"buffer_load_dwordx2 v[{W1+2*i}:{W1+2*i+1}], v{TMP+2}, s[48:51], {so} offen {wpol}")
    for i in range(5):
        for b in range(2):
            a(f"buffer_load_ushort v{XR+2*i+b}, v{TMP+11}, s[40:43], 0 offen offset:{b*1280 + i*8}")
    a("s_waitcnt lgkmcnt(0)")
    a("s_barrier")
    a(f"v_mov_b32 v{TMP+5}, 0")
    a(f"v_mov_b32 v{TMP+6}, {OOB}")
    a(f"v_cmp_lt_u32 vcc, 9, v{C}")
    a(f"v_cndmask_b32 v{TMP+5}, v{TMP+5}, v{TMP+6}, vcc")
    a(f"v_lshl_add_u32 v{TMP+5}, v{C}, 4, v{TMP+5}")
    a("s_mul_i32 s10, s5, 160")
    a(f"v_add_u32 v{TMP+5}, s10, v{TMP+5}")
    a("s_movk_i32 s14, 1280")
    a("s_lshl_b32 s10, s4, 6")
    a("s_lshl_b32 s11, s3, 4")
    a("s_add_u32 s10, s10, s11")
    a(f"v_lshl_add_u32 v{TMP+3}, v{RG}, 2, s10")
    a(f"v_mul_lo_u32 v{TMP+3}, v{TMP+3}, s14")
    a(f"v_add_u32 v{TMP+3}, v{TMP+5}, v{TMP+3}")
    a(f"v_add_u32 v{TMP+3}, s13, v{TMP+3}")
    a("s_lshl_b32 s10, s4, 7")
    a("s_lshl_b32 s11, s3, 5")
    a("s_add_u32 s10, s10, s11")
    a(f"v_lshl_add_u32 v{TMP+4}, v{RG}, 3, s10")
    a(f"v_mul_lo_u32 v{TMP+4}, v{TMP+4}, s14")
    a(f"v_add_u32 v{TMP+4}, v{TMP+5}, v{TMP+4}")
    if 'o' in opts.abl:
        a(f"v_add_u32 v{TMP+4}, {OOB}, v{TMP+4}")
    a("s_movk_i32 s12, 5120")
    srd(52, 30, 2211840)
    for i in range(4):
        a(f"buffer_load_dwordx4 v[{W2+4*i}:{W2+4*i+3}], v{TMP+3}, s[52:55], 0 offen offset:{i*1280} {wpol}")
    srd(60, 24, 5242880)
    LATEWO = opts.wpos >= 0
    def issue_wo(va):
        for i in range(8):
            so = "0" if i < 4 else "s12"
            a(f"buffer_load_dwordx4 v[{WO+4*i}:{WO+4*i+3}], v{va}, s[60:63], {so} offen offset:{(i&3)*1280} {wpol}")
    if LATEWO:
        a(f"v_mov_b32 v1, v{TMP+4}")
    else:
        issue_wo(TMP + 4)

    a(f"s_waitcnt vmcnt({24 if LATEWO else 32})")
    a(f"v_readfirstlane_b32 s68, v{VE}")
    a("s_mov_b32 s15, 0xffff0000")
    a("s_add_u32 s68, s68, 1")
    a("s_xor_b32 s69, s68, 0x9e3779b9")
    F = TMP + 12
    srcs = [[4, 5, 6, 7, 8], [12, 13, 14, 15, 16]]
    for b in range(2):
        for d in range(5):
            a(f"v_lshlrev_b32 v{F+10*b+2*d}, 16, v{srcs[b][d]}")
            a(f"v_and_b32 v{F+10*b+2*d+1}, s15, v{srcs[b][d]}")
    S0, S1, Q0, Q1, t0, t1 = 4, 5, 6, 7, 8, 9

    def wave_sum2(r0, r1, sbase):
        for ctrl in ["quad_perm:[1,0,3,2]", "quad_perm:[2,3,0,1]", "row_half_mirror", "row_mirror"]:
            a(f"v_add_f32_dpp v{r0}, v{r0}, v{r0} {ctrl} row_mask:0xf bank_mask:0xf")
            a(f"v_add_f32_dpp v{r1}, v{r1}, v{r1} {ctrl} row_mask:0xf bank_mask:0xf")
        for r in range(4):
            a(f"v_readlane_b32 s{sbase+r}, v{r0}, {16*r}")
            a(f"v_readlane_b32 s{sbase+4+r}, v{r1}, {16*r}")
        a(f"v_mov_b32 v{r0}, s{sbase}")
        a(f"v_mov_b32 v{r1}, s{sbase+4}")
        for r in range(1, 4):
            a(f"v_add_f32 v{r0}, s{sbase+r}, v{r0}")
            a(f"v_add_f32 v{r1}, s{sbase+4+r}, v{r1}")

    for e in range(1, 10):
        for b, S in ((0, S0), (1, S1)):
            if e == 1:
                a(f"v_add_f32 v{S}, v{F+10*b}, v{F+10*b+1}")
            else:
                a(f"v_add_f32 v{S}, v{S}, v{F+10*b+e}")
    wave_sum2(S0, S1, 88)
    a(f"s_mov_b32 s14, 0x{f32bits(1.0/640):08x}")
    a(f"v_mul_f32 v{S0}, s14, v{S0}")
    a(f"v_mul_f32 v{S1}, s14, v{S1}")
    for b, S in ((0, S0), (1, S1)):
        for e in range(10):
            a(f"v_sub_f32 v{F+10*b+e}, v{F+10*b+e}, v{S}")
    for e in range(10):
        for b, Q in ((0, Q0), (1, Q1)):
            if e == 0:
                a(f"v_mul_f32 v{Q}, v{F+10*b}, v{F+10*b}")
            else:
                a(f"v_fma_f32 v{Q}, v{F+10*b+e}, v{F+10*b+e}, v{Q}")
    wave_sum2(Q0, Q1, 88)
    a(f"v_mul_f32 v{Q0}, s14, v{Q0}")
    a(f"v_mul_f32 v{Q1}, s14, v{Q1}")
    a(f"v_cvt_pk_bf16_f32 v{t0}, v{S0}, v{S1}")
    a(f"v_cvt_pk_bf16_f32 v{t1}, v{Q0}, v{Q1}")
    a(f"v_lshlrev_b32 v{S0}, 16, v{t0}")
    a(f"v_and_b32 v{S1}, s15, v{t0}")
    a(f"v_lshlrev_b32 v{Q0}, 16, v{t1}")
    a(f"v_and_b32 v{Q1}, s15, v{t1}")
    a(f"s_mov_b32 s14, 0x{f32bits(1e-5):08x}")
    a(f"v_add_f32 v{Q0}, s14, v{Q0}")
    a(f"v_add_f32 v{Q1}, s14, v{Q1}")
    a(f"v_cvt_pk_bf16_f32 v{t1}, v{Q0}, v{Q1}")
    a(f"v_lshlrev_b32 v{Q0}, 16, v{t1}")
    a(f"v_and_b32 v{Q1}, s15, v{t1}")
    a(f"v_sqrt_f32 v{Q0}, v{Q0}")
    a(f"v_sqrt_f32 v{Q1}, v{Q1}")
    a(f"v_cvt_pk_bf16_f32 v{t1}, v{Q0}, v{Q1}")
    a(f"v_lshlrev_b32 v{Q0}, 16, v{t1}")
    a(f"v_and_b32 v{Q1}, s15, v{t1}")
    a(f"v_rcp_f32 v{Q0}, v{Q0}")
    a(f"v_rcp_f32 v{Q1}, v{Q1}")
    XH = F
    MS = [S0, S1]; RS = [Q0, Q1]
    a(f"s_waitcnt vmcnt({4 if LATEWO else 12})")

    def each(fn):
        for i in range(5):
            for b in range(2):
                fn(XR + 2*i + b, b, i)
    each(lambda r, b, i: a(f"v_lshlrev_b32 v{r}, 16, v{r}"))
    each(lambda r, b, i: a(f"v_sub_f32 v{r}, v{r}, v{MS[b]}"))
    each(lambda r, b, i: a(f"v_cvt_pk_bf16_f32 v{r}, v{r}, 0"))
    each(lambda r, b, i: a(f"v_lshlrev_b32 v{r}, 16, v{r}"))
    each(lambda r, b, i: a(f"v_mul_f32 v{r}, v{r}, v{RS[b]}"))
    each(lambda r, b, i: a(f"v_cvt_pk_bf16_f32 v{r}, v{r}, 0"))
    each(lambda r, b, i: a(f"v_lshlrev_b32 v{XH+2*i+b}, 16, v{r}"))
    AQ = ACC; AH = ACC + 16
    for i in range(5):
        for b in range(2):
            for d in range(4):
                for hl in range(2):
                    acc = AQ + 8*b + 2*d + hl
                    xs = (XR if hl == 0 else XH) + 2*i + b
                    s2 = "0" if i == 0 else f"v{acc}"
                    a(f"v_dot2_f32_bf16 v{acc}, v{WQ+4*i+d}, v{xs}, {s2}")
    for i in range(5):
        for b in range(2):
            for d in range(2):
                for hl in range(2):
                    acc = AH + 4*b + 2*d + hl
                    xs = (XR if hl == 0 else XH) + 2*i + b
                    s2 = "0" if i == 0 else f"v{acc}"
                    a(f"v_dot2_f32_bf16 v{acc}, v{W1+2*i+d}, v{xs}, {s2}")

    def reduce16(base):
        for k in range(8):
            a(f"v_permlane32_swap_b32 v{base+k}, v{base+k+8}")
        for k in range(8):
            a(f"v_add_f32 v{base+k}, v{base+k}, v{base+k+8}")
        for k in range(4):
            a(f"v_permlane16_swap_b32 v{base+k}, v{base+k+4}")
        for k in range(4):
            a(f"v_add_f32 v{base+k}, v{base+k}, v{base+k+4}")

    reduce16(AQ)
    for k in range(4):
        a(f"v_permlane32_swap_b32 v{AH+k}, v{AH+k+4}")
    for k in range(4):
        a(f"v_add_f32 v{AH+k}, v{AH+k}, v{AH+k+4}")
    for k in range(2):
        a(f"v_permlane16_swap_b32 v{AH+k}, v{AH+k+2}")
    for k in range(2):
        a(f"v_add_f32 v{AH+k}, v{AH+k}, v{AH+k+2}")
    a(f"v_lshrrev_b32 v2, 1, v{RG}")
    a(f"v_and_b32 v3, 1, v{RG}")
    a(f"v_lshlrev_b32 v{TMP}, 9, v2")
    a(f"v_lshl_add_u32 v{TMP}, v{C}, 5, v{TMP}")
    a(f"v_lshl_add_u32 v{TMP}, v3, 4, v{TMP}")
    a("s_lshl_b32 s10, s3, 10")
    a(f"v_add_u32 v{TMP}, s10, v{TMP}")
    a(f"ds_write_b128 v{TMP}, v[{AQ}:{AQ+3}] offset:{L_QP}")
    a(f"v_lshlrev_b32 v{TMP+1}, 8, v2")
    a(f"v_lshl_add_u32 v{TMP+1}, v{C}, 4, v{TMP+1}")
    a(f"v_lshl_add_u32 v{TMP+1}, v3, 3, v{TMP+1}")
    a("s_lshl_b32 s10, s3, 9")
    a(f"v_add_u32 v{TMP+1}, s10, v{TMP+1}")
    a(f"ds_write_b64 v{TMP+1}, v[{AH}:{AH+1}] offset:{L_HP}")
    VY = 31
    a("s_movk_i32 s10, 320")
    a(f"v_mul_u32_u24 v{VY}, s10, v2")
    a(f"v_lshl_add_u32 v{VY}, v{C}, 5, v{VY}")
    a(f"v_lshl_add_u32 v{VY}, v3, 4, v{VY}")
    a("s_mul_i32 s10, s3, 640")
    a(f"v_add_u32 v{VY}, s10, v{VY}")
    VZ = 12
    a(f"v_mov_b32 v{VZ}, 0")
    lds_arrive(C1, VZ, 3)
    lds_spin(C1, 4, VZ, 3)
    stamp(1)

    G = TMP

    def check_tags(regs, lbl_retry_cnt, lbl_loop, lbl_done):
        tags_bad(regs)
        a(f"s_cbranch_scc1 {lbl_done}")
        a(f"s_sub_u32 {lbl_retry_cnt}, {lbl_retry_cnt}, 1")
        a(f"s_cmp_eq_u32 {lbl_retry_cnt}, 0")
        a(f"s_cbranch_scc0 {lbl_loop}")

    def preperm():
        a("s_mov_b32 s10, 0x05040100")
        a("s_mov_b32 s11, 0x07060302")
        for q in range(2):
            for d in range(4):
                r0, r1 = W2 + 8*q + d, W2 + 8*q + 4 + d
                a(f"v_perm_b32 v{LO2+4*q+d}, v{r1}, v{r0}, s10")
                a(f"v_perm_b32 v{r1}, v{r1}, v{r0}, s11")
        if not LATEWO:
            preperm_wo()

    def preperm_wo():
        a("s_mov_b32 s10, 0x05040100")
        a("s_mov_b32 s11, 0x07060302")
        for e in range(8):
            for t in range(4):
                r0, r1 = WO + 8*t + (e >> 1), WO + 8*t + 4 + (e >> 1)
                a(f"v_perm_b32 v{BOP+4*e+t}, v{r1}, v{r0}, s{10 + (e & 1)}")

    a("s_cmp_eq_u32 s3, 3")
    a("s_cbranch_scc1 L_h1_gather")
    if 'F' in opts.abl:
        a("s_cmp_eq_u32 s3, 2")
        a("s_cbranch_scc0 L_now2skip")
        a("s_waitcnt vmcnt(0)")
        preperm()
        a("s_branch L_b3")
        a.label("L_now2skip")
    a(f"v_lshlrev_b32 v2, 3, v0")
    a("s_cmp_eq_u32 s3, 2")
    a("s_cbranch_scc1 L_h1_pubh")
    a("s_lshl_b32 s10, s3, 9")
    a(f"v_add_u32 v2, s10, v2")
    for w in range(4):
        a(f"ds_read_b64 v[{G+4+2*w}:{G+5+2*w}], v2 offset:{L_QP + w*1024}")
    a("s_lshl_b32 s11, s3, 10")
    a("s_branch L_h1_pub")
    a.label("L_h1_pubh")
    for w in range(4):
        a(f"ds_read_b64 v[{G+4+2*w}:{G+5+2*w}], v2 offset:{L_HP + w*512}")
    a("s_movk_i32 s11, 2048")
    a.label("L_h1_pub")
    a("s_mul_i32 s10, s6, 3072")
    a("s_add_u32 s10, s10, s11")
    a(f"v_lshl_add_u32 v3, v0, 4, s10")
    set_tag(G)
    a("s_waitcnt lgkmcnt(0)")
    a(f"v_add_f32 v{G}, v{G+4}, v{G+6}")
    a(f"v_add_f32 v{G+1}, v{G+5}, v{G+7}")
    a(f"v_add_f32 v{G+8}, v{G+8}, v{G+10}")
    a(f"v_add_f32 v{G+9}, v{G+9}, v{G+11}")
    a(f"v_add_f32 v{G}, v{G}, v{G+8}")
    a(f"v_add_f32 v{G+1}, v{G+1}, v{G+9}")
    if opts.h1f:
        a(f"s_mov_b32 s10, {FOFF}")
        a(f"buffer_store_dwordx4 v[{G}:{G+3}], v3, s[56:59], s10 offen")
    a(f"buffer_store_dwordx4 v[{G}:{G+3}], v3, s[56:59], 0 offen sc1")
    a(f"s_mul_i32 s10, s4, {GSTR}")
    a("s_lshl_b32 s11, s3, 6")
    a("s_add_u32 s10, s10, s11")
    a("s_lshl_b32 s11, s5, 3")
    a("s_add_u32 s10, s10, s11")
    a(f"s_add_u32 s10, s10, {WS_H1F}")
    a("v_mov_b32 v3, s10")
    a("s_mov_b64 exec, 1")
    a(f"buffer_store_dwordx2 v[{G+2}:{G+3}], v3, s[56:59], 0 offen sc1")
    a("s_mov_b64 exec, -1")
    a("s_cmp_eq_u32 s3, 2")
    a("s_cbranch_scc1 L_h1_gather")
    a(f"s_waitcnt vmcnt({3 if opts.h1f else 2})")
    preperm()
    if opts.fast:
        a("s_cmp_lg_u32 s3, 0")
        a("s_cbranch_scc1 L_nopre")
        for r in range(4):
            a(f"v_mov_b32 v{G+r}, 0")
        a("s_lshl_b32 s10, s6, 10")
        a(f"s_add_u32 s10, s10, {WS_H2 + FOFF}")
        a(f"v_lshl_add_u32 v3, v0, 4, s10")
        if opts.preld:
            a(f"buffer_load_dwordx4 v[{G}:{G+3}], v3, s[56:59], 0 offen")
        else:
            a(f"buffer_store_dwordx4 v[{G}:{G+3}], v3, s[56:59], 0 offen")
        a(f"s_mul_i32 s10, s4, {GSTR}")
        a("s_lshl_b32 s11, s5, 7")
        a("s_add_u32 s10, s10, s11")
        a(f"s_add_u32 s10, s10, {WS_ML + FOFF}")
        a(f"v_lshl_add_u32 v2, v0, 4, s10")
        a("s_mov_b64 exec, 0xff")
        if opts.preld:
            a(f"buffer_load_dwordx4 v[{G+4}:{G+7}], v2, s[56:59], 0 offen")
        else:
            a(f"buffer_store_dwordx4 v[{G}:{G+3}], v2, s[56:59], 0 offen")
        a("s_mov_b64 exec, -1")
        if opts.preld:
            a("s_waitcnt vmcnt(0)")
        a.label("L_nopre")
    stamp(2)
    a("s_branch L_b3")

    a.label("L_h1_gather")
    a("s_lshl_b32 s10, s7, 10")
    a("s_cmp_eq_u32 s3, 2")
    a("s_cselect_b32 s10, 2048, s10")
    a("s_mul_i32 s11, s4, 24576")
    a("s_add_u32 s10, s10, s11")
    a(f"v_lshl_add_u32 v3, v0, 4, s10")
    for jj in range(1, 8):
        a(f"s_mov_b32 s{88+jj}, {jj*3072}")
    a("s_cmp_eq_u32 s3, 2")
    a("s_cbranch_scc1 L_pp2")
    a("s_waitcnt vmcnt(0)")
    a("s_branch L_pp")
    a.label("L_pp2")
    a(f"s_waitcnt vmcnt({3 if opts.h1f else 2})")
    a.label("L_pp")
    preperm()
    a("s_cmp_eq_u32 s3, 2")
    a("s_cselect_b32 s10, 2, s7")
    a("s_lshl_b32 s10, s10, 6")
    a(f"s_mul_i32 s11, s4, {GSTR}")
    a("s_add_u32 s10, s10, s11")
    a(f"s_add_u32 s10, s10, {WS_H1F}")
    if "h" not in opts.abl:
        hint_poll("hint1", 10, 0)
    if "g" not in opts.abl:
        a(f"s_mov_b32 s12, {opts.maxpoll}")
        if opts.h1f:
            a(f"v_add_u32 v3, {FOFF}, v3")
            a(f"s_mov_b32 s13, {FOFF}")
        a.label("L_poll1")
        for jj in range(8):
            so = "0" if jj == 0 else f"s{88+jj}"
            a(f"buffer_load_dwordx4 v[{G+4*jj}:{G+4*jj+3}], v3, s[56:59], {so} offen sc1")
        a("s_waitcnt vmcnt(0)")
        if opts.h1f:
            tags_bad([G+4*jj for jj in range(8)])
            a("s_cbranch_scc1 L_poll1_done")
            a("v_subrev_u32 v3, s13, v3")
            a("s_mov_b32 s13, 0")
            a("s_sub_u32 s12, s12, 1")
            a("s_cmp_eq_u32 s12, 0")
            a("s_cbranch_scc0 L_poll1")
        elif "h" not in opts.abl:
            check_tags([G+4*jj for jj in range(8)], "s12", "L_poll1", "L_poll1_done")
        a.label("L_poll1_done")
    stamp(2)
    for e in range(2):
        a(f"v_add_f32 v{G+e}, v{G+e}, v{G+4+e}")
        a(f"v_add_f32 v{G+8+e}, v{G+8+e}, v{G+12+e}")
        a(f"v_add_f32 v{G+16+e}, v{G+16+e}, v{G+20+e}")
        a(f"v_add_f32 v{G+24+e}, v{G+24+e}, v{G+28+e}")
    for e in range(2):
        a(f"v_add_f32 v{G+e}, v{G+e}, v{G+8+e}")
        a(f"v_add_f32 v{G+16+e}, v{G+16+e}, v{G+24+e}")
    for e in range(2):
        a(f"v_add_f32 v{G+e}, v{G+e}, v{G+16+e}")
    a(f"v_lshlrev_b32 v2, 2, v0")
    a("s_cmp_eq_u32 s3, 2")
    a("s_cbranch_scc0 L_qw")
    a(f"v_max_f32 v{G}, 0, v{G}")
    a(f"v_max_f32 v{G+1}, 0, v{G+1}")
    a(f"v_add_u32 v2, {L_H - L_Q}, v2")
    a.label("L_qw")
    a(f"v_cvt_pk_bf16_f32 v{G}, v{G}, v{G+1}")
    a(f"ds_write_b32 v2, v{G} offset:{L_Q}")
    a("v_mov_b32 v2, s68")
    a("v_mov_b32 v3, s69")
    a(f"ds_write_b64 v{VZ}, v[2:3] offset:{L_TAG}")
    a("s_cmp_eq_u32 s3, 2")
    a(f"s_movk_i32 s10, {QF}")
    a(f"s_movk_i32 s11, {HF}")
    a(f"s_cselect_b32 s10, s11, s10")
    a("v_mov_b32 v2, s10")
    a("v_mov_b32 v3, 1")
    a(f"ds_write_b32 v2, v3")
    a.label("L_b3")
    if 'F' in opts.abl:
        a("s_branch L_noy2")
    lds_spin(HF, 1, VZ, 3)
    a("s_lshl_b32 s10, s3, 5")
    a(f"v_lshl_add_u32 v2, v{RG}, 3, s10")
    a(f"ds_read_b64 v[{TMP}:{TMP+1}], v2 offset:{L_H}")
    a(f"ds_read_b64 v[{TMP+2}:{TMP+3}], v2 offset:{L_H+128}")
    a("s_waitcnt lgkmcnt(0)")
    for q in range(2):
        for b in range(2):
            for d in range(4):
                for hl in range(2):
                    acc = AY + 8*b + 2*d + hl
                    w = (LO2 + 4*q + d) if hl == 0 else (W2 + 8*q + 4 + d)
                    s2 = "0" if q == 0 else f"v{acc}"
                    a(f"v_dot2_f32_bf16 v{acc}, v{w}, v{TMP+2*b+q}, {s2}")
    reduce16(AY)
    a(f"s_mov_b32 s10, {LANES10}")
    a(f"s_mov_b32 s11, {LANES10}")
    a("s_mov_b64 exec, s[10:11]")
    a(f"ds_write_b128 v{VY}, v[{AY}:{AY+3}] offset:{L_Y2P}")
    a("s_mov_b64 exec, -1")
    lds_arrive(C4, VZ, 3, rtn=True)
    a("s_cmp_eq_u32 s10, 3")
    a("s_cbranch_scc0 L_noy2")
    a(f"v_lshlrev_b32 v2, 3, v0")
    for w in range(4):
        a(f"ds_read_b64 v[{TMP+8+2*w}:{TMP+9+2*w}], v2 offset:{L_Y2P + w*640}")
    for w in range(4):
        a(f"ds_read_b64 v[{TMP+16+2*w}:{TMP+17+2*w}], v2 offset:{L_Y2P + w*640 + 512}")
    def pair_addr(vdst, vp, vt):
        a(f"v_lshrrev_b32 v{vdst}, 2, v{vp}")
        a(f"v_cmp_lt_u32 vcc, 39, v{vp}")
        a(f"v_mov_b32 v{vt}, 0")
        a(f"v_cndmask_b32 v{vt}, v{vt}, v{TMP+31}, vcc")
        a(f"v_add_u32 v{vdst}, v{vdst}, v{vt}")
        a(f"v_lshlrev_b32 v{vdst}, 11, v{vdst}")
        a(f"v_and_b32 v{vt}, 2, v{vp}")
        a(f"v_lshl_add_u32 v{vdst}, v{vt}, 9, v{vdst}")
        a(f"v_and_b32 v{vt}, 1, v{vp}")
        a(f"v_lshl_add_u32 v{vdst}, v{vt}, 4, v{vdst}")
        a(f"v_add_u32 v{vdst}, s10, v{vdst}")
    if opts.y2lay:
        a("s_mul_i32 s10, s4, 10240")
        a("s_mul_i32 s11, s5, 1280")
        a("s_add_u32 s10, s10, s11")
        a(f"s_add_u32 s10, s10, {WS_H3B}")
        a("v_lshl_add_u32 v3, v0, 4, s10")
        a("v_add_u32 v2, 1024, v3")
    else:
        a("s_mul_i32 s10, s5, 20480")
        a("s_lshl_b32 s11, s4, 5")
        a("s_add_u32 s10, s10, s11")
        a(f"s_add_u32 s10, s10, {WS_H3B}")
        a(f"v_mov_b32 v{TMP+31}, 70")
        pair_addr(3, 0, TMP + 30)
        a(f"v_add_u32 v{TMP+29}, 64, v0")
        pair_addr(2, TMP + 29, TMP + 30)
    set_tag(TMP)
    set_tag(TMP+4)
    a("s_waitcnt lgkmcnt(0)")
    for e in range(2):
        a(f"v_add_f32 v{TMP+8+e}, v{TMP+8+e}, v{TMP+10+e}")
        a(f"v_add_f32 v{TMP+12+e}, v{TMP+12+e}, v{TMP+14+e}")
        a(f"v_add_f32 v{TMP+e}, v{TMP+8+e}, v{TMP+12+e}")
    if 'y' not in opts.abl:
        a(f"buffer_store_dwordx4 v[{TMP}:{TMP+3}], v3, s[56:59], 0 offen sc1")
    for e in range(2):
        a(f"v_add_f32 v{TMP+16+e}, v{TMP+16+e}, v{TMP+18+e}")
        a(f"v_add_f32 v{TMP+20+e}, v{TMP+20+e}, v{TMP+22+e}")
        a(f"v_add_f32 v{TMP+4+e}, v{TMP+16+e}, v{TMP+20+e}")
    a("s_mov_b64 exec, 0xffff")
    if 'y' not in opts.abl:
        a(f"buffer_store_dwordx4 v[{TMP+4}:{TMP+7}], v2, s[56:59], 0 offen sc1")
    a("s_mov_b64 exec, -1")
    a.label("L_noy2")
    stamp(3)
    MASK = 120
    AOP = 136
    ACC2 = 96
    YR = 104
    VPH, VYW, VY0, VY1 = 13, 14, 15, 16
    GY = 20
    a("v_lshrrev_b32 v2, 1, v0")
    a("v_and_b32 v2, 7, v2")
    for q in range(4):
        for h in range(2):
            a(f"v_cmp_eq_u32 vcc, {2*q+h}, v2")
            a(f"v_cndmask_b32 v{MASK+2*q+h}, 0, -1, vcc")
    a("v_and_b32 v3, 1, v0")
    a("v_lshlrev_b32 v3, 12, v3")
    a("v_lshrrev_b32 v4, 1, v2")
    a("v_lshl_add_u32 v3, v4, 10, v3")
    a(f"v_lshl_add_u32 v3, v{RG}, 6, v3")
    a("v_and_b32 v4, 1, v2")
    a("v_lshl_add_u32 v3, v4, 5, v3")
    a("s_lshl_b32 s10, s4, 13")
    a("s_lshl_b32 s11, s3, 8")
    a("s_add_u32 s10, s10, s11")
    a(f"s_add_u32 s10, s10, {WS_H2}")
    a(f"v_add_u32 v{VPH}, s10, v3")
    a("s_lshl_b32 s10, s3, 10")
    a(f"v_lshl_add_u32 v{VYW}, v0, 4, s10")
    a(f"v_lshlrev_b32 v3, 11, v{C}")
    a(f"v_lshrrev_b32 v4, 1, v{RG}")
    a("v_lshl_add_u32 v3, v4, 10, v3")
    a(f"v_and_b32 v4, 1, v{RG}")
    a("v_lshl_add_u32 v3, v4, 4, v3")
    a("s_mul_i32 s10, s5, 20480")
    a("s_lshl_b32 s11, s4, 5")
    a("s_add_u32 s10, s10, s11")
    a(f"s_add_u32 s10, s10, {WS_H3A}")
    a(f"v_add_u32 v{VY0}, s10, v3")
    a(f"v_lshlrev_b32 v{VY1}, 4, v0")
    if opts.y1lay:
        a("s_mul_i32 s10, s4, 10240")
        a("s_mul_i32 s11, s5, 1280")
        a("s_add_u32 s10, s10, s11")
        a(f"s_add_u32 s10, s10, {WS_H3A}")
        a(f"v_lshl_add_u32 v{VY0}, v0, 4, s10")
        a("v_and_b32 v3, 3, v0")
        a("v_lshrrev_b32 v4, 2, v0")
        a("v_and_b32 v4, 15, v4")
        a("v_lshl_add_u32 v3, v3, 4, v4")
        a(f"v_lshlrev_b32 v{VY1}, 4, v3")
    set_tag(GY)
    set_tag(GY + 4)
    a("s_cmp_lg_u32 s3, 0")
    a("s_cbranch_scc1 L_noml")
    lds_spin(C2, 8, VZ, 3, sleep=1)
    a(f"ds_read_b128 v[{TMP}:{TMP+3}], v{VZ} offset:{L_ML}")
    a(f"ds_read_b128 v[{TMP+4}:{TMP+7}], v{VZ} offset:{L_ML+16}")
    a(f"ds_read_b128 v[{TMP+8}:{TMP+11}], v{VZ} offset:{L_ML+32}")
    a(f"ds_read_b128 v[{TMP+12}:{TMP+15}], v{VZ} offset:{L_ML+48}")
    GM = TMP + 16
    set_tag(GM)
    a(f"s_mul_i32 s10, s4, {GSTR}")
    a("s_lshl_b32 s11, s5, 7")
    a("s_add_u32 s10, s10, s11")
    a(f"s_add_u32 s10, s10, {WS_ML}")
    a("v_mov_b32 v3, s10")
    a(f"s_mov_b32 s14, 0x{f32bits(LOG2E):08x}")
    a("s_waitcnt lgkmcnt(0)")
    M = GM
    a(f"v_max3_f32 v{M}, v{TMP}, v{TMP+1}, v{TMP+2}")
    a(f"v_max3_f32 v{M}, v{M}, v{TMP+3}, v{TMP+4}")
    a(f"v_max3_f32 v{M}, v{M}, v{TMP+5}, v{TMP+6}")
    a(f"v_max_f32 v{M}, v{M}, v{TMP+7}")
    E8 = TMP + 24
    for w in range(8):
        a(f"v_sub_f32 v{E8+w}, v{TMP+w}, v{M}")
    for w in range(8):
        a(f"v_mul_f32 v{E8+w}, s14, v{E8+w}")
    for w in range(8):
        a(f"v_exp_f32 v{E8+w}, v{E8+w}")
    a("s_mov_b64 exec, 1")
    a(f"ds_write_b128 v{VZ}, v[{E8}:{E8+3}] offset:{L_F}")
    a(f"ds_write_b128 v{VZ}, v[{E8+4}:{E8+7}] offset:{L_F+16}")
    a("v_mov_b32 v4, 1")
    a(f"ds_write_b32 v{VZ}, v4 offset:{FF}")
    a("s_mov_b64 exec, -1")
    Ls = GM + 1
    a(f"v_mul_f32 v{Ls}, v{E8}, v{TMP+8}")
    for w in range(1, 8):
        a(f"v_fma_f32 v{Ls}, v{E8+w}, v{TMP+8+w}, v{Ls}")
    a("s_mov_b64 exec, 1")
    if opts.fast:
        a(f"s_mov_b32 s10, {FOFF}")
        a(f"buffer_store_dwordx4 v[{GM}:{GM+3}], v3, s[56:59], s10 offen")
    a(f"buffer_store_dwordx4 v[{GM}:{GM+3}], v3, s[56:59], 0 offen sc1")
    a("s_mov_b64 exec, -1")
    if opts.fast and opts.reclaim:
        for r in range(4):
            a(f"v_mov_b32 v{TMP+r}, 0")
        a("s_lshl_b32 s10, s6, 10")
        a(f"s_add_u32 s10, s10, {WS_H2 + FOFF}")
        a(f"v_lshl_add_u32 v3, v0, 4, s10")
        a(f"buffer_store_dwordx4 v[{TMP}:{TMP+3}], v3, s[56:59], 0 offen")
    a.label("L_noml")
    if "t" in opts.abl:
        a("s_branch L_fin")
    GP = TMP + 28
    VFS = 17
    VML = 18
    a("v_and_b32 v3, 1, v0")
    a("v_lshlrev_b32 v3, 9, v3")
    a("v_lshrrev_b32 v4, 2, v0")
    a("v_and_b32 v4, 3, v4")
    a("v_lshl_add_u32 v3, v4, 7, v3")
    a(f"s_mul_i32 s10, s4, {GSTR}")
    a(f"s_add_u32 s10, s10, {WS_ML}")
    a(f"v_add_u32 v{VML}, s10, v3")
    a(f"s_mul_i32 s9, s4, {GSTR}")
    a(f"s_add_u32 s9, s9, {WS_H2F}")
    a("s_lshl_b32 s10, s5, 3")
    a("s_add_u32 s10, s10, s9")
    a("v_mov_b32 v19, s10")
    def calc_f():
        a(f"v_max_f32_dpp v5, v{GP}, v{GP} row_ror:4 row_mask:0xf bank_mask:0xf")
        a(f"v_max_f32_dpp v5, v5, v5 row_ror:8 row_mask:0xf bank_mask:0xf")
        a(f"v_sub_f32 v6, v{GP}, v5")
        a(f"v_mul_f32 v6, s14, v6")
        a(f"v_exp_f32 v6, v6")
        a(f"v_mul_f32 v7, v6, v{GP+1}")
        a(f"v_add_f32_dpp v7, v7, v7 row_ror:4 row_mask:0xf bank_mask:0xf")
        a(f"v_add_f32_dpp v7, v7, v7 row_ror:8 row_mask:0xf bank_mask:0xf")
        a(f"v_rcp_f32 v7, v7")
        a(f"v_mul_f32 v{VFS}, v6, v7")
    SRC = "s13"
    if not opts.fast:
        lds_spin(C6, 8, VZ, 3, sleep=2)
    if opts.fast:
        lds_spin(FF, 1, VZ, 3, sleep=4)
        if LATEWO:
            lds_spin(HG, opts.wcnt, VZ, 3, sleep=2)
            a("s_movk_i32 s12, 5120")
            issue_wo(1)
        a(f"s_mov_b32 {SRC}, {FOFF}")
        a(f"s_mov_b32 s12, {opts.maxpoll}")
        a.label("L_pollml")
        a(f"buffer_load_dwordx4 v[{GP}:{GP+3}], v{VML}, s[56:59], {SRC} offen sc1")
        a("s_waitcnt vmcnt(0)")
        tags_bad([GP])
        a("s_cbranch_scc1 L_pollml_done")
        a(f"s_sleep {opts.mlsleep}")
        a(f"s_cmp_lt_u32 s12, {opts.maxpoll - opts.nf}")
        a(f"s_cselect_b32 s10, {FOFF}, 0")
        a(f"s_xor_b32 {SRC}, {SRC}, s10")
        a("s_sub_u32 s12, s12, 1")
        a("s_cmp_lg_u32 s12, 0")
        a("s_cbranch_scc1 L_pollml")
        a.label("L_pollml_done")
        a(f"s_mov_b32 s14, 0x{f32bits(LOG2E):08x}")
        calc_f()
        if LATEWO:
            preperm_wo()
        lds_spin(C6, 8, VZ, 3, sleep=1)
        a(f"s_mov_b32 {SRC}, {FOFF}")
    else:
        a("s_cmp_lg_u32 s3, 0")
        a("s_cbranch_scc1 L_nohint0")
        a("s_mov_b64 exec, 1")
        a(f"buffer_store_dwordx2 v[{GY+2}:{GY+3}], v19, s[56:59], 0 offen sc1")
        a("s_mov_b64 exec, -1")
        a.label("L_nohint0")
        a(f"buffer_load_dwordx4 v[{GP}:{GP+3}], v{VML}, s[56:59], 0 offen sc1")
        a("s_cmp_lg_u32 s3, 0")
        a("s_cbranch_scc1 L_nohint")
        hint_poll("hint2", 9, 1)
        a("v_mov_b32 v3, 1")
        a(f"ds_write_b32 v{VZ}, v3 offset:{HG}")
        a.label("L_nohint")
        lds_spin(HG, 1, VZ, 3)
        a(f"s_mov_b32 s12, {opts.maxpoll}")
        a.label("L_pollml")
        a("s_waitcnt vmcnt(0)")
        tags_bad([GP])
        a("s_cbranch_scc1 L_pollml_done")
        a("s_sleep 2")
        a(f"buffer_load_dwordx4 v[{GP}:{GP+3}], v{VML}, s[56:59], 0 offen sc1")
        a("s_sub_u32 s12, s12, 1")
        a("s_cmp_lg_u32 s12, 0")
        a("s_cbranch_scc1 L_pollml")
        a.label("L_pollml_done")
    stamp(4)
    a(f"s_mov_b32 s9, {640 if opts.y1lay else 160*1024}")
    a(f"s_mov_b32 s14, 0x{f32bits(LOG2E):08x}")
    n2 = opts.npoll2
    assert n2 <= (4 if opts.fast else 3)
    PS = [[TMP + 8*k, TMP + 8*k + 4] for k in range(n2)]

    def issue2(k):
        so = SRC if opts.fast else "0"
        a(f"buffer_load_dwordx4 v[{PS[k][0]}:{PS[k][0]+3}], v{VPH}, s[56:59], {so} offen sc1")
        a(f"buffer_load_dwordx4 v[{PS[k][1]}:{PS[k][1]+3}], v{VPH}, s[56:59], {so} offen offset:16 sc1")
        if opts.fast:
            a(f"s_cmp_lt_u32 s12, {opts.maxpoll - opts.nf}")
            a(f"s_cselect_b32 s10, {FOFF}, 0")
            a(f"s_xor_b32 {SRC}, {SRC}, s10")

    O4 = [4, 5, 6, 7]
    pipelined_poll("pollH2", n2, PS, issue2, opts.stag2, O4, after_issue=(None if opts.fast else calc_f))
    stamp(5)
    for r in O4:
        a(f"v_mul_f32 v{r}, v{VFS}, v{r}")
    for ctrl in ["row_ror:4", "row_ror:8"]:
        for r in O4:
            a(f"v_add_f32_dpp v{r}, v{r}, v{r} {ctrl} row_mask:0xf bank_mask:0xf")
    D0, D1 = 2, 3
    a(f"v_cvt_pk_bf16_f32 v{D0}, v{O4[0]}, v{O4[1]}")
    a(f"v_cvt_pk_bf16_f32 v{D1}, v{O4[2]}, v{O4[3]}")
    for q in range(4):
        a(f"v_and_b32 v{AOP+4*q}, v{D0}, v{MASK+2*q}")
        a(f"v_and_b32 v{AOP+4*q+1}, v{D1}, v{MASK+2*q}")
        a(f"v_and_b32 v{AOP+4*q+2}, v{D0}, v{MASK+2*q+1}")
        a(f"v_and_b32 v{AOP+4*q+3}, v{D1}, v{MASK+2*q+1}")
    for q in range(4):
        for od in range(2):
            acc = ACC2 + 4*od
            c = "0" if q == 0 else f"v[{acc}:{acc+3}]"
            e = 2*q + od
            a(f"v_mfma_f32_16x16x32_bf16 v[{acc}:{acc+3}], v[{AOP+4*q}:{AOP+4*q+3}], v[{BOP+4*e}:{BOP+4*e+3}], {c}")
    YW = YR
    a(f"v_add_f32 v{YW}, v{ACC2}, v{ACC2+2}")
    a(f"v_add_f32 v{YW+1}, v{ACC2+4}, v{ACC2+6}")
    a(f"v_add_f32 v{YW+2}, v{ACC2+1}, v{ACC2+3}")
    a(f"v_add_f32 v{YW+3}, v{ACC2+5}, v{ACC2+7}")
    a(f"ds_write_b128 v{VYW}, v[{YW}:{YW+3}] offset:{L_Y1P}")
    lds_arrive(C5, VZ, 3, rtn=True)
    stamp(6)
    a("s_cmp_eq_u32 s10, 3")
    a("s_cbranch_scc0 L_fin")
    for w in range(4):
        a(f"ds_read_b128 v[{YR+4*w}:{YR+4*w+3}], v{VY1} offset:{L_Y1P + w*1024}")
    if opts.y1lay:
        a("s_mov_b32 s10, -1")
        a("s_mov_b32 s11, 0xff")
    else:
        a(f"s_mov_b32 s10, {LANES10}")
        a(f"s_mov_b32 s11, {LANES10}")
    a("s_waitcnt lgkmcnt(2)")
    for e in range(4):
        a(f"v_add_f32 v{YR+e}, v{YR+e}, v{YR+4+e}")
    a("s_waitcnt lgkmcnt(0)")
    for e in range(4):
        a(f"v_add_f32 v{YR+8+e}, v{YR+8+e}, v{YR+12+e}")
    a(f"v_add_f32 v{GY}, v{YR}, v{YR+8}")
    a(f"v_add_f32 v{GY+1}, v{YR+1}, v{YR+9}")
    a(f"v_add_f32 v{GY+4}, v{YR+2}, v{YR+10}")
    a(f"v_add_f32 v{GY+5}, v{YR+3}, v{YR+11}")
    a("s_mov_b64 exec, s[10:11]")
    a(f"buffer_store_dwordx4 v[{GY}:{GY+3}], v{VY0}, s[56:59], 0 offen sc1")
    a(f"buffer_store_dwordx4 v[{GY+4}:{GY+7}], v{VY0}, s[56:59], s9 offen sc1")
    a("s_mov_b64 exec, -1")
    stamp(7)
    a.label("L_fin")
    if stamps:
        a("s_mul_i32 s90, s6, 12")
        a("s_add_u32 s90, s90, s3")
        a("s_lshl_b32 s90, s90, 6")
        a(f"s_add_u32 s90, s90, {WS_STAMP}")
        a("v_mov_b32 v2, s90")
        a("s_waitcnt lgkmcnt(0)")
        for i in range(16):
            a(f"v_mov_b32 v{8+i}, s{ST0+i}")
        a("s_mov_b64 exec, 1")
        for q in range(4):
            a(f"buffer_store_dwordx4 v[{8+4*q}:{11+4*q}], v2, s[56:59], 0 offen offset:{16*q}")
    a.label("L_end")
    a("s_endpgm")

    nv = 168
    out = HEADER
    out += f"; @launch grid=(256,1,1) block=(768,1,1) lds={L_TOTAL}\n"
    out += '.amdgcn_target "amdgcn-amd-amdhsa--gfx950"\n.text\n'
    out += f".globl {KNAME}\n.p2align 8\n.type {KNAME},@function\n{KNAME}:\n"
    out += "\n".join(a.l) + "\n"
    out += f""".section .rodata,"a"
.p2align 6
.amdhsa_kernel {KNAME}
  .amdhsa_next_free_vgpr {nv}
  .amdhsa_next_free_sgpr 96
  .amdhsa_accum_offset {nv}
  .amdhsa_group_segment_fixed_size 0
  .amdhsa_kernarg_size 88
  .amdhsa_user_sgpr_count 2
  .amdhsa_user_sgpr_kernarg_segment_ptr 1
  .amdhsa_system_sgpr_workgroup_id_x 1
.end_amdhsa_kernel
"""
    return out


def main():
    p = argparse.ArgumentParser()
    p.add_argument("-o", default="recurrent_scan__sliding_block_cached__dense_activation_relu__decode.s")
    p.add_argument("--kvpol", default="nt")
    p.add_argument("--wpol", default="nt")
    p.add_argument("--stamps", action="store_true")
    p.add_argument("--maxpoll", type=int, default=20000)
    p.add_argument("--maxspin", type=int, default=2000000)
    p.add_argument("--rotg", type=int, default=1)
    p.add_argument("--rotw", type=int, default=4)
    p.add_argument("--map", default="C")
    p.add_argument("--win", type=int, default=4)
    p.add_argument("--qkv", type=lambda s: [int(x) for x in s.split(",")], default=[1, 1, 1, 1])
    p.add_argument("--fpos", type=int, default=12)
    p.add_argument("--qpos", type=int, default=24)
    p.add_argument("--sched", default="dyn")
    p.add_argument("--kwin", type=int, default=0)
    p.add_argument("--dbgst", action="store_true")
    p.add_argument("--abl", default="")
    p.add_argument("--win2", type=int, default=0)
    p.add_argument("--bpos", type=int, default=3)
    p.add_argument("--hpos", type=int, default=8)
    p.add_argument("--ygate", type=lambda s: tuple(eval(x) for x in s.split(",")), default=(C5, 1))
    p.add_argument("--gate", type=int, default=8)
    p.add_argument("--npoll2", type=int, default=2)
    p.add_argument("--npoll3", type=int, default=4)
    p.add_argument("--stag2", type=int, default=6)
    p.add_argument("--stag3", type=int, default=3)
    p.add_argument("--prio", default="")
    p.add_argument("--qprio", type=int, default=-1)
    p.add_argument("--fast", action="store_true")
    p.add_argument("--nf", type=int, default=48)
    p.add_argument("--slow3", default="")
    p.add_argument("--mlsleep", type=int, default=4)
    p.add_argument("--reclaim", action="store_true")
    p.add_argument("--y1lay", type=int, default=0)
    p.add_argument("--y2lay", type=int, default=0)
    p.add_argument("--burst", type=int, default=-1)
    p.add_argument("--winy", type=int, default=0)
    p.add_argument("--wpos", type=int, default=-1)
    p.add_argument("--wcnt", type=int, default=8)
    p.add_argument("--preld", type=int, default=0)
    p.add_argument("--h1f", type=int, default=0)
    p.add_argument("--bhi", type=int, default=2)
    o = p.parse_args()
    open(o.o, "w").write(gen(o))
    print("wrote", o.o)


if __name__ == "__main__":
    main()
```

```python
import sys, argparse, struct
from asmh import A
from gen2 import HEADER, KNAME

WS_H1 = 0x0
WS_H2 = 0xC0000
GSTR = 4352
WS_ML = 0x340000
WS_H1F = 0x380000
WS_H2F = 0x300000
WS_H3A = 0x140000
WS_H3B = 0x190000
WS_EPOCH = 0x1F0000
WS_STAMP = 0x200000
WS_SIZE = 0x800000
FOFF = 0x400000

L_QP = 0
L_HP = 4096
L_Q = 6144
L_H = 6400
L_OP = 6656
L_ML = 10752
L_F = 10816
L_TAG = 10848
L_Y2P = 11392
L_Y1P = 13952
L_SYNC = 18048
L_TOTAL = 18176
C1, QF, HF, C2, FF, C3, C4, C5, C6, HG = [L_SYNC + 4 * i for i in range(10)]

LOG2E = 1.4426950408889634
OOB = 0x40000000
LANES10 = "0x03ff03ff"


def f32bits(x):
    return struct.unpack('<I', struct.pack('<f', x))[0]


def gen(opts):
    a = A()
    kvpol = opts.kvpol
    wpol = opts.wpol
    stamps = opts.stamps
    W = opts.win
    ST0 = 72

    def stamp(idx):
        if stamps:
            a(f"s_memrealtime s[{ST0+2*idx}:{ST0+2*idx+1}]")

    uid = [0]

    def lds_spin(off, val, vz, vt, sleep=0):
        uid[0] += 1
        lbl = f"L_spin{uid[0]}"
        a(f"s_mov_b32 s12, {opts.maxspin}")
        a.label(lbl)
        a(f"ds_read_b32 v{vt}, v{vz} offset:{off}")
        a("s_waitcnt lgkmcnt(0)")
        a(f"v_readfirstlane_b32 s10, v{vt}")
        a(f"s_cmp_ge_u32 s10, {val}")
        a(f"s_cbranch_scc1 {lbl}_done")
        if sleep:
            a(f"s_sleep {sleep}")
        a("s_sub_u32 s12, s12, 1")
        a("s_cmp_lg_u32 s12, 0")
        a(f"s_cbranch_scc1 {lbl}")
        a.label(lbl + "_done")

    def lds_arrive(off, vz, vt, rtn=False):
        a(f"v_mov_b32 v{vt}, 1")
        a("s_mov_b64 exec, 1")
        if rtn:
            a(f"ds_add_rtn_u32 v{vt}, v{vz}, v{vt} offset:{off}")
        else:
            a(f"ds_add_u32 v{vz}, v{vt} offset:{off}")
        a("s_mov_b64 exec, -1")
        if rtn:
            a("s_waitcnt lgkmcnt(0)")
            a(f"v_readfirstlane_b32 s10, v{vt}")

    def set_tag(r):
        a(f"v_mov_b32 v{r+2}, s68")
        a(f"v_mov_b32 v{r+3}, s69")

    def tags_bad(regs):
        for n, r in enumerate(regs):
            dst = "s[70:71]" if n == 0 else "vcc"
            a(f"v_cmp_ne_u64 {dst}, v[{r+2}:{r+3}], s[68:69]")
            if n:
                a("s_or_b64 s[70:71], s[70:71], vcc")
        a("s_cmp_eq_u64 s[70:71], 0")

    def pipelined_poll(name, nsets, setregs, issue, stag, res, slow=0, after_issue=None):
        nl = len(setregs[0])
        a(f"s_mov_b32 s12, {opts.maxpoll}")
        a("s_mov_b64 s[38:39], -1")
        for k in range(nsets):
            issue(k)
            if k == 0 and after_issue:
                after_issue()
            if k + 1 < nsets and stag:
                a(f"s_sleep {stag}")
        a.label(f"L_{name}")
        for k in range(nsets):
            a(f"s_waitcnt vmcnt({(nsets-1)*nl})")
            for n, r in enumerate(setregs[k]):
                dst = "s[70:71]" if n == 0 else "vcc"
                a(f"v_cmp_eq_u64 {dst}, v[{r+2}:{r+3}], s[68:69]")
                if n:
                    a("s_and_b64 s[70:71], s[70:71], vcc")
            a("s_and_b64 exec, s[70:71], s[38:39]")
            for n, r in enumerate(setregs[k]):
                a(f"v_mov_b32 v{res[2*n]}, v{r}")
                a(f"v_mov_b32 v{res[2*n+1]}, v{r+1}")
            a("s_andn2_b64 s[38:39], s[38:39], s[70:71]")
            a("s_mov_b64 exec, s[38:39]")
            a(f"s_cbranch_scc0 L_{name}_done")
            if slow:
                a("s_bcnt1_i32_b64 s10, s[38:39]")
                a(f"s_cmp_lt_u32 s10, {slow[0]}")
                uid[0] += 1
                a(f"s_cbranch_scc1 L_fast{uid[0]}")
                a(f"s_sleep {slow[1]}")
                a.label(f"L_fast{uid[0]}")
            issue(k)
            a("s_mov_b64 exec, -1")
        a("s_sub_u32 s12, s12, 1")
        a("s_cmp_lg_u32 s12, 0")
        a(f"s_cbranch_scc1 L_{name}")
        a.label(f"L_{name}_done")
        a("s_mov_b64 exec, -1")

    def hint_poll(name, ws_off_sgpr, sleep):
        a(f"s_add_u32 s14, s56, s{ws_off_sgpr}")
        a("s_addc_u32 s15, s57, 0")
        a(f"s_mov_b32 s12, {opts.maxpoll}")
        a.label(f"L_{name}")
        a("s_load_dwordx16 s[16:31], s[14:15], 0 glc")
        a("s_waitcnt lgkmcnt(0)")
        for i in range(8):
            a(f"s_cmp_eq_u64 s[{16+2*i}:{17+2*i}], s[68:69]")
            a(f"s_cbranch_scc0 L_{name}_no")
        a(f"s_branch L_{name}_done")
        a.label(f"L_{name}_no")
        if sleep:
            a(f"s_sleep {sleep}")
        a("s_sub_u32 s12, s12, 1")
        a("s_cmp_lg_u32 s12, 0")
        a(f"s_cbranch_scc1 L_{name}")
        a.label(f"L_{name}_done")

    a("s_cmp_ge_u32 s2, 256")
    a("s_cbranch_scc1 L_end")
    a("s_load_dwordx16 s[16:31], s[0:1], 0")
    a("s_load_dwordx4 s[32:35], s[0:1], 64")
    a("s_load_dwordx2 s[36:37], s[0:1], 80")
    if stamps:
        for i in range(1, 8):
            a(f"s_mov_b64 s[{ST0+2*i}:{ST0+2*i+1}], 0")
        stamp(0)
    a("v_lshrrev_b32 v1, 6, v0")
    a("v_and_b32 v0, 63, v0")
    if opts.map == "C":
        a("s_and_b32 s4, s2, 7")
        a("s_lshr_b32 s5, s2, 6")
        a("s_lshl_b32 s5, s5, 3")
        a("s_or_b32 s4, s4, s5")
        a("s_lshr_b32 s5, s2, 3")
        a("s_and_b32 s5, s5, 7")
    else:
        a("s_lshr_b32 s4, s2, 3")
        a("s_and_b32 s5, s2, 7")
    a("v_readfirstlane_b32 s3, v1")
    a("s_lshl_b32 s6, s4, 3")
    a("s_or_b32 s6, s6, s5")
    a("s_lshr_b32 s7, s5, 2")
    a("s_and_b32 s8, s5, 3")
    a(f"s_mov_b32 s58, {WS_SIZE}")
    a("s_mov_b32 s59, 0x00020000")
    a("s_cmp_lt_u32 s3, 4")
    a("s_cbranch_scc1 L_aux")

    VOFF, VQ, VT, VS, VACC, VK, VV, VF = 1, 2, 6, 8, 24, 32, 96, 160
    a.c("---- streaming wave ----")
    a("s_sub_u32 s3, s3, 4")
    a("s_lshl_b32 s9, s7, 5")
    a("s_add_u32 s9, s9, s4")
    a("s_lshl_b32 s9, s9, 21")
    a("s_lshl_b32 s10, s8, 17")
    a("s_add_u32 s9, s9, s10")
    a("s_add_u32 s9, s9, 1572864")
    a("s_lshl_b32 s10, s3, 14")
    a(f"v_lshl_add_u32 v{VOFF}, v0, 4, s10")
    a(f"s_mul_i32 s11, s4, {opts.rotg}")
    a(f"s_mul_i32 s12, s3, {opts.rotw}")
    a("s_add_u32 s11, s11, s12")
    a("s_lshl_b32 s11, s11, 10")
    a("s_mov_b32 s42, 131072")
    a("s_mov_b32 s43, 0x00020000")
    a("s_mov_b32 s46, 131072")
    a("s_mov_b32 s47, 0x00020000")
    a("s_cmp_lt_u32 s4, 20")
    a("s_cselect_b32 s13, 1, 0")
    a("s_cmp_lt_u32 s3, 2")
    a("s_cselect_b32 s13, s13, 0")
    a("s_cmp_ge_u32 s4, 10")
    a("s_cselect_b32 s14, 560, 0")
    a("s_lshl_b32 s10, s4, 3")
    a("s_add_u32 s14, s14, s10")
    a("s_mul_i32 s10, s5, 80")
    a("s_add_u32 s14, s14, s10")
    a("s_lshl_b32 s10, s3, 2")
    a("s_add_u32 s14, s14, s10")
    VXV = VK + 63
    a(f"v_and_b32 v{VT}, 1, v0")
    a(f"v_lshlrev_b32 v{VT}, 1, v{VT}")
    a(f"v_lshrrev_b32 v{VT+1}, 5, v0")
    a(f"v_add3_u32 v{VT}, v{VT}, v{VT+1}, s14")
    a(f"v_lshlrev_b32 v{VQ}, 1, v{VT}")
    a("s_waitcnt lgkmcnt(0)")
    if "e" in opts.abl:
        stamp(5)
    a("s_add_u32 s40, s18, s9")
    a("s_addc_u32 s41, s19, 0")
    a("s_add_u32 s44, s20, s9")
    a("s_addc_u32 s45, s21, 0")
    a("s_mov_b32 s56, s36")
    a("s_mov_b32 s57, s37")
    a("s_mov_b32 s48, s16")
    a("s_mov_b32 s49, s17")
    a("s_movk_i32 s50, 2560")
    a("s_mov_b32 s51, 0x00020000")
    a("s_mov_b32 s64, s32")
    a("s_mov_b32 s65, s33")
    a("s_movk_i32 s66, 2560")
    a("s_mov_b32 s67, 0x00020000")
    for i in range(16):
        a(f"s_add_u32 s{16+i}, s11, {i*1024}")
        a(f"s_and_b32 s{16+i}, s{16+i}, 0x3c00")
    if not opts.b0late:
        a("s_barrier")
    if "e" in opts.abl:
        stamp(6)
    a("s_cmp_eq_u32 s13, 0")
    a("s_cbranch_scc1 L_nox")
    a(f"buffer_load_ushort v{VF+7+0}, v{VQ}, s[48:51], 0 offen")
    a.label("L_nox")
    XV = VF + 7
    PRIO = {int(k): int(v) for k, v in (it.split(":") for it in opts.prio.split(",") if it)}

    def issue(n, static=True):
        if static and n in PRIO:
            a(f"s_setprio {PRIO[n]}")
        if n < 16:
            a(f"buffer_load_dwordx4 v[{VK+4*n}:{VK+4*n+3}], v{VOFF}, s[40:43], s{16+n} offen {kvpol}")
        else:
            i = n - 16
            a(f"buffer_load_dwordx4 v[{VV+4*i}:{VV+4*i+3}], v{VOFF}, s[44:47], s{16+i} offen {kvpol}")

    W2 = opts.win2 or W
    NS = 16 - W2
    slot_i = [0]
    SREM = "s9"

    FLAT = opts.sched in ("flat", "ab")
    AB = opts.sched == "ab"

    def dstamp(idx):
        if opts.dbgst:
            stamp(idx)

    def late_burst():
        a(f"s_cmp_eq_u32 {SREM}, 0")
        a("s_cbranch_scc1 L_nolate")
        for n in range(opts.kwin, 32):
            issue(n)
        dstamp(5)
        a.label("L_nolate")

    def slot():
        k = slot_i[0]
        slot_i[0] += 1
        if AB and k == opts.bpos:
            late_burst()
        if FLAT:
            return
        if opts.burst >= 0 and k > opts.burst:
            a(f"s_cmp_eq_u32 {SREM}, {NS}")
            a(f"s_cbranch_scc1 L_slot{k}_full")
            a("s_waitcnt vmcnt(0)")
            a.label(f"L_slot{k}_full")
            a(f"s_waitcnt vmcnt({15 - k})")
            return
        if opts.burst >= 0 and k == opts.burst:
            a(f"s_cmp_eq_u32 {SREM}, {NS}")
            a(f"s_cbranch_scc1 L_slot{k}_full")
            for kk in range(k, NS):
                a(f"s_cmp_gt_u32 {SREM}, {kk}")
                a(f"s_cbranch_scc0 L_slot{k}_no")
                issue(16 + 15 - kk, False)
            a.label(f"L_slot{k}_no")
            a("s_waitcnt vmcnt(0)")
            a(f"s_branch L_slot{k}_done")
            a.label(f"L_slot{k}_full")
            a(f"s_waitcnt vmcnt({W2-1})")
            for kk in range(k, NS):
                issue(16 + 15 - kk, False)
            a.label(f"L_slot{k}_done")
            return
        if k < NS:
            a(f"s_cmp_gt_u32 {SREM}, {k}")
            a(f"s_cbranch_scc0 L_slot{k}_no")
            a(f"s_waitcnt vmcnt({W2-1})")
            issue(16 + 15 - k, False)
            a(f"s_branch L_slot{k}_done")
            a.label(f"L_slot{k}_no")
            a("s_waitcnt vmcnt(0)")
            a.label(f"L_slot{k}_done")
        else:
            a(f"s_waitcnt vmcnt({max(W2 - 1 - (k - NS), 0)})")

    a(f"v_mov_b32 v{VT+1}, 0")
    for n in range(W):
        issue(n)
    if opts.b0late:
        a("s_barrier")
    if AB:
        KW = opts.kwin
        for n in range(W, KW):
            a(f"s_waitcnt vmcnt({W-1})")
            issue(n)
        a(f"ds_read_b32 v{VT}, v{VT+1} offset:{QF}")
        a(f"s_waitcnt vmcnt({KW - 16})")
        a("s_waitcnt lgkmcnt(0)")
        a(f"v_readfirstlane_b32 {SREM}, v{VT}")
        a(f"s_cmp_lg_u32 {SREM}, 0")
        a(f"s_cbranch_scc1 L_qready")
        for n in range(KW, 32):
            issue(n)
        dstamp(5)
        lds_spin(QF, 1, VT + 1, VT, sleep=1)
        a(f"s_mov_b32 {SREM}, 0")
    elif FLAT:
        for n in range(W, 32):
            if n < opts.kwin:
                a(f"s_waitcnt vmcnt({W-1})")
            issue(n)
        dstamp(5)
        lds_spin(QF, 1, VT + 1, VT, sleep=1)
    else:
        for n in range(W, 16 + W2):
            if opts.winy and n < 16:
                a("s_cmp_ge_u32 s3, 4")
                a(f"s_waitcnt vmcnt({opts.winy - 1})")
                a(f"s_cbranch_scc1 L_wy{n}")
                a(f"s_waitcnt vmcnt({W - 1})")
                a.label(f"L_wy{n}")
            else:
                a(f"s_waitcnt vmcnt({(W if n < 16 else W2) - 1})")
            if "e" in opts.abl and n == W:
                stamp(7)
            if "e" in opts.abl and n == W + 4:
                stamp(4)
            issue(n)
        dstamp(5)
        if "q" in opts.abl:
            a(f"s_mov_b32 {SREM}, {NS}")
            a(f"s_waitcnt vmcnt({W2})")
            a("s_branch L_qready")
        for n in range(16 + W2, 32):
            a(f"ds_read_b32 v{VT}, v{VT+1} offset:{QF}")
            a(f"s_mov_b32 {SREM}, {32 - n}")
            a(f"s_waitcnt vmcnt({W2-1})")
            a("s_waitcnt lgkmcnt(0)")
            a(f"v_readfirstlane_b32 s10, v{VT}")
            a("s_cmp_lg_u32 s10, 0")
            a(f"s_cbranch_scc1 L_qready")
            issue(n)
        a(f"s_mov_b32 {SREM}, 0")
        a(f"s_waitcnt vmcnt({16 if False else min(W2, 16)})")
        lds_spin(QF, 1, VT + 1, VT, sleep=1)
    a.label("L_qready")
    if opts.qprio >= 0:
        a(f"s_setprio {opts.qprio}")
    a(f"v_and_b32 v{VT}, 15, v0")
    a(f"v_lshlrev_b32 v{VT}, 4, v{VT}")
    a(f"ds_read_b128 v[{VQ}:{VQ+3}], v{VT} offset:{L_Q}")
    a(f"ds_read_b64 v[{VS}:{VS+1}], v{VT+1} offset:{L_TAG}")
    stamp(1)
    a("s_waitcnt lgkmcnt(0)")
    a(f"v_readfirstlane_b32 s68, v{VS}")
    a(f"v_readfirstlane_b32 s69, v{VS+1}")
    _a = a
    class _F:
        def __call__(self, t):
            if "s" in opts.abl and t.startswith("v_") and not t.startswith("v_readlane"):
                return
            _a(t)
        def __getattr__(self, n):
            return getattr(_a, n)
    a = _F()
    for grp in range(4):
        if FLAT and not AB:
            a(f"s_waitcnt vmcnt({16 + 12 - 4*grp})")
        for d in range(4):
            for i in range(4*grp, 4*grp+4):
                src2 = "0" if d == 0 else f"v{VS+i}"
                a(f"v_dot2_f32_bf16 v{VS+i}, v{VK+4*i+d}, v{VQ+d}, {src2}")
    slot()
    for ctrl in ["quad_perm:[1,0,3,2]", "quad_perm:[2,3,0,1]", "row_half_mirror", "row_mirror"]:
        for i in range(16):
            a(f"v_add_f32_dpp v{VS+i}, v{VS+i}, v{VS+i} {ctrl} row_mask:0xf bank_mask:0xf")
    slot()
    a(f"s_mov_b32 s14, 0x{f32bits(128 ** -0.5):08x}")
    a("s_mov_b32 s15, 0xffff0000")
    for rnd in range(2):
        for p in range(8):
            a(f"v_cvt_pk_bf16_f32 v{VK+p}, v{VS+2*p}, v{VS+2*p+1}")
        for p in range(8):
            a(f"v_lshlrev_b32 v{VS+2*p}, 16, v{VK+p}")
            a(f"v_and_b32 v{VS+2*p+1}, s15, v{VK+p}")
        if rnd == 0:
            for i in range(16):
                a(f"v_mul_f32 v{VS+i}, s14, v{VS+i}")
    m = VT
    a(f"v_max3_f32 v{m}, v{VS}, v{VS+1}, v{VS+2}")
    for i in range(3, 15, 2):
        a(f"v_max3_f32 v{m}, v{m}, v{VS+i}, v{VS+i+1}")
    a(f"v_max_f32 v{m}, v{m}, v{VS+15}")
    for r in range(4):
        a(f"v_readlane_b32 s{60+r}, v{m}, {16*r}")
    a(f"v_mov_b32 v{m}, s60")
    a(f"v_max_f32 v{m}, s61, v{m}")
    a(f"v_max_f32 v{m}, s62, v{m}")
    a(f"v_max_f32 v{m}, s63, v{m}")
    slot()
    a(f"s_mov_b32 s14, 0x{f32bits(LOG2E):08x}")
    for i in range(16):
        a(f"v_sub_f32 v{VS+i}, v{VS+i}, v{m}")
    for i in range(16):
        a(f"v_mul_f32 v{VS+i}, s14, v{VS+i}")
    for i in range(16):
        a(f"v_exp_f32 v{VS+i}, v{VS+i}")
    PLO, PHI = VK, VK + 16
    a(f"v_mov_b32 v{VXV}, v{XV}")
    for i in range(16):
        a(f"v_cvt_pk_bf16_f32 v{PLO+i}, v{VS+i}, 0")
    for i in range(16):
        a(f"v_lshlrev_b32 v{PHI+i}, 16, v{PLO+i}")
    lsum = VT + 1
    a(f"v_add_f32 v{lsum}, v{VS}, v{VS+1}")
    for i in range(2, 16):
        a(f"v_add_f32 v{lsum}, v{lsum}, v{VS+i}")
    for r in range(4):
        a(f"v_readlane_b32 s{60+r}, v{lsum}, {16*r}")
    a(f"v_mov_b32 v{lsum}, s60")
    a(f"v_add_f32 v{lsum}, s61, v{lsum}")
    a(f"v_add_f32 v{lsum}, s62, v{lsum}")
    a(f"v_add_f32 v{lsum}, s63, v{lsum}")
    a = _a
    VZ = VQ
    a(f"s_lshl_b32 s10, s3, 2")
    a(f"v_mov_b32 v{VS}, s10")
    a(f"v_mov_b32 v{VZ}, 0")
    a(f"ds_write_b32 v{VS}, v{m} offset:{L_ML}")
    a(f"ds_write_b32 v{VS}, v{lsum} offset:{L_ML+32}")
    lds_arrive(C2, VZ, VS + 1)
    a(f"v_and_b32 v{VS}, 15, v0")
    a(f"v_lshlrev_b32 v{VS}, 5, v{VS}")
    a(f"v_lshrrev_b32 v{VS+1}, 4, v0")
    a(f"v_lshl_add_u32 v{VS}, v{VS+1}, 3, v{VS}")
    a(f"s_lshl_b32 s10, s3, 9")
    a(f"v_add_u32 v{VS}, s10, v{VS}")
    VCA, VPA, GO = VS + 2, VS + 3, VS + 4
    a(f"v_lshlrev_b32 v{VCA}, 3, v0")
    a("s_lshl_b32 s10, s6, 10")
    a(f"s_add_u32 s10, s10, {WS_H2}")
    a(f"v_lshl_add_u32 v{VPA}, v0, 4, s10")
    set_tag(GO)
    order = list(range(W2)) + list(range(15, W2 - 1, -1))
    if FLAT:
        order = list(range(16))
    dstamp(6)
    if AB and opts.bpos >= 3:
        late_burst()
    if FLAT:
        slot_i[0] = 16
    for t in range(16):
        i = order[t]
        while slot_i[0] <= t:
            slot()
        if FLAT:
            a(f"s_waitcnt vmcnt({15 - t})")
        if t == 15:
            dstamp(7)
        if t == opts.wpos:
            lds_arrive(HG, VZ, VS + 8)
        if t == opts.hpos:
            lds_arrive(C6, VZ, VS + 8)
        if t == opts.fpos:
            stamp(3)
            lds_spin(FF, 1, VZ, VS + 8, sleep=1)
            a(f"ds_read_b128 v[{VF}:{VF+3}], v{VZ} offset:{L_F}")
            a(f"ds_read_b128 v[{VF+4}:{VF+7}], v{VZ} offset:{L_F+16}")
            a("s_setprio 3")
        for d in range(4):
            s2a = "0" if t == 0 else f"v{VACC+2*d}"
            s2b = "0" if t == 0 else f"v{VACC+2*d+1}"
            a(f"v_dot2_f32_bf16 v{VACC+2*d}, v{VV+4*i+d}, v{PLO+i}, {s2a}")
            a(f"v_dot2_f32_bf16 v{VACC+2*d+1}, v{VV+4*i+d}, v{PHI+i}, {s2b}")
    assert slot_i[0] == 16
    for e in range(4):
        a(f"v_permlane32_swap_b32 v{VACC+e}, v{VACC+e+4}")
    for e in range(4):
        a(f"v_add_f32 v{VACC+e}, v{VACC+e}, v{VACC+e+4}")
    a(f"v_permlane16_swap_b32 v{VACC}, v{VACC+2}")
    a(f"v_permlane16_swap_b32 v{VACC+1}, v{VACC+3}")
    a(f"v_add_f32 v{VACC}, v{VACC}, v{VACC+2}")
    a(f"v_add_f32 v{VACC+1}, v{VACC+1}, v{VACC+3}")
    a(f"ds_write_b64 v{VS}, v[{VACC}:{VACC+1}] offset:{L_OP}")
    lds_arrive(C3, VZ, VS + 8, rtn=True)
    stamp(2)
    a("s_cmp_eq_u32 s10, 7")
    a("s_cbranch_scc0 L_nocomb")
    OPR = VK
    for w in range(8):
        a(f"ds_read_b64 v[{OPR+2*w}:{OPR+2*w+1}], v{VCA} offset:{L_OP + w*512}")
    for w in range(8):
        a(f"s_waitcnt lgkmcnt({7-w})")
        for e in range(2):
            if w == 0:
                a(f"v_mul_f32 v{GO+e}, v{VF}, v{OPR+e}")
            else:
                a(f"v_fma_f32 v{GO+e}, v{VF+w}, v{OPR+2*w+e}, v{GO+e}")
    if opts.fast:
        a(f"s_mov_b32 s10, {FOFF}")
        a(f"buffer_store_dwordx4 v[{GO}:{GO+3}], v{VPA}, s[56:59], s10 offen")
    a(f"buffer_store_dwordx4 v[{GO}:{GO+3}], v{VPA}, s[56:59], 0 offen sc1")
    stamp(4)
    a.label("L_nocomb")
    if "t" in opts.abl:
        a("s_branch L_sfin")
    a("s_cmp_eq_u32 s13, 0")
    a("s_cbranch_scc1 L_sfin")
    a("s_cmp_ge_u32 s4, 10")
    a("s_cselect_b32 s9, 70, 0")
    a("s_add_u32 s9, s9, s4")
    a("s_mul_i32 s10, s5, 10")
    a("s_add_u32 s9, s9, s10")
    a("s_lshl_b32 s9, s9, 1")
    a("s_add_u32 s9, s9, s3")
    a("s_lshl_b32 s9, s9, 10")
    a(f"s_add_u32 s9, s9, {WS_H3A}")
    FA, FO = VS, VS + 1
    FA1 = FA
    a(f"v_lshl_add_u32 v{FA}, v0, 4, s9")
    a(f"s_mov_b32 s11, {WS_H3B - WS_H3A}")
    if opts.y1lay:
        FA1 = VS + 3
        a("s_lshl_b32 s9, s4, 6")
        a("s_mul_i32 s10, s5, 1280")
        a("s_add_u32 s9, s9, s10")
        a("s_lshl_b32 s10, s3, 5")
        a("s_add_u32 s9, s9, s10")
        a(f"s_add_u32 s9, s9, {WS_H3A}")
        a(f"v_lshrrev_b32 v{FA1}, 1, v0")
        a(f"v_mul_u32_u24 v{FA1}, 10240, v{FA1}")
        a(f"v_and_b32 v{VS+2}, 1, v0")
        a(f"v_lshl_add_u32 v{FA1}, v{VS+2}, 4, v{FA1}")
        a(f"v_add_u32 v{FA1}, s9, v{FA1}")
    P = VK

    def reduce_duo(r0):
        for ctrl in ["quad_perm:[2,3,0,1]", "row_ror:4", "row_ror:8"]:
            a(f"v_add_f32_dpp v{r0}, v{r0}, v{r0} {ctrl} row_mask:0xf bank_mask:0xf")
            a(f"v_add_f32_dpp v{r0+1}, v{r0+1}, v{r0+1} {ctrl} row_mask:0xf bank_mask:0xf")
        a(f"v_permlane32_swap_b32 v{r0}, v{r0+1}")
        a(f"v_add_f32 v{r0}, v{r0}, v{r0+1}")
        a(f"v_mov_b32 v{r0+1}, v{r0}")
        a(f"v_permlane16_swap_b32 v{r0}, v{r0+1}")
        a(f"v_add_f32 v{r0}, v{r0}, v{r0+1}")

    RY2, RY1 = P + 4, P + 6
    pipelined_poll("pollY2", 1, [[P]],
                   lambda k: a(f"buffer_load_dwordx4 v[{P}:{P+3}], v{FA1 if opts.y2lay else FA}, s[56:59], s11 offen sc1"), 0,
                   [RY2, RY2 + 1], slow=(1, 8))
    n3 = opts.npoll3
    Y1S = [[P + 8 + 4*k] for k in range(n3)]
    a("s_cmp_ge_u32 s4, 10")
    a("s_cselect_b32 s14, 560, 0")
    a("s_lshl_b32 s10, s4, 3")
    a("s_add_u32 s14, s14, s10")
    a("s_mul_i32 s10, s5, 80")
    a("s_add_u32 s14, s14, s10")
    a("s_lshl_b32 s10, s3, 2")
    a("s_add_u32 s14, s14, s10")
    a(f"v_and_b32 v{FO}, 1, v0")
    a(f"v_lshlrev_b32 v{FO}, 1, v{FO}")
    a(f"v_lshrrev_b32 v{FO+1}, 5, v0")
    a(f"v_add3_u32 v{FO}, v{FO}, v{FO+1}, s14")
    a(f"v_lshlrev_b32 v{FO}, 1, v{FO}")
    reduce_duo(RY2)
    Y2 = RY2
    T7 = P
    a(f"v_cvt_pk_bf16_f32 v{Y2}, v{Y2}, 0")
    a(f"v_lshlrev_b32 v{Y2}, 16, v{Y2}")
    a(f"s_mov_b32 s14, 0x{f32bits(-LOG2E):08x}")
    a(f"v_mul_f32 v{T7}, s14, v{Y2}")
    a(f"v_exp_f32 v{T7}, v{T7}")
    a(f"v_add_f32 v{T7}, 1.0, v{T7}")
    a(f"v_rcp_f32 v{T7}, v{T7}")
    a(f"v_mul_f32 v{Y2}, v{Y2}, v{T7}")
    a(f"v_cvt_pk_bf16_f32 v{Y2}, v{Y2}, 0")
    a(f"v_lshlrev_b32 v{Y2}, 16, v{Y2}")
    a(f"v_lshlrev_b32 v{VXV}, 16, v{VXV}")
    if not opts.dbgst:
        stamp(5)
    lds_spin(opts.ygate[0], opts.ygate[1], VZ, VS + 8, sleep=1)
    pipelined_poll("pollY1", n3, Y1S,
                   lambda k: a(f"buffer_load_dwordx4 v[{Y1S[k][0]}:{Y1S[k][0]+3}], v{FA1}, s[56:59], 0 offen sc1"), opts.stag3,
                   [RY1, RY1 + 1], slow=(tuple(int(x) for x in opts.slow3.split(",")) if opts.slow3 else 0))
    if not opts.dbgst:
        stamp(6)
    Y1 = RY1
    reduce_duo(Y1)
    a(f"v_cvt_pk_bf16_f32 v{Y1}, v{Y1}, 0")
    a(f"v_lshlrev_b32 v{Y1}, 16, v{Y1}")
    a(f"v_mul_f32 v{Y1}, v{Y1}, v{Y2}")
    a(f"v_cvt_pk_bf16_f32 v{Y1}, v{Y1}, 0")
    a(f"v_lshlrev_b32 v{Y1}, 16, v{Y1}")
    a(f"v_add_f32 v{Y1}, v{VXV}, v{Y1}")
    a(f"v_cvt_pk_bf16_f32 v{Y1}, v{Y1}, 0")
    a("s_mov_b32 s10, 3")
    a("s_mov_b32 s11, 3")
    a("s_mov_b64 exec, s[10:11]")
    a(f"buffer_store_short v{Y1}, v{FO}, s[64:67], 0 offen")
    a("s_or_b32 s10, s6, s3")
    a("s_cmp_lg_u32 s10, 0")
    a("s_cbranch_scc1 L_noep")
    a("s_mov_b64 exec, 1")
    a(f"v_mov_b32 v{VS+2}, {WS_EPOCH}")
    a(f"v_mov_b32 v{VS+3}, s68")
    a(f"buffer_store_dword v{VS+3}, v{VS+2}, s[56:59], 0 offen sc1")
    a.label("L_noep")
    a("s_mov_b64 exec, -1")
    if not opts.dbgst:
        stamp(7)
    else:
        stamp(4)
    a.label("L_sfin")
    a("s_add_u32 s3, s3, 4")
    a("s_branch L_fin")

    a.label("L_aux")
    a.c("---- aux wave: a = s3 (0..3) ----")
    a("s_setprio 3")
    XR = 20
    VE = 30
    WQ = 32
    W1 = 52
    TMP = 64
    ACC = 96
    W2 = 120
    WO = 136
    LO2 = 96
    AY = 104
    BOP = 32
    a("s_cmp_lg_u32 s3, 0")
    a("s_cbranch_scc1 L_noclr")
    for r in range(4, 8):
        a(f"v_mov_b32 v{r}, 0")
    a(f"ds_write_b128 v4, v[4:7] offset:{L_SYNC}")
    a(f"ds_write_b128 v4, v[4:7] offset:{L_SYNC+16}")
    a(f"ds_write_b128 v4, v[4:7] offset:{L_SYNC+32}")
    a.label("L_noclr")
    a(f"v_lshlrev_b32 v2, 4, v0")
    a(f"v_lshlrev_b32 v3, 2, v0")
    a(f"v_mov_b32 v{VE}, {WS_EPOCH}")
    a("s_mul_i32 s9, s5, 80")
    a("s_mul_i32 s10, s3, 20")
    a("s_add_u32 s9, s9, s10")
    a(f"v_lshrrev_b32 v10, 4, v0")
    a(f"v_and_b32 v11, 15, v0")
    RG, C = 10, 11
    a(f"v_add_u32 v{TMP+10}, s9, v{RG}")
    a(f"v_lshlrev_b32 v{TMP+11}, 1, v{TMP+10}")
    a(f"v_lshlrev_b32 v{TMP+1}, 13, v{TMP+10}")
    a(f"v_lshl_add_u32 v{TMP+1}, v{C}, 4, v{TMP+1}")
    a("s_lshl_b32 s10, s4, 8")
    a(f"v_add_u32 v{TMP+1}, s10, v{TMP+1}")
    a(f"s_cmp_ge_u32 s4, {0 if 'f' in opts.abl else 27}")
    a(f"s_cselect_b32 s13, {OOB}, 0")
    if 'w' in opts.abl:
        a(f"v_add_u32 v{TMP+1}, {OOB}, v{TMP+1}")
    if 'B' in opts.abl:
        a(f"s_cmp_lt_u32 s2, {opts.bhi*64}")
        a(f"s_cselect_b32 s10, {OOB}, 0")
        a("s_bitcmp1_b32 s2, 2")
        a("s_cselect_b32 s10, s10, 0")
        a(f"v_add_u32 v{TMP+1}, s10, v{TMP+1}")
    a("s_movk_i32 s10, 3456")
    a(f"v_mul_lo_u32 v{TMP+2}, v{TMP+10}, s10")
    a(f"v_lshl_add_u32 v{TMP+2}, v{C}, 3, v{TMP+2}")
    a("s_lshl_b32 s10, s4, 7")
    a("s_add_u32 s10, s10, s13")
    a(f"v_add_u32 v{TMP+2}, s10, v{TMP+2}")
    for i in range(1, 5):
        a(f"s_mov_b32 s{88+i}, {i*32768}")
        if i < 4:
            a(f"s_mov_b32 s{92+i}, {i*13824}")
    a(f"s_mov_b32 s88, {4*13824}")
    a("s_waitcnt lgkmcnt(0)")

    def srd(r, lo, size):
        a(f"s_mov_b32 s{r}, s{lo}")
        a(f"s_mov_b32 s{r+1}, s{lo+1}")
        a(f"s_mov_b32 s{r+2}, {size}")
        a(f"s_mov_b32 s{r+3}, 0x00020000")
    a("s_mov_b32 s56, s36")
    a("s_mov_b32 s57, s37")
    srd(40, 16, 2560)
    a(f"buffer_load_dword v{VE}, v{VE}, s[56:59], 0 offen sc1")
    a(f"buffer_load_dwordx4 v[4:7], v2, s[40:43], 0 offen")
    a(f"buffer_load_dword v8, v3, s[40:43], 0 offen offset:1024")
    a(f"buffer_load_dwordx4 v[12:15], v2, s[40:43], 0 offen offset:1280")
    a(f"buffer_load_dword v16, v3, s[40:43], 0 offen offset:2304")
    srd(44, 22, 5242880)
    for i in range(5):
        so = "0" if i == 0 else f"s{88+i}"
        a(f"buffer_load_dwordx4 v[{WQ+4*i}:{WQ+4*i+3}], v{TMP+1}, s[44:47], {so} offen {wpol}")
    if 'B' in opts.abl:
        a("s_cmp_eq_u32 s8, 1")
        a(f"s_cmp_lt_u32 s2, {opts.bhi*64}")
        a("s_cbranch_scc0 L_nob")
        a("s_bitcmp1_b32 s2, 2")
        a("s_cbranch_scc1 L_nob")
        a(f"v_add_u32 v{TMP+7}, 1024, v{TMP+1}")
        for i in range(5):
            so = "0" if i == 0 else f"s{88+i}"
            a(f"buffer_load_dwordx4 v[{ACC+4*i}:{ACC+4*i+3}], v{TMP+7}, s[44:47], {so} offen {wpol}")
        a.label("L_nob")
    srd(48, 28, 2211840)
    for i in range(5):
        so = "0" if i == 0 else (f"s{92+i}" if i < 4 else "s88")
        a(f"buffer_load_dwordx2 v[{W1+2*i}:{W1+2*i+1}], v{TMP+2}, s[48:51], {so} offen {wpol}")
    for i in range(5):
        for b in range(2):
            a(f"buffer_load_ushort v{XR+2*i+b}, v{TMP+11}, s[40:43], 0 offen offset:{b*1280 + i*8}")
    a("s_waitcnt lgkmcnt(0)")
    a("s_barrier")
    a(f"v_mov_b32 v{TMP+5}, 0")
    a(f"v_mov_b32 v{TMP+6}, {OOB}")
    a(f"v_cmp_lt_u32 vcc, 9, v{C}")
    a(f"v_cndmask_b32 v{TMP+5}, v{TMP+5}, v{TMP+6}, vcc")
    a(f"v_lshl_add_u32 v{TMP+5}, v{C}, 4, v{TMP+5}")
    a("s_mul_i32 s10, s5, 160")
    a(f"v_add_u32 v{TMP+5}, s10, v{TMP+5}")
    a("s_movk_i32 s14, 1280")
    a("s_lshl_b32 s10, s4, 6")
    a("s_lshl_b32 s11, s3, 4")
    a("s_add_u32 s10, s10, s11")
    a(f"v_lshl_add_u32 v{TMP+3}, v{RG}, 2, s10")
    a(f"v_mul_lo_u32 v{TMP+3}, v{TMP+3}, s14")
    a(f"v_add_u32 v{TMP+3}, v{TMP+5}, v{TMP+3}")
    a(f"v_add_u32 v{TMP+3}, s13, v{TMP+3}")
    a("s_lshl_b32 s10, s4, 7")
    a("s_lshl_b32 s11, s3, 5")
    a("s_add_u32 s10, s10, s11")
    a(f"v_lshl_add_u32 v{TMP+4}, v{RG}, 3, s10")
    a(f"v_mul_lo_u32 v{TMP+4}, v{TMP+4}, s14")
    a(f"v_add_u32 v{TMP+4}, v{TMP+5}, v{TMP+4}")
    if 'o' in opts.abl:
        a(f"v_add_u32 v{TMP+4}, {OOB}, v{TMP+4}")
    a("s_movk_i32 s12, 5120")
    srd(52, 30, 2211840)
    for i in range(4):
        a(f"buffer_load_dwordx4 v[{W2+4*i}:{W2+4*i+3}], v{TMP+3}, s[52:55], 0 offen offset:{i*1280} {wpol}")
    srd(60, 24, 5242880)
    LATEWO = opts.wpos >= 0
    def issue_wo(va):
        for i in range(8):
            so = "0" if i < 4 else "s12"
            a(f"buffer_load_dwordx4 v[{WO+4*i}:{WO+4*i+3}], v{va}, s[60:63], {so} offen offset:{(i&3)*1280} {wpol}")
    if LATEWO:
        a(f"v_mov_b32 v1, v{TMP+4}")
    else:
        issue_wo(TMP + 4)

    a(f"s_waitcnt vmcnt({24 if LATEWO else 32})")
    a(f"v_readfirstlane_b32 s68, v{VE}")
    a("s_mov_b32 s15, 0xffff0000")
    a("s_add_u32 s68, s68, 1")
    a("s_xor_b32 s69, s68, 0x9e3779b9")
    F = TMP + 12
    srcs = [[4, 5, 6, 7, 8], [12, 13, 14, 15, 16]]
    for b in range(2):
        for d in range(5):
            a(f"v_lshlrev_b32 v{F+10*b+2*d}, 16, v{srcs[b][d]}")
            a(f"v_and_b32 v{F+10*b+2*d+1}, s15, v{srcs[b][d]}")
    S0, S1, Q0, Q1, t0, t1 = 4, 5, 6, 7, 8, 9

    def wave_sum2(r0, r1, sbase):
        for ctrl in ["quad_perm:[1,0,3,2]", "quad_perm:[2,3,0,1]", "row_half_mirror", "row_mirror"]:
            a(f"v_add_f32_dpp v{r0}, v{r0}, v{r0} {ctrl} row_mask:0xf bank_mask:0xf")
            a(f"v_add_f32_dpp v{r1}, v{r1}, v{r1} {ctrl} row_mask:0xf bank_mask:0xf")
        for r in range(4):
            a(f"v_readlane_b32 s{sbase+r}, v{r0}, {16*r}")
            a(f"v_readlane_b32 s{sbase+4+r}, v{r1}, {16*r}")
        a(f"v_mov_b32 v{r0}, s{sbase}")
        a(f"v_mov_b32 v{r1}, s{sbase+4}")
        for r in range(1, 4):
            a(f"v_add_f32 v{r0}, s{sbase+r}, v{r0}")
            a(f"v_add_f32 v{r1}, s{sbase+4+r}, v{r1}")

    for e in range(1, 10):
        for b, S in ((0, S0), (1, S1)):
            if e == 1:
                a(f"v_add_f32 v{S}, v{F+10*b}, v{F+10*b+1}")
            else:
                a(f"v_add_f32 v{S}, v{S}, v{F+10*b+e}")
    wave_sum2(S0, S1, 88)
    a(f"s_mov_b32 s14, 0x{f32bits(1.0/640):08x}")
    a(f"v_mul_f32 v{S0}, s14, v{S0}")
    a(f"v_mul_f32 v{S1}, s14, v{S1}")
    for b, S in ((0, S0), (1, S1)):
        for e in range(10):
            a(f"v_sub_f32 v{F+10*b+e}, v{F+10*b+e}, v{S}")
    for e in range(10):
        for b, Q in ((0, Q0), (1, Q1)):
            if e == 0:
                a(f"v_mul_f32 v{Q}, v{F+10*b}, v{F+10*b}")
            else:
                a(f"v_fma_f32 v{Q}, v{F+10*b+e}, v{F+10*b+e}, v{Q}")
    wave_sum2(Q0, Q1, 88)
    a(f"v_mul_f32 v{Q0}, s14, v{Q0}")
    a(f"v_mul_f32 v{Q1}, s14, v{Q1}")
    a(f"v_cvt_pk_bf16_f32 v{t0}, v{S0}, v{S1}")
    a(f"v_cvt_pk_bf16_f32 v{t1}, v{Q0}, v{Q1}")
    a(f"v_lshlrev_b32 v{S0}, 16, v{t0}")
    a(f"v_and_b32 v{S1}, s15, v{t0}")
    a(f"v_lshlrev_b32 v{Q0}, 16, v{t1}")
    a(f"v_and_b32 v{Q1}, s15, v{t1}")
    a(f"s_mov_b32 s14, 0x{f32bits(1e-5):08x}")
    a(f"v_add_f32 v{Q0}, s14, v{Q0}")
    a(f"v_add_f32 v{Q1}, s14, v{Q1}")
    a(f"v_cvt_pk_bf16_f32 v{t1}, v{Q0}, v{Q1}")
    a(f"v_lshlrev_b32 v{Q0}, 16, v{t1}")
    a(f"v_and_b32 v{Q1}, s15, v{t1}")
    a(f"v_sqrt_f32 v{Q0}, v{Q0}")
    a(f"v_sqrt_f32 v{Q1}, v{Q1}")
    a(f"v_cvt_pk_bf16_f32 v{t1}, v{Q0}, v{Q1}")
    a(f"v_lshlrev_b32 v{Q0}, 16, v{t1}")
    a(f"v_and_b32 v{Q1}, s15, v{t1}")
    a(f"v_rcp_f32 v{Q0}, v{Q0}")
    a(f"v_rcp_f32 v{Q1}, v{Q1}")
    XH = F
    MS = [S0, S1]; RS = [Q0, Q1]
    a(f"s_waitcnt vmcnt({4 if LATEWO else 12})")

    def each(fn):
        for i in range(5):
            for b in range(2):
                fn(XR + 2*i + b, b, i)
    each(lambda r, b, i: a(f"v_lshlrev_b32 v{r}, 16, v{r}"))
    each(lambda r, b, i: a(f"v_sub_f32 v{r}, v{r}, v{MS[b]}"))
    each(lambda r, b, i: a(f"v_cvt_pk_bf16_f32 v{r}, v{r}, 0"))
    each(lambda r, b, i: a(f"v_lshlrev_b32 v{r}, 16, v{r}"))
    each(lambda r, b, i: a(f"v_mul_f32 v{r}, v{r}, v{RS[b]}"))
    each(lambda r, b, i: a(f"v_cvt_pk_bf16_f32 v{r}, v{r}, 0"))
    each(lambda r, b, i: a(f"v_lshlrev_b32 v{XH+2*i+b}, 16, v{r}"))
    AQ = ACC; AH = ACC + 16
    for i in range(5):
        for b in range(2):
            for d in range(4):
                for hl in range(2):
                    acc = AQ + 8*b + 2*d + hl
                    xs = (XR if hl == 0 else XH) + 2*i + b
                    s2 = "0" if i == 0 else f"v{acc}"
                    a(f"v_dot2_f32_bf16 v{acc}, v{WQ+4*i+d}, v{xs}, {s2}")
    for i in range(5):
        for b in range(2):
            for d in range(2):
                for hl in range(2):
                    acc = AH + 4*b + 2*d + hl
                    xs = (XR if hl == 0 else XH) + 2*i + b
                    s2 = "0" if i == 0 else f"v{acc}"
                    a(f"v_dot2_f32_bf16 v{acc}, v{W1+2*i+d}, v{xs}, {s2}")

    def reduce16(base):
        for k in range(8):
            a(f"v_permlane32_swap_b32 v{base+k}, v{base+k+8}")
        for k in range(8):
            a(f"v_add_f32 v{base+k}, v{base+k}, v{base+k+8}")
        for k in range(4):
            a(f"v_permlane16_swap_b32 v{base+k}, v{base+k+4}")
        for k in range(4):
            a(f"v_add_f32 v{base+k}, v{base+k}, v{base+k+4}")

    reduce16(AQ)
    for k in range(4):
        a(f"v_permlane32_swap_b32 v{AH+k}, v{AH+k+4}")
    for k in range(4):
        a(f"v_add_f32 v{AH+k}, v{AH+k}, v{AH+k+4}")
    for k in range(2):
        a(f"v_permlane16_swap_b32 v{AH+k}, v{AH+k+2}")
    for k in range(2):
        a(f"v_add_f32 v{AH+k}, v{AH+k}, v{AH+k+2}")
    a(f"v_lshrrev_b32 v2, 1, v{RG}")
    a(f"v_and_b32 v3, 1, v{RG}")
    a(f"v_lshlrev_b32 v{TMP}, 9, v2")
    a(f"v_lshl_add_u32 v{TMP}, v{C}, 5, v{TMP}")
    a(f"v_lshl_add_u32 v{TMP}, v3, 4, v{TMP}")
    a("s_lshl_b32 s10, s3, 10")
    a(f"v_add_u32 v{TMP}, s10, v{TMP}")
    a(f"ds_write_b128 v{TMP}, v[{AQ}:{AQ+3}] offset:{L_QP}")
    a(f"v_lshlrev_b32 v{TMP+1}, 8, v2")
    a(f"v_lshl_add_u32 v{TMP+1}, v{C}, 4, v{TMP+1}")
    a(f"v_lshl_add_u32 v{TMP+1}, v3, 3, v{TMP+1}")
    a("s_lshl_b32 s10, s3, 9")
    a(f"v_add_u32 v{TMP+1}, s10, v{TMP+1}")
    a(f"ds_write_b64 v{TMP+1}, v[{AH}:{AH+1}] offset:{L_HP}")
    VY = 31
    a("s_movk_i32 s10, 320")
    a(f"v_mul_u32_u24 v{VY}, s10, v2")
    a(f"v_lshl_add_u32 v{VY}, v{C}, 5, v{VY}")
    a(f"v_lshl_add_u32 v{VY}, v3, 4, v{VY}")
    a("s_mul_i32 s10, s3, 640")
    a(f"v_add_u32 v{VY}, s10, v{VY}")
    VZ = 12
    a(f"v_mov_b32 v{VZ}, 0")
    lds_arrive(C1, VZ, 3)
    lds_spin(C1, 4, VZ, 3)
    stamp(1)

    G = TMP

    def check_tags(regs, lbl_retry_cnt, lbl_loop, lbl_done):
        tags_bad(regs)
        a(f"s_cbranch_scc1 {lbl_done}")
        a(f"s_sub_u32 {lbl_retry_cnt}, {lbl_retry_cnt}, 1")
        a(f"s_cmp_eq_u32 {lbl_retry_cnt}, 0")
        a(f"s_cbranch_scc0 {lbl_loop}")

    def preperm():
        a("s_mov_b32 s10, 0x05040100")
        a("s_mov_b32 s11, 0x07060302")
        for q in range(2):
            for d in range(4):
                r0, r1 = W2 + 8*q + d, W2 + 8*q + 4 + d
                a(f"v_perm_b32 v{LO2+4*q+d}, v{r1}, v{r0}, s10")
                a(f"v_perm_b32 v{r1}, v{r1}, v{r0}, s11")
        if not LATEWO:
            preperm_wo()

    def preperm_wo():
        a("s_mov_b32 s10, 0x05040100")
        a("s_mov_b32 s11, 0x07060302")
        for e in range(8):
            for t in range(4):
                r0, r1 = WO + 8*t + (e >> 1), WO + 8*t + 4 + (e >> 1)
                a(f"v_perm_b32 v{BOP+4*e+t}, v{r1}, v{r0}, s{10 + (e & 1)}")

    a("s_cmp_eq_u32 s3, 3")
    a("s_cbranch_scc1 L_h1_gather")
    if 'F' in opts.abl:
        a("s_cmp_eq_u32 s3, 2")
        a("s_cbranch_scc0 L_now2skip")
        a("s_waitcnt vmcnt(0)")
        preperm()
        a("s_branch L_b3")
        a.label("L_now2skip")
    a(f"v_lshlrev_b32 v2, 3, v0")
    a("s_cmp_eq_u32 s3, 2")
    a("s_cbranch_scc1 L_h1_pubh")
    a("s_lshl_b32 s10, s3, 9")
    a(f"v_add_u32 v2, s10, v2")
    for w in range(4):
        a(f"ds_read_b64 v[{G+4+2*w}:{G+5+2*w}], v2 offset:{L_QP + w*1024}")
    a("s_lshl_b32 s11, s3, 10")
    a("s_branch L_h1_pub")
    a.label("L_h1_pubh")
    for w in range(4):
        a(f"ds_read_b64 v[{G+4+2*w}:{G+5+2*w}], v2 offset:{L_HP + w*512}")
    a("s_movk_i32 s11, 2048")
    a.label("L_h1_pub")
    a("s_mul_i32 s10, s6, 3072")
    a("s_add_u32 s10, s10, s11")
    a(f"v_lshl_add_u32 v3, v0, 4, s10")
    set_tag(G)
    a("s_waitcnt lgkmcnt(0)")
    a(f"v_add_f32 v{G}, v{G+4}, v{G+6}")
    a(f"v_add_f32 v{G+1}, v{G+5}, v{G+7}")
    a(f"v_add_f32 v{G+8}, v{G+8}, v{G+10}")
    a(f"v_add_f32 v{G+9}, v{G+9}, v{G+11}")
    a(f"v_add_f32 v{G}, v{G}, v{G+8}")
    a(f"v_add_f32 v{G+1}, v{G+1}, v{G+9}")
    if opts.h1f:
        a(f"s_mov_b32 s10, {FOFF}")
        a(f"buffer_store_dwordx4 v[{G}:{G+3}], v3, s[56:59], s10 offen")
    a(f"buffer_store_dwordx4 v[{G}:{G+3}], v3, s[56:59], 0 offen sc1")
    a(f"s_mul_i32 s10, s4, {GSTR}")
    a("s_lshl_b32 s11, s3, 6")
    a("s_add_u32 s10, s10, s11")
    a("s_lshl_b32 s11, s5, 3")
    a("s_add_u32 s10, s10, s11")
    a(f"s_add_u32 s10, s10, {WS_H1F}")
    a("v_mov_b32 v3, s10")
    a("s_mov_b64 exec, 1")
    a(f"buffer_store_dwordx2 v[{G+2}:{G+3}], v3, s[56:59], 0 offen sc1")
    a("s_mov_b64 exec, -1")
    a("s_cmp_eq_u32 s3, 2")
    a("s_cbranch_scc1 L_h1_gather")
    a(f"s_waitcnt vmcnt({3 if opts.h1f else 2})")
    preperm()
    if opts.fast:
        a("s_cmp_lg_u32 s3, 0")
        a("s_cbranch_scc1 L_nopre")
        for r in range(4):
            a(f"v_mov_b32 v{G+r}, 0")
        a("s_lshl_b32 s10, s6, 10")
        a(f"s_add_u32 s10, s10, {WS_H2 + FOFF}")
        a(f"v_lshl_add_u32 v3, v0, 4, s10")
        if opts.preld:
            a(f"buffer_load_dwordx4 v[{G}:{G+3}], v3, s[56:59], 0 offen")
        else:
            a(f"buffer_store_dwordx4 v[{G}:{G+3}], v3, s[56:59], 0 offen")
        a(f"s_mul_i32 s10, s4, {GSTR}")
        a("s_lshl_b32 s11, s5, 7")
        a("s_add_u32 s10, s10, s11")
        a(f"s_add_u32 s10, s10, {WS_ML + FOFF}")
        a(f"v_lshl_add_u32 v2, v0, 4, s10")
        a("s_mov_b64 exec, 0xff")
        if opts.preld:
            a(f"buffer_load_dwordx4 v[{G+4}:{G+7}], v2, s[56:59], 0 offen")
        else:
            a(f"buffer_store_dwordx4 v[{G}:{G+3}], v2, s[56:59], 0 offen")
        a("s_mov_b64 exec, -1")
        if opts.preld:
            a("s_waitcnt vmcnt(0)")
        a.label("L_nopre")
    stamp(2)
    a("s_branch L_b3")

    a.label("L_h1_gather")
    a("s_lshl_b32 s10, s7, 10")
    a("s_cmp_eq_u32 s3, 2")
    a("s_cselect_b32 s10, 2048, s10")
    a("s_mul_i32 s11, s4, 24576")
    a("s_add_u32 s10, s10, s11")
    a(f"v_lshl_add_u32 v3, v0, 4, s10")
    for jj in range(1, 8):
        a(f"s_mov_b32 s{88+jj}, {jj*3072}")
    a("s_cmp_eq_u32 s3, 2")
    a("s_cbranch_scc1 L_pp2")
    a("s_waitcnt vmcnt(0)")
    a("s_branch L_pp")
    a.label("L_pp2")
    a(f"s_waitcnt vmcnt({3 if opts.h1f else 2})")
    a.label("L_pp")
    preperm()
    a("s_cmp_eq_u32 s3, 2")
    a("s_cselect_b32 s10, 2, s7")
    a("s_lshl_b32 s10, s10, 6")
    a(f"s_mul_i32 s11, s4, {GSTR}")
    a("s_add_u32 s10, s10, s11")
    a(f"s_add_u32 s10, s10, {WS_H1F}")
    if "h" not in opts.abl:
        hint_poll("hint1", 10, 0)
    if "g" not in opts.abl:
        a(f"s_mov_b32 s12, {opts.maxpoll}")
        if opts.h1f:
            a(f"v_add_u32 v3, {FOFF}, v3")
            a(f"s_mov_b32 s13, {FOFF}")
        a.label("L_poll1")
        for jj in range(8):
            so = "0" if jj == 0 else f"s{88+jj}"
            a(f"buffer_load_dwordx4 v[{G+4*jj}:{G+4*jj+3}], v3, s[56:59], {so} offen sc1")
        a("s_waitcnt vmcnt(0)")
        if opts.h1f:
            tags_bad([G+4*jj for jj in range(8)])
            a("s_cbranch_scc1 L_poll1_done")
            a("v_subrev_u32 v3, s13, v3")
            a("s_mov_b32 s13, 0")
            a("s_sub_u32 s12, s12, 1")
            a("s_cmp_eq_u32 s12, 0")
            a("s_cbranch_scc0 L_poll1")
        elif "h" not in opts.abl:
            check_tags([G+4*jj for jj in range(8)], "s12", "L_poll1", "L_poll1_done")
        a.label("L_poll1_done")
    stamp(2)
    for e in range(2):
        a(f"v_add_f32 v{G+e}, v{G+e}, v{G+4+e}")
        a(f"v_add_f32 v{G+8+e}, v{G+8+e}, v{G+12+e}")
        a(f"v_add_f32 v{G+16+e}, v{G+16+e}, v{G+20+e}")
        a(f"v_add_f32 v{G+24+e}, v{G+24+e}, v{G+28+e}")
    for e in range(2):
        a(f"v_add_f32 v{G+e}, v{G+e}, v{G+8+e}")
        a(f"v_add_f32 v{G+16+e}, v{G+16+e}, v{G+24+e}")
    for e in range(2):
        a(f"v_add_f32 v{G+e}, v{G+e}, v{G+16+e}")
    a(f"v_lshlrev_b32 v2, 2, v0")
    a("s_cmp_eq_u32 s3, 2")
    a("s_cbranch_scc0 L_qw")
    a(f"v_max_f32 v{G}, 0, v{G}")
    a(f"v_max_f32 v{G+1}, 0, v{G+1}")
    a(f"v_add_u32 v2, {L_H - L_Q}, v2")
    a.label("L_qw")
    a(f"v_cvt_pk_bf16_f32 v{G}, v{G}, v{G+1}")
    a(f"ds_write_b32 v2, v{G} offset:{L_Q}")
    a("v_mov_b32 v2, s68")
    a("v_mov_b32 v3, s69")
    a(f"ds_write_b64 v{VZ}, v[2:3] offset:{L_TAG}")
    a("s_cmp_eq_u32 s3, 2")
    a(f"s_movk_i32 s10, {QF}")
    a(f"s_movk_i32 s11, {HF}")
    a(f"s_cselect_b32 s10, s11, s10")
    a("v_mov_b32 v2, s10")
    a("v_mov_b32 v3, 1")
    a(f"ds_write_b32 v2, v3")
    a.label("L_b3")
    if 'F' in opts.abl:
        a("s_branch L_noy2")
    lds_spin(HF, 1, VZ, 3)
    a("s_lshl_b32 s10, s3, 5")
    a(f"v_lshl_add_u32 v2, v{RG}, 3, s10")
    a(f"ds_read_b64 v[{TMP}:{TMP+1}], v2 offset:{L_H}")
    a(f"ds_read_b64 v[{TMP+2}:{TMP+3}], v2 offset:{L_H+128}")
    a("s_waitcnt lgkmcnt(0)")
    for q in range(2):
        for b in range(2):
            for d in range(4):
                for hl in range(2):
                    acc = AY + 8*b + 2*d + hl
                    w = (LO2 + 4*q + d) if hl == 0 else (W2 + 8*q + 4 + d)
                    s2 = "0" if q == 0 else f"v{acc}"
                    a(f"v_dot2_f32_bf16 v{acc}, v{w}, v{TMP+2*b+q}, {s2}")
    reduce16(AY)
    a(f"s_mov_b32 s10, {LANES10}")
    a(f"s_mov_b32 s11, {LANES10}")
    a("s_mov_b64 exec, s[10:11]")
    a(f"ds_write_b128 v{VY}, v[{AY}:{AY+3}] offset:{L_Y2P}")
    a("s_mov_b64 exec, -1")
    lds_arrive(C4, VZ, 3, rtn=True)
    a("s_cmp_eq_u32 s10, 3")
    a("s_cbranch_scc0 L_noy2")
    a(f"v_lshlrev_b32 v2, 3, v0")
    for w in range(4):
        a(f"ds_read_b64 v[{TMP+8+2*w}:{TMP+9+2*w}], v2 offset:{L_Y2P + w*640}")
    for w in range(4):
        a(f"ds_read_b64 v[{TMP+16+2*w}:{TMP+17+2*w}], v2 offset:{L_Y2P + w*640 + 512}")
    def pair_addr(vdst, vp, vt):
        a(f"v_lshrrev_b32 v{vdst}, 2, v{vp}")
        a(f"v_cmp_lt_u32 vcc, 39, v{vp}")
        a(f"v_mov_b32 v{vt}, 0")
        a(f"v_cndmask_b32 v{vt}, v{vt}, v{TMP+31}, vcc")
        a(f"v_add_u32 v{vdst}, v{vdst}, v{vt}")
        a(f"v_lshlrev_b32 v{vdst}, 11, v{vdst}")
        a(f"v_and_b32 v{vt}, 2, v{vp}")
        a(f"v_lshl_add_u32 v{vdst}, v{vt}, 9, v{vdst}")
        a(f"v_and_b32 v{vt}, 1, v{vp}")
        a(f"v_lshl_add_u32 v{vdst}, v{vt}, 4, v{vdst}")
        a(f"v_add_u32 v{vdst}, s10, v{vdst}")
    if opts.y2lay:
        a("s_mul_i32 s10, s4, 10240")
        a("s_mul_i32 s11, s5, 1280")
        a("s_add_u32 s10, s10, s11")
        a(f"s_add_u32 s10, s10, {WS_H3B}")
        a("v_lshl_add_u32 v3, v0, 4, s10")
        a("v_add_u32 v2, 1024, v3")
    else:
        a("s_mul_i32 s10, s5, 20480")
        a("s_lshl_b32 s11, s4, 5")
        a("s_add_u32 s10, s10, s11")
        a(f"s_add_u32 s10, s10, {WS_H3B}")
        a(f"v_mov_b32 v{TMP+31}, 70")
        pair_addr(3, 0, TMP + 30)
        a(f"v_add_u32 v{TMP+29}, 64, v0")
        pair_addr(2, TMP + 29, TMP + 30)
    set_tag(TMP)
    set_tag(TMP+4)
    a("s_waitcnt lgkmcnt(0)")
    for e in range(2):
        a(f"v_add_f32 v{TMP+8+e}, v{TMP+8+e}, v{TMP+10+e}")
        a(f"v_add_f32 v{TMP+12+e}, v{TMP+12+e}, v{TMP+14+e}")
        a(f"v_add_f32 v{TMP+e}, v{TMP+8+e}, v{TMP+12+e}")
    if 'y' not in opts.abl:
        a(f"buffer_store_dwordx4 v[{TMP}:{TMP+3}], v3, s[56:59], 0 offen sc1")
    for e in range(2):
        a(f"v_add_f32 v{TMP+16+e}, v{TMP+16+e}, v{TMP+18+e}")
        a(f"v_add_f32 v{TMP+20+e}, v{TMP+20+e}, v{TMP+22+e}")
        a(f"v_add_f32 v{TMP+4+e}, v{TMP+16+e}, v{TMP+20+e}")
    a("s_mov_b64 exec, 0xffff")
    if 'y' not in opts.abl:
        a(f"buffer_store_dwordx4 v[{TMP+4}:{TMP+7}], v2, s[56:59], 0 offen sc1")
    a("s_mov_b64 exec, -1")
    a.label("L_noy2")
    stamp(3)
    MASK = 120
    AOP = 136
    ACC2 = 96
    YR = 104
    VPH, VYW, VY0, VY1 = 13, 14, 15, 16
    GY = 20
    a("v_lshrrev_b32 v2, 1, v0")
    a("v_and_b32 v2, 7, v2")
    for q in range(4):
        for h in range(2):
            a(f"v_cmp_eq_u32 vcc, {2*q+h}, v2")
            a(f"v_cndmask_b32 v{MASK+2*q+h}, 0, -1, vcc")
    a("v_and_b32 v3, 1, v0")
    a("v_lshlrev_b32 v3, 12, v3")
    a("v_lshrrev_b32 v4, 1, v2")
    a("v_lshl_add_u32 v3, v4, 10, v3")
    a(f"v_lshl_add_u32 v3, v{RG}, 6, v3")
    a("v_and_b32 v4, 1, v2")
    a("v_lshl_add_u32 v3, v4, 5, v3")
    a("s_lshl_b32 s10, s4, 13")
    a("s_lshl_b32 s11, s3, 8")
    a("s_add_u32 s10, s10, s11")
    a(f"s_add_u32 s10, s10, {WS_H2}")
    a(f"v_add_u32 v{VPH}, s10, v3")
    a("s_lshl_b32 s10, s3, 10")
    a(f"v_lshl_add_u32 v{VYW}, v0, 4, s10")
    a(f"v_lshlrev_b32 v3, 11, v{C}")
    a(f"v_lshrrev_b32 v4, 1, v{RG}")
    a("v_lshl_add_u32 v3, v4, 10, v3")
    a(f"v_and_b32 v4, 1, v{RG}")
    a("v_lshl_add_u32 v3, v4, 4, v3")
    a("s_mul_i32 s10, s5, 20480")
    a("s_lshl_b32 s11, s4, 5")
    a("s_add_u32 s10, s10, s11")
    a(f"s_add_u32 s10, s10, {WS_H3A}")
    a(f"v_add_u32 v{VY0}, s10, v3")
    a(f"v_lshlrev_b32 v{VY1}, 4, v0")
    if opts.y1lay:
        a("s_mul_i32 s10, s4, 10240")
        a("s_mul_i32 s11, s5, 1280")
        a("s_add_u32 s10, s10, s11")
        a(f"s_add_u32 s10, s10, {WS_H3A}")
        a(f"v_lshl_add_u32 v{VY0}, v0, 4, s10")
        a("v_and_b32 v3, 3, v0")
        a("v_lshrrev_b32 v4, 2, v0")
        a("v_and_b32 v4, 15, v4")
        a("v_lshl_add_u32 v3, v3, 4, v4")
        a(f"v_lshlrev_b32 v{VY1}, 4, v3")
    set_tag(GY)
    set_tag(GY + 4)
    a("s_cmp_lg_u32 s3, 0")
    a("s_cbranch_scc1 L_noml")
    lds_spin(C2, 8, VZ, 3, sleep=1)
    a(f"ds_read_b128 v[{TMP}:{TMP+3}], v{VZ} offset:{L_ML}")
    a(f"ds_read_b128 v[{TMP+4}:{TMP+7}], v{VZ} offset:{L_ML+16}")
    a(f"ds_read_b128 v[{TMP+8}:{TMP+11}], v{VZ} offset:{L_ML+32}")
    a(f"ds_read_b128 v[{TMP+12}:{TMP+15}], v{VZ} offset:{L_ML+48}")
    GM = TMP + 16
    set_tag(GM)
    a(f"s_mul_i32 s10, s4, {GSTR}")
    a("s_lshl_b32 s11, s5, 7")
    a("s_add_u32 s10, s10, s11")
    a(f"s_add_u32 s10, s10, {WS_ML}")
    a("v_mov_b32 v3, s10")
    a(f"s_mov_b32 s14, 0x{f32bits(LOG2E):08x}")
    a("s_waitcnt lgkmcnt(0)")
    M = GM
    a(f"v_max3_f32 v{M}, v{TMP}, v{TMP+1}, v{TMP+2}")
    a(f"v_max3_f32 v{M}, v{M}, v{TMP+3}, v{TMP+4}")
    a(f"v_max3_f32 v{M}, v{M}, v{TMP+5}, v{TMP+6}")
    a(f"v_max_f32 v{M}, v{M}, v{TMP+7}")
    E8 = TMP + 24
    for w in range(8):
        a(f"v_sub_f32 v{E8+w}, v{TMP+w}, v{M}")
    for w in range(8):
        a(f"v_mul_f32 v{E8+w}, s14, v{E8+w}")
    for w in range(8):
        a(f"v_exp_f32 v{E8+w}, v{E8+w}")
    a("s_mov_b64 exec, 1")
    a(f"ds_write_b128 v{VZ}, v[{E8}:{E8+3}] offset:{L_F}")
    a(f"ds_write_b128 v{VZ}, v[{E8+4}:{E8+7}] offset:{L_F+16}")
    a("v_mov_b32 v4, 1")
    a(f"ds_write_b32 v{VZ}, v4 offset:{FF}")
    a("s_mov_b64 exec, -1")
    Ls = GM + 1
    a(f"v_mul_f32 v{Ls}, v{E8}, v{TMP+8}")
    for w in range(1, 8):
        a(f"v_fma_f32 v{Ls}, v{E8+w}, v{TMP+8+w}, v{Ls}")
    a("s_mov_b64 exec, 1")
    if opts.fast:
        a(f"s_mov_b32 s10, {FOFF}")
        a(f"buffer_store_dwordx4 v[{GM}:{GM+3}], v3, s[56:59], s10 offen")
    a(f"buffer_store_dwordx4 v[{GM}:{GM+3}], v3, s[56:59], 0 offen sc1")
    a("s_mov_b64 exec, -1")
    if opts.fast and opts.reclaim:
        for r in range(4):
            a(f"v_mov_b32 v{TMP+r}, 0")
        a("s_lshl_b32 s10, s6, 10")
        a(f"s_add_u32 s10, s10, {WS_H2 + FOFF}")
        a(f"v_lshl_add_u32 v3, v0, 4, s10")
        a(f"buffer_store_dwordx4 v[{TMP}:{TMP+3}], v3, s[56:59], 0 offen")
    a.label("L_noml")
    if "t" in opts.abl:
        a("s_branch L_fin")
    GP = TMP + 28
    VFS = 17
    VML = 18
    a("v_and_b32 v3, 1, v0")
    a("v_lshlrev_b32 v3, 9, v3")
    a("v_lshrrev_b32 v4, 2, v0")
    a("v_and_b32 v4, 3, v4")
    a("v_lshl_add_u32 v3, v4, 7, v3")
    a(f"s_mul_i32 s10, s4, {GSTR}")
    a(f"s_add_u32 s10, s10, {WS_ML}")
    a(f"v_add_u32 v{VML}, s10, v3")
    a(f"s_mul_i32 s9, s4, {GSTR}")
    a(f"s_add_u32 s9, s9, {WS_H2F}")
    a("s_lshl_b32 s10, s5, 3")
    a("s_add_u32 s10, s10, s9")
    a("v_mov_b32 v19, s10")
    def calc_f():
        a(f"v_max_f32_dpp v5, v{GP}, v{GP} row_ror:4 row_mask:0xf bank_mask:0xf")
        a(f"v_max_f32_dpp v5, v5, v5 row_ror:8 row_mask:0xf bank_mask:0xf")
        a(f"v_sub_f32 v6, v{GP}, v5")
        a(f"v_mul_f32 v6, s14, v6")
        a(f"v_exp_f32 v6, v6")
        a(f"v_mul_f32 v7, v6, v{GP+1}")
        a(f"v_add_f32_dpp v7, v7, v7 row_ror:4 row_mask:0xf bank_mask:0xf")
        a(f"v_add_f32_dpp v7, v7, v7 row_ror:8 row_mask:0xf bank_mask:0xf")
        a(f"v_rcp_f32 v7, v7")
        a(f"v_mul_f32 v{VFS}, v6, v7")
    SRC = "s13"
    if not opts.fast:
        lds_spin(C6, 8, VZ, 3, sleep=2)
    if opts.fast:
        lds_spin(FF, 1, VZ, 3, sleep=4)
        if LATEWO:
            lds_spin(HG, opts.wcnt, VZ, 3, sleep=2)
            a("s_movk_i32 s12, 5120")
            issue_wo(1)
        a(f"s_mov_b32 {SRC}, {FOFF}")
        a(f"s_mov_b32 s12, {opts.maxpoll}")
        a.label("L_pollml")
        a(f"buffer_load_dwordx4 v[{GP}:{GP+3}], v{VML}, s[56:59], {SRC} offen sc1")
        a("s_waitcnt vmcnt(0)")
        tags_bad([GP])
        a("s_cbranch_scc1 L_pollml_done")
        a(f"s_sleep {opts.mlsleep}")
        a(f"s_cmp_lt_u32 s12, {opts.maxpoll - opts.nf}")
        a(f"s_cselect_b32 s10, {FOFF}, 0")
        a(f"s_xor_b32 {SRC}, {SRC}, s10")
        a("s_sub_u32 s12, s12, 1")
        a("s_cmp_lg_u32 s12, 0")
        a("s_cbranch_scc1 L_pollml")
        a.label("L_pollml_done")
        a(f"s_mov_b32 s14, 0x{f32bits(LOG2E):08x}")
        calc_f()
        if LATEWO:
            preperm_wo()
        lds_spin(C6, 8, VZ, 3, sleep=1)
        a(f"s_mov_b32 {SRC}, {FOFF}")
    else:
        a("s_cmp_lg_u32 s3, 0")
        a("s_cbranch_scc1 L_nohint0")
        a("s_mov_b64 exec, 1")
        a(f"buffer_store_dwordx2 v[{GY+2}:{GY+3}], v19, s[56:59], 0 offen sc1")
        a("s_mov_b64 exec, -1")
        a.label("L_nohint0")
        a(f"buffer_load_dwordx4 v[{GP}:{GP+3}], v{VML}, s[56:59], 0 offen sc1")
        a("s_cmp_lg_u32 s3, 0")
        a("s_cbranch_scc1 L_nohint")
        hint_poll("hint2", 9, 1)
        a("v_mov_b32 v3, 1")
        a(f"ds_write_b32 v{VZ}, v3 offset:{HG}")
        a.label("L_nohint")
        lds_spin(HG, 1, VZ, 3)
        a(f"s_mov_b32 s12, {opts.maxpoll}")
        a.label("L_pollml")
        a("s_waitcnt vmcnt(0)")
        tags_bad([GP])
        a("s_cbranch_scc1 L_pollml_done")
        a("s_sleep 2")
        a(f"buffer_load_dwordx4 v[{GP}:{GP+3}], v{VML}, s[56:59], 0 offen sc1")
        a("s_sub_u32 s12, s12, 1")
        a("s_cmp_lg_u32 s12, 0")
        a("s_cbranch_scc1 L_pollml")
        a.label("L_pollml_done")
    stamp(4)
    a(f"s_mov_b32 s9, {640 if opts.y1lay else 160*1024}")
    a(f"s_mov_b32 s14, 0x{f32bits(LOG2E):08x}")
    n2 = opts.npoll2
    assert n2 <= (4 if opts.fast else 3)
    PS = [[TMP + 8*k, TMP + 8*k + 4] for k in range(n2)]

    def issue2(k):
        so = SRC if opts.fast else "0"
        a(f"buffer_load_dwordx4 v[{PS[k][0]}:{PS[k][0]+3}], v{VPH}, s[56:59], {so} offen sc1")
        a(f"buffer_load_dwordx4 v[{PS[k][1]}:{PS[k][1]+3}], v{VPH}, s[56:59], {so} offen offset:16 sc1")
        if opts.fast:
            a(f"s_cmp_lt_u32 s12, {opts.maxpoll - opts.nf}")
            a(f"s_cselect_b32 s10, {FOFF}, 0")
            a(f"s_xor_b32 {SRC}, {SRC}, s10")

    O4 = [4, 5, 6, 7]
    pipelined_poll("pollH2", n2, PS, issue2, opts.stag2, O4, after_issue=(None if opts.fast else calc_f))
    stamp(5)
    for r in O4:
        a(f"v_mul_f32 v{r}, v{VFS}, v{r}")
    for ctrl in ["row_ror:4", "row_ror:8"]:
        for r in O4:
            a(f"v_add_f32_dpp v{r}, v{r}, v{r} {ctrl} row_mask:0xf bank_mask:0xf")
    D0, D1 = 2, 3
    a(f"v_cvt_pk_bf16_f32 v{D0}, v{O4[0]}, v{O4[1]}")
    a(f"v_cvt_pk_bf16_f32 v{D1}, v{O4[2]}, v{O4[3]}")
    for q in range(4):
        a(f"v_and_b32 v{AOP+4*q}, v{D0}, v{MASK+2*q}")
        a(f"v_and_b32 v{AOP+4*q+1}, v{D1}, v{MASK+2*q}")
        a(f"v_and_b32 v{AOP+4*q+2}, v{D0}, v{MASK+2*q+1}")
        a(f"v_and_b32 v{AOP+4*q+3}, v{D1}, v{MASK+2*q+1}")
    for q in range(4):
        for od in range(2):
            acc = ACC2 + 4*od
            c = "0" if q == 0 else f"v[{acc}:{acc+3}]"
            e = 2*q + od
            a(f"v_mfma_f32_16x16x32_bf16 v[{acc}:{acc+3}], v[{AOP+4*q}:{AOP+4*q+3}], v[{BOP+4*e}:{BOP+4*e+3}], {c}")
    YW = YR
    a(f"v_add_f32 v{YW}, v{ACC2}, v{ACC2+2}")
    a(f"v_add_f32 v{YW+1}, v{ACC2+4}, v{ACC2+6}")
    a(f"v_add_f32 v{YW+2}, v{ACC2+1}, v{ACC2+3}")
    a(f"v_add_f32 v{YW+3}, v{ACC2+5}, v{ACC2+7}")
    a(f"ds_write_b128 v{VYW}, v[{YW}:{YW+3}] offset:{L_Y1P}")
    lds_arrive(C5, VZ, 3, rtn=True)
    stamp(6)
    a("s_cmp_eq_u32 s10, 3")
    a("s_cbranch_scc0 L_fin")
    for w in range(4):
        a(f"ds_read_b128 v[{YR+4*w}:{YR+4*w+3}], v{VY1} offset:{L_Y1P + w*1024}")
    if opts.y1lay:
        a("s_mov_b32 s10, -1")
        a("s_mov_b32 s11, 0xff")
    else:
        a(f"s_mov_b32 s10, {LANES10}")
        a(f"s_mov_b32 s11, {LANES10}")
    a("s_waitcnt lgkmcnt(2)")
    for e in range(4):
        a(f"v_add_f32 v{YR+e}, v{YR+e}, v{YR+4+e}")
    a("s_waitcnt lgkmcnt(0)")
    for e in range(4):
        a(f"v_add_f32 v{YR+8+e}, v{YR+8+e}, v{YR+12+e}")
    a(f"v_add_f32 v{GY}, v{YR}, v{YR+8}")
    a(f"v_add_f32 v{GY+1}, v{YR+1}, v{YR+9}")
    a(f"v_add_f32 v{GY+4}, v{YR+2}, v{YR+10}")
    a(f"v_add_f32 v{GY+5}, v{YR+3}, v{YR+11}")
    a("s_mov_b64 exec, s[10:11]")
    a(f"buffer_store_dwordx4 v[{GY}:{GY+3}], v{VY0}, s[56:59], 0 offen sc1")
    a(f"buffer_store_dwordx4 v[{GY+4}:{GY+7}], v{VY0}, s[56:59], s9 offen sc1")
    a("s_mov_b64 exec, -1")
    stamp(7)
    a.label("L_fin")
    if stamps:
        a("s_mul_i32 s90, s6, 12")
        a("s_add_u32 s90, s90, s3")
        a("s_lshl_b32 s90, s90, 6")
        a(f"s_add_u32 s90, s90, {WS_STAMP}")
        a("v_mov_b32 v2, s90")
        a("s_waitcnt lgkmcnt(0)")
        for i in range(16):
            a(f"v_mov_b32 v{8+i}, s{ST0+i}")
        a("s_mov_b64 exec, 1")
        for q in range(4):
            a(f"buffer_store_dwordx4 v[{8+4*q}:{11+4*q}], v2, s[56:59], 0 offen offset:{16*q}")
    a.label("L_end")
    a("s_endpgm")

    nv = 168
    out = HEADER
    out += f"; @launch grid=(256,1,1) block=(768,1,1) lds={L_TOTAL}\n"
    out += '.amdgcn_target "amdgcn-amd-amdhsa--gfx950"\n.text\n'
    out += f".globl {KNAME}\n.p2align 8\n.type {KNAME},@function\n{KNAME}:\n"
    out += "\n".join(a.l) + "\n"
    out += f""".section .rodata,"a"
.p2align 6
.amdhsa_kernel {KNAME}
  .amdhsa_next_free_vgpr {nv}
  .amdhsa_next_free_sgpr 96
  .amdhsa_accum_offset {nv}
  .amdhsa_group_segment_fixed_size 0
  .amdhsa_kernarg_size 88
  .amdhsa_user_sgpr_count 2
  .amdhsa_user_sgpr_kernarg_segment_ptr 1
  .amdhsa_system_sgpr_workgroup_id_x 1
.end_amdhsa_kernel
"""
    return out


def main():
    p = argparse.ArgumentParser()
    p.add_argument("-o", default="recurrent_scan__sliding_block_cached__dense_activation_relu__decode.s")
    p.add_argument("--kvpol", default="nt")
    p.add_argument("--wpol", default="nt")
    p.add_argument("--stamps", action="store_true")
    p.add_argument("--maxpoll", type=int, default=20000)
    p.add_argument("--maxspin", type=int, default=2000000)
    p.add_argument("--rotg", type=int, default=1)
    p.add_argument("--rotw", type=int, default=4)
    p.add_argument("--map", default="C")
    p.add_argument("--win", type=int, default=4)
    p.add_argument("--qkv", type=lambda s: [int(x) for x in s.split(",")], default=[1, 1, 1, 1])
    p.add_argument("--fpos", type=int, default=12)
    p.add_argument("--qpos", type=int, default=24)
    p.add_argument("--sched", default="dyn")
    p.add_argument("--kwin", type=int, default=0)
    p.add_argument("--dbgst", action="store_true")
    p.add_argument("--abl", default="")
    p.add_argument("--win2", type=int, default=0)
    p.add_argument("--bpos", type=int, default=3)
    p.add_argument("--hpos", type=int, default=8)
    p.add_argument("--ygate", type=lambda s: tuple(eval(x) for x in s.split(",")), default=(C5, 1))
    p.add_argument("--gate", type=int, default=8)
    p.add_argument("--npoll2", type=int, default=2)
    p.add_argument("--npoll3", type=int, default=4)
    p.add_argument("--stag2", type=int, default=6)
    p.add_argument("--stag3", type=int, default=3)
    p.add_argument("--prio", default="")
    p.add_argument("--qprio", type=int, default=-1)
    p.add_argument("--fast", action="store_true")
    p.add_argument("--nf", type=int, default=48)
    p.add_argument("--slow3", default="")
    p.add_argument("--mlsleep", type=int, default=4)
    p.add_argument("--reclaim", action="store_true")
    p.add_argument("--y1lay", type=int, default=0)
    p.add_argument("--y2lay", type=int, default=0)
    p.add_argument("--burst", type=int, default=-1)
    p.add_argument("--b0late", type=int, default=0)
    p.add_argument("--winy", type=int, default=0)
    p.add_argument("--wpos", type=int, default=-1)
    p.add_argument("--wcnt", type=int, default=8)
    p.add_argument("--preld", type=int, default=0)
    p.add_argument("--h1f", type=int, default=0)
    p.add_argument("--bhi", type=int, default=2)
    o = p.parse_args()
    open(o.o, "w").write(gen(o))
    print("wrote", o.o)


if __name__ == "__main__":
    main()
```

```python
import sys, argparse, struct
from asmh import A
from gen2 import HEADER, KNAME

WS_H1 = 0x0
WS_H2 = 0xC0000
GSTR = 4352
WS_ML = 0x340000
WS_H1F = 0x380000
WS_H2F = 0x300000
WS_H3A = 0x140000
WS_H3B = 0x190000
WS_EPOCH = 0x1F0000
WS_STAMP = 0x200000
WS_SIZE = 0x800000
FOFF = 0x400000

L_QP = 0
L_HP = 4096
L_Q = 6144
L_H = 6400
L_OP = 6656
L_ML = 10752
L_F = 10816
L_TAG = 10848
L_Y2P = 11392
L_Y1P = 13952
L_SYNC = 18048
L_TOTAL = 18176
C1, QF, HF, C2, FF, C3, C4, C5, C6, HG = [L_SYNC + 4 * i for i in range(10)]

LOG2E = 1.4426950408889634
OOB = 0x40000000
LANES10 = "0x03ff03ff"


def f32bits(x):
    return struct.unpack('<I', struct.pack('<f', x))[0]


def gen(opts):
    a = A()
    kvpol = opts.kvpol
    wpol = opts.wpol
    stamps = opts.stamps
    W = opts.win
    ST0 = 72

    def stamp(idx):
        if stamps:
            a(f"s_memrealtime s[{ST0+2*idx}:{ST0+2*idx+1}]")

    uid = [0]

    def lds_spin(off, val, vz, vt, sleep=0):
        uid[0] += 1
        lbl = f"L_spin{uid[0]}"
        a(f"s_mov_b32 s12, {opts.maxspin}")
        a.label(lbl)
        a(f"ds_read_b32 v{vt}, v{vz} offset:{off}")
        a("s_waitcnt lgkmcnt(0)")
        a(f"v_readfirstlane_b32 s10, v{vt}")
        a(f"s_cmp_ge_u32 s10, {val}")
        a(f"s_cbranch_scc1 {lbl}_done")
        if sleep:
            a(f"s_sleep {sleep}")
        a("s_sub_u32 s12, s12, 1")
        a("s_cmp_lg_u32 s12, 0")
        a(f"s_cbranch_scc1 {lbl}")
        a.label(lbl + "_done")

    def lds_arrive(off, vz, vt, rtn=False):
        a(f"v_mov_b32 v{vt}, 1")
        a("s_mov_b64 exec, 1")
        if rtn:
            a(f"ds_add_rtn_u32 v{vt}, v{vz}, v{vt} offset:{off}")
        else:
            a(f"ds_add_u32 v{vz}, v{vt} offset:{off}")
        a("s_mov_b64 exec, -1")
        if rtn:
            a("s_waitcnt lgkmcnt(0)")
            a(f"v_readfirstlane_b32 s10, v{vt}")

    def dual_store(data, addr, width, modereg, name):
        a(f"s_mov_b32 s10, {FOFF}")
        a(f"s_cmp_eq_u32 {modereg}, 2")
        a(f"s_cbranch_scc0 L_ds_{name}_g")
        a(f"buffer_store_{width} {data}, {addr}, s[56:59], s10 offen")
        a(f"s_branch L_ds_{name}_d")
        a.label(f"L_ds_{name}_g")
        a(f"buffer_store_{width} {data}, {addr}, s[56:59], 0 offen sc1")
        a.label(f"L_ds_{name}_d")

    def set_tag(r):
        a(f"v_mov_b32 v{r+2}, s68")
        a(f"v_mov_b32 v{r+3}, s69")

    def tags_bad(regs):
        for n, r in enumerate(regs):
            dst = "s[70:71]" if n == 0 else "vcc"
            a(f"v_cmp_ne_u64 {dst}, v[{r+2}:{r+3}], s[68:69]")
            if n:
                a("s_or_b64 s[70:71], s[70:71], vcc")
        a("s_cmp_eq_u64 s[70:71], 0")

    def pipelined_poll(name, nsets, setregs, issue, stag, res, slow=0, after_issue=None):
        nl = len(setregs[0])
        a(f"s_mov_b32 s12, {opts.maxpoll}")
        a("s_mov_b64 s[38:39], -1")
        for k in range(nsets):
            issue(k)
            if k == 0 and after_issue:
                after_issue()
            if k + 1 < nsets and stag:
                a(f"s_sleep {stag}")
        a.label(f"L_{name}")
        for k in range(nsets):
            a(f"s_waitcnt vmcnt({(nsets-1)*nl})")
            for n, r in enumerate(setregs[k]):
                dst = "s[70:71]" if n == 0 else "vcc"
                a(f"v_cmp_eq_u64 {dst}, v[{r+2}:{r+3}], s[68:69]")
                if n:
                    a("s_and_b64 s[70:71], s[70:71], vcc")
            a("s_and_b64 exec, s[70:71], s[38:39]")
            for n, r in enumerate(setregs[k]):
                a(f"v_mov_b32 v{res[2*n]}, v{r}")
                a(f"v_mov_b32 v{res[2*n+1]}, v{r+1}")
            a("s_andn2_b64 s[38:39], s[38:39], s[70:71]")
            a("s_mov_b64 exec, s[38:39]")
            a(f"s_cbranch_scc0 L_{name}_done")
            if slow:
                a("s_bcnt1_i32_b64 s10, s[38:39]")
                a(f"s_cmp_lt_u32 s10, {slow[0]}")
                uid[0] += 1
                a(f"s_cbranch_scc1 L_fast{uid[0]}")
                a(f"s_sleep {slow[1]}")
                a.label(f"L_fast{uid[0]}")
            issue(k)
            a("s_mov_b64 exec, -1")
        a("s_sub_u32 s12, s12, 1")
        a("s_cmp_lg_u32 s12, 0")
        a(f"s_cbranch_scc1 L_{name}")
        a.label(f"L_{name}_done")
        a("s_mov_b64 exec, -1")

    def hint_poll(name, ws_off_sgpr, sleep):
        a(f"s_add_u32 s14, s56, s{ws_off_sgpr}")
        a("s_addc_u32 s15, s57, 0")
        a(f"s_mov_b32 s12, {opts.maxpoll}")
        a.label(f"L_{name}")
        a("s_load_dwordx16 s[16:31], s[14:15], 0 glc")
        a("s_waitcnt lgkmcnt(0)")
        for i in range(8):
            a(f"s_cmp_eq_u64 s[{16+2*i}:{17+2*i}], s[68:69]")
            a(f"s_cbranch_scc0 L_{name}_no")
        a(f"s_branch L_{name}_done")
        a.label(f"L_{name}_no")
        if sleep:
            a(f"s_sleep {sleep}")
        a("s_sub_u32 s12, s12, 1")
        a("s_cmp_lg_u32 s12, 0")
        a(f"s_cbranch_scc1 L_{name}")
        a.label(f"L_{name}_done")

    a("s_cmp_ge_u32 s2, 256")
    a("s_cbranch_scc1 L_end")
    a("s_load_dwordx16 s[16:31], s[0:1], 0")
    a("s_load_dwordx4 s[32:35], s[0:1], 64")
    a("s_load_dwordx2 s[36:37], s[0:1], 80")
    if stamps:
        for i in range(1, 8):
            a(f"s_mov_b64 s[{ST0+2*i}:{ST0+2*i+1}], 0")
        stamp(0)
    a("v_lshrrev_b32 v1, 6, v0")
    a("v_and_b32 v0, 63, v0")
    if opts.map == "C":
        a("s_and_b32 s4, s2, 7")
        a("s_lshr_b32 s5, s2, 6")
        a("s_lshl_b32 s5, s5, 3")
        a("s_or_b32 s4, s4, s5")
        a("s_lshr_b32 s5, s2, 3")
        a("s_and_b32 s5, s5, 7")
    else:
        a("s_lshr_b32 s4, s2, 3")
        a("s_and_b32 s5, s2, 7")
    a("v_readfirstlane_b32 s3, v1")
    a("s_lshl_b32 s6, s4, 3")
    a("s_or_b32 s6, s6, s5")
    a("s_lshr_b32 s7, s5, 2")
    a("s_and_b32 s8, s5, 3")
    a(f"s_mov_b32 s58, {WS_SIZE}")
    a("s_mov_b32 s59, 0x00020000")
    a("s_cmp_lt_u32 s3, 4")
    a("s_cbranch_scc1 L_aux")

    VOFF, VQ, VT, VS, VACC, VK, VV, VF = 1, 2, 6, 8, 24, 32, 96, 160
    a.c("---- streaming wave ----")
    a("s_sub_u32 s3, s3, 4")
    a("s_lshl_b32 s9, s7, 5")
    a("s_add_u32 s9, s9, s4")
    a("s_lshl_b32 s9, s9, 21")
    a("s_lshl_b32 s10, s8, 17")
    a("s_add_u32 s9, s9, s10")
    a("s_add_u32 s9, s9, 1572864")
    a("s_lshl_b32 s10, s3, 14")
    a(f"v_lshl_add_u32 v{VOFF}, v0, 4, s10")
    a(f"s_mul_i32 s11, s4, {opts.rotg}")
    a(f"s_mul_i32 s12, s3, {opts.rotw}")
    a("s_add_u32 s11, s11, s12")
    a("s_lshl_b32 s11, s11, 10")
    a("s_mov_b32 s42, 131072")
    a("s_mov_b32 s43, 0x00020000")
    a("s_mov_b32 s46, 131072")
    a("s_mov_b32 s47, 0x00020000")
    a("s_cmp_lt_u32 s4, 20")
    a("s_cselect_b32 s13, 1, 0")
    a("s_cmp_lt_u32 s3, 2")
    a("s_cselect_b32 s13, s13, 0")
    a("s_cmp_ge_u32 s4, 10")
    a("s_cselect_b32 s14, 560, 0")
    a("s_lshl_b32 s10, s4, 3")
    a("s_add_u32 s14, s14, s10")
    a("s_mul_i32 s10, s5, 80")
    a("s_add_u32 s14, s14, s10")
    a("s_lshl_b32 s10, s3, 2")
    a("s_add_u32 s14, s14, s10")
    VXV = VK + 63
    a(f"v_and_b32 v{VT}, 1, v0")
    a(f"v_lshlrev_b32 v{VT}, 1, v{VT}")
    a(f"v_lshrrev_b32 v{VT+1}, 5, v0")
    a(f"v_add3_u32 v{VT}, v{VT}, v{VT+1}, s14")
    a(f"v_lshlrev_b32 v{VQ}, 1, v{VT}")
    NPRE = opts.fastpro
    for i in range(NPRE):
        a(f"s_add_u32 s{88+i}, s11, {i*1024}")
        a(f"s_and_b32 s{88+i}, s{88+i}, 0x3c00")
    a("s_waitcnt lgkmcnt(0)")
    if "e" in opts.abl:
        stamp(5)
    a("s_add_u32 s40, s18, s9")
    a("s_addc_u32 s41, s19, 0")
    for i in range(NPRE):
        a(f"buffer_load_dwordx4 v[{VK+4*i}:{VK+4*i+3}], v{VOFF}, s[40:43], s{88+i} offen {kvpol}")
    a("s_add_u32 s44, s20, s9")
    a("s_addc_u32 s45, s21, 0")
    a("s_mov_b32 s56, s36")
    a("s_mov_b32 s57, s37")
    a("s_mov_b32 s48, s16")
    a("s_mov_b32 s49, s17")
    a("s_movk_i32 s50, 2560")
    a("s_mov_b32 s51, 0x00020000")
    a("s_mov_b32 s64, s32")
    a("s_mov_b32 s65, s33")
    a("s_movk_i32 s66, 2560")
    a("s_mov_b32 s67, 0x00020000")
    for i in range(16):
        a(f"s_add_u32 s{16+i}, s11, {i*1024}")
        a(f"s_and_b32 s{16+i}, s{16+i}, 0x3c00")
    if not opts.b0late:
        a("s_barrier")
    if "e" in opts.abl:
        stamp(6)
    a("s_cmp_eq_u32 s13, 0")
    a("s_cbranch_scc1 L_nox")
    a(f"buffer_load_ushort v{VF+7+0}, v{VQ}, s[48:51], 0 offen")
    a.label("L_nox")
    XV = VF + 7
    PRIO = {int(k): int(v) for k, v in (it.split(":") for it in opts.prio.split(",") if it)}

    def issue(n, static=True):
        if static and n in PRIO:
            a(f"s_setprio {PRIO[n]}")
        if n < 16:
            a(f"buffer_load_dwordx4 v[{VK+4*n}:{VK+4*n+3}], v{VOFF}, s[40:43], s{16+n} offen {kvpol}")
        else:
            i = n - 16
            a(f"buffer_load_dwordx4 v[{VV+4*i}:{VV+4*i+3}], v{VOFF}, s[44:47], s{16+i} offen {kvpol}")

    W2 = opts.win2 or W
    NS = 16 - W2
    slot_i = [0]
    SREM = "s9"

    FLAT = opts.sched in ("flat", "ab")
    AB = opts.sched == "ab"

    def dstamp(idx):
        if opts.dbgst:
            stamp(idx)

    def late_burst():
        a(f"s_cmp_eq_u32 {SREM}, 0")
        a("s_cbranch_scc1 L_nolate")
        for n in range(opts.kwin, 32):
            issue(n)
        dstamp(5)
        a.label("L_nolate")

    def slot():
        k = slot_i[0]
        slot_i[0] += 1
        if AB and k == opts.bpos:
            late_burst()
        if FLAT:
            return
        if opts.burst >= 0 and k > opts.burst:
            a(f"s_cmp_eq_u32 {SREM}, {NS}")
            a(f"s_cbranch_scc1 L_slot{k}_full")
            a("s_waitcnt vmcnt(0)")
            a.label(f"L_slot{k}_full")
            a(f"s_waitcnt vmcnt({15 - k})")
            return
        if opts.burst >= 0 and k == opts.burst:
            a(f"s_cmp_eq_u32 {SREM}, {NS}")
            a(f"s_cbranch_scc1 L_slot{k}_full")
            for kk in range(k, NS):
                a(f"s_cmp_gt_u32 {SREM}, {kk}")
                a(f"s_cbranch_scc0 L_slot{k}_no")
                issue(16 + 15 - kk, False)
            a.label(f"L_slot{k}_no")
            a("s_waitcnt vmcnt(0)")
            a(f"s_branch L_slot{k}_done")
            a.label(f"L_slot{k}_full")
            a(f"s_waitcnt vmcnt({W2-1})")
            for kk in range(k, NS):
                issue(16 + 15 - kk, False)
            a.label(f"L_slot{k}_done")
            return
        if k < NS:
            a(f"s_cmp_gt_u32 {SREM}, {k}")
            a(f"s_cbranch_scc0 L_slot{k}_no")
            a(f"s_waitcnt vmcnt({W2-1})")
            issue(16 + 15 - k, False)
            a(f"s_branch L_slot{k}_done")
            a.label(f"L_slot{k}_no")
            a("s_waitcnt vmcnt(0)")
            a.label(f"L_slot{k}_done")
        else:
            a(f"s_waitcnt vmcnt({max(W2 - 1 - (k - NS), 0)})")

    a(f"v_mov_b32 v{VT+1}, 0")
    for n in range(NPRE, W):
        issue(n)
    if opts.b0late:
        a("s_barrier")
    if AB:
        KW = opts.kwin
        for n in range(W, KW):
            a(f"s_waitcnt vmcnt({W-1})")
            issue(n)
        a(f"ds_read_b32 v{VT}, v{VT+1} offset:{QF}")
        a(f"s_waitcnt vmcnt({KW - 16})")
        a("s_waitcnt lgkmcnt(0)")
        a(f"v_readfirstlane_b32 {SREM}, v{VT}")
        a(f"s_cmp_lg_u32 {SREM}, 0")
        a(f"s_cbranch_scc1 L_qready")
        for n in range(KW, 32):
            issue(n)
        dstamp(5)
        lds_spin(QF, 1, VT + 1, VT, sleep=1)
        a(f"s_mov_b32 {SREM}, 0")
    elif FLAT:
        for n in range(W, 32):
            if n < opts.kwin:
                a(f"s_waitcnt vmcnt({W-1})")
            issue(n)
        dstamp(5)
        lds_spin(QF, 1, VT + 1, VT, sleep=1)
    else:
        for n in range(W, 16 + W2):
            if opts.winy and n < 16 and n >= opts.wsw:
                a(f"s_waitcnt vmcnt({opts.winy - 1})")
            elif opts.winy and n < 16:
                a("s_cmp_ge_u32 s3, 4")
                a(f"s_waitcnt vmcnt({opts.winy - 1})")
                a(f"s_cbranch_scc1 L_wy{n}")
                a(f"s_waitcnt vmcnt({W - 1})")
                a.label(f"L_wy{n}")
            else:
                a(f"s_waitcnt vmcnt({(W if n < 16 else W2) - 1})")
            if "e" in opts.abl and n == W:
                stamp(7)
            if "e" in opts.abl and n == W + 4:
                stamp(4)
            issue(n)
        dstamp(5)
        if "q" in opts.abl:
            a(f"s_mov_b32 {SREM}, {NS}")
            a(f"s_waitcnt vmcnt({W2})")
            a("s_branch L_qready")
        for n in range(16 + W2, 32):
            a(f"ds_read_b32 v{VT}, v{VT+1} offset:{QF}")
            a(f"s_mov_b32 {SREM}, {32 - n}")
            a(f"s_waitcnt vmcnt({W2-1})")
            a("s_waitcnt lgkmcnt(0)")
            a(f"v_readfirstlane_b32 s10, v{VT}")
            a("s_cmp_lg_u32 s10, 0")
            a(f"s_cbranch_scc1 L_qready")
            issue(n)
        a(f"s_mov_b32 {SREM}, 0")
        a(f"s_waitcnt vmcnt({16 if False else min(W2, 16)})")
        lds_spin(QF, 1, VT + 1, VT, sleep=1)
    a.label("L_qready")
    if opts.qprio >= 0:
        a(f"s_setprio {opts.qprio}")
    a(f"v_and_b32 v{VT}, 15, v0")
    a(f"v_lshlrev_b32 v{VT}, 4, v{VT}")
    a(f"ds_read_b128 v[{VQ}:{VQ+3}], v{VT} offset:{L_Q}")
    a(f"ds_read_b64 v[{VS}:{VS+1}], v{VT+1} offset:{L_TAG}")
    if opts.hloc:
        a(f"ds_read_b32 v{VS+2}, v{VT+1} offset:{HG}")
    stamp(1)
    a("s_waitcnt lgkmcnt(0)")
    a(f"v_readfirstlane_b32 s68, v{VS}")
    a(f"v_readfirstlane_b32 s69, v{VS+1}")
    if opts.hloc:
        a(f"v_readfirstlane_b32 s8, v{VS+2}")
    _a = a
    class _F:
        def __call__(self, t):
            if "s" in opts.abl and t.startswith("v_") and not t.startswith("v_readlane"):
                return
            _a(t)
        def __getattr__(self, n):
            return getattr(_a, n)
    a = _F()
    for grp in range(4):
        if FLAT and not AB:
            a(f"s_waitcnt vmcnt({16 + 12 - 4*grp})")
        for d in range(4):
            for i in range(4*grp, 4*grp+4):
                src2 = "0" if d == 0 else f"v{VS+i}"
                a(f"v_dot2_f32_bf16 v{VS+i}, v{VK+4*i+d}, v{VQ+d}, {src2}")
    slot()
    for ctrl in ["quad_perm:[1,0,3,2]", "quad_perm:[2,3,0,1]", "row_half_mirror", "row_mirror"]:
        for i in range(16):
            a(f"v_add_f32_dpp v{VS+i}, v{VS+i}, v{VS+i} {ctrl} row_mask:0xf bank_mask:0xf")
    slot()
    a(f"s_mov_b32 s14, 0x{f32bits(128 ** -0.5):08x}")
    a("s_mov_b32 s15, 0xffff0000")
    for rnd in range(2):
        for p in range(8):
            a(f"v_cvt_pk_bf16_f32 v{VK+p}, v{VS+2*p}, v{VS+2*p+1}")
        for p in range(8):
            a(f"v_lshlrev_b32 v{VS+2*p}, 16, v{VK+p}")
            a(f"v_and_b32 v{VS+2*p+1}, s15, v{VK+p}")
        if rnd == 0:
            for i in range(16):
                a(f"v_mul_f32 v{VS+i}, s14, v{VS+i}")
    m = VT
    a(f"v_max3_f32 v{m}, v{VS}, v{VS+1}, v{VS+2}")
    for i in range(3, 15, 2):
        a(f"v_max3_f32 v{m}, v{m}, v{VS+i}, v{VS+i+1}")
    a(f"v_max_f32 v{m}, v{m}, v{VS+15}")
    for r in range(4):
        a(f"v_readlane_b32 s{60+r}, v{m}, {16*r}")
    a(f"v_mov_b32 v{m}, s60")
    a(f"v_max_f32 v{m}, s61, v{m}")
    a(f"v_max_f32 v{m}, s62, v{m}")
    a(f"v_max_f32 v{m}, s63, v{m}")
    slot()
    a(f"s_mov_b32 s14, 0x{f32bits(LOG2E):08x}")
    for i in range(16):
        a(f"v_sub_f32 v{VS+i}, v{VS+i}, v{m}")
    for i in range(16):
        a(f"v_mul_f32 v{VS+i}, s14, v{VS+i}")
    for i in range(16):
        a(f"v_exp_f32 v{VS+i}, v{VS+i}")
    PLO, PHI = VK, VK + 16
    a(f"v_mov_b32 v{VXV}, v{XV}")
    for i in range(16):
        a(f"v_cvt_pk_bf16_f32 v{PLO+i}, v{VS+i}, 0")
    for i in range(16):
        a(f"v_lshlrev_b32 v{PHI+i}, 16, v{PLO+i}")
    lsum = VT + 1
    a(f"v_add_f32 v{lsum}, v{VS}, v{VS+1}")
    for i in range(2, 16):
        a(f"v_add_f32 v{lsum}, v{lsum}, v{VS+i}")
    for r in range(4):
        a(f"v_readlane_b32 s{60+r}, v{lsum}, {16*r}")
    a(f"v_mov_b32 v{lsum}, s60")
    a(f"v_add_f32 v{lsum}, s61, v{lsum}")
    a(f"v_add_f32 v{lsum}, s62, v{lsum}")
    a(f"v_add_f32 v{lsum}, s63, v{lsum}")
    a = _a
    VZ = VQ
    a(f"s_lshl_b32 s10, s3, 2")
    a(f"v_mov_b32 v{VS}, s10")
    a(f"v_mov_b32 v{VZ}, 0")
    a(f"ds_write_b32 v{VS}, v{m} offset:{L_ML}")
    a(f"ds_write_b32 v{VS}, v{lsum} offset:{L_ML+32}")
    lds_arrive(C2, VZ, VS + 1)
    a(f"v_and_b32 v{VS}, 15, v0")
    a(f"v_lshlrev_b32 v{VS}, 5, v{VS}")
    a(f"v_lshrrev_b32 v{VS+1}, 4, v0")
    a(f"v_lshl_add_u32 v{VS}, v{VS+1}, 3, v{VS}")
    a(f"s_lshl_b32 s10, s3, 9")
    a(f"v_add_u32 v{VS}, s10, v{VS}")
    VCA, VPA, GO = VS + 2, VS + 3, VS + 4
    a(f"v_lshlrev_b32 v{VCA}, 3, v0")
    a("s_lshl_b32 s10, s6, 10")
    a(f"s_add_u32 s10, s10, {WS_H2}")
    a(f"v_lshl_add_u32 v{VPA}, v0, 4, s10")
    set_tag(GO)
    order = list(range(W2)) + list(range(15, W2 - 1, -1))
    if FLAT:
        order = list(range(16))
    dstamp(6)
    if AB and opts.bpos >= 3:
        late_burst()
    if FLAT:
        slot_i[0] = 16
    for t in range(16):
        i = order[t]
        while slot_i[0] <= t:
            slot()
        if FLAT:
            a(f"s_waitcnt vmcnt({15 - t})")
        if t == 15:
            dstamp(7)
        if t == opts.wpos:
            lds_arrive(HG, VZ, VS + 8)
        if t == opts.hpos:
            lds_arrive(C6, VZ, VS + 8)
        if t == opts.fpos:
            stamp(3)
            if 'x' not in opts.abl and 'P' not in opts.abl and 'G' not in opts.abl:
                lds_spin(FF, 1, VZ, VS + 8, sleep=1)
            a(f"ds_read_b128 v[{VF}:{VF+3}], v{VZ} offset:{L_F}")
            a(f"ds_read_b128 v[{VF+4}:{VF+7}], v{VZ} offset:{L_F+16}")
            a("s_setprio 3")
        for d in range(4):
            s2a = "0" if t == 0 else f"v{VACC+2*d}"
            s2b = "0" if t == 0 else f"v{VACC+2*d+1}"
            a(f"v_dot2_f32_bf16 v{VACC+2*d}, v{VV+4*i+d}, v{PLO+i}, {s2a}")
            a(f"v_dot2_f32_bf16 v{VACC+2*d+1}, v{VV+4*i+d}, v{PHI+i}, {s2b}")
    assert slot_i[0] == 16
    for e in range(4):
        a(f"v_permlane32_swap_b32 v{VACC+e}, v{VACC+e+4}")
    for e in range(4):
        a(f"v_add_f32 v{VACC+e}, v{VACC+e}, v{VACC+e+4}")
    a(f"v_permlane16_swap_b32 v{VACC}, v{VACC+2}")
    a(f"v_permlane16_swap_b32 v{VACC+1}, v{VACC+3}")
    a(f"v_add_f32 v{VACC}, v{VACC}, v{VACC+2}")
    a(f"v_add_f32 v{VACC+1}, v{VACC+1}, v{VACC+3}")
    a(f"ds_write_b64 v{VS}, v[{VACC}:{VACC+1}] offset:{L_OP}")
    lds_arrive(C3, VZ, VS + 8, rtn=True)
    stamp(2)
    a("s_cmp_eq_u32 s10, 7")
    a("s_cbranch_scc0 L_nocomb")
    OPR = VK
    for w in range(8):
        a(f"ds_read_b64 v[{OPR+2*w}:{OPR+2*w+1}], v{VCA} offset:{L_OP + w*512}")
    for w in range(8):
        a(f"s_waitcnt lgkmcnt({7-w})")
        for e in range(2):
            if w == 0:
                a(f"v_mul_f32 v{GO+e}, v{VF}, v{OPR+e}")
            else:
                a(f"v_fma_f32 v{GO+e}, v{VF+w}, v{OPR+2*w+e}, v{GO+e}")
    if opts.hloc:
        dual_store(f"v[{GO}:{GO+3}]", f"v{VPA}", "dwordx4", "s8", "h2")
    else:
        if opts.fast:
            a(f"s_mov_b32 s10, {FOFF}")
            a(f"buffer_store_dwordx4 v[{GO}:{GO+3}], v{VPA}, s[56:59], s10 offen")
        a(f"buffer_store_dwordx4 v[{GO}:{GO+3}], v{VPA}, s[56:59], 0 offen sc1")
    stamp(4)
    a.label("L_nocomb")
    if "t" in opts.abl:
        a("s_branch L_sfin")
    a("s_cmp_eq_u32 s13, 0")
    a("s_cbranch_scc1 L_sfin")
    a("s_cmp_ge_u32 s4, 10")
    a("s_cselect_b32 s9, 70, 0")
    a("s_add_u32 s9, s9, s4")
    a("s_mul_i32 s10, s5, 10")
    a("s_add_u32 s9, s9, s10")
    a("s_lshl_b32 s9, s9, 1")
    a("s_add_u32 s9, s9, s3")
    a("s_lshl_b32 s9, s9, 10")
    a(f"s_add_u32 s9, s9, {WS_H3A}")
    FA, FO = VS, VS + 1
    FA1 = FA
    a(f"v_lshl_add_u32 v{FA}, v0, 4, s9")
    a(f"s_mov_b32 s11, {WS_H3B - WS_H3A}")
    if opts.y1lay:
        FA1 = VS + 3
        a("s_lshl_b32 s9, s4, 6")
        a("s_mul_i32 s10, s5, 1280")
        a("s_add_u32 s9, s9, s10")
        a("s_lshl_b32 s10, s3, 5")
        a("s_add_u32 s9, s9, s10")
        a(f"s_add_u32 s9, s9, {WS_H3A}")
        a(f"v_lshrrev_b32 v{FA1}, 1, v0")
        a(f"v_mul_u32_u24 v{FA1}, 10240, v{FA1}")
        a(f"v_and_b32 v{VS+2}, 1, v0")
        a(f"v_lshl_add_u32 v{FA1}, v{VS+2}, 4, v{FA1}")
        a(f"v_add_u32 v{FA1}, s9, v{FA1}")
    P = VK

    def reduce_duo(r0):
        for ctrl in ["quad_perm:[2,3,0,1]", "row_ror:4", "row_ror:8"]:
            a(f"v_add_f32_dpp v{r0}, v{r0}, v{r0} {ctrl} row_mask:0xf bank_mask:0xf")
            a(f"v_add_f32_dpp v{r0+1}, v{r0+1}, v{r0+1} {ctrl} row_mask:0xf bank_mask:0xf")
        a(f"v_permlane32_swap_b32 v{r0}, v{r0+1}")
        a(f"v_add_f32 v{r0}, v{r0}, v{r0+1}")
        a(f"v_mov_b32 v{r0+1}, v{r0}")
        a(f"v_permlane16_swap_b32 v{r0}, v{r0+1}")
        a(f"v_add_f32 v{r0}, v{r0}, v{r0+1}")

    RY2, RY1 = P + 4, P + 6
    pipelined_poll("pollY2", 1, [[P]],
                   lambda k: a(f"buffer_load_dwordx4 v[{P}:{P+3}], v{FA1 if opts.y2lay else FA}, s[56:59], s11 offen sc1"), 0,
                   [RY2, RY2 + 1], slow=(1, 8))
    n3 = opts.npoll3
    Y1S = [[P + 8 + 4*k] for k in range(n3)]
    a("s_cmp_ge_u32 s4, 10")
    a("s_cselect_b32 s14, 560, 0")
    a("s_lshl_b32 s10, s4, 3")
    a("s_add_u32 s14, s14, s10")
    a("s_mul_i32 s10, s5, 80")
    a("s_add_u32 s14, s14, s10")
    a("s_lshl_b32 s10, s3, 2")
    a("s_add_u32 s14, s14, s10")
    a(f"v_and_b32 v{FO}, 1, v0")
    a(f"v_lshlrev_b32 v{FO}, 1, v{FO}")
    a(f"v_lshrrev_b32 v{FO+1}, 5, v0")
    a(f"v_add3_u32 v{FO}, v{FO}, v{FO+1}, s14")
    a(f"v_lshlrev_b32 v{FO}, 1, v{FO}")
    reduce_duo(RY2)
    Y2 = RY2
    T7 = P
    a(f"v_cvt_pk_bf16_f32 v{Y2}, v{Y2}, 0")
    a(f"v_lshlrev_b32 v{Y2}, 16, v{Y2}")
    a(f"s_mov_b32 s14, 0x{f32bits(-LOG2E):08x}")
    a(f"v_mul_f32 v{T7}, s14, v{Y2}")
    a(f"v_exp_f32 v{T7}, v{T7}")
    a(f"v_add_f32 v{T7}, 1.0, v{T7}")
    a(f"v_rcp_f32 v{T7}, v{T7}")
    a(f"v_mul_f32 v{Y2}, v{Y2}, v{T7}")
    a(f"v_cvt_pk_bf16_f32 v{Y2}, v{Y2}, 0")
    a(f"v_lshlrev_b32 v{Y2}, 16, v{Y2}")
    a(f"v_lshlrev_b32 v{VXV}, 16, v{VXV}")
    if not opts.dbgst:
        stamp(5)
    lds_spin(opts.ygate[0], opts.ygate[1], VZ, VS + 8, sleep=1)
    pipelined_poll("pollY1", n3, Y1S,
                   lambda k: a(f"buffer_load_dwordx4 v[{Y1S[k][0]}:{Y1S[k][0]+3}], v{FA1}, s[56:59], 0 offen sc1"), opts.stag3,
                   [RY1, RY1 + 1], slow=(tuple(int(x) for x in opts.slow3.split(",")) if opts.slow3 else 0))
    if not opts.dbgst:
        stamp(6)
    Y1 = RY1
    reduce_duo(Y1)
    a(f"v_cvt_pk_bf16_f32 v{Y1}, v{Y1}, 0")
    a(f"v_lshlrev_b32 v{Y1}, 16, v{Y1}")
    a(f"v_mul_f32 v{Y1}, v{Y1}, v{Y2}")
    a(f"v_cvt_pk_bf16_f32 v{Y1}, v{Y1}, 0")
    a(f"v_lshlrev_b32 v{Y1}, 16, v{Y1}")
    a(f"v_add_f32 v{Y1}, v{VXV}, v{Y1}")
    a(f"v_cvt_pk_bf16_f32 v{Y1}, v{Y1}, 0")
    a("s_mov_b32 s10, 3")
    a("s_mov_b32 s11, 3")
    a("s_mov_b64 exec, s[10:11]")
    a(f"buffer_store_short v{Y1}, v{FO}, s[64:67], 0 offen {opts.opol}".rstrip())
    a("s_or_b32 s10, s6, s3")
    a("s_cmp_lg_u32 s10, 0")
    a("s_cbranch_scc1 L_noep")
    a("s_mov_b64 exec, 1")
    a(f"v_mov_b32 v{VS+2}, {WS_EPOCH}")
    a(f"v_mov_b32 v{VS+3}, s68")
    a(f"buffer_store_dword v{VS+3}, v{VS+2}, s[56:59], 0 offen sc1")
    a.label("L_noep")
    a("s_mov_b64 exec, -1")
    if not opts.dbgst:
        stamp(7)
    else:
        stamp(4)
    a.label("L_sfin")
    a("s_add_u32 s3, s3, 4")
    a("s_branch L_fin")

    a.label("L_aux")
    a.c("---- aux wave: a = s3 (0..3) ----")
    a("s_setprio 3")
    XR = 20
    VE = 30
    WQ = 32
    W1 = 52
    TMP = 64
    ACC = 96
    W2 = 120
    WO = 136
    LO2 = 96
    AY = 104
    BOP = 32
    a("s_cmp_lg_u32 s3, 0")
    a("s_cbranch_scc1 L_noclr")
    for r in range(4, 8):
        a(f"v_mov_b32 v{r}, 0")
    a(f"ds_write_b128 v4, v[4:7] offset:{L_SYNC}")
    a(f"ds_write_b128 v4, v[4:7] offset:{L_SYNC+16}")
    a(f"ds_write_b128 v4, v[4:7] offset:{L_SYNC+32}")
    a.label("L_noclr")
    a(f"v_lshlrev_b32 v2, 4, v0")
    a(f"v_lshlrev_b32 v3, 2, v0")
    a(f"v_mov_b32 v{VE}, {WS_EPOCH}")
    a("s_mul_i32 s9, s5, 80")
    a("s_mul_i32 s10, s3, 20")
    a("s_add_u32 s9, s9, s10")
    a(f"v_lshrrev_b32 v10, 4, v0")
    a(f"v_and_b32 v11, 15, v0")
    RG, C = 10, 11
    a(f"v_add_u32 v{TMP+10}, s9, v{RG}")
    a(f"v_lshlrev_b32 v{TMP+11}, 1, v{TMP+10}")
    a(f"v_lshlrev_b32 v{TMP+1}, 13, v{TMP+10}")
    a(f"v_lshl_add_u32 v{TMP+1}, v{C}, 4, v{TMP+1}")
    a("s_lshl_b32 s10, s4, 8")
    a(f"v_add_u32 v{TMP+1}, s10, v{TMP+1}")
    a(f"s_cmp_ge_u32 s4, {0 if 'f' in opts.abl else 27}")
    a(f"s_cselect_b32 s13, {OOB}, 0")
    if 'w' in opts.abl:
        a(f"v_add_u32 v{TMP+1}, {OOB}, v{TMP+1}")
    if 'B' in opts.abl:
        a(f"s_cmp_lt_u32 s2, {opts.bhi*64}")
        a(f"s_cselect_b32 s10, {OOB}, 0")
        a("s_bitcmp1_b32 s2, 2")
        a("s_cselect_b32 s10, s10, 0")
        a(f"v_add_u32 v{TMP+1}, s10, v{TMP+1}")
    a("s_movk_i32 s10, 3456")
    a(f"v_mul_lo_u32 v{TMP+2}, v{TMP+10}, s10")
    a(f"v_lshl_add_u32 v{TMP+2}, v{C}, 3, v{TMP+2}")
    a("s_lshl_b32 s10, s4, 7")
    a("s_add_u32 s10, s10, s13")
    a(f"v_add_u32 v{TMP+2}, s10, v{TMP+2}")
    for i in range(1, 5):
        a(f"s_mov_b32 s{88+i}, {i*32768}")
        if i < 4:
            a(f"s_mov_b32 s{92+i}, {i*13824}")
    a(f"s_mov_b32 s88, {4*13824}")
    a("s_waitcnt lgkmcnt(0)")

    def srd(r, lo, size):
        a(f"s_mov_b32 s{r}, s{lo}")
        a(f"s_mov_b32 s{r+1}, s{lo+1}")
        a(f"s_mov_b32 s{r+2}, {size}")
        a(f"s_mov_b32 s{r+3}, 0x00020000")
    a("s_mov_b32 s56, s36")
    a("s_mov_b32 s57, s37")
    srd(40, 16, 2560)
    if opts.hloc == 1:
        a("s_mul_i32 s10, s6, 3072")
        a("s_lshl_b32 s11, s3, 10")
        a("s_add_u32 s10, s10, s11")
        a(f"s_add_u32 s10, s10, {WS_H1 + FOFF}")
        a(f"s_mul_i32 s11, s4, {GSTR}")
        a(f"s_add_u32 s11, s11, {WS_H1F + FOFF}")
        a("s_cmp_eq_u32 s3, 3")
        a("s_cselect_b32 s10, s11, s10")
        a("s_cselect_b32 s14, 0xfff, -1")
        a("s_cselect_b32 s15, 0, -1")
        a(f"v_lshl_add_u32 v{TMP+19}, v0, 4, s10")
        a("s_mov_b32 exec_lo, s14")
        a("s_mov_b32 exec_hi, s15")
        a(f"buffer_load_dwordx4 v[{TMP+20}:{TMP+23}], v{TMP+19}, s[56:59], 0 offen")
        a("s_mov_b64 exec, -1")
    a(f"buffer_load_dword v{VE}, v{VE}, s[56:59], 0 offen sc1")
    a(f"buffer_load_dwordx4 v[4:7], v2, s[40:43], 0 offen")
    a(f"buffer_load_dword v8, v3, s[40:43], 0 offen offset:1024")
    a(f"buffer_load_dwordx4 v[12:15], v2, s[40:43], 0 offen offset:1280")
    a(f"buffer_load_dword v16, v3, s[40:43], 0 offen offset:2304")
    srd(44, 22, 5242880)
    for i in range(5):
        so = "0" if i == 0 else f"s{88+i}"
        a(f"buffer_load_dwordx4 v[{WQ+4*i}:{WQ+4*i+3}], v{TMP+1}, s[44:47], {so} offen {wpol}")
    if 'B' in opts.abl:
        a("s_cmp_eq_u32 s8, 1")
        a(f"s_cmp_lt_u32 s2, {opts.bhi*64}")
        a("s_cbranch_scc0 L_nob")
        a("s_bitcmp1_b32 s2, 2")
        a("s_cbranch_scc1 L_nob")
        a(f"v_add_u32 v{TMP+7}, 1024, v{TMP+1}")
        for i in range(5):
            so = "0" if i == 0 else f"s{88+i}"
            a(f"buffer_load_dwordx4 v[{ACC+4*i}:{ACC+4*i+3}], v{TMP+7}, s[44:47], {so} offen {wpol}")
        a.label("L_nob")
    srd(48, 28, 2211840)
    for i in range(5):
        so = "0" if i == 0 else (f"s{92+i}" if i < 4 else "s88")
        a(f"buffer_load_dwordx2 v[{W1+2*i}:{W1+2*i+1}], v{TMP+2}, s[48:51], {so} offen {wpol}")
    for i in range(5):
        for b in range(2):
            a(f"buffer_load_ushort v{XR+2*i+b}, v{TMP+11}, s[40:43], 0 offen offset:{b*1280 + i*8}")
    a("s_waitcnt lgkmcnt(0)")
    a("s_barrier")
    if 'x' in opts.abl:
        a("s_branch L_fin")
    a(f"v_mov_b32 v{TMP+5}, 0")
    a(f"v_mov_b32 v{TMP+6}, {OOB}")
    a(f"v_cmp_lt_u32 vcc, 9, v{C}")
    a(f"v_cndmask_b32 v{TMP+5}, v{TMP+5}, v{TMP+6}, vcc")
    a(f"v_lshl_add_u32 v{TMP+5}, v{C}, 4, v{TMP+5}")
    a("s_mul_i32 s10, s5, 160")
    a(f"v_add_u32 v{TMP+5}, s10, v{TMP+5}")
    a("s_movk_i32 s14, 1280")
    a("s_lshl_b32 s10, s4, 6")
    a("s_lshl_b32 s11, s3, 4")
    a("s_add_u32 s10, s10, s11")
    a(f"v_lshl_add_u32 v{TMP+3}, v{RG}, 2, s10")
    a(f"v_mul_lo_u32 v{TMP+3}, v{TMP+3}, s14")
    a(f"v_add_u32 v{TMP+3}, v{TMP+5}, v{TMP+3}")
    a(f"v_add_u32 v{TMP+3}, s13, v{TMP+3}")
    a("s_lshl_b32 s10, s4, 7")
    a("s_lshl_b32 s11, s3, 5")
    a("s_add_u32 s10, s10, s11")
    a(f"v_lshl_add_u32 v{TMP+4}, v{RG}, 3, s10")
    a(f"v_mul_lo_u32 v{TMP+4}, v{TMP+4}, s14")
    a(f"v_add_u32 v{TMP+4}, v{TMP+5}, v{TMP+4}")
    if 'o' in opts.abl:
        a(f"v_add_u32 v{TMP+4}, {OOB}, v{TMP+4}")
    a("s_movk_i32 s12, 5120")
    srd(52, 30, 2211840)
    for i in range(4):
        a(f"buffer_load_dwordx4 v[{W2+4*i}:{W2+4*i+3}], v{TMP+3}, s[52:55], 0 offen offset:{i*1280} {wpol}")
    srd(60, 24, 5242880)
    LATEWO = opts.wpos >= 0
    def issue_wo(va):
        for i in range(8):
            so = "0" if i < 4 else "s12"
            a(f"buffer_load_dwordx4 v[{WO+4*i}:{WO+4*i+3}], v{va}, s[60:63], {so} offen offset:{(i&3)*1280} {wpol}")
    if LATEWO:
        a(f"v_mov_b32 v1, v{TMP+4}")
    else:
        issue_wo(TMP + 4)

    a(f"s_waitcnt vmcnt({24 if LATEWO else 32})")
    a(f"v_readfirstlane_b32 s68, v{VE}")
    a("s_mov_b32 s15, 0xffff0000")
    a("s_add_u32 s68, s68, 1")
    a("s_xor_b32 s69, s68, 0x9e3779b9")
    if opts.hloc == 1:
        a("s_cmp_lg_u32 s3, 3")
        a("s_cbranch_scc1 L_noann")
        a("s_getreg_b32 s10, hwreg(HW_REG_XCC_ID)")
        a("s_and_b32 s10, s10, 15")
        a("s_xor_b32 s10, s10, s69")
        a(f"s_mul_i32 s11, s4, {GSTR}")
        a(f"s_add_u32 s11, s11, {WS_H2F}")
        a("s_add_u32 s90, s56, s11")
        a("s_addc_u32 s91, s57, 0")
        a("s_mov_b64 s[64:65], s[90:91]")
        a("s_lshl_b32 s12, s5, 3")
        a("s_add_u32 s11, s11, s12")
        a("v_mov_b32 v2, s68")
        a("v_mov_b32 v3, s10")
        a("v_mov_b32 v9, s11")
        a("s_mov_b64 exec, 1")
        a("buffer_store_dwordx2 v[2:3], v9, s[56:59], 0 offen sc1")
        a("s_mov_b64 exec, -1")
        a.label("L_noann")
    F = TMP + 12
    srcs = [[4, 5, 6, 7, 8], [12, 13, 14, 15, 16]]
    for b in range(2):
        for d in range(5):
            a(f"v_lshlrev_b32 v{F+10*b+2*d}, 16, v{srcs[b][d]}")
            a(f"v_and_b32 v{F+10*b+2*d+1}, s15, v{srcs[b][d]}")
    S0, S1, Q0, Q1, t0, t1 = 4, 5, 6, 7, 8, 9

    def wave_sum2(r0, r1, sbase):
        for ctrl in ["quad_perm:[1,0,3,2]", "quad_perm:[2,3,0,1]", "row_half_mirror", "row_mirror"]:
            a(f"v_add_f32_dpp v{r0}, v{r0}, v{r0} {ctrl} row_mask:0xf bank_mask:0xf")
            a(f"v_add_f32_dpp v{r1}, v{r1}, v{r1} {ctrl} row_mask:0xf bank_mask:0xf")
        for r in range(4):
            a(f"v_readlane_b32 s{sbase+r}, v{r0}, {16*r}")
            a(f"v_readlane_b32 s{sbase+4+r}, v{r1}, {16*r}")
        a(f"v_mov_b32 v{r0}, s{sbase}")
        a(f"v_mov_b32 v{r1}, s{sbase+4}")
        for r in range(1, 4):
            a(f"v_add_f32 v{r0}, s{sbase+r}, v{r0}")
            a(f"v_add_f32 v{r1}, s{sbase+4+r}, v{r1}")

    for e in range(1, 10):
        for b, S in ((0, S0), (1, S1)):
            if e == 1:
                a(f"v_add_f32 v{S}, v{F+10*b}, v{F+10*b+1}")
            else:
                a(f"v_add_f32 v{S}, v{S}, v{F+10*b+e}")
    wave_sum2(S0, S1, 88)
    a(f"s_mov_b32 s14, 0x{f32bits(1.0/640):08x}")
    a(f"v_mul_f32 v{S0}, s14, v{S0}")
    a(f"v_mul_f32 v{S1}, s14, v{S1}")
    for b, S in ((0, S0), (1, S1)):
        for e in range(10):
            a(f"v_sub_f32 v{F+10*b+e}, v{F+10*b+e}, v{S}")
    for e in range(10):
        for b, Q in ((0, Q0), (1, Q1)):
            if e == 0:
                a(f"v_mul_f32 v{Q}, v{F+10*b}, v{F+10*b}")
            else:
                a(f"v_fma_f32 v{Q}, v{F+10*b+e}, v{F+10*b+e}, v{Q}")
    wave_sum2(Q0, Q1, 88)
    a(f"v_mul_f32 v{Q0}, s14, v{Q0}")
    a(f"v_mul_f32 v{Q1}, s14, v{Q1}")
    a(f"v_cvt_pk_bf16_f32 v{t0}, v{S0}, v{S1}")
    a(f"v_cvt_pk_bf16_f32 v{t1}, v{Q0}, v{Q1}")
    a(f"v_lshlrev_b32 v{S0}, 16, v{t0}")
    a(f"v_and_b32 v{S1}, s15, v{t0}")
    a(f"v_lshlrev_b32 v{Q0}, 16, v{t1}")
    a(f"v_and_b32 v{Q1}, s15, v{t1}")
    a(f"s_mov_b32 s14, 0x{f32bits(1e-5):08x}")
    a(f"v_add_f32 v{Q0}, s14, v{Q0}")
    a(f"v_add_f32 v{Q1}, s14, v{Q1}")
    a(f"v_cvt_pk_bf16_f32 v{t1}, v{Q0}, v{Q1}")
    a(f"v_lshlrev_b32 v{Q0}, 16, v{t1}")
    a(f"v_and_b32 v{Q1}, s15, v{t1}")
    a(f"v_sqrt_f32 v{Q0}, v{Q0}")
    a(f"v_sqrt_f32 v{Q1}, v{Q1}")
    a(f"v_cvt_pk_bf16_f32 v{t1}, v{Q0}, v{Q1}")
    a(f"v_lshlrev_b32 v{Q0}, 16, v{t1}")
    a(f"v_and_b32 v{Q1}, s15, v{t1}")
    a(f"v_rcp_f32 v{Q0}, v{Q0}")
    a(f"v_rcp_f32 v{Q1}, v{Q1}")
    XH = F
    MS = [S0, S1]; RS = [Q0, Q1]
    if opts.hloc == 1:
        a("s_cmp_lg_u32 s3, 3")
        a("s_cbranch_scc1 L_noannp")
        a(f"s_mov_b32 s12, {opts.maxpoll}")
        a.label("L_annp")
        a("s_load_dwordx16 s[16:31], s[64:65], 0 glc")
        a("s_waitcnt lgkmcnt(0)")
        for i in range(8):
            a(f"s_cmp_eq_u32 s{16+2*i}, s68")
            a("s_cbranch_scc0 L_annp_no")
            a(f"s_xor_b32 s{17+2*i}, s{17+2*i}, s69")
            a(f"s_cmp_lt_u32 s{17+2*i}, 16")
            a("s_cbranch_scc0 L_annp_no")
        a("s_mov_b32 s11, 2")
        for i in range(1, 8):
            a(f"s_cmp_eq_u32 s{17+2*i}, s17")
            a("s_cselect_b32 s11, s11, 1")
        a("s_branch L_annp_done")
        a.label("L_annp_no")
        a("s_sleep 2")
        a("s_sub_u32 s12, s12, 1")
        a("s_cmp_lg_u32 s12, 0")
        a("s_cbranch_scc1 L_annp")
        a("s_mov_b32 s11, 1")
        a.label("L_annp_done")
        a("v_mov_b32 v2, 0")
        a("v_mov_b32 v3, s11")
        a(f"ds_write_b32 v2, v3 offset:{HG}")
        a.label("L_noannp")
    a(f"s_waitcnt vmcnt({4 if LATEWO else 12})")

    def each(fn):
        for i in range(5):
            for b in range(2):
                fn(XR + 2*i + b, b, i)
    each(lambda r, b, i: a(f"v_lshlrev_b32 v{r}, 16, v{r}"))
    each(lambda r, b, i: a(f"v_sub_f32 v{r}, v{r}, v{MS[b]}"))
    each(lambda r, b, i: a(f"v_cvt_pk_bf16_f32 v{r}, v{r}, 0"))
    each(lambda r, b, i: a(f"v_lshlrev_b32 v{r}, 16, v{r}"))
    each(lambda r, b, i: a(f"v_mul_f32 v{r}, v{r}, v{RS[b]}"))
    each(lambda r, b, i: a(f"v_cvt_pk_bf16_f32 v{r}, v{r}, 0"))
    each(lambda r, b, i: a(f"v_lshlrev_b32 v{XH+2*i+b}, 16, v{r}"))
    AQ = ACC; AH = ACC + 16
    for i in range(5):
        for b in range(2):
            for d in range(4):
                for hl in range(2):
                    acc = AQ + 8*b + 2*d + hl
                    xs = (XR if hl == 0 else XH) + 2*i + b
                    s2 = "0" if i == 0 else f"v{acc}"
                    a(f"v_dot2_f32_bf16 v{acc}, v{WQ+4*i+d}, v{xs}, {s2}")
    for i in range(5):
        for b in range(2):
            for d in range(2):
                for hl in range(2):
                    acc = AH + 4*b + 2*d + hl
                    xs = (XR if hl == 0 else XH) + 2*i + b
                    s2 = "0" if i == 0 else f"v{acc}"
                    a(f"v_dot2_f32_bf16 v{acc}, v{W1+2*i+d}, v{xs}, {s2}")

    def reduce16(base):
        for k in range(8):
            a(f"v_permlane32_swap_b32 v{base+k}, v{base+k+8}")
        for k in range(8):
            a(f"v_add_f32 v{base+k}, v{base+k}, v{base+k+8}")
        for k in range(4):
            a(f"v_permlane16_swap_b32 v{base+k}, v{base+k+4}")
        for k in range(4):
            a(f"v_add_f32 v{base+k}, v{base+k}, v{base+k+4}")

    reduce16(AQ)
    for k in range(4):
        a(f"v_permlane32_swap_b32 v{AH+k}, v{AH+k+4}")
    for k in range(4):
        a(f"v_add_f32 v{AH+k}, v{AH+k}, v{AH+k+4}")
    for k in range(2):
        a(f"v_permlane16_swap_b32 v{AH+k}, v{AH+k+2}")
    for k in range(2):
        a(f"v_add_f32 v{AH+k}, v{AH+k}, v{AH+k+2}")
    a(f"v_lshrrev_b32 v2, 1, v{RG}")
    a(f"v_and_b32 v3, 1, v{RG}")
    a(f"v_lshlrev_b32 v{TMP}, 9, v2")
    a(f"v_lshl_add_u32 v{TMP}, v{C}, 5, v{TMP}")
    a(f"v_lshl_add_u32 v{TMP}, v3, 4, v{TMP}")
    a("s_lshl_b32 s10, s3, 10")
    a(f"v_add_u32 v{TMP}, s10, v{TMP}")
    a(f"ds_write_b128 v{TMP}, v[{AQ}:{AQ+3}] offset:{L_QP}")
    a(f"v_lshlrev_b32 v{TMP+1}, 8, v2")
    a(f"v_lshl_add_u32 v{TMP+1}, v{C}, 4, v{TMP+1}")
    a(f"v_lshl_add_u32 v{TMP+1}, v3, 3, v{TMP+1}")
    a("s_lshl_b32 s10, s3, 9")
    a(f"v_add_u32 v{TMP+1}, s10, v{TMP+1}")
    a(f"ds_write_b64 v{TMP+1}, v[{AH}:{AH+1}] offset:{L_HP}")
    VY = 31
    a("s_movk_i32 s10, 320")
    a(f"v_mul_u32_u24 v{VY}, s10, v2")
    a(f"v_lshl_add_u32 v{VY}, v{C}, 5, v{VY}")
    a(f"v_lshl_add_u32 v{VY}, v3, 4, v{VY}")
    a("s_mul_i32 s10, s3, 640")
    a(f"v_add_u32 v{VY}, s10, v{VY}")
    VZ = 12
    a(f"v_mov_b32 v{VZ}, 0")
    lds_arrive(C1, VZ, 3)
    lds_spin(C1, 4, VZ, 3)
    def read_mode():
        a(f"ds_read_b32 v3, v{VZ} offset:{HG}")
        a("s_waitcnt lgkmcnt(0)")
        a("v_readfirstlane_b32 s67, v3")
        a(f"s_mov_b32 s66, {FOFF}")
        a("s_cmp_eq_u32 s67, 2")
        a("s_cselect_b32 s66, s66, 0")
    if opts.hloc == 1:
        a(f"ds_read_b32 v3, v{VZ} offset:{HG}")
        a("s_waitcnt lgkmcnt(0)")
        a("v_readfirstlane_b32 s67, v3")
        a(f"s_mov_b32 s66, {FOFF}")
        a("s_cmp_eq_u32 s67, 2")
        a("s_cselect_b32 s66, s66, 0")
    stamp(1)

    G = TMP

    def check_tags(regs, lbl_retry_cnt, lbl_loop, lbl_done):
        tags_bad(regs)
        a(f"s_cbranch_scc1 {lbl_done}")
        a(f"s_sub_u32 {lbl_retry_cnt}, {lbl_retry_cnt}, 1")
        a(f"s_cmp_eq_u32 {lbl_retry_cnt}, 0")
        a(f"s_cbranch_scc0 {lbl_loop}")

    def preperm():
        a("s_mov_b32 s10, 0x05040100")
        a("s_mov_b32 s11, 0x07060302")
        for q in range(2):
            for d in range(4):
                r0, r1 = W2 + 8*q + d, W2 + 8*q + 4 + d
                a(f"v_perm_b32 v{LO2+4*q+d}, v{r1}, v{r0}, s10")
                a(f"v_perm_b32 v{r1}, v{r1}, v{r0}, s11")
        if not LATEWO:
            preperm_wo()

    def preperm_wo():
        a("s_mov_b32 s10, 0x05040100")
        a("s_mov_b32 s11, 0x07060302")
        for e in range(8):
            for t in range(4):
                r0, r1 = WO + 8*t + (e >> 1), WO + 8*t + 4 + (e >> 1)
                a(f"v_perm_b32 v{BOP+4*e+t}, v{r1}, v{r0}, s{10 + (e & 1)}")

    a("s_cmp_eq_u32 s3, 3")
    a("s_cbranch_scc1 L_h1_gather")
    if 'F' in opts.abl:
        a("s_cmp_eq_u32 s3, 2")
        a("s_cbranch_scc0 L_now2skip")
        a("s_waitcnt vmcnt(0)")
        preperm()
        a("s_branch L_b3")
        a.label("L_now2skip")
    a(f"v_lshlrev_b32 v2, 3, v0")
    a("s_cmp_eq_u32 s3, 2")
    a("s_cbranch_scc1 L_h1_pubh")
    a("s_lshl_b32 s10, s3, 9")
    a(f"v_add_u32 v2, s10, v2")
    for w in range(4):
        a(f"ds_read_b64 v[{G+4+2*w}:{G+5+2*w}], v2 offset:{L_QP + w*1024}")
    a("s_lshl_b32 s11, s3, 10")
    a("s_branch L_h1_pub")
    a.label("L_h1_pubh")
    for w in range(4):
        a(f"ds_read_b64 v[{G+4+2*w}:{G+5+2*w}], v2 offset:{L_HP + w*512}")
    a("s_movk_i32 s11, 2048")
    a.label("L_h1_pub")
    a("s_mul_i32 s10, s6, 3072")
    a("s_add_u32 s10, s10, s11")
    a(f"v_lshl_add_u32 v3, v0, 4, s10")
    set_tag(G)
    a("s_waitcnt lgkmcnt(0)")
    a(f"v_add_f32 v{G}, v{G+4}, v{G+6}")
    a(f"v_add_f32 v{G+1}, v{G+5}, v{G+7}")
    a(f"v_add_f32 v{G+8}, v{G+8}, v{G+10}")
    a(f"v_add_f32 v{G+9}, v{G+9}, v{G+11}")
    a(f"v_add_f32 v{G}, v{G}, v{G+8}")
    a(f"v_add_f32 v{G+1}, v{G+1}, v{G+9}")
    if opts.h1f:
        a(f"s_mov_b32 s10, {FOFF}")
        a(f"buffer_store_dwordx4 v[{G}:{G+3}], v3, s[56:59], s10 offen")
    if 'D' in opts.abl:
        a("s_mov_b64 exec, 0xffffffff")
    if opts.hloc == 1:
        dual_store(f"v[{G}:{G+3}]", "v3", "dwordx4", "s67", "h1")
    elif 'N' not in opts.abl:
        a(f"buffer_store_dwordx4 v[{G}:{G+3}], v3, s[56:59], 0 offen sc1")
    a("s_mov_b64 exec, -1")
    a(f"s_mul_i32 s10, s4, {GSTR}")
    a("s_lshl_b32 s11, s3, 6")
    a("s_add_u32 s10, s10, s11")
    a("s_lshl_b32 s11, s5, 3")
    a("s_add_u32 s10, s10, s11")
    a(f"s_add_u32 s10, s10, {WS_H1F}")
    a("v_mov_b32 v3, s10")
    a("s_mov_b64 exec, 1")
    if opts.hloc == 2:
        a("s_getreg_b32 s10, hwreg(HW_REG_XCC_ID)")
        a("s_and_b32 s10, s10, 15")
        a("s_xor_b32 s10, s10, s69")
        a(f"v_mov_b32 v{G+4}, s68")
        a(f"v_mov_b32 v{G+5}, s10")
        a(f"buffer_store_dwordx2 v[{G+4}:{G+5}], v3, s[56:59], 0 offen sc1")
    elif opts.hloc:
        dual_store(f"v[{G+2}:{G+3}]", "v3", "dwordx2", "s67", "h1h")
    elif 'H' not in opts.abl:
        a(f"buffer_store_dwordx2 v[{G+2}:{G+3}], v3, s[56:59], 0 offen sc1")
    a("s_mov_b64 exec, -1")
    if 'P' in opts.abl:
        a("s_branch L_fin")
    a("s_cmp_eq_u32 s3, 2")
    a("s_cbranch_scc1 L_h1_gather")
    a(f"s_waitcnt vmcnt({3 if opts.h1f else 2})")
    preperm()
    if opts.fast:
        a("s_cmp_lg_u32 s3, 0")
        a("s_cbranch_scc1 L_nopre")
        for r in range(4):
            a(f"v_mov_b32 v{G+r}, 0")
        a("s_lshl_b32 s10, s6, 10")
        a(f"s_add_u32 s10, s10, {WS_H2 + FOFF}")
        a(f"v_lshl_add_u32 v3, v0, 4, s10")
        if opts.preld:
            a(f"buffer_load_dwordx4 v[{G}:{G+3}], v3, s[56:59], 0 offen")
        else:
            a(f"buffer_store_dwordx4 v[{G}:{G+3}], v3, s[56:59], 0 offen")
        a(f"s_mul_i32 s10, s4, {GSTR}")
        a("s_lshl_b32 s11, s5, 7")
        a("s_add_u32 s10, s10, s11")
        a(f"s_add_u32 s10, s10, {WS_ML + FOFF}")
        a(f"v_lshl_add_u32 v2, v0, 4, s10")
        a("s_mov_b64 exec, 0xff")
        if opts.preld:
            a(f"buffer_load_dwordx4 v[{G+4}:{G+7}], v2, s[56:59], 0 offen")
        else:
            a(f"buffer_store_dwordx4 v[{G}:{G+3}], v2, s[56:59], 0 offen")
        a("s_mov_b64 exec, -1")
        if opts.preld:
            a("s_waitcnt vmcnt(0)")
        a.label("L_nopre")
    stamp(2)
    a("s_branch L_b3")

    a.label("L_h1_gather")
    if 'P' in opts.abl:
        a("s_branch L_fin")
    a("s_lshl_b32 s10, s7, 10")
    a("s_cmp_eq_u32 s3, 2")
    a("s_cselect_b32 s10, 2048, s10")
    a("s_mul_i32 s11, s4, 24576")
    a("s_add_u32 s10, s10, s11")
    a(f"v_lshl_add_u32 v3, v0, 4, s10")
    for jj in range(1, 8):
        a(f"s_mov_b32 s{88+jj}, {jj*3072}")
    a("s_cmp_eq_u32 s3, 2")
    a("s_cbranch_scc1 L_pp2")
    a("s_waitcnt vmcnt(0)")
    a("s_branch L_pp")
    a.label("L_pp2")
    a(f"s_waitcnt vmcnt({3 if opts.h1f else 2})")
    a.label("L_pp")
    preperm()
    a("s_cmp_eq_u32 s3, 2")
    a("s_cselect_b32 s10, 2, s7")
    a("s_lshl_b32 s10, s10, 6")
    a(f"s_mul_i32 s11, s4, {GSTR}")
    a("s_add_u32 s10, s10, s11")
    a(f"s_add_u32 s10, s10, {WS_H1F}")
    if opts.hloc == 2:
        a("s_add_u32 s14, s56, s10")
        a("s_addc_u32 s15, s57, 0")
        a(f"s_mov_b32 s12, {opts.maxpoll}")
        a.label("L_hx")
        a("s_load_dwordx16 s[16:31], s[14:15], 0 glc")
        a("s_waitcnt lgkmcnt(0)")
        for i in range(8):
            a(f"s_cmp_eq_u32 s{16+2*i}, s68")
            a("s_cbranch_scc0 L_hx_no")
            a(f"s_xor_b32 s{17+2*i}, s{17+2*i}, s69")
            a(f"s_cmp_lt_u32 s{17+2*i}, 16")
            a("s_cbranch_scc0 L_hx_no")
        a("s_mov_b32 s11, 2")
        for i in range(1, 8):
            a(f"s_cmp_eq_u32 s{17+2*i}, s17")
            a("s_cselect_b32 s11, s11, 1")
        a("s_branch L_hx_done")
        a.label("L_hx_no")
        a("s_sub_u32 s12, s12, 1")
        a("s_cmp_lg_u32 s12, 0")
        a("s_cbranch_scc1 L_hx")
        a("s_mov_b32 s11, 1")
        a.label("L_hx_done")
        a("s_cmp_eq_u32 s3, 3")
        a("s_cbranch_scc0 L_hx_nw")
        a("v_mov_b32 v2, s11")
        a(f"ds_write_b32 v{VZ}, v2 offset:{HG}")
        a.label("L_hx_nw")
    if opts.hloc == 1:
        a("s_add_u32 s10, s10, s66")
        a("v_add_u32 v3, s66, v3")
    if opts.hloc == 1:
        a("s_cmp_eq_u32 s67, 2")
        a("s_cbranch_scc0 L_hint_glob")
        a(f"v_lshl_add_u32 v2, v0, 3, s10")
        a(f"s_mov_b32 s12, {opts.maxpoll}")
        a("s_mov_b64 exec, 0xff")
        a.label("L_hintv")
        a(f"buffer_load_dwordx2 v[{G}:{G+1}], v2, s[56:59], 0 offen sc1")
        a("s_waitcnt vmcnt(0)")
        a(f"v_cmp_ne_u64 vcc, v[{G}:{G+1}], s[68:69]")
        a("s_cmp_eq_u64 vcc, 0")
        a("s_cbranch_scc1 L_hintv_done")
        if opts.hvsleep:
            a(f"s_sleep {opts.hvsleep}")
        a("s_sub_u32 s12, s12, 1")
        a("s_cmp_lg_u32 s12, 0")
        a("s_cbranch_scc1 L_hintv")
        a.label("L_hintv_done")
        a("s_mov_b64 exec, -1")
        a("s_branch L_hint_end")
        a.label("L_hint_glob")
        hint_poll("hint1", 10, opts.hsleep)
        a.label("L_hint_end")
    elif "h" not in opts.abl and opts.hloc != 2:
        hint_poll("hint1", 10, opts.hsleep)
    if "g" not in opts.abl:
        a(f"s_mov_b32 s12, {opts.maxpoll}")
        if opts.h1f:
            a(f"v_add_u32 v3, {FOFF}, v3")
            a(f"s_mov_b32 s13, {FOFF}")
        a.label("L_poll1")
        for jj in range(8):
            so = "0" if jj == 0 else f"s{88+jj}"
            a(f"buffer_load_dwordx4 v[{G+4*jj}:{G+4*jj+3}], v3, s[56:59], {so} offen sc1")
        a("s_waitcnt vmcnt(0)")
        if opts.h1f:
            tags_bad([G+4*jj for jj in range(8)])
            a("s_cbranch_scc1 L_poll1_done")
            a("v_subrev_u32 v3, s13, v3")
            a("s_mov_b32 s13, 0")
            a("s_sub_u32 s12, s12, 1")
            a("s_cmp_eq_u32 s12, 0")
            a("s_cbranch_scc0 L_poll1")
        elif "h" not in opts.abl:
            check_tags([G+4*jj for jj in range(8)], "s12", "L_poll1", "L_poll1_done")
        a.label("L_poll1_done")
    stamp(2)
    for e in range(2):
        a(f"v_add_f32 v{G+e}, v{G+e}, v{G+4+e}")
        a(f"v_add_f32 v{G+8+e}, v{G+8+e}, v{G+12+e}")
        a(f"v_add_f32 v{G+16+e}, v{G+16+e}, v{G+20+e}")
        a(f"v_add_f32 v{G+24+e}, v{G+24+e}, v{G+28+e}")
    for e in range(2):
        a(f"v_add_f32 v{G+e}, v{G+e}, v{G+8+e}")
        a(f"v_add_f32 v{G+16+e}, v{G+16+e}, v{G+24+e}")
    for e in range(2):
        a(f"v_add_f32 v{G+e}, v{G+e}, v{G+16+e}")
    a(f"v_lshlrev_b32 v2, 2, v0")
    a("s_cmp_eq_u32 s3, 2")
    a("s_cbranch_scc0 L_qw")
    a(f"v_max_f32 v{G}, 0, v{G}")
    a(f"v_max_f32 v{G+1}, 0, v{G+1}")
    a(f"v_add_u32 v2, {L_H - L_Q}, v2")
    a.label("L_qw")
    a(f"v_cvt_pk_bf16_f32 v{G}, v{G}, v{G+1}")
    a(f"ds_write_b32 v2, v{G} offset:{L_Q}")
    a("v_mov_b32 v2, s68")
    a("v_mov_b32 v3, s69")
    a(f"ds_write_b64 v{VZ}, v[2:3] offset:{L_TAG}")
    a("s_cmp_eq_u32 s3, 2")
    a(f"s_movk_i32 s10, {QF}")
    a(f"s_movk_i32 s11, {HF}")
    a(f"s_cselect_b32 s10, s11, s10")
    a("v_mov_b32 v2, s10")
    a("v_mov_b32 v3, 1")
    a(f"ds_write_b32 v2, v3")
    a.label("L_b3")
    if 'G' in opts.abl:
        a("s_branch L_fin")
    if 'F' in opts.abl:
        a("s_branch L_noy2")
    lds_spin(HF, 1, VZ, 3, sleep=opts.hfsleep)
    a("s_lshl_b32 s10, s3, 5")
    a(f"v_lshl_add_u32 v2, v{RG}, 3, s10")
    a(f"ds_read_b64 v[{TMP}:{TMP+1}], v2 offset:{L_H}")
    a(f"ds_read_b64 v[{TMP+2}:{TMP+3}], v2 offset:{L_H+128}")
    a("s_waitcnt lgkmcnt(0)")
    for q in range(2):
        for b in range(2):
            for d in range(4):
                for hl in range(2):
                    acc = AY + 8*b + 2*d + hl
                    w = (LO2 + 4*q + d) if hl == 0 else (W2 + 8*q + 4 + d)
                    s2 = "0" if q == 0 else f"v{acc}"
                    a(f"v_dot2_f32_bf16 v{acc}, v{w}, v{TMP+2*b+q}, {s2}")
    reduce16(AY)
    a(f"s_mov_b32 s10, {LANES10}")
    a(f"s_mov_b32 s11, {LANES10}")
    a("s_mov_b64 exec, s[10:11]")
    a(f"ds_write_b128 v{VY}, v[{AY}:{AY+3}] offset:{L_Y2P}")
    a("s_mov_b64 exec, -1")
    lds_arrive(C4, VZ, 3, rtn=True)
    a("s_cmp_eq_u32 s10, 3")
    a("s_cbranch_scc0 L_noy2")
    a(f"v_lshlrev_b32 v2, 3, v0")
    for w in range(4):
        a(f"ds_read_b64 v[{TMP+8+2*w}:{TMP+9+2*w}], v2 offset:{L_Y2P + w*640}")
    for w in range(4):
        a(f"ds_read_b64 v[{TMP+16+2*w}:{TMP+17+2*w}], v2 offset:{L_Y2P + w*640 + 512}")
    def pair_addr(vdst, vp, vt):
        a(f"v_lshrrev_b32 v{vdst}, 2, v{vp}")
        a(f"v_cmp_lt_u32 vcc, 39, v{vp}")
        a(f"v_mov_b32 v{vt}, 0")
        a(f"v_cndmask_b32 v{vt}, v{vt}, v{TMP+31}, vcc")
        a(f"v_add_u32 v{vdst}, v{vdst}, v{vt}")
        a(f"v_lshlrev_b32 v{vdst}, 11, v{vdst}")
        a(f"v_and_b32 v{vt}, 2, v{vp}")
        a(f"v_lshl_add_u32 v{vdst}, v{vt}, 9, v{vdst}")
        a(f"v_and_b32 v{vt}, 1, v{vp}")
        a(f"v_lshl_add_u32 v{vdst}, v{vt}, 4, v{vdst}")
        a(f"v_add_u32 v{vdst}, s10, v{vdst}")
    if opts.y2lay:
        a("s_mul_i32 s10, s4, 10240")
        a("s_mul_i32 s11, s5, 1280")
        a("s_add_u32 s10, s10, s11")
        a(f"s_add_u32 s10, s10, {WS_H3B}")
        a("v_lshl_add_u32 v3, v0, 4, s10")
        a("v_add_u32 v2, 1024, v3")
    else:
        a("s_mul_i32 s10, s5, 20480")
        a("s_lshl_b32 s11, s4, 5")
        a("s_add_u32 s10, s10, s11")
        a(f"s_add_u32 s10, s10, {WS_H3B}")
        a(f"v_mov_b32 v{TMP+31}, 70")
        pair_addr(3, 0, TMP + 30)
        a(f"v_add_u32 v{TMP+29}, 64, v0")
        pair_addr(2, TMP + 29, TMP + 30)
    set_tag(TMP)
    set_tag(TMP+4)
    a("s_waitcnt lgkmcnt(0)")
    for e in range(2):
        a(f"v_add_f32 v{TMP+8+e}, v{TMP+8+e}, v{TMP+10+e}")
        a(f"v_add_f32 v{TMP+12+e}, v{TMP+12+e}, v{TMP+14+e}")
        a(f"v_add_f32 v{TMP+e}, v{TMP+8+e}, v{TMP+12+e}")
    if 'y' not in opts.abl:
        a(f"buffer_store_dwordx4 v[{TMP}:{TMP+3}], v3, s[56:59], 0 offen sc1")
    for e in range(2):
        a(f"v_add_f32 v{TMP+16+e}, v{TMP+16+e}, v{TMP+18+e}")
        a(f"v_add_f32 v{TMP+20+e}, v{TMP+20+e}, v{TMP+22+e}")
        a(f"v_add_f32 v{TMP+4+e}, v{TMP+16+e}, v{TMP+20+e}")
    a("s_mov_b64 exec, 0xffff")
    if 'y' not in opts.abl:
        a(f"buffer_store_dwordx4 v[{TMP+4}:{TMP+7}], v2, s[56:59], 0 offen sc1")
    a("s_mov_b64 exec, -1")
    a.label("L_noy2")
    stamp(3)
    MASK = 120
    AOP = 136
    ACC2 = 96
    YR = 104
    VPH, VYW, VY0, VY1 = 13, 14, 15, 16
    GY = 20
    a("v_lshrrev_b32 v2, 1, v0")
    a("v_and_b32 v2, 7, v2")
    for q in range(4):
        for h in range(2):
            a(f"v_cmp_eq_u32 vcc, {2*q+h}, v2")
            a(f"v_cndmask_b32 v{MASK+2*q+h}, 0, -1, vcc")
    a("v_and_b32 v3, 1, v0")
    a("v_lshlrev_b32 v3, 12, v3")
    a("v_lshrrev_b32 v4, 1, v2")
    a("v_lshl_add_u32 v3, v4, 10, v3")
    a(f"v_lshl_add_u32 v3, v{RG}, 6, v3")
    a("v_and_b32 v4, 1, v2")
    a("v_lshl_add_u32 v3, v4, 5, v3")
    a("s_lshl_b32 s10, s4, 13")
    a("s_lshl_b32 s11, s3, 8")
    a("s_add_u32 s10, s10, s11")
    a(f"s_add_u32 s10, s10, {WS_H2}")
    a(f"v_add_u32 v{VPH}, s10, v3")
    a("s_lshl_b32 s10, s3, 10")
    a(f"v_lshl_add_u32 v{VYW}, v0, 4, s10")
    a(f"v_lshlrev_b32 v3, 11, v{C}")
    a(f"v_lshrrev_b32 v4, 1, v{RG}")
    a("v_lshl_add_u32 v3, v4, 10, v3")
    a(f"v_and_b32 v4, 1, v{RG}")
    a("v_lshl_add_u32 v3, v4, 4, v3")
    a("s_mul_i32 s10, s5, 20480")
    a("s_lshl_b32 s11, s4, 5")
    a("s_add_u32 s10, s10, s11")
    a(f"s_add_u32 s10, s10, {WS_H3A}")
    a(f"v_add_u32 v{VY0}, s10, v3")
    a(f"v_lshlrev_b32 v{VY1}, 4, v0")
    if opts.y1lay:
        a("s_mul_i32 s10, s4, 10240")
        a("s_mul_i32 s11, s5, 1280")
        a("s_add_u32 s10, s10, s11")
        a(f"s_add_u32 s10, s10, {WS_H3A}")
        a(f"v_lshl_add_u32 v{VY0}, v0, 4, s10")
        a("v_and_b32 v3, 3, v0")
        a("v_lshrrev_b32 v4, 2, v0")
        a("v_and_b32 v4, 15, v4")
        a("v_lshl_add_u32 v3, v3, 4, v4")
        a(f"v_lshlrev_b32 v{VY1}, 4, v3")
    set_tag(GY)
    set_tag(GY + 4)
    a("s_cmp_lg_u32 s3, 0")
    a("s_cbranch_scc1 L_noml")
    lds_spin(C2, 8, VZ, 3, sleep=1)
    a(f"ds_read_b128 v[{TMP}:{TMP+3}], v{VZ} offset:{L_ML}")
    a(f"ds_read_b128 v[{TMP+4}:{TMP+7}], v{VZ} offset:{L_ML+16}")
    a(f"ds_read_b128 v[{TMP+8}:{TMP+11}], v{VZ} offset:{L_ML+32}")
    a(f"ds_read_b128 v[{TMP+12}:{TMP+15}], v{VZ} offset:{L_ML+48}")
    GM = TMP + 16
    set_tag(GM)
    a(f"s_mul_i32 s10, s4, {GSTR}")
    a("s_lshl_b32 s11, s5, 7")
    a("s_add_u32 s10, s10, s11")
    a(f"s_add_u32 s10, s10, {WS_ML}")
    a("v_mov_b32 v3, s10")
    a(f"s_mov_b32 s14, 0x{f32bits(LOG2E):08x}")
    a("s_waitcnt lgkmcnt(0)")
    M = GM
    a(f"v_max3_f32 v{M}, v{TMP}, v{TMP+1}, v{TMP+2}")
    a(f"v_max3_f32 v{M}, v{M}, v{TMP+3}, v{TMP+4}")
    a(f"v_max3_f32 v{M}, v{M}, v{TMP+5}, v{TMP+6}")
    a(f"v_max_f32 v{M}, v{M}, v{TMP+7}")
    E8 = TMP + 24
    for w in range(8):
        a(f"v_sub_f32 v{E8+w}, v{TMP+w}, v{M}")
    for w in range(8):
        a(f"v_mul_f32 v{E8+w}, s14, v{E8+w}")
    for w in range(8):
        a(f"v_exp_f32 v{E8+w}, v{E8+w}")
    a("s_mov_b64 exec, 1")
    a(f"ds_write_b128 v{VZ}, v[{E8}:{E8+3}] offset:{L_F}")
    a(f"ds_write_b128 v{VZ}, v[{E8+4}:{E8+7}] offset:{L_F+16}")
    a("v_mov_b32 v4, 1")
    a(f"ds_write_b32 v{VZ}, v4 offset:{FF}")
    a("s_mov_b64 exec, -1")
    Ls = GM + 1
    a(f"v_mul_f32 v{Ls}, v{E8}, v{TMP+8}")
    for w in range(1, 8):
        a(f"v_fma_f32 v{Ls}, v{E8+w}, v{TMP+8+w}, v{Ls}")
    a("s_mov_b64 exec, 1")
    if opts.hloc:
        if opts.hloc == 2:
            a(f"ds_read_b32 v4, v{VZ} offset:{HG}")
            a("s_waitcnt lgkmcnt(0)")
            a("v_readfirstlane_b32 s67, v4")
        dual_store(f"v[{GM}:{GM+3}]", "v3", "dwordx4", "s67", "ml")
    else:
        if opts.fast:
            a(f"s_mov_b32 s10, {FOFF}")
            a(f"buffer_store_dwordx4 v[{GM}:{GM+3}], v3, s[56:59], s10 offen")
        a(f"buffer_store_dwordx4 v[{GM}:{GM+3}], v3, s[56:59], 0 offen sc1")
    a("s_mov_b64 exec, -1")
    if opts.fast and opts.reclaim:
        for r in range(4):
            a(f"v_mov_b32 v{TMP+r}, 0")
        a("s_lshl_b32 s10, s6, 10")
        a(f"s_add_u32 s10, s10, {WS_H2 + FOFF}")
        a(f"v_lshl_add_u32 v3, v0, 4, s10")
        a(f"buffer_store_dwordx4 v[{TMP}:{TMP+3}], v3, s[56:59], 0 offen")
    a.label("L_noml")
    if "t" in opts.abl:
        a("s_branch L_fin")
    GP = TMP + 28
    VFS = 17
    VML = 18
    a("v_and_b32 v3, 1, v0")
    a("v_lshlrev_b32 v3, 9, v3")
    a("v_lshrrev_b32 v4, 2, v0")
    a("v_and_b32 v4, 3, v4")
    a("v_lshl_add_u32 v3, v4, 7, v3")
    a(f"s_mul_i32 s10, s4, {GSTR}")
    a(f"s_add_u32 s10, s10, {WS_ML}")
    a(f"v_add_u32 v{VML}, s10, v3")
    a(f"s_mul_i32 s9, s4, {GSTR}")
    a(f"s_add_u32 s9, s9, {WS_H2F}")
    a("s_lshl_b32 s10, s5, 3")
    a("s_add_u32 s10, s10, s9")
    a("v_mov_b32 v19, s10")
    def calc_f():
        a(f"v_max_f32_dpp v5, v{GP}, v{GP} row_ror:4 row_mask:0xf bank_mask:0xf")
        a(f"v_max_f32_dpp v5, v5, v5 row_ror:8 row_mask:0xf bank_mask:0xf")
        a(f"v_sub_f32 v6, v{GP}, v5")
        a(f"v_mul_f32 v6, s14, v6")
        a(f"v_exp_f32 v6, v6")
        a(f"v_mul_f32 v7, v6, v{GP+1}")
        a(f"v_add_f32_dpp v7, v7, v7 row_ror:4 row_mask:0xf bank_mask:0xf")
        a(f"v_add_f32_dpp v7, v7, v7 row_ror:8 row_mask:0xf bank_mask:0xf")
        a(f"v_rcp_f32 v7, v7")
        a(f"v_mul_f32 v{VFS}, v6, v7")
    SRC = "s13"
    if not opts.fast:
        lds_spin(C6, 8, VZ, 3, sleep=2)
    if opts.fast:
        lds_spin(FF, 1, VZ, 3, sleep=4)
        if opts.hloc == 2:
            read_mode()
        if LATEWO:
            lds_spin(HG, opts.wcnt, VZ, 3, sleep=2)
            a("s_movk_i32 s12, 5120")
            issue_wo(1)
        a(f"s_mov_b32 {SRC}, {'s66' if opts.hloc else FOFF}")
        a(f"s_mov_b32 s12, {opts.maxpoll}")
        a.label("L_pollml")
        a(f"buffer_load_dwordx4 v[{GP}:{GP+3}], v{VML}, s[56:59], {SRC} offen sc1")
        a("s_waitcnt vmcnt(0)")
        tags_bad([GP])
        a("s_cbranch_scc1 L_pollml_done")
        a(f"s_sleep {opts.mlsleep}")
        a(f"s_cmp_lt_u32 s12, {opts.maxpoll - opts.nf}")
        a(f"s_cselect_b32 s10, {FOFF}, 0")
        a(f"s_xor_b32 {SRC}, {SRC}, s10")
        a("s_sub_u32 s12, s12, 1")
        a("s_cmp_lg_u32 s12, 0")
        a("s_cbranch_scc1 L_pollml")
        a.label("L_pollml_done")
        a(f"s_mov_b32 s14, 0x{f32bits(LOG2E):08x}")
        calc_f()
        if LATEWO:
            preperm_wo()
        lds_spin(C6, 8, VZ, 3, sleep=1)
        a(f"s_mov_b32 {SRC}, {'s66' if opts.hloc else FOFF}")
    else:
        a("s_cmp_lg_u32 s3, 0")
        a("s_cbranch_scc1 L_nohint0")
        a("s_mov_b64 exec, 1")
        a(f"buffer_store_dwordx2 v[{GY+2}:{GY+3}], v19, s[56:59], 0 offen sc1")
        a("s_mov_b64 exec, -1")
        a.label("L_nohint0")
        a(f"buffer_load_dwordx4 v[{GP}:{GP+3}], v{VML}, s[56:59], 0 offen sc1")
        a("s_cmp_lg_u32 s3, 0")
        a("s_cbranch_scc1 L_nohint")
        hint_poll("hint2", 9, 1)
        a("v_mov_b32 v3, 1")
        a(f"ds_write_b32 v{VZ}, v3 offset:{HG}")
        a.label("L_nohint")
        lds_spin(HG, 1, VZ, 3)
        a(f"s_mov_b32 s12, {opts.maxpoll}")
        a.label("L_pollml")
        a("s_waitcnt vmcnt(0)")
        tags_bad([GP])
        a("s_cbranch_scc1 L_pollml_done")
        a("s_sleep 2")
        a(f"buffer_load_dwordx4 v[{GP}:{GP+3}], v{VML}, s[56:59], 0 offen sc1")
        a("s_sub_u32 s12, s12, 1")
        a("s_cmp_lg_u32 s12, 0")
        a("s_cbranch_scc1 L_pollml")
        a.label("L_pollml_done")
    stamp(4)
    a(f"s_mov_b32 s9, {640 if opts.y1lay else 160*1024}")
    a(f"s_mov_b32 s14, 0x{f32bits(LOG2E):08x}")
    n2 = opts.npoll2
    assert n2 <= (4 if opts.fast else 3)
    PS = [[TMP + 8*k, TMP + 8*k + 4] for k in range(n2)]

    def issue2(k):
        so = SRC if opts.fast else "0"
        a(f"buffer_load_dwordx4 v[{PS[k][0]}:{PS[k][0]+3}], v{VPH}, s[56:59], {so} offen sc1")
        a(f"buffer_load_dwordx4 v[{PS[k][1]}:{PS[k][1]+3}], v{VPH}, s[56:59], {so} offen offset:16 sc1")
        if opts.fast:
            a(f"s_cmp_lt_u32 s12, {opts.maxpoll - opts.nf}")
            a(f"s_cselect_b32 s10, {FOFF}, 0")
            a(f"s_xor_b32 {SRC}, {SRC}, s10")

    O4 = [4, 5, 6, 7]
    pipelined_poll("pollH2", n2, PS, issue2, opts.stag2, O4, after_issue=(None if opts.fast else calc_f))
    stamp(5)
    for r in O4:
        a(f"v_mul_f32 v{r}, v{VFS}, v{r}")
    for ctrl in ["row_ror:4", "row_ror:8"]:
        for r in O4:
            a(f"v_add_f32_dpp v{r}, v{r}, v{r} {ctrl} row_mask:0xf bank_mask:0xf")
    D0, D1 = 2, 3
    a(f"v_cvt_pk_bf16_f32 v{D0}, v{O4[0]}, v{O4[1]}")
    a(f"v_cvt_pk_bf16_f32 v{D1}, v{O4[2]}, v{O4[3]}")
    for q in range(4):
        a(f"v_and_b32 v{AOP+4*q}, v{D0}, v{MASK+2*q}")
        a(f"v_and_b32 v{AOP+4*q+1}, v{D1}, v{MASK+2*q}")
        a(f"v_and_b32 v{AOP+4*q+2}, v{D0}, v{MASK+2*q+1}")
        a(f"v_and_b32 v{AOP+4*q+3}, v{D1}, v{MASK+2*q+1}")
    for q in range(4):
        for od in range(2):
            acc = ACC2 + 4*od
            c = "0" if q == 0 else f"v[{acc}:{acc+3}]"
            e = 2*q + od
            a(f"v_mfma_f32_16x16x32_bf16 v[{acc}:{acc+3}], v[{AOP+4*q}:{AOP+4*q+3}], v[{BOP+4*e}:{BOP+4*e+3}], {c}")
    YW = YR
    a(f"v_add_f32 v{YW}, v{ACC2}, v{ACC2+2}")
    a(f"v_add_f32 v{YW+1}, v{ACC2+4}, v{ACC2+6}")
    a(f"v_add_f32 v{YW+2}, v{ACC2+1}, v{ACC2+3}")
    a(f"v_add_f32 v{YW+3}, v{ACC2+5}, v{ACC2+7}")
    a(f"ds_write_b128 v{VYW}, v[{YW}:{YW+3}] offset:{L_Y1P}")
    lds_arrive(C5, VZ, 3, rtn=True)
    stamp(6)
    a("s_cmp_eq_u32 s10, 3")
    a("s_cbranch_scc0 L_fin")
    for w in range(4):
        a(f"ds_read_b128 v[{YR+4*w}:{YR+4*w+3}], v{VY1} offset:{L_Y1P + w*1024}")
    if opts.y1lay:
        a("s_mov_b32 s10, -1")
        a("s_mov_b32 s11, 0xff")
    else:
        a(f"s_mov_b32 s10, {LANES10}")
        a(f"s_mov_b32 s11, {LANES10}")
    a("s_waitcnt lgkmcnt(2)")
    for e in range(4):
        a(f"v_add_f32 v{YR+e}, v{YR+e}, v{YR+4+e}")
    a("s_waitcnt lgkmcnt(0)")
    for e in range(4):
        a(f"v_add_f32 v{YR+8+e}, v{YR+8+e}, v{YR+12+e}")
    a(f"v_add_f32 v{GY}, v{YR}, v{YR+8}")
    a(f"v_add_f32 v{GY+1}, v{YR+1}, v{YR+9}")
    a(f"v_add_f32 v{GY+4}, v{YR+2}, v{YR+10}")
    a(f"v_add_f32 v{GY+5}, v{YR+3}, v{YR+11}")
    a("s_mov_b64 exec, s[10:11]")
    a(f"buffer_store_dwordx4 v[{GY}:{GY+3}], v{VY0}, s[56:59], 0 offen sc1")
    a(f"buffer_store_dwordx4 v[{GY+4}:{GY+7}], v{VY0}, s[56:59], s9 offen sc1")
    a("s_mov_b64 exec, -1")
    stamp(7)
    a.label("L_fin")
    if stamps:
        a("s_mul_i32 s90, s6, 12")
        a("s_add_u32 s90, s90, s3")
        a("s_lshl_b32 s90, s90, 6")
        a(f"s_add_u32 s90, s90, {WS_STAMP}")
        a("v_mov_b32 v2, s90")
        a("s_waitcnt lgkmcnt(0)")
        for i in range(16):
            a(f"v_mov_b32 v{8+i}, s{ST0+i}")
        a("s_mov_b64 exec, 1")
        for q in range(4):
            a(f"buffer_store_dwordx4 v[{8+4*q}:{11+4*q}], v2, s[56:59], 0 offen offset:{16*q}")
    a.label("L_end")
    a("s_endpgm")

    nv = 168
    out = HEADER
    out += f"; @launch grid=(256,1,1) block=(768,1,1) lds={L_TOTAL}\n"
    out += '.amdgcn_target "amdgcn-amd-amdhsa--gfx950"\n.text\n'
    out += f".globl {KNAME}\n.p2align 8\n.type {KNAME},@function\n{KNAME}:\n"
    out += "\n".join(a.l) + "\n"
    out += f""".section .rodata,"a"
.p2align 6
.amdhsa_kernel {KNAME}
  .amdhsa_next_free_vgpr {nv}
  .amdhsa_next_free_sgpr 96
  .amdhsa_accum_offset {nv}
  .amdhsa_group_segment_fixed_size 0
  .amdhsa_kernarg_size 88
  .amdhsa_user_sgpr_count 2
  .amdhsa_user_sgpr_kernarg_segment_ptr 1
  .amdhsa_system_sgpr_workgroup_id_x 1
.end_amdhsa_kernel
"""
    return out


def main():
    p = argparse.ArgumentParser()
    p.add_argument("-o", default="recurrent_scan__sliding_block_cached__dense_activation_relu__decode.s")
    p.add_argument("--kvpol", default="nt")
    p.add_argument("--wpol", default="nt")
    p.add_argument("--stamps", action="store_true")
    p.add_argument("--maxpoll", type=int, default=20000)
    p.add_argument("--maxspin", type=int, default=2000000)
    p.add_argument("--rotg", type=int, default=1)
    p.add_argument("--rotw", type=int, default=4)
    p.add_argument("--map", default="C")
    p.add_argument("--win", type=int, default=4)
    p.add_argument("--qkv", type=lambda s: [int(x) for x in s.split(",")], default=[1, 1, 1, 1])
    p.add_argument("--fpos", type=int, default=12)
    p.add_argument("--qpos", type=int, default=24)
    p.add_argument("--sched", default="dyn")
    p.add_argument("--kwin", type=int, default=0)
    p.add_argument("--dbgst", action="store_true")
    p.add_argument("--abl", default="")
    p.add_argument("--win2", type=int, default=0)
    p.add_argument("--bpos", type=int, default=3)
    p.add_argument("--hpos", type=int, default=8)
    p.add_argument("--ygate", type=lambda s: tuple(eval(x) for x in s.split(",")), default=(C5, 1))
    p.add_argument("--gate", type=int, default=8)
    p.add_argument("--npoll2", type=int, default=2)
    p.add_argument("--npoll3", type=int, default=4)
    p.add_argument("--stag2", type=int, default=6)
    p.add_argument("--stag3", type=int, default=3)
    p.add_argument("--prio", default="")
    p.add_argument("--qprio", type=int, default=-1)
    p.add_argument("--fast", action="store_true")
    p.add_argument("--nf", type=int, default=48)
    p.add_argument("--slow3", default="")
    p.add_argument("--mlsleep", type=int, default=4)
    p.add_argument("--reclaim", action="store_true")
    p.add_argument("--y1lay", type=int, default=0)
    p.add_argument("--y2lay", type=int, default=0)
    p.add_argument("--burst", type=int, default=-1)
    p.add_argument("--hloc", type=int, default=0)
    p.add_argument("--hvsleep", type=int, default=2)
    p.add_argument("--hsleep", type=int, default=0)
    p.add_argument("--hfsleep", type=int, default=0)
    p.add_argument("--opol", default="")
    p.add_argument("--wsw", type=int, default=99)
    p.add_argument("--fastpro", type=int, default=0)
    p.add_argument("--b0late", type=int, default=0)
    p.add_argument("--winy", type=int, default=0)
    p.add_argument("--wpos", type=int, default=-1)
    p.add_argument("--wcnt", type=int, default=8)
    p.add_argument("--preld", type=int, default=0)
    p.add_argument("--h1f", type=int, default=0)
    p.add_argument("--bhi", type=int, default=2)
    o = p.parse_args()
    open(o.o, "w").write(gen(o))
    print("wrote", o.o)


if __name__ == "__main__":
    main()
```

```python
import sys, argparse, struct
from asmh import A
from gen2 import HEADER, KNAME

WS_H1 = 0x0
WS_H2 = 0xC0000
GSTR = 4352
WS_ML = 0x340000
WS_H1F = 0x380000
WS_H2F = 0x300000
WS_H3A = 0x140000
WS_H3B = 0x190000
WS_EPOCH = 0x1F0000
WS_STAMP = 0x200000
WS_SIZE = 0x800000
FOFF = 0x400000

L_QP = 0
L_HP = 4096
L_Q = 6144
L_H = 6400
L_OP = 6656
L_ML = 10752
L_F = 10816
L_TAG = 10848
L_Y2P = 11392
L_Y1P = 13952
L_SYNC = 18048
L_TOTAL = 18176
C1, QF, HF, C2, FF, C3, C4, C5, C6, HG = [L_SYNC + 4 * i for i in range(10)]

LOG2E = 1.4426950408889634
OOB = 0x40000000
LANES10 = "0x03ff03ff"


def f32bits(x):
    return struct.unpack('<I', struct.pack('<f', x))[0]


def gen(opts):
    a = A()
    kvpol = opts.kvpol
    wpol = opts.wpol
    stamps = opts.stamps
    W = opts.win
    ST0 = 72

    def stamp(idx):
        if stamps:
            a(f"s_memrealtime s[{ST0+2*idx}:{ST0+2*idx+1}]")

    uid = [0]

    def lds_spin(off, val, vz, vt, sleep=0):
        uid[0] += 1
        lbl = f"L_spin{uid[0]}"
        a(f"s_mov_b32 s12, {opts.maxspin}")
        a.label(lbl)
        a(f"ds_read_b32 v{vt}, v{vz} offset:{off}")
        a("s_waitcnt lgkmcnt(0)")
        a(f"v_readfirstlane_b32 s10, v{vt}")
        a(f"s_cmp_ge_u32 s10, {val}")
        a(f"s_cbranch_scc1 {lbl}_done")
        if sleep:
            a(f"s_sleep {sleep}")
        a("s_sub_u32 s12, s12, 1")
        a("s_cmp_lg_u32 s12, 0")
        a(f"s_cbranch_scc1 {lbl}")
        a.label(lbl + "_done")

    def lds_arrive(off, vz, vt, rtn=False):
        a(f"v_mov_b32 v{vt}, 1")
        a("s_mov_b64 exec, 1")
        if rtn:
            a(f"ds_add_rtn_u32 v{vt}, v{vz}, v{vt} offset:{off}")
        else:
            a(f"ds_add_u32 v{vz}, v{vt} offset:{off}")
        a("s_mov_b64 exec, -1")
        if rtn:
            a("s_waitcnt lgkmcnt(0)")
            a(f"v_readfirstlane_b32 s10, v{vt}")

    def dual_store(data, addr, width, modereg, name):
        a(f"s_mov_b32 s10, {FOFF}")
        a(f"s_cmp_eq_u32 {modereg}, 2")
        a(f"s_cbranch_scc0 L_ds_{name}_g")
        a(f"buffer_store_{width} {data}, {addr}, s[56:59], s10 offen")
        a(f"s_branch L_ds_{name}_d")
        a.label(f"L_ds_{name}_g")
        a(f"buffer_store_{width} {data}, {addr}, s[56:59], 0 offen sc1")
        a.label(f"L_ds_{name}_d")

    def set_tag(r):
        a(f"v_mov_b32 v{r+2}, s68")
        a(f"v_mov_b32 v{r+3}, s69")

    def tags_bad(regs):
        for n, r in enumerate(regs):
            dst = "s[70:71]" if n == 0 else "vcc"
            a(f"v_cmp_ne_u64 {dst}, v[{r+2}:{r+3}], s[68:69]")
            if n:
                a("s_or_b64 s[70:71], s[70:71], vcc")
        a("s_cmp_eq_u64 s[70:71], 0")

    def pipelined_poll(name, nsets, setregs, issue, stag, res, slow=0, after_issue=None):
        nl = len(setregs[0])
        a(f"s_mov_b32 s12, {opts.maxpoll}")
        a("s_mov_b64 s[38:39], -1")
        for k in range(nsets):
            issue(k)
            if k == 0 and after_issue:
                after_issue()
            if k + 1 < nsets and stag:
                a(f"s_sleep {stag}")
        a.label(f"L_{name}")
        for k in range(nsets):
            a(f"s_waitcnt vmcnt({(nsets-1)*nl})")
            for n, r in enumerate(setregs[k]):
                dst = "s[70:71]" if n == 0 else "vcc"
                a(f"v_cmp_eq_u64 {dst}, v[{r+2}:{r+3}], s[68:69]")
                if n:
                    a("s_and_b64 s[70:71], s[70:71], vcc")
            a("s_and_b64 exec, s[70:71], s[38:39]")
            for n, r in enumerate(setregs[k]):
                a(f"v_mov_b32 v{res[2*n]}, v{r}")
                a(f"v_mov_b32 v{res[2*n+1]}, v{r+1}")
            a("s_andn2_b64 s[38:39], s[38:39], s[70:71]")
            a("s_mov_b64 exec, s[38:39]")
            a(f"s_cbranch_scc0 L_{name}_done")
            if slow:
                a("s_bcnt1_i32_b64 s10, s[38:39]")
                a(f"s_cmp_lt_u32 s10, {slow[0]}")
                uid[0] += 1
                a(f"s_cbranch_scc1 L_fast{uid[0]}")
                a(f"s_sleep {slow[1]}")
                a.label(f"L_fast{uid[0]}")
            issue(k)
            a("s_mov_b64 exec, -1")
        a("s_sub_u32 s12, s12, 1")
        a("s_cmp_lg_u32 s12, 0")
        a(f"s_cbranch_scc1 L_{name}")
        a.label(f"L_{name}_done")
        a("s_mov_b64 exec, -1")

    def hint_poll(name, ws_off_sgpr, sleep):
        a(f"s_add_u32 s14, s56, s{ws_off_sgpr}")
        a("s_addc_u32 s15, s57, 0")
        a(f"s_mov_b32 s12, {opts.maxpoll}")
        a.label(f"L_{name}")
        a("s_load_dwordx16 s[16:31], s[14:15], 0 glc")
        a("s_waitcnt lgkmcnt(0)")
        for i in range(8):
            a(f"s_cmp_eq_u64 s[{16+2*i}:{17+2*i}], s[68:69]")
            a(f"s_cbranch_scc0 L_{name}_no")
        a(f"s_branch L_{name}_done")
        a.label(f"L_{name}_no")
        if sleep:
            a(f"s_sleep {sleep}")
        a("s_sub_u32 s12, s12, 1")
        a("s_cmp_lg_u32 s12, 0")
        a(f"s_cbranch_scc1 L_{name}")
        a.label(f"L_{name}_done")

    a("s_cmp_ge_u32 s2, 256")
    a("s_cbranch_scc1 L_end")
    a("s_load_dwordx16 s[16:31], s[0:1], 0")
    a("s_load_dwordx4 s[32:35], s[0:1], 64")
    a("s_load_dwordx2 s[36:37], s[0:1], 80")
    if stamps:
        for i in range(1, 8):
            a(f"s_mov_b64 s[{ST0+2*i}:{ST0+2*i+1}], 0")
        stamp(0)
    a("v_lshrrev_b32 v1, 6, v0")
    a("v_and_b32 v0, 63, v0")
    if opts.map == "C":
        a("s_and_b32 s4, s2, 7")
        a("s_lshr_b32 s5, s2, 6")
        a("s_lshl_b32 s5, s5, 3")
        a("s_or_b32 s4, s4, s5")
        a("s_lshr_b32 s5, s2, 3")
        a("s_and_b32 s5, s5, 7")
    else:
        a("s_lshr_b32 s4, s2, 3")
        a("s_and_b32 s5, s2, 7")
    a("v_readfirstlane_b32 s3, v1")
    a("s_lshl_b32 s6, s4, 3")
    a("s_or_b32 s6, s6, s5")
    a("s_lshr_b32 s7, s5, 2")
    a("s_and_b32 s8, s5, 3")
    a(f"s_mov_b32 s58, {WS_SIZE}")
    a("s_mov_b32 s59, 0x00020000")
    a("s_cmp_lt_u32 s3, 4")
    a("s_cbranch_scc1 L_aux")

    VOFF, VQ, VT, VS, VACC, VK, VV, VF = 1, 2, 6, 8, 24, 32, 96, 160
    a.c("---- streaming wave ----")
    a("s_sub_u32 s3, s3, 4")
    a("s_lshl_b32 s9, s7, 5")
    a("s_add_u32 s9, s9, s4")
    a("s_lshl_b32 s9, s9, 21")
    a("s_lshl_b32 s10, s8, 17")
    a("s_add_u32 s9, s9, s10")
    a("s_add_u32 s9, s9, 1572864")
    a("s_lshl_b32 s10, s3, 14")
    a(f"v_lshl_add_u32 v{VOFF}, v0, 4, s10")
    a(f"s_mul_i32 s11, s4, {opts.rotg}")
    a(f"s_mul_i32 s12, s3, {opts.rotw}")
    a("s_add_u32 s11, s11, s12")
    if opts.xthr:
        th = [int(x) for x in opts.xthr.split(",")]
        cst = sum(t << (4 * n) for n, t in enumerate(th))
        a("s_and_b32 s12, s4, 7")
        a("s_lshl_b32 s12, s12, 2")
        a(f"s_lshr_b32 s12, {cst:#x}, s12")
        a("s_and_b32 s12, s12, 15")
    a("s_lshl_b32 s11, s11, 10")
    a("s_mov_b32 s42, 131072")
    a("s_mov_b32 s43, 0x00020000")
    a("s_mov_b32 s46, 131072")
    a("s_mov_b32 s47, 0x00020000")
    a("s_cmp_lt_u32 s4, 20")
    a("s_cselect_b32 s13, 1, 0")
    a("s_cmp_lt_u32 s3, 2")
    a("s_cselect_b32 s13, s13, 0")
    a("s_cmp_ge_u32 s4, 10")
    a("s_cselect_b32 s14, 560, 0")
    a("s_lshl_b32 s10, s4, 3")
    a("s_add_u32 s14, s14, s10")
    a("s_mul_i32 s10, s5, 80")
    a("s_add_u32 s14, s14, s10")
    a("s_lshl_b32 s10, s3, 2")
    a("s_add_u32 s14, s14, s10")
    VXV = VK + 63
    a(f"v_and_b32 v{VT}, 1, v0")
    a(f"v_lshlrev_b32 v{VT}, 1, v{VT}")
    a(f"v_lshrrev_b32 v{VT+1}, 5, v0")
    a(f"v_add3_u32 v{VT}, v{VT}, v{VT+1}, s14")
    a(f"v_lshlrev_b32 v{VQ}, 1, v{VT}")
    NPRE = opts.fastpro
    for i in range(NPRE):
        a(f"s_add_u32 s{88+i}, s11, {i*1024}")
        a(f"s_and_b32 s{88+i}, s{88+i}, 0x3c00")
    a("s_waitcnt lgkmcnt(0)")
    if "e" in opts.abl:
        stamp(5)
    a("s_add_u32 s40, s18, s9")
    a("s_addc_u32 s41, s19, 0")
    for i in range(NPRE):
        a(f"buffer_load_dwordx4 v[{VK+4*i}:{VK+4*i+3}], v{VOFF}, s[40:43], s{88+i} offen {kvpol}")
    a("s_add_u32 s44, s20, s9")
    a("s_addc_u32 s45, s21, 0")
    a("s_mov_b32 s56, s36")
    a("s_mov_b32 s57, s37")
    a("s_mov_b32 s48, s16")
    a("s_mov_b32 s49, s17")
    a("s_movk_i32 s50, 2560")
    a("s_mov_b32 s51, 0x00020000")
    a("s_mov_b32 s64, s32")
    a("s_mov_b32 s65, s33")
    a("s_movk_i32 s66, 2560")
    a("s_mov_b32 s67, 0x00020000")
    for i in range(16):
        a(f"s_add_u32 s{16+i}, s11, {i*1024}")
        a(f"s_and_b32 s{16+i}, s{16+i}, 0x3c00")
    if not opts.b0late:
        a("s_barrier")
    if "e" in opts.abl:
        stamp(6)
    a("s_cmp_eq_u32 s13, 0")
    a("s_cbranch_scc1 L_nox")
    a(f"buffer_load_ushort v{VF+7+0}, v{VQ}, s[48:51], 0 offen")
    a.label("L_nox")
    XV = VF + 7
    PRIO = {int(k): int(v) for k, v in (it.split(":") for it in opts.prio.split(",") if it)}

    def issue(n, static=True):
        if static and n in PRIO:
            a(f"s_setprio {PRIO[n]}")
        if n < 16:
            a(f"buffer_load_dwordx4 v[{VK+4*n}:{VK+4*n+3}], v{VOFF}, s[40:43], s{16+n} offen {kvpol}")
        else:
            i = n - 16
            a(f"buffer_load_dwordx4 v[{VV+4*i}:{VV+4*i+3}], v{VOFF}, s[44:47], s{16+i} offen {kvpol}")

    W2 = opts.win2 or W
    NS = 16 - W2
    slot_i = [0]
    SREM = "s9"

    FLAT = opts.sched in ("flat", "ab")
    AB = opts.sched == "ab"

    def dstamp(idx):
        if opts.dbgst:
            stamp(idx)

    def late_burst():
        a(f"s_cmp_eq_u32 {SREM}, 0")
        a("s_cbranch_scc1 L_nolate")
        for n in range(opts.kwin, 32):
            issue(n)
        dstamp(5)
        a.label("L_nolate")

    def slot():
        k = slot_i[0]
        slot_i[0] += 1
        if AB and k == opts.bpos:
            late_burst()
        if FLAT:
            return
        if opts.burst >= 0 and k > opts.burst:
            a(f"s_cmp_eq_u32 {SREM}, {NS}")
            a(f"s_cbranch_scc1 L_slot{k}_full")
            a("s_waitcnt vmcnt(0)")
            a.label(f"L_slot{k}_full")
            a(f"s_waitcnt vmcnt({15 - k})")
            return
        if opts.burst >= 0 and k == opts.burst:
            a(f"s_cmp_eq_u32 {SREM}, {NS}")
            a(f"s_cbranch_scc1 L_slot{k}_full")
            for kk in range(k, NS):
                a(f"s_cmp_gt_u32 {SREM}, {kk}")
                a(f"s_cbranch_scc0 L_slot{k}_no")
                issue(16 + 15 - kk, False)
            a.label(f"L_slot{k}_no")
            a("s_waitcnt vmcnt(0)")
            a(f"s_branch L_slot{k}_done")
            a.label(f"L_slot{k}_full")
            a(f"s_waitcnt vmcnt({W2-1})")
            for kk in range(k, NS):
                issue(16 + 15 - kk, False)
            a.label(f"L_slot{k}_done")
            return
        if k < NS:
            a(f"s_cmp_gt_u32 {SREM}, {k}")
            a(f"s_cbranch_scc0 L_slot{k}_no")
            a(f"s_waitcnt vmcnt({W2-1})")
            issue(16 + 15 - k, False)
            a(f"s_branch L_slot{k}_done")
            a.label(f"L_slot{k}_no")
            a("s_waitcnt vmcnt(0)")
            a.label(f"L_slot{k}_done")
        else:
            a(f"s_waitcnt vmcnt({max(W2 - 1 - (k - NS), 0)})")

    a(f"v_mov_b32 v{VT+1}, 0")
    for n in range(NPRE, W):
        issue(n)
    if opts.b0late:
        a("s_barrier")
    if AB:
        KW = opts.kwin
        for n in range(W, KW):
            a(f"s_waitcnt vmcnt({W-1})")
            issue(n)
        a(f"ds_read_b32 v{VT}, v{VT+1} offset:{QF}")
        a(f"s_waitcnt vmcnt({KW - 16})")
        a("s_waitcnt lgkmcnt(0)")
        a(f"v_readfirstlane_b32 {SREM}, v{VT}")
        a(f"s_cmp_lg_u32 {SREM}, 0")
        a(f"s_cbranch_scc1 L_qready")
        for n in range(KW, 32):
            issue(n)
        dstamp(5)
        lds_spin(QF, 1, VT + 1, VT, sleep=1)
        a(f"s_mov_b32 {SREM}, 0")
    elif FLAT:
        for n in range(W, 32):
            if n < opts.kwin:
                a(f"s_waitcnt vmcnt({W-1})")
            issue(n)
        dstamp(5)
        lds_spin(QF, 1, VT + 1, VT, sleep=1)
    else:
        for n in range(W, 16 + W2):
            if opts.winy and n < 16 and n >= opts.wsw:
                a(f"s_waitcnt vmcnt({opts.winy - 1})")
            elif opts.winy and n < 16:
                a("s_cmp_ge_u32 s3, s12" if opts.xthr else "s_cmp_ge_u32 s3, 4")
                a(f"s_waitcnt vmcnt({opts.winy - 1})")
                a(f"s_cbranch_scc1 L_wy{n}")
                a(f"s_waitcnt vmcnt({W - 1})")
                a.label(f"L_wy{n}")
            else:
                a(f"s_waitcnt vmcnt({(W if n < 16 else W2) - 1})")
            if "e" in opts.abl and n == W:
                stamp(7)
            if "e" in opts.abl and n == W + 4:
                stamp(4)
            issue(n)
        dstamp(5)
        if "q" in opts.abl:
            a(f"s_mov_b32 {SREM}, {NS}")
            a(f"s_waitcnt vmcnt({W2})")
            a("s_branch L_qready")
        for n in range(16 + W2, 32):
            a(f"ds_read_b32 v{VT}, v{VT+1} offset:{QF}")
            a(f"s_mov_b32 {SREM}, {32 - n}")
            a(f"s_waitcnt vmcnt({W2-1})")
            a("s_waitcnt lgkmcnt(0)")
            a(f"v_readfirstlane_b32 s10, v{VT}")
            a("s_cmp_lg_u32 s10, 0")
            a(f"s_cbranch_scc1 L_qready")
            issue(n)
        a(f"s_mov_b32 {SREM}, 0")
        a(f"s_waitcnt vmcnt({16 if False else min(W2, 16)})")
        lds_spin(QF, 1, VT + 1, VT, sleep=1)
    a.label("L_qready")
    if opts.qprio >= 0:
        a(f"s_setprio {opts.qprio}")
    a(f"v_and_b32 v{VT}, 15, v0")
    a(f"v_lshlrev_b32 v{VT}, 4, v{VT}")
    a(f"ds_read_b128 v[{VQ}:{VQ+3}], v{VT} offset:{L_Q}")
    a(f"ds_read_b64 v[{VS}:{VS+1}], v{VT+1} offset:{L_TAG}")
    if opts.hloc:
        a(f"ds_read_b32 v{VS+2}, v{VT+1} offset:{HG}")
    stamp(1)
    a("s_waitcnt lgkmcnt(0)")
    a(f"v_readfirstlane_b32 s68, v{VS}")
    a(f"v_readfirstlane_b32 s69, v{VS+1}")
    if opts.hloc:
        a(f"v_readfirstlane_b32 s8, v{VS+2}")
    _a = a
    class _F:
        def __call__(self, t):
            if "s" in opts.abl and t.startswith("v_") and not t.startswith("v_readlane"):
                return
            _a(t)
        def __getattr__(self, n):
            return getattr(_a, n)
    a = _F()
    for grp in range(4):
        if FLAT and not AB:
            a(f"s_waitcnt vmcnt({16 + 12 - 4*grp})")
        for d in range(4):
            for i in range(4*grp, 4*grp+4):
                src2 = "0" if d == 0 else f"v{VS+i}"
                a(f"v_dot2_f32_bf16 v{VS+i}, v{VK+4*i+d}, v{VQ+d}, {src2}")
    slot()
    for ctrl in ["quad_perm:[1,0,3,2]", "quad_perm:[2,3,0,1]", "row_half_mirror", "row_mirror"]:
        for i in range(16):
            a(f"v_add_f32_dpp v{VS+i}, v{VS+i}, v{VS+i} {ctrl} row_mask:0xf bank_mask:0xf")
    slot()
    a(f"s_mov_b32 s14, 0x{f32bits(128 ** -0.5):08x}")
    a("s_mov_b32 s15, 0xffff0000")
    for rnd in range(2):
        for p in range(8):
            a(f"v_cvt_pk_bf16_f32 v{VK+p}, v{VS+2*p}, v{VS+2*p+1}")
        for p in range(8):
            a(f"v_lshlrev_b32 v{VS+2*p}, 16, v{VK+p}")
            a(f"v_and_b32 v{VS+2*p+1}, s15, v{VK+p}")
        if rnd == 0:
            for i in range(16):
                a(f"v_mul_f32 v{VS+i}, s14, v{VS+i}")
    m = VT
    a(f"v_max3_f32 v{m}, v{VS}, v{VS+1}, v{VS+2}")
    for i in range(3, 15, 2):
        a(f"v_max3_f32 v{m}, v{m}, v{VS+i}, v{VS+i+1}")
    a(f"v_max_f32 v{m}, v{m}, v{VS+15}")
    for r in range(4):
        a(f"v_readlane_b32 s{60+r}, v{m}, {16*r}")
    a(f"v_mov_b32 v{m}, s60")
    a(f"v_max_f32 v{m}, s61, v{m}")
    a(f"v_max_f32 v{m}, s62, v{m}")
    a(f"v_max_f32 v{m}, s63, v{m}")
    slot()
    a(f"s_mov_b32 s14, 0x{f32bits(LOG2E):08x}")
    for i in range(16):
        a(f"v_sub_f32 v{VS+i}, v{VS+i}, v{m}")
    for i in range(16):
        a(f"v_mul_f32 v{VS+i}, s14, v{VS+i}")
    for i in range(16):
        a(f"v_exp_f32 v{VS+i}, v{VS+i}")
    PLO, PHI = VK, VK + 16
    a(f"v_mov_b32 v{VXV}, v{XV}")
    for i in range(16):
        a(f"v_cvt_pk_bf16_f32 v{PLO+i}, v{VS+i}, 0")
    for i in range(16):
        a(f"v_lshlrev_b32 v{PHI+i}, 16, v{PLO+i}")
    lsum = VT + 1
    a(f"v_add_f32 v{lsum}, v{VS}, v{VS+1}")
    for i in range(2, 16):
        a(f"v_add_f32 v{lsum}, v{lsum}, v{VS+i}")
    for r in range(4):
        a(f"v_readlane_b32 s{60+r}, v{lsum}, {16*r}")
    a(f"v_mov_b32 v{lsum}, s60")
    a(f"v_add_f32 v{lsum}, s61, v{lsum}")
    a(f"v_add_f32 v{lsum}, s62, v{lsum}")
    a(f"v_add_f32 v{lsum}, s63, v{lsum}")
    a = _a
    VZ = VQ
    a(f"s_lshl_b32 s10, s3, 2")
    a(f"v_mov_b32 v{VS}, s10")
    a(f"v_mov_b32 v{VZ}, 0")
    a(f"ds_write_b32 v{VS}, v{m} offset:{L_ML}")
    a(f"ds_write_b32 v{VS}, v{lsum} offset:{L_ML+32}")
    lds_arrive(C2, VZ, VS + 1)
    a(f"v_and_b32 v{VS}, 15, v0")
    a(f"v_lshlrev_b32 v{VS}, 5, v{VS}")
    a(f"v_lshrrev_b32 v{VS+1}, 4, v0")
    a(f"v_lshl_add_u32 v{VS}, v{VS+1}, 3, v{VS}")
    a(f"s_lshl_b32 s10, s3, 9")
    a(f"v_add_u32 v{VS}, s10, v{VS}")
    VCA, VPA, GO = VS + 2, VS + 3, VS + 4
    a(f"v_lshlrev_b32 v{VCA}, 3, v0")
    a("s_lshl_b32 s10, s6, 10")
    a(f"s_add_u32 s10, s10, {WS_H2}")
    a(f"v_lshl_add_u32 v{VPA}, v0, 4, s10")
    set_tag(GO)
    order = list(range(W2)) + list(range(15, W2 - 1, -1))
    if FLAT:
        order = list(range(16))
    dstamp(6)
    if AB and opts.bpos >= 3:
        late_burst()
    if FLAT:
        slot_i[0] = 16
    for t in range(16):
        i = order[t]
        while slot_i[0] <= t:
            slot()
        if FLAT:
            a(f"s_waitcnt vmcnt({15 - t})")
        if t == 15:
            dstamp(7)
        if t == opts.wpos:
            lds_arrive(HG, VZ, VS + 8)
        if t == opts.hpos:
            lds_arrive(C6, VZ, VS + 8)
        if t == opts.fpos:
            stamp(3)
            if 'x' not in opts.abl and 'P' not in opts.abl and 'G' not in opts.abl:
                lds_spin(FF, 1, VZ, VS + 8, sleep=1)
            a(f"ds_read_b128 v[{VF}:{VF+3}], v{VZ} offset:{L_F}")
            a(f"ds_read_b128 v[{VF+4}:{VF+7}], v{VZ} offset:{L_F+16}")
            a("s_setprio 3")
        for d in range(4):
            s2a = "0" if t == 0 else f"v{VACC+2*d}"
            s2b = "0" if t == 0 else f"v{VACC+2*d+1}"
            a(f"v_dot2_f32_bf16 v{VACC+2*d}, v{VV+4*i+d}, v{PLO+i}, {s2a}")
            a(f"v_dot2_f32_bf16 v{VACC+2*d+1}, v{VV+4*i+d}, v{PHI+i}, {s2b}")
    assert slot_i[0] == 16
    for e in range(4):
        a(f"v_permlane32_swap_b32 v{VACC+e}, v{VACC+e+4}")
    for e in range(4):
        a(f"v_add_f32 v{VACC+e}, v{VACC+e}, v{VACC+e+4}")
    a(f"v_permlane16_swap_b32 v{VACC}, v{VACC+2}")
    a(f"v_permlane16_swap_b32 v{VACC+1}, v{VACC+3}")
    a(f"v_add_f32 v{VACC}, v{VACC}, v{VACC+2}")
    a(f"v_add_f32 v{VACC+1}, v{VACC+1}, v{VACC+3}")
    a(f"ds_write_b64 v{VS}, v[{VACC}:{VACC+1}] offset:{L_OP}")
    lds_arrive(C3, VZ, VS + 8, rtn=True)
    stamp(2)
    a("s_cmp_eq_u32 s10, 7")
    a("s_cbranch_scc0 L_nocomb")
    OPR = VK
    for w in range(8):
        a(f"ds_read_b64 v[{OPR+2*w}:{OPR+2*w+1}], v{VCA} offset:{L_OP + w*512}")
    for w in range(8):
        a(f"s_waitcnt lgkmcnt({7-w})")
        for e in range(2):
            if w == 0:
                a(f"v_mul_f32 v{GO+e}, v{VF}, v{OPR+e}")
            else:
                a(f"v_fma_f32 v{GO+e}, v{VF+w}, v{OPR+2*w+e}, v{GO+e}")
    if opts.hloc:
        dual_store(f"v[{GO}:{GO+3}]", f"v{VPA}", "dwordx4", "s8", "h2")
    else:
        if opts.fast:
            a(f"s_mov_b32 s10, {FOFF}")
            a(f"buffer_store_dwordx4 v[{GO}:{GO+3}], v{VPA}, s[56:59], s10 offen")
        a(f"buffer_store_dwordx4 v[{GO}:{GO+3}], v{VPA}, s[56:59], 0 offen sc1")
    stamp(4)
    a.label("L_nocomb")
    if "t" in opts.abl:
        a("s_branch L_sfin")
    a("s_cmp_eq_u32 s13, 0")
    a("s_cbranch_scc1 L_sfin")
    a("s_cmp_ge_u32 s4, 10")
    a("s_cselect_b32 s9, 70, 0")
    a("s_add_u32 s9, s9, s4")
    a("s_mul_i32 s10, s5, 10")
    a("s_add_u32 s9, s9, s10")
    a("s_lshl_b32 s9, s9, 1")
    a("s_add_u32 s9, s9, s3")
    a("s_lshl_b32 s9, s9, 10")
    a(f"s_add_u32 s9, s9, {WS_H3A}")
    FA, FO = VS, VS + 1
    FA1 = FA
    a(f"v_lshl_add_u32 v{FA}, v0, 4, s9")
    a(f"s_mov_b32 s11, {WS_H3B - WS_H3A}")
    if opts.y1lay:
        FA1 = VS + 3
        a("s_lshl_b32 s9, s4, 6")
        a("s_mul_i32 s10, s5, 1280")
        a("s_add_u32 s9, s9, s10")
        a("s_lshl_b32 s10, s3, 5")
        a("s_add_u32 s9, s9, s10")
        a(f"s_add_u32 s9, s9, {WS_H3A}")
        a(f"v_lshrrev_b32 v{FA1}, 1, v0")
        a(f"v_mul_u32_u24 v{FA1}, 10240, v{FA1}")
        a(f"v_and_b32 v{VS+2}, 1, v0")
        a(f"v_lshl_add_u32 v{FA1}, v{VS+2}, 4, v{FA1}")
        a(f"v_add_u32 v{FA1}, s9, v{FA1}")
    P = VK

    def reduce_duo(r0):
        for ctrl in ["quad_perm:[2,3,0,1]", "row_ror:4", "row_ror:8"]:
            a(f"v_add_f32_dpp v{r0}, v{r0}, v{r0} {ctrl} row_mask:0xf bank_mask:0xf")
            a(f"v_add_f32_dpp v{r0+1}, v{r0+1}, v{r0+1} {ctrl} row_mask:0xf bank_mask:0xf")
        a(f"v_permlane32_swap_b32 v{r0}, v{r0+1}")
        a(f"v_add_f32 v{r0}, v{r0}, v{r0+1}")
        a(f"v_mov_b32 v{r0+1}, v{r0}")
        a(f"v_permlane16_swap_b32 v{r0}, v{r0+1}")
        a(f"v_add_f32 v{r0}, v{r0}, v{r0+1}")

    RY2, RY1 = P + 4, P + 6
    pipelined_poll("pollY2", 1, [[P]],
                   lambda k: a(f"buffer_load_dwordx4 v[{P}:{P+3}], v{FA1 if opts.y2lay else FA}, s[56:59], s11 offen sc1"), 0,
                   [RY2, RY2 + 1], slow=(1, 8))
    n3 = opts.npoll3
    Y1S = [[P + 8 + 4*k] for k in range(n3)]
    a("s_cmp_ge_u32 s4, 10")
    a("s_cselect_b32 s14, 560, 0")
    a("s_lshl_b32 s10, s4, 3")
    a("s_add_u32 s14, s14, s10")
    a("s_mul_i32 s10, s5, 80")
    a("s_add_u32 s14, s14, s10")
    a("s_lshl_b32 s10, s3, 2")
    a("s_add_u32 s14, s14, s10")
    a(f"v_and_b32 v{FO}, 1, v0")
    a(f"v_lshlrev_b32 v{FO}, 1, v{FO}")
    a(f"v_lshrrev_b32 v{FO+1}, 5, v0")
    a(f"v_add3_u32 v{FO}, v{FO}, v{FO+1}, s14")
    a(f"v_lshlrev_b32 v{FO}, 1, v{FO}")
    reduce_duo(RY2)
    Y2 = RY2
    T7 = P
    a(f"v_cvt_pk_bf16_f32 v{Y2}, v{Y2}, 0")
    a(f"v_lshlrev_b32 v{Y2}, 16, v{Y2}")
    a(f"s_mov_b32 s14, 0x{f32bits(-LOG2E):08x}")
    a(f"v_mul_f32 v{T7}, s14, v{Y2}")
    a(f"v_exp_f32 v{T7}, v{T7}")
    a(f"v_add_f32 v{T7}, 1.0, v{T7}")
    a(f"v_rcp_f32 v{T7}, v{T7}")
    a(f"v_mul_f32 v{Y2}, v{Y2}, v{T7}")
    a(f"v_cvt_pk_bf16_f32 v{Y2}, v{Y2}, 0")
    a(f"v_lshlrev_b32 v{Y2}, 16, v{Y2}")
    a(f"v_lshlrev_b32 v{VXV}, 16, v{VXV}")
    if not opts.dbgst:
        stamp(5)
    lds_spin(opts.ygate[0], opts.ygate[1], VZ, VS + 8, sleep=1)
    pipelined_poll("pollY1", n3, Y1S,
                   lambda k: a(f"buffer_load_dwordx4 v[{Y1S[k][0]}:{Y1S[k][0]+3}], v{FA1}, s[56:59], 0 offen sc1"), opts.stag3,
                   [RY1, RY1 + 1], slow=(tuple(int(x) for x in opts.slow3.split(",")) if opts.slow3 else 0))
    if not opts.dbgst:
        stamp(6)
    Y1 = RY1
    reduce_duo(Y1)
    a(f"v_cvt_pk_bf16_f32 v{Y1}, v{Y1}, 0")
    a(f"v_lshlrev_b32 v{Y1}, 16, v{Y1}")
    a(f"v_mul_f32 v{Y1}, v{Y1}, v{Y2}")
    a(f"v_cvt_pk_bf16_f32 v{Y1}, v{Y1}, 0")
    a(f"v_lshlrev_b32 v{Y1}, 16, v{Y1}")
    a(f"v_add_f32 v{Y1}, v{VXV}, v{Y1}")
    a(f"v_cvt_pk_bf16_f32 v{Y1}, v{Y1}, 0")
    a("s_mov_b32 s10, 3")
    a("s_mov_b32 s11, 3")
    a("s_mov_b64 exec, s[10:11]")
    a(f"buffer_store_short v{Y1}, v{FO}, s[64:67], 0 offen {opts.opol}".rstrip())
    a("s_or_b32 s10, s6, s3")
    a("s_cmp_lg_u32 s10, 0")
    a("s_cbranch_scc1 L_noep")
    a("s_mov_b64 exec, 1")
    a(f"v_mov_b32 v{VS+2}, {WS_EPOCH}")
    a(f"v_mov_b32 v{VS+3}, s68")
    a(f"buffer_store_dword v{VS+3}, v{VS+2}, s[56:59], 0 offen sc1")
    a.label("L_noep")
    a("s_mov_b64 exec, -1")
    if not opts.dbgst:
        stamp(7)
    else:
        stamp(4)
    a.label("L_sfin")
    a("s_add_u32 s3, s3, 4")
    a("s_branch L_fin")

    a.label("L_aux")
    a.c("---- aux wave: a = s3 (0..3) ----")
    a("s_setprio 3")
    XR = 20
    VE = 30
    WQ = 32
    W1 = 52
    TMP = 64
    ACC = 96
    W2 = 120
    WO = 136
    LO2 = 96
    AY = 104
    BOP = 32
    a("s_cmp_lg_u32 s3, 0")
    a("s_cbranch_scc1 L_noclr")
    for r in range(4, 8):
        a(f"v_mov_b32 v{r}, 0")
    a(f"ds_write_b128 v4, v[4:7] offset:{L_SYNC}")
    a(f"ds_write_b128 v4, v[4:7] offset:{L_SYNC+16}")
    a(f"ds_write_b128 v4, v[4:7] offset:{L_SYNC+32}")
    a.label("L_noclr")
    a(f"v_lshlrev_b32 v2, 4, v0")
    a(f"v_lshlrev_b32 v3, 2, v0")
    a(f"v_mov_b32 v{VE}, {WS_EPOCH}")
    a("s_mul_i32 s9, s5, 80")
    a("s_mul_i32 s10, s3, 20")
    a("s_add_u32 s9, s9, s10")
    a(f"v_lshrrev_b32 v10, 4, v0")
    a(f"v_and_b32 v11, 15, v0")
    RG, C = 10, 11
    a(f"v_add_u32 v{TMP+10}, s9, v{RG}")
    a(f"v_lshlrev_b32 v{TMP+11}, 1, v{TMP+10}")
    a(f"v_lshlrev_b32 v{TMP+1}, 13, v{TMP+10}")
    a(f"v_lshl_add_u32 v{TMP+1}, v{C}, 4, v{TMP+1}")
    a("s_lshl_b32 s10, s4, 8")
    a(f"v_add_u32 v{TMP+1}, s10, v{TMP+1}")
    def fgroup(r):
        a(f"s_mov_b32 s{r}, s4")
        for pr in [x for x in opts.fperm.split(",") if x]:
            p0, p1 = pr.split(":")
            for (u, w) in ((p0, p1), (p1, p0)):
                a(f"s_cmp_eq_u32 s4, {u}")
                a(f"s_cselect_b32 s{r}, {w}, s{r}")
    fgroup(11)
    a(f"s_cmp_ge_u32 s11, {0 if 'f' in opts.abl else 27}")
    a(f"s_cselect_b32 s13, {OOB}, 0")
    if 'w' in opts.abl:
        a(f"v_add_u32 v{TMP+1}, {OOB}, v{TMP+1}")
    if 'B' in opts.abl:
        a(f"s_cmp_lt_u32 s2, {opts.bhi*64}")
        a(f"s_cselect_b32 s10, {OOB}, 0")
        a("s_bitcmp1_b32 s2, 2")
        a("s_cselect_b32 s10, s10, 0")
        a(f"v_add_u32 v{TMP+1}, s10, v{TMP+1}")
    a("s_movk_i32 s10, 3456")
    a(f"v_mul_lo_u32 v{TMP+2}, v{TMP+10}, s10")
    a(f"v_lshl_add_u32 v{TMP+2}, v{C}, 3, v{TMP+2}")
    a("s_lshl_b32 s10, s11, 7")
    a("s_add_u32 s10, s10, s13")
    a(f"v_add_u32 v{TMP+2}, s10, v{TMP+2}")
    for i in range(1, 5):
        a(f"s_mov_b32 s{88+i}, {i*32768}")
        if i < 4:
            a(f"s_mov_b32 s{92+i}, {i*13824}")
    a(f"s_mov_b32 s88, {4*13824}")
    a("s_waitcnt lgkmcnt(0)")

    def srd(r, lo, size):
        a(f"s_mov_b32 s{r}, s{lo}")
        a(f"s_mov_b32 s{r+1}, s{lo+1}")
        a(f"s_mov_b32 s{r+2}, {size}")
        a(f"s_mov_b32 s{r+3}, 0x00020000")
    a("s_mov_b32 s56, s36")
    a("s_mov_b32 s57, s37")
    srd(40, 16, 2560)
    if opts.hloc == 1 and opts.earlyann:
        a(f"s_add_u32 s64, s36, {WS_EPOCH}")
        a("s_addc_u32 s65, s37, 0")
        a("s_cmp_lg_u32 s3, 3")
        a("s_cbranch_scc1 L_noeld")
        a("s_load_dword s70, s[64:65], 0")
        a.label("L_noeld")
    if opts.hloc == 1:
        a("s_mul_i32 s10, s6, 3072")
        a("s_lshl_b32 s11, s3, 10")
        a("s_add_u32 s10, s10, s11")
        a(f"s_add_u32 s10, s10, {WS_H1 + FOFF}")
        a(f"s_mul_i32 s11, s4, {GSTR}")
        a(f"s_add_u32 s11, s11, {WS_H1F + FOFF}")
        a("s_cmp_eq_u32 s3, 3")
        a("s_cselect_b32 s10, s11, s10")
        a("s_cselect_b32 s14, 0xfff, -1")
        a("s_cselect_b32 s15, 0, -1")
        a(f"v_lshl_add_u32 v{TMP+19}, v0, 4, s10")
        a("s_mov_b32 exec_lo, s14")
        a("s_mov_b32 exec_hi, s15")
        a(f"buffer_load_dwordx4 v[{TMP+20}:{TMP+23}], v{TMP+19}, s[56:59], 0 offen")
        a("s_mov_b64 exec, -1")
    a(f"buffer_load_dword v{VE}, v{VE}, s[56:59], 0 offen sc1")
    a(f"buffer_load_dwordx4 v[4:7], v2, s[40:43], 0 offen")
    a(f"buffer_load_dword v8, v3, s[40:43], 0 offen offset:1024")
    a(f"buffer_load_dwordx4 v[12:15], v2, s[40:43], 0 offen offset:1280")
    a(f"buffer_load_dword v16, v3, s[40:43], 0 offen offset:2304")
    srd(44, 22, 5242880)
    for i in range(5):
        so = "0" if i == 0 else f"s{88+i}"
        a(f"buffer_load_dwordx4 v[{WQ+4*i}:{WQ+4*i+3}], v{TMP+1}, s[44:47], {so} offen {wpol}")
    if 'B' in opts.abl:
        a("s_cmp_eq_u32 s8, 1")
        a(f"s_cmp_lt_u32 s2, {opts.bhi*64}")
        a("s_cbranch_scc0 L_nob")
        a("s_bitcmp1_b32 s2, 2")
        a("s_cbranch_scc1 L_nob")
        a(f"v_add_u32 v{TMP+7}, 1024, v{TMP+1}")
        for i in range(5):
            so = "0" if i == 0 else f"s{88+i}"
            a(f"buffer_load_dwordx4 v[{ACC+4*i}:{ACC+4*i+3}], v{TMP+7}, s[44:47], {so} offen {wpol}")
        a.label("L_nob")
    srd(48, 28, 2211840)
    for i in range(5):
        so = "0" if i == 0 else (f"s{92+i}" if i < 4 else "s88")
        a(f"buffer_load_dwordx2 v[{W1+2*i}:{W1+2*i+1}], v{TMP+2}, s[48:51], {so} offen {wpol}")
    for i in range(5):
        for b in range(2):
            a(f"buffer_load_ushort v{XR+2*i+b}, v{TMP+11}, s[40:43], 0 offen offset:{b*1280 + i*8}")
    a("s_waitcnt lgkmcnt(0)")
    if opts.hloc == 1 and opts.earlyann:
        a("s_cmp_lg_u32 s3, 3")
        a("s_cbranch_scc1 L_noann")
        a("s_add_u32 s70, s70, 1")
        a("s_xor_b32 s71, s70, 0x9e3779b9")
        a("s_getreg_b32 s10, hwreg(HW_REG_XCC_ID)")
        a("s_and_b32 s10, s10, 15")
        a("s_xor_b32 s10, s10, s71")
        a(f"s_mul_i32 s11, s4, {GSTR}")
        a(f"s_add_u32 s11, s11, {WS_H2F}")
        a("s_add_u32 s64, s56, s11")
        a("s_addc_u32 s65, s57, 0")
        a("s_lshl_b32 s12, s5, 3")
        a("s_add_u32 s11, s11, s12")
        a(f"v_mov_b32 v{TMP+16}, s70")
        a(f"v_mov_b32 v{TMP+17}, s10")
        a(f"v_mov_b32 v{TMP+18}, s11")
        a("s_mov_b64 exec, 1")
        a(f"buffer_store_dwordx2 v[{TMP+16}:{TMP+17}], v{TMP+18}, s[56:59], 0 offen sc1")
        a("s_mov_b64 exec, -1")
        a.label("L_noann")
    a("s_barrier")
    if 'x' in opts.abl:
        a("s_branch L_fin")
    a(f"v_mov_b32 v{TMP+5}, 0")
    a(f"v_mov_b32 v{TMP+6}, {OOB}")
    a(f"v_cmp_lt_u32 vcc, 9, v{C}")
    a(f"v_cndmask_b32 v{TMP+5}, v{TMP+5}, v{TMP+6}, vcc")
    a(f"v_lshl_add_u32 v{TMP+5}, v{C}, 4, v{TMP+5}")
    a("s_mul_i32 s10, s5, 160")
    a(f"v_add_u32 v{TMP+5}, s10, v{TMP+5}")
    a("s_movk_i32 s14, 1280")
    fgroup(10)
    a("s_lshl_b32 s10, s10, 6")
    a("s_lshl_b32 s11, s3, 4")
    a("s_add_u32 s10, s10, s11")
    a(f"v_lshl_add_u32 v{TMP+3}, v{RG}, 2, s10")
    a(f"v_mul_lo_u32 v{TMP+3}, v{TMP+3}, s14")
    a(f"v_add_u32 v{TMP+3}, v{TMP+5}, v{TMP+3}")
    a(f"v_add_u32 v{TMP+3}, s13, v{TMP+3}")
    a("s_lshl_b32 s10, s4, 7")
    a("s_lshl_b32 s11, s3, 5")
    a("s_add_u32 s10, s10, s11")
    a(f"v_lshl_add_u32 v{TMP+4}, v{RG}, 3, s10")
    a(f"v_mul_lo_u32 v{TMP+4}, v{TMP+4}, s14")
    a(f"v_add_u32 v{TMP+4}, v{TMP+5}, v{TMP+4}")
    if 'o' in opts.abl:
        a(f"v_add_u32 v{TMP+4}, {OOB}, v{TMP+4}")
    a("s_movk_i32 s12, 5120")
    srd(52, 30, 2211840)
    for i in range(4):
        a(f"buffer_load_dwordx4 v[{W2+4*i}:{W2+4*i+3}], v{TMP+3}, s[52:55], 0 offen offset:{i*1280} {wpol}")
    srd(60, 24, 5242880)
    LATEWO = opts.wpos >= 0
    def issue_wo(va):
        for i in range(8):
            so = "0" if i < 4 else "s12"
            a(f"buffer_load_dwordx4 v[{WO+4*i}:{WO+4*i+3}], v{va}, s[60:63], {so} offen offset:{(i&3)*1280} {wpol}")
    if LATEWO:
        a(f"v_mov_b32 v1, v{TMP+4}")
    else:
        issue_wo(TMP + 4)

    a(f"s_waitcnt vmcnt({24 if LATEWO else 32})")
    a(f"v_readfirstlane_b32 s68, v{VE}")
    a("s_mov_b32 s15, 0xffff0000")
    a("s_add_u32 s68, s68, 1")
    a("s_xor_b32 s69, s68, 0x9e3779b9")
    if opts.hloc == 1 and not opts.earlyann:
        a("s_cmp_lg_u32 s3, 3")
        a("s_cbranch_scc1 L_noann")
        a("s_getreg_b32 s10, hwreg(HW_REG_XCC_ID)")
        a("s_and_b32 s10, s10, 15")
        a("s_xor_b32 s10, s10, s69")
        a(f"s_mul_i32 s11, s4, {GSTR}")
        a(f"s_add_u32 s11, s11, {WS_H2F}")
        a("s_add_u32 s90, s56, s11")
        a("s_addc_u32 s91, s57, 0")
        a("s_mov_b64 s[64:65], s[90:91]")
        a("s_lshl_b32 s12, s5, 3")
        a("s_add_u32 s11, s11, s12")
        a("v_mov_b32 v2, s68")
        a("v_mov_b32 v3, s10")
        a("v_mov_b32 v9, s11")
        a("s_mov_b64 exec, 1")
        a("buffer_store_dwordx2 v[2:3], v9, s[56:59], 0 offen sc1")
        a("s_mov_b64 exec, -1")
        a.label("L_noann")
    F = TMP + 12
    srcs = [[4, 5, 6, 7, 8], [12, 13, 14, 15, 16]]
    for b in range(2):
        for d in range(5):
            a(f"v_lshlrev_b32 v{F+10*b+2*d}, 16, v{srcs[b][d]}")
            a(f"v_and_b32 v{F+10*b+2*d+1}, s15, v{srcs[b][d]}")
    S0, S1, Q0, Q1, t0, t1 = 4, 5, 6, 7, 8, 9

    def wave_sum2(r0, r1, sbase):
        for ctrl in ["quad_perm:[1,0,3,2]", "quad_perm:[2,3,0,1]", "row_half_mirror", "row_mirror"]:
            a(f"v_add_f32_dpp v{r0}, v{r0}, v{r0} {ctrl} row_mask:0xf bank_mask:0xf")
            a(f"v_add_f32_dpp v{r1}, v{r1}, v{r1} {ctrl} row_mask:0xf bank_mask:0xf")
        for r in range(4):
            a(f"v_readlane_b32 s{sbase+r}, v{r0}, {16*r}")
            a(f"v_readlane_b32 s{sbase+4+r}, v{r1}, {16*r}")
        a(f"v_mov_b32 v{r0}, s{sbase}")
        a(f"v_mov_b32 v{r1}, s{sbase+4}")
        for r in range(1, 4):
            a(f"v_add_f32 v{r0}, s{sbase+r}, v{r0}")
            a(f"v_add_f32 v{r1}, s{sbase+4+r}, v{r1}")

    for e in range(1, 10):
        for b, S in ((0, S0), (1, S1)):
            if e == 1:
                a(f"v_add_f32 v{S}, v{F+10*b}, v{F+10*b+1}")
            else:
                a(f"v_add_f32 v{S}, v{S}, v{F+10*b+e}")
    wave_sum2(S0, S1, 88)
    a(f"s_mov_b32 s14, 0x{f32bits(1.0/640):08x}")
    a(f"v_mul_f32 v{S0}, s14, v{S0}")
    a(f"v_mul_f32 v{S1}, s14, v{S1}")
    for b, S in ((0, S0), (1, S1)):
        for e in range(10):
            a(f"v_sub_f32 v{F+10*b+e}, v{F+10*b+e}, v{S}")
    for e in range(10):
        for b, Q in ((0, Q0), (1, Q1)):
            if e == 0:
                a(f"v_mul_f32 v{Q}, v{F+10*b}, v{F+10*b}")
            else:
                a(f"v_fma_f32 v{Q}, v{F+10*b+e}, v{F+10*b+e}, v{Q}")
    wave_sum2(Q0, Q1, 88)
    a(f"v_mul_f32 v{Q0}, s14, v{Q0}")
    a(f"v_mul_f32 v{Q1}, s14, v{Q1}")
    a(f"v_cvt_pk_bf16_f32 v{t0}, v{S0}, v{S1}")
    a(f"v_cvt_pk_bf16_f32 v{t1}, v{Q0}, v{Q1}")
    a(f"v_lshlrev_b32 v{S0}, 16, v{t0}")
    a(f"v_and_b32 v{S1}, s15, v{t0}")
    a(f"v_lshlrev_b32 v{Q0}, 16, v{t1}")
    a(f"v_and_b32 v{Q1}, s15, v{t1}")
    a(f"s_mov_b32 s14, 0x{f32bits(1e-5):08x}")
    a(f"v_add_f32 v{Q0}, s14, v{Q0}")
    a(f"v_add_f32 v{Q1}, s14, v{Q1}")
    a(f"v_cvt_pk_bf16_f32 v{t1}, v{Q0}, v{Q1}")
    a(f"v_lshlrev_b32 v{Q0}, 16, v{t1}")
    a(f"v_and_b32 v{Q1}, s15, v{t1}")
    a(f"v_sqrt_f32 v{Q0}, v{Q0}")
    a(f"v_sqrt_f32 v{Q1}, v{Q1}")
    a(f"v_cvt_pk_bf16_f32 v{t1}, v{Q0}, v{Q1}")
    a(f"v_lshlrev_b32 v{Q0}, 16, v{t1}")
    a(f"v_and_b32 v{Q1}, s15, v{t1}")
    a(f"v_rcp_f32 v{Q0}, v{Q0}")
    a(f"v_rcp_f32 v{Q1}, v{Q1}")
    XH = F
    MS = [S0, S1]; RS = [Q0, Q1]
    if opts.hloc == 1:
        a("s_cmp_lg_u32 s3, 3")
        a("s_cbranch_scc1 L_noannp")
        a(f"s_mov_b32 s12, {opts.maxpoll}")
        a.label("L_annp")
        a("s_load_dwordx16 s[16:31], s[64:65], 0 glc")
        a("s_waitcnt lgkmcnt(0)")
        for i in range(8):
            a(f"s_cmp_eq_u32 s{16+2*i}, s68")
            a("s_cbranch_scc0 L_annp_no")
            a(f"s_xor_b32 s{17+2*i}, s{17+2*i}, s69")
            a(f"s_cmp_lt_u32 s{17+2*i}, 16")
            a("s_cbranch_scc0 L_annp_no")
        a("s_mov_b32 s11, 2")
        for i in range(1, 8):
            a(f"s_cmp_eq_u32 s{17+2*i}, s17")
            a("s_cselect_b32 s11, s11, 1")
        a("s_branch L_annp_done")
        a.label("L_annp_no")
        a("s_sleep 2")
        a("s_sub_u32 s12, s12, 1")
        a("s_cmp_lg_u32 s12, 0")
        a("s_cbranch_scc1 L_annp")
        a("s_mov_b32 s11, 1")
        a.label("L_annp_done")
        a("v_mov_b32 v2, 0")
        a("v_mov_b32 v3, s11")
        a(f"ds_write_b32 v2, v3 offset:{HG}")
        a.label("L_noannp")
    a(f"s_waitcnt vmcnt({4 if LATEWO else 12})")

    def each(fn):
        for i in range(5):
            for b in range(2):
                fn(XR + 2*i + b, b, i)
    each(lambda r, b, i: a(f"v_lshlrev_b32 v{r}, 16, v{r}"))
    each(lambda r, b, i: a(f"v_sub_f32 v{r}, v{r}, v{MS[b]}"))
    each(lambda r, b, i: a(f"v_cvt_pk_bf16_f32 v{r}, v{r}, 0"))
    each(lambda r, b, i: a(f"v_lshlrev_b32 v{r}, 16, v{r}"))
    each(lambda r, b, i: a(f"v_mul_f32 v{r}, v{r}, v{RS[b]}"))
    each(lambda r, b, i: a(f"v_cvt_pk_bf16_f32 v{r}, v{r}, 0"))
    each(lambda r, b, i: a(f"v_lshlrev_b32 v{XH+2*i+b}, 16, v{r}"))
    AQ = ACC; AH = ACC + 16
    for i in range(5):
        for b in range(2):
            for d in range(4):
                for hl in range(2):
                    acc = AQ + 8*b + 2*d + hl
                    xs = (XR if hl == 0 else XH) + 2*i + b
                    s2 = "0" if i == 0 else f"v{acc}"
                    a(f"v_dot2_f32_bf16 v{acc}, v{WQ+4*i+d}, v{xs}, {s2}")
    for i in range(5):
        for b in range(2):
            for d in range(2):
                for hl in range(2):
                    acc = AH + 4*b + 2*d + hl
                    xs = (XR if hl == 0 else XH) + 2*i + b
                    s2 = "0" if i == 0 else f"v{acc}"
                    a(f"v_dot2_f32_bf16 v{acc}, v{W1+2*i+d}, v{xs}, {s2}")

    def reduce16(base):
        for k in range(8):
            a(f"v_permlane32_swap_b32 v{base+k}, v{base+k+8}")
        for k in range(8):
            a(f"v_add_f32 v{base+k}, v{base+k}, v{base+k+8}")
        for k in range(4):
            a(f"v_permlane16_swap_b32 v{base+k}, v{base+k+4}")
        for k in range(4):
            a(f"v_add_f32 v{base+k}, v{base+k}, v{base+k+4}")

    reduce16(AQ)
    for k in range(4):
        a(f"v_permlane32_swap_b32 v{AH+k}, v{AH+k+4}")
    for k in range(4):
        a(f"v_add_f32 v{AH+k}, v{AH+k}, v{AH+k+4}")
    for k in range(2):
        a(f"v_permlane16_swap_b32 v{AH+k}, v{AH+k+2}")
    for k in range(2):
        a(f"v_add_f32 v{AH+k}, v{AH+k}, v{AH+k+2}")
    a(f"v_lshrrev_b32 v2, 1, v{RG}")
    a(f"v_and_b32 v3, 1, v{RG}")
    a(f"v_lshlrev_b32 v{TMP}, 9, v2")
    a(f"v_lshl_add_u32 v{TMP}, v{C}, 5, v{TMP}")
    a(f"v_lshl_add_u32 v{TMP}, v3, 4, v{TMP}")
    a("s_lshl_b32 s10, s3, 10")
    a(f"v_add_u32 v{TMP}, s10, v{TMP}")
    a(f"ds_write_b128 v{TMP}, v[{AQ}:{AQ+3}] offset:{L_QP}")
    a(f"v_lshlrev_b32 v{TMP+1}, 8, v2")
    a(f"v_lshl_add_u32 v{TMP+1}, v{C}, 4, v{TMP+1}")
    a(f"v_lshl_add_u32 v{TMP+1}, v3, 3, v{TMP+1}")
    a("s_lshl_b32 s10, s3, 9")
    a(f"v_add_u32 v{TMP+1}, s10, v{TMP+1}")
    a(f"ds_write_b64 v{TMP+1}, v[{AH}:{AH+1}] offset:{L_HP}")
    VY = 31
    a("s_movk_i32 s10, 320")
    a(f"v_mul_u32_u24 v{VY}, s10, v2")
    a(f"v_lshl_add_u32 v{VY}, v{C}, 5, v{VY}")
    a(f"v_lshl_add_u32 v{VY}, v3, 4, v{VY}")
    a("s_mul_i32 s10, s3, 640")
    a(f"v_add_u32 v{VY}, s10, v{VY}")
    VZ = 12
    a(f"v_mov_b32 v{VZ}, 0")
    lds_arrive(C1, VZ, 3)
    lds_spin(C1, 4, VZ, 3)
    def read_mode():
        a(f"ds_read_b32 v3, v{VZ} offset:{HG}")
        a("s_waitcnt lgkmcnt(0)")
        a("v_readfirstlane_b32 s67, v3")
        a(f"s_mov_b32 s66, {FOFF}")
        a("s_cmp_eq_u32 s67, 2")
        a("s_cselect_b32 s66, s66, 0")
    if opts.hloc == 1:
        a(f"ds_read_b32 v3, v{VZ} offset:{HG}")
        a("s_waitcnt lgkmcnt(0)")
        a("v_readfirstlane_b32 s67, v3")
        a(f"s_mov_b32 s66, {FOFF}")
        a("s_cmp_eq_u32 s67, 2")
        a("s_cselect_b32 s66, s66, 0")
    stamp(1)

    G = TMP

    def check_tags(regs, lbl_retry_cnt, lbl_loop, lbl_done):
        tags_bad(regs)
        a(f"s_cbranch_scc1 {lbl_done}")
        a(f"s_sub_u32 {lbl_retry_cnt}, {lbl_retry_cnt}, 1")
        a(f"s_cmp_eq_u32 {lbl_retry_cnt}, 0")
        a(f"s_cbranch_scc0 {lbl_loop}")

    def preperm():
        a("s_mov_b32 s10, 0x05040100")
        a("s_mov_b32 s11, 0x07060302")
        for q in range(2):
            for d in range(4):
                r0, r1 = W2 + 8*q + d, W2 + 8*q + 4 + d
                a(f"v_perm_b32 v{LO2+4*q+d}, v{r1}, v{r0}, s10")
                a(f"v_perm_b32 v{r1}, v{r1}, v{r0}, s11")
        if not LATEWO:
            preperm_wo()

    def preperm_wo():
        a("s_mov_b32 s10, 0x05040100")
        a("s_mov_b32 s11, 0x07060302")
        for e in range(8):
            for t in range(4):
                r0, r1 = WO + 8*t + (e >> 1), WO + 8*t + 4 + (e >> 1)
                a(f"v_perm_b32 v{BOP+4*e+t}, v{r1}, v{r0}, s{10 + (e & 1)}")

    a("s_cmp_eq_u32 s3, 3")
    a("s_cbranch_scc1 L_h1_gather")
    if 'F' in opts.abl:
        a("s_cmp_eq_u32 s3, 2")
        a("s_cbranch_scc0 L_now2skip")
        a("s_waitcnt vmcnt(0)")
        preperm()
        a("s_branch L_b3")
        a.label("L_now2skip")
    a(f"v_lshlrev_b32 v2, 3, v0")
    a("s_cmp_eq_u32 s3, 2")
    a("s_cbranch_scc1 L_h1_pubh")
    a("s_lshl_b32 s10, s3, 9")
    a(f"v_add_u32 v2, s10, v2")
    for w in range(4):
        a(f"ds_read_b64 v[{G+4+2*w}:{G+5+2*w}], v2 offset:{L_QP + w*1024}")
    a("s_lshl_b32 s11, s3, 10")
    a("s_branch L_h1_pub")
    a.label("L_h1_pubh")
    for w in range(4):
        a(f"ds_read_b64 v[{G+4+2*w}:{G+5+2*w}], v2 offset:{L_HP + w*512}")
    a("s_movk_i32 s11, 2048")
    a.label("L_h1_pub")
    a("s_mul_i32 s10, s6, 3072")
    a("s_add_u32 s10, s10, s11")
    a(f"v_lshl_add_u32 v3, v0, 4, s10")
    set_tag(G)
    a("s_waitcnt lgkmcnt(0)")
    a(f"v_add_f32 v{G}, v{G+4}, v{G+6}")
    a(f"v_add_f32 v{G+1}, v{G+5}, v{G+7}")
    a(f"v_add_f32 v{G+8}, v{G+8}, v{G+10}")
    a(f"v_add_f32 v{G+9}, v{G+9}, v{G+11}")
    a(f"v_add_f32 v{G}, v{G}, v{G+8}")
    a(f"v_add_f32 v{G+1}, v{G+1}, v{G+9}")
    if opts.h1f:
        a(f"s_mov_b32 s10, {FOFF}")
        a(f"buffer_store_dwordx4 v[{G}:{G+3}], v3, s[56:59], s10 offen")
    if 'D' in opts.abl:
        a("s_mov_b64 exec, 0xffffffff")
    if opts.hloc == 1:
        dual_store(f"v[{G}:{G+3}]", "v3", "dwordx4", "s67", "h1")
    elif 'N' not in opts.abl:
        a(f"buffer_store_dwordx4 v[{G}:{G+3}], v3, s[56:59], 0 offen sc1")
    a("s_mov_b64 exec, -1")
    a(f"s_mul_i32 s10, s4, {GSTR}")
    a("s_lshl_b32 s11, s3, 6")
    a("s_add_u32 s10, s10, s11")
    a("s_lshl_b32 s11, s5, 3")
    a("s_add_u32 s10, s10, s11")
    a(f"s_add_u32 s10, s10, {WS_H1F}")
    a("v_mov_b32 v3, s10")
    a("s_mov_b64 exec, 1")
    if opts.hloc == 2:
        a("s_getreg_b32 s10, hwreg(HW_REG_XCC_ID)")
        a("s_and_b32 s10, s10, 15")
        a("s_xor_b32 s10, s10, s69")
        a(f"v_mov_b32 v{G+4}, s68")
        a(f"v_mov_b32 v{G+5}, s10")
        a(f"buffer_store_dwordx2 v[{G+4}:{G+5}], v3, s[56:59], 0 offen sc1")
    elif opts.hloc and opts.nohint:
        a("s_cmp_eq_u32 s67, 2")
        a("s_cbranch_scc1 L_nohst")
        a(f"buffer_store_dwordx2 v[{G+2}:{G+3}], v3, s[56:59], 0 offen sc1")
        a("s_branch L_nohst2")
        a.label("L_nohst")
        a(f"buffer_store_dwordx2 v[{G+2}:{G+3}], v3, s[56:59], 0 offen offset:0") if False else None
        a.label("L_nohst2")
    elif opts.hloc:
        dual_store(f"v[{G+2}:{G+3}]", "v3", "dwordx2", "s67", "h1h")
    elif 'H' not in opts.abl:
        a(f"buffer_store_dwordx2 v[{G+2}:{G+3}], v3, s[56:59], 0 offen sc1")
    a("s_mov_b64 exec, -1")
    if 'P' in opts.abl:
        a("s_branch L_fin")
    a("s_cmp_eq_u32 s3, 2")
    a("s_cbranch_scc1 L_h1_gather")
    a(f"s_waitcnt vmcnt({1 if opts.nohint else 3 if opts.h1f else 2})")
    preperm()
    if opts.fast:
        a("s_cmp_lg_u32 s3, 0")
        a("s_cbranch_scc1 L_nopre")
        for r in range(4):
            a(f"v_mov_b32 v{G+r}, 0")
        a("s_lshl_b32 s10, s6, 10")
        a(f"s_add_u32 s10, s10, {WS_H2 + FOFF}")
        a(f"v_lshl_add_u32 v3, v0, 4, s10")
        if opts.preld:
            a(f"buffer_load_dwordx4 v[{G}:{G+3}], v3, s[56:59], 0 offen")
        else:
            a(f"buffer_store_dwordx4 v[{G}:{G+3}], v3, s[56:59], 0 offen")
        a(f"s_mul_i32 s10, s4, {GSTR}")
        a("s_lshl_b32 s11, s5, 7")
        a("s_add_u32 s10, s10, s11")
        a(f"s_add_u32 s10, s10, {WS_ML + FOFF}")
        a(f"v_lshl_add_u32 v2, v0, 4, s10")
        a("s_mov_b64 exec, 0xff")
        if opts.preld:
            a(f"buffer_load_dwordx4 v[{G+4}:{G+7}], v2, s[56:59], 0 offen")
        else:
            a(f"buffer_store_dwordx4 v[{G}:{G+3}], v2, s[56:59], 0 offen")
        a("s_mov_b64 exec, -1")
        if opts.preld:
            a("s_waitcnt vmcnt(0)")
        a.label("L_nopre")
    stamp(2)
    a("s_branch L_b3")

    a.label("L_h1_gather")
    if 'P' in opts.abl:
        a("s_branch L_fin")
    a("s_lshl_b32 s10, s7, 10")
    a("s_cmp_eq_u32 s3, 2")
    a("s_cselect_b32 s10, 2048, s10")
    a("s_mul_i32 s11, s4, 24576")
    a("s_add_u32 s10, s10, s11")
    a(f"v_lshl_add_u32 v3, v0, 4, s10")
    for jj in range(1, 8):
        a(f"s_mov_b32 s{88+jj}, {jj*3072}")
    a("s_cmp_eq_u32 s3, 2")
    a("s_cbranch_scc1 L_pp2")
    a("s_waitcnt vmcnt(0)")
    a("s_branch L_pp")
    a.label("L_pp2")
    a(f"s_waitcnt vmcnt({1 if opts.nohint else 3 if opts.h1f else 2})")
    a.label("L_pp")
    preperm()
    a("s_cmp_eq_u32 s3, 2")
    a("s_cselect_b32 s10, 2, s7")
    a("s_lshl_b32 s10, s10, 6")
    a(f"s_mul_i32 s11, s4, {GSTR}")
    a("s_add_u32 s10, s10, s11")
    a(f"s_add_u32 s10, s10, {WS_H1F}")
    if opts.hloc == 2:
        a("s_add_u32 s14, s56, s10")
        a("s_addc_u32 s15, s57, 0")
        a(f"s_mov_b32 s12, {opts.maxpoll}")
        a.label("L_hx")
        a("s_load_dwordx16 s[16:31], s[14:15], 0 glc")
        a("s_waitcnt lgkmcnt(0)")
        for i in range(8):
            a(f"s_cmp_eq_u32 s{16+2*i}, s68")
            a("s_cbranch_scc0 L_hx_no")
            a(f"s_xor_b32 s{17+2*i}, s{17+2*i}, s69")
            a(f"s_cmp_lt_u32 s{17+2*i}, 16")
            a("s_cbranch_scc0 L_hx_no")
        a("s_mov_b32 s11, 2")
        for i in range(1, 8):
            a(f"s_cmp_eq_u32 s{17+2*i}, s17")
            a("s_cselect_b32 s11, s11, 1")
        a("s_branch L_hx_done")
        a.label("L_hx_no")
        a("s_sub_u32 s12, s12, 1")
        a("s_cmp_lg_u32 s12, 0")
        a("s_cbranch_scc1 L_hx")
        a("s_mov_b32 s11, 1")
        a.label("L_hx_done")
        a("s_cmp_eq_u32 s3, 3")
        a("s_cbranch_scc0 L_hx_nw")
        a("v_mov_b32 v2, s11")
        a(f"ds_write_b32 v{VZ}, v2 offset:{HG}")
        a.label("L_hx_nw")
    if opts.hloc == 1:
        a("s_add_u32 s10, s10, s66")
        a("v_add_u32 v3, s66, v3")
    if opts.hloc == 1:
        a("s_cmp_eq_u32 s67, 2")
        a("s_cbranch_scc0 L_hint_glob")
        if opts.nohint:
            if opts.nohint > 1:
                a(f"s_sleep {opts.nohint}")
            a("s_branch L_hint_end")
        a(f"v_lshl_add_u32 v2, v0, 3, s10")
        a(f"s_mov_b32 s12, {opts.maxpoll}")
        a("s_mov_b64 exec, 0xff")
        a.label("L_hintv")
        a(f"buffer_load_dwordx2 v[{G}:{G+1}], v2, s[56:59], 0 offen sc1")
        a("s_waitcnt vmcnt(0)")
        a(f"v_cmp_ne_u64 vcc, v[{G}:{G+1}], s[68:69]")
        a("s_cmp_eq_u64 vcc, 0")
        a("s_cbranch_scc1 L_hintv_done")
        if opts.hvsleep:
            a(f"s_sleep {opts.hvsleep}")
        a("s_sub_u32 s12, s12, 1")
        a("s_cmp_lg_u32 s12, 0")
        a("s_cbranch_scc1 L_hintv")
        a.label("L_hintv_done")
        a("s_mov_b64 exec, -1")
        a("s_branch L_hint_end")
        a.label("L_hint_glob")
        hint_poll("hint1", 10, opts.hsleep)
        a.label("L_hint_end")
    elif "h" not in opts.abl and opts.hloc != 2:
        hint_poll("hint1", 10, opts.hsleep)
    if "g" not in opts.abl:
        a(f"s_mov_b32 s12, {opts.maxpoll}")
        if opts.h1f:
            a(f"v_add_u32 v3, {FOFF}, v3")
            a(f"s_mov_b32 s13, {FOFF}")
        a.label("L_poll1")
        for jj in range(8):
            so = "0" if jj == 0 else f"s{88+jj}"
            a(f"buffer_load_dwordx4 v[{G+4*jj}:{G+4*jj+3}], v3, s[56:59], {so} offen sc1")
        a("s_waitcnt vmcnt(0)")
        if opts.h1f:
            tags_bad([G+4*jj for jj in range(8)])
            a("s_cbranch_scc1 L_poll1_done")
            a("v_subrev_u32 v3, s13, v3")
            a("s_mov_b32 s13, 0")
            a("s_sub_u32 s12, s12, 1")
            a("s_cmp_eq_u32 s12, 0")
            a("s_cbranch_scc0 L_poll1")
        elif "h" not in opts.abl:
            check_tags([G+4*jj for jj in range(8)], "s12", "L_poll1", "L_poll1_done")
        a.label("L_poll1_done")
    stamp(2)
    for e in range(2):
        a(f"v_add_f32 v{G+e}, v{G+e}, v{G+4+e}")
        a(f"v_add_f32 v{G+8+e}, v{G+8+e}, v{G+12+e}")
        a(f"v_add_f32 v{G+16+e}, v{G+16+e}, v{G+20+e}")
        a(f"v_add_f32 v{G+24+e}, v{G+24+e}, v{G+28+e}")
    for e in range(2):
        a(f"v_add_f32 v{G+e}, v{G+e}, v{G+8+e}")
        a(f"v_add_f32 v{G+16+e}, v{G+16+e}, v{G+24+e}")
    for e in range(2):
        a(f"v_add_f32 v{G+e}, v{G+e}, v{G+16+e}")
    a(f"v_lshlrev_b32 v2, 2, v0")
    a("s_cmp_eq_u32 s3, 2")
    a("s_cbranch_scc0 L_qw")
    a(f"v_max_f32 v{G}, 0, v{G}")
    a(f"v_max_f32 v{G+1}, 0, v{G+1}")
    a(f"v_add_u32 v2, {L_H - L_Q}, v2")
    a.label("L_qw")
    a(f"v_cvt_pk_bf16_f32 v{G}, v{G}, v{G+1}")
    a(f"ds_write_b32 v2, v{G} offset:{L_Q}")
    a("v_mov_b32 v2, s68")
    a("v_mov_b32 v3, s69")
    a(f"ds_write_b64 v{VZ}, v[2:3] offset:{L_TAG}")
    a("s_cmp_eq_u32 s3, 2")
    a(f"s_movk_i32 s10, {QF}")
    a(f"s_movk_i32 s11, {HF}")
    a(f"s_cselect_b32 s10, s11, s10")
    a("v_mov_b32 v2, s10")
    a("v_mov_b32 v3, 1")
    a(f"ds_write_b32 v2, v3")
    a.label("L_b3")
    if 'G' in opts.abl:
        a("s_branch L_fin")
    if 'F' in opts.abl:
        a("s_branch L_noy2")
    lds_spin(HF, 1, VZ, 3, sleep=opts.hfsleep)
    a("s_lshl_b32 s10, s3, 5")
    a(f"v_lshl_add_u32 v2, v{RG}, 3, s10")
    a(f"ds_read_b64 v[{TMP}:{TMP+1}], v2 offset:{L_H}")
    a(f"ds_read_b64 v[{TMP+2}:{TMP+3}], v2 offset:{L_H+128}")
    a("s_waitcnt lgkmcnt(0)")
    for q in range(2):
        for b in range(2):
            for d in range(4):
                for hl in range(2):
                    acc = AY + 8*b + 2*d + hl
                    w = (LO2 + 4*q + d) if hl == 0 else (W2 + 8*q + 4 + d)
                    s2 = "0" if q == 0 else f"v{acc}"
                    a(f"v_dot2_f32_bf16 v{acc}, v{w}, v{TMP+2*b+q}, {s2}")
    reduce16(AY)
    a(f"s_mov_b32 s10, {LANES10}")
    a(f"s_mov_b32 s11, {LANES10}")
    a("s_mov_b64 exec, s[10:11]")
    a(f"ds_write_b128 v{VY}, v[{AY}:{AY+3}] offset:{L_Y2P}")
    a("s_mov_b64 exec, -1")
    lds_arrive(C4, VZ, 3, rtn=True)
    a("s_cmp_eq_u32 s10, 3")
    a("s_cbranch_scc0 L_noy2")
    a(f"v_lshlrev_b32 v2, 3, v0")
    for w in range(4):
        a(f"ds_read_b64 v[{TMP+8+2*w}:{TMP+9+2*w}], v2 offset:{L_Y2P + w*640}")
    for w in range(4):
        a(f"ds_read_b64 v[{TMP+16+2*w}:{TMP+17+2*w}], v2 offset:{L_Y2P + w*640 + 512}")
    def pair_addr(vdst, vp, vt):
        a(f"v_lshrrev_b32 v{vdst}, 2, v{vp}")
        a(f"v_cmp_lt_u32 vcc, 39, v{vp}")
        a(f"v_mov_b32 v{vt}, 0")
        a(f"v_cndmask_b32 v{vt}, v{vt}, v{TMP+31}, vcc")
        a(f"v_add_u32 v{vdst}, v{vdst}, v{vt}")
        a(f"v_lshlrev_b32 v{vdst}, 11, v{vdst}")
        a(f"v_and_b32 v{vt}, 2, v{vp}")
        a(f"v_lshl_add_u32 v{vdst}, v{vt}, 9, v{vdst}")
        a(f"v_and_b32 v{vt}, 1, v{vp}")
        a(f"v_lshl_add_u32 v{vdst}, v{vt}, 4, v{vdst}")
        a(f"v_add_u32 v{vdst}, s10, v{vdst}")
    if opts.y2lay:
        a("s_mul_i32 s10, s4, 10240")
        a("s_mul_i32 s11, s5, 1280")
        a("s_add_u32 s10, s10, s11")
        a(f"s_add_u32 s10, s10, {WS_H3B}")
        a("v_lshl_add_u32 v3, v0, 4, s10")
        a("v_add_u32 v2, 1024, v3")
    else:
        a("s_mul_i32 s10, s5, 20480")
        a("s_lshl_b32 s11, s4, 5")
        a("s_add_u32 s10, s10, s11")
        a(f"s_add_u32 s10, s10, {WS_H3B}")
        a(f"v_mov_b32 v{TMP+31}, 70")
        pair_addr(3, 0, TMP + 30)
        a(f"v_add_u32 v{TMP+29}, 64, v0")
        pair_addr(2, TMP + 29, TMP + 30)
    set_tag(TMP)
    set_tag(TMP+4)
    a("s_waitcnt lgkmcnt(0)")
    for e in range(2):
        a(f"v_add_f32 v{TMP+8+e}, v{TMP+8+e}, v{TMP+10+e}")
        a(f"v_add_f32 v{TMP+12+e}, v{TMP+12+e}, v{TMP+14+e}")
        a(f"v_add_f32 v{TMP+e}, v{TMP+8+e}, v{TMP+12+e}")
    if 'y' not in opts.abl:
        a(f"buffer_store_dwordx4 v[{TMP}:{TMP+3}], v3, s[56:59], 0 offen sc1")
    for e in range(2):
        a(f"v_add_f32 v{TMP+16+e}, v{TMP+16+e}, v{TMP+18+e}")
        a(f"v_add_f32 v{TMP+20+e}, v{TMP+20+e}, v{TMP+22+e}")
        a(f"v_add_f32 v{TMP+4+e}, v{TMP+16+e}, v{TMP+20+e}")
    a("s_mov_b64 exec, 0xffff")
    if 'y' not in opts.abl:
        a(f"buffer_store_dwordx4 v[{TMP+4}:{TMP+7}], v2, s[56:59], 0 offen sc1")
    a("s_mov_b64 exec, -1")
    a.label("L_noy2")
    stamp(3)
    MASK = 120
    AOP = 136
    ACC2 = 96
    YR = 104
    VPH, VYW, VY0, VY1 = 13, 14, 15, 16
    GY = 20
    a("v_lshrrev_b32 v2, 1, v0")
    a("v_and_b32 v2, 7, v2")
    for q in range(4):
        for h in range(2):
            a(f"v_cmp_eq_u32 vcc, {2*q+h}, v2")
            a(f"v_cndmask_b32 v{MASK+2*q+h}, 0, -1, vcc")
    a("v_and_b32 v3, 1, v0")
    a("v_lshlrev_b32 v3, 12, v3")
    a("v_lshrrev_b32 v4, 1, v2")
    a("v_lshl_add_u32 v3, v4, 10, v3")
    a(f"v_lshl_add_u32 v3, v{RG}, 6, v3")
    a("v_and_b32 v4, 1, v2")
    a("v_lshl_add_u32 v3, v4, 5, v3")
    a("s_lshl_b32 s10, s4, 13")
    a("s_lshl_b32 s11, s3, 8")
    a("s_add_u32 s10, s10, s11")
    a(f"s_add_u32 s10, s10, {WS_H2}")
    a(f"v_add_u32 v{VPH}, s10, v3")
    a("s_lshl_b32 s10, s3, 10")
    a(f"v_lshl_add_u32 v{VYW}, v0, 4, s10")
    a(f"v_lshlrev_b32 v3, 11, v{C}")
    a(f"v_lshrrev_b32 v4, 1, v{RG}")
    a("v_lshl_add_u32 v3, v4, 10, v3")
    a(f"v_and_b32 v4, 1, v{RG}")
    a("v_lshl_add_u32 v3, v4, 4, v3")
    a("s_mul_i32 s10, s5, 20480")
    a("s_lshl_b32 s11, s4, 5")
    a("s_add_u32 s10, s10, s11")
    a(f"s_add_u32 s10, s10, {WS_H3A}")
    a(f"v_add_u32 v{VY0}, s10, v3")
    a(f"v_lshlrev_b32 v{VY1}, 4, v0")
    if opts.y1lay:
        a("s_mul_i32 s10, s4, 10240")
        a("s_mul_i32 s11, s5, 1280")
        a("s_add_u32 s10, s10, s11")
        a(f"s_add_u32 s10, s10, {WS_H3A}")
        a(f"v_lshl_add_u32 v{VY0}, v0, 4, s10")
        a("v_and_b32 v3, 3, v0")
        a("v_lshrrev_b32 v4, 2, v0")
        a("v_and_b32 v4, 15, v4")
        a("v_lshl_add_u32 v3, v3, 4, v4")
        a(f"v_lshlrev_b32 v{VY1}, 4, v3")
    set_tag(GY)
    set_tag(GY + 4)
    a("s_cmp_lg_u32 s3, 0")
    a("s_cbranch_scc1 L_noml")
    lds_spin(C2, 8, VZ, 3, sleep=1)
    a(f"ds_read_b128 v[{TMP}:{TMP+3}], v{VZ} offset:{L_ML}")
    a(f"ds_read_b128 v[{TMP+4}:{TMP+7}], v{VZ} offset:{L_ML+16}")
    a(f"ds_read_b128 v[{TMP+8}:{TMP+11}], v{VZ} offset:{L_ML+32}")
    a(f"ds_read_b128 v[{TMP+12}:{TMP+15}], v{VZ} offset:{L_ML+48}")
    GM = TMP + 16
    set_tag(GM)
    a(f"s_mul_i32 s10, s4, {GSTR}")
    a("s_lshl_b32 s11, s5, 7")
    a("s_add_u32 s10, s10, s11")
    a(f"s_add_u32 s10, s10, {WS_ML}")
    a("v_mov_b32 v3, s10")
    a(f"s_mov_b32 s14, 0x{f32bits(LOG2E):08x}")
    a("s_waitcnt lgkmcnt(0)")
    M = GM
    a(f"v_max3_f32 v{M}, v{TMP}, v{TMP+1}, v{TMP+2}")
    a(f"v_max3_f32 v{M}, v{M}, v{TMP+3}, v{TMP+4}")
    a(f"v_max3_f32 v{M}, v{M}, v{TMP+5}, v{TMP+6}")
    a(f"v_max_f32 v{M}, v{M}, v{TMP+7}")
    E8 = TMP + 24
    for w in range(8):
        a(f"v_sub_f32 v{E8+w}, v{TMP+w}, v{M}")
    for w in range(8):
        a(f"v_mul_f32 v{E8+w}, s14, v{E8+w}")
    for w in range(8):
        a(f"v_exp_f32 v{E8+w}, v{E8+w}")
    a("s_mov_b64 exec, 1")
    a(f"ds_write_b128 v{VZ}, v[{E8}:{E8+3}] offset:{L_F}")
    a(f"ds_write_b128 v{VZ}, v[{E8+4}:{E8+7}] offset:{L_F+16}")
    a("v_mov_b32 v4, 1")
    a(f"ds_write_b32 v{VZ}, v4 offset:{FF}")
    a("s_mov_b64 exec, -1")
    Ls = GM + 1
    a(f"v_mul_f32 v{Ls}, v{E8}, v{TMP+8}")
    for w in range(1, 8):
        a(f"v_fma_f32 v{Ls}, v{E8+w}, v{TMP+8+w}, v{Ls}")
    a("s_mov_b64 exec, 1")
    if opts.hloc:
        if opts.hloc == 2:
            a(f"ds_read_b32 v4, v{VZ} offset:{HG}")
            a("s_waitcnt lgkmcnt(0)")
            a("v_readfirstlane_b32 s67, v4")
        dual_store(f"v[{GM}:{GM+3}]", "v3", "dwordx4", "s67", "ml")
    else:
        if opts.fast:
            a(f"s_mov_b32 s10, {FOFF}")
            a(f"buffer_store_dwordx4 v[{GM}:{GM+3}], v3, s[56:59], s10 offen")
        a(f"buffer_store_dwordx4 v[{GM}:{GM+3}], v3, s[56:59], 0 offen sc1")
    a("s_mov_b64 exec, -1")
    if opts.fast and opts.reclaim:
        for r in range(4):
            a(f"v_mov_b32 v{TMP+r}, 0")
        a("s_lshl_b32 s10, s6, 10")
        a(f"s_add_u32 s10, s10, {WS_H2 + FOFF}")
        a(f"v_lshl_add_u32 v3, v0, 4, s10")
        a(f"buffer_store_dwordx4 v[{TMP}:{TMP+3}], v3, s[56:59], 0 offen")
    a.label("L_noml")
    if "t" in opts.abl:
        a("s_branch L_fin")
    GP = TMP + 28
    VFS = 17
    VML = 18
    a("v_and_b32 v3, 1, v0")
    a("v_lshlrev_b32 v3, 9, v3")
    a("v_lshrrev_b32 v4, 2, v0")
    a("v_and_b32 v4, 3, v4")
    a("v_lshl_add_u32 v3, v4, 7, v3")
    a(f"s_mul_i32 s10, s4, {GSTR}")
    a(f"s_add_u32 s10, s10, {WS_ML}")
    a(f"v_add_u32 v{VML}, s10, v3")
    a(f"s_mul_i32 s9, s4, {GSTR}")
    a(f"s_add_u32 s9, s9, {WS_H2F}")
    a("s_lshl_b32 s10, s5, 3")
    a("s_add_u32 s10, s10, s9")
    a("v_mov_b32 v19, s10")
    def calc_f():
        a(f"v_max_f32_dpp v5, v{GP}, v{GP} row_ror:4 row_mask:0xf bank_mask:0xf")
        a(f"v_max_f32_dpp v5, v5, v5 row_ror:8 row_mask:0xf bank_mask:0xf")
        a(f"v_sub_f32 v6, v{GP}, v5")
        a(f"v_mul_f32 v6, s14, v6")
        a(f"v_exp_f32 v6, v6")
        a(f"v_mul_f32 v7, v6, v{GP+1}")
        a(f"v_add_f32_dpp v7, v7, v7 row_ror:4 row_mask:0xf bank_mask:0xf")
        a(f"v_add_f32_dpp v7, v7, v7 row_ror:8 row_mask:0xf bank_mask:0xf")
        a(f"v_rcp_f32 v7, v7")
        a(f"v_mul_f32 v{VFS}, v6, v7")
    SRC = "s13"
    if not opts.fast:
        lds_spin(C6, 8, VZ, 3, sleep=2)
    if opts.fast:
        lds_spin(FF, 1, VZ, 3, sleep=4)
        if opts.hloc == 2:
            read_mode()
        if LATEWO:
            lds_spin(HG, opts.wcnt, VZ, 3, sleep=2)
            a("s_movk_i32 s12, 5120")
            issue_wo(1)
        a(f"s_mov_b32 {SRC}, {'s66' if opts.hloc else FOFF}")
        a(f"s_mov_b32 s12, {opts.maxpoll}")
        a.label("L_pollml")
        a(f"buffer_load_dwordx4 v[{GP}:{GP+3}], v{VML}, s[56:59], {SRC} offen sc1")
        a("s_waitcnt vmcnt(0)")
        tags_bad([GP])
        a("s_cbranch_scc1 L_pollml_done")
        a(f"s_sleep {opts.mlsleep}")
        a(f"s_cmp_lt_u32 s12, {opts.maxpoll - opts.nf}")
        a(f"s_cselect_b32 s10, {FOFF}, 0")
        a(f"s_xor_b32 {SRC}, {SRC}, s10")
        a("s_sub_u32 s12, s12, 1")
        a("s_cmp_lg_u32 s12, 0")
        a("s_cbranch_scc1 L_pollml")
        a.label("L_pollml_done")
        a(f"s_mov_b32 s14, 0x{f32bits(LOG2E):08x}")
        calc_f()
        if LATEWO:
            preperm_wo()
        lds_spin(C6, 8, VZ, 3, sleep=1)
        a(f"s_mov_b32 {SRC}, {'s66' if opts.hloc else FOFF}")
    else:
        a("s_cmp_lg_u32 s3, 0")
        a("s_cbranch_scc1 L_nohint0")
        a("s_mov_b64 exec, 1")
        a(f"buffer_store_dwordx2 v[{GY+2}:{GY+3}], v19, s[56:59], 0 offen sc1")
        a("s_mov_b64 exec, -1")
        a.label("L_nohint0")
        a(f"buffer_load_dwordx4 v[{GP}:{GP+3}], v{VML}, s[56:59], 0 offen sc1")
        a("s_cmp_lg_u32 s3, 0")
        a("s_cbranch_scc1 L_nohint")
        hint_poll("hint2", 9, 1)
        a("v_mov_b32 v3, 1")
        a(f"ds_write_b32 v{VZ}, v3 offset:{HG}")
        a.label("L_nohint")
        lds_spin(HG, 1, VZ, 3)
        a(f"s_mov_b32 s12, {opts.maxpoll}")
        a.label("L_pollml")
        a("s_waitcnt vmcnt(0)")
        tags_bad([GP])
        a("s_cbranch_scc1 L_pollml_done")
        a("s_sleep 2")
        a(f"buffer_load_dwordx4 v[{GP}:{GP+3}], v{VML}, s[56:59], 0 offen sc1")
        a("s_sub_u32 s12, s12, 1")
        a("s_cmp_lg_u32 s12, 0")
        a("s_cbranch_scc1 L_pollml")
        a.label("L_pollml_done")
    stamp(4)
    a(f"s_mov_b32 s9, {640 if opts.y1lay else 160*1024}")
    a(f"s_mov_b32 s14, 0x{f32bits(LOG2E):08x}")
    n2 = opts.npoll2
    assert n2 <= (4 if opts.fast else 3)
    PS = [[TMP + 8*k, TMP + 8*k + 4] for k in range(n2)]

    def issue2(k):
        so = SRC if opts.fast else "0"
        a(f"buffer_load_dwordx4 v[{PS[k][0]}:{PS[k][0]+3}], v{VPH}, s[56:59], {so} offen sc1")
        a(f"buffer_load_dwordx4 v[{PS[k][1]}:{PS[k][1]+3}], v{VPH}, s[56:59], {so} offen offset:16 sc1")
        if opts.fast:
            a(f"s_cmp_lt_u32 s12, {opts.maxpoll - opts.nf}")
            a(f"s_cselect_b32 s10, {FOFF}, 0")
            a(f"s_xor_b32 {SRC}, {SRC}, s10")

    O4 = [4, 5, 6, 7]
    pipelined_poll("pollH2", n2, PS, issue2, opts.stag2, O4, after_issue=(None if opts.fast else calc_f))
    stamp(5)
    for r in O4:
        a(f"v_mul_f32 v{r}, v{VFS}, v{r}")
    for ctrl in ["row_ror:4", "row_ror:8"]:
        for r in O4:
            a(f"v_add_f32_dpp v{r}, v{r}, v{r} {ctrl} row_mask:0xf bank_mask:0xf")
    D0, D1 = 2, 3
    a(f"v_cvt_pk_bf16_f32 v{D0}, v{O4[0]}, v{O4[1]}")
    a(f"v_cvt_pk_bf16_f32 v{D1}, v{O4[2]}, v{O4[3]}")
    for q in range(4):
        a(f"v_and_b32 v{AOP+4*q}, v{D0}, v{MASK+2*q}")
        a(f"v_and_b32 v{AOP+4*q+1}, v{D1}, v{MASK+2*q}")
        a(f"v_and_b32 v{AOP+4*q+2}, v{D0}, v{MASK+2*q+1}")
        a(f"v_and_b32 v{AOP+4*q+3}, v{D1}, v{MASK+2*q+1}")
    for q in range(4):
        for od in range(2):
            acc = ACC2 + 4*od
            c = "0" if q == 0 else f"v[{acc}:{acc+3}]"
            e = 2*q + od
            a(f"v_mfma_f32_16x16x32_bf16 v[{acc}:{acc+3}], v[{AOP+4*q}:{AOP+4*q+3}], v[{BOP+4*e}:{BOP+4*e+3}], {c}")
    YW = YR
    a(f"v_add_f32 v{YW}, v{ACC2}, v{ACC2+2}")
    a(f"v_add_f32 v{YW+1}, v{ACC2+4}, v{ACC2+6}")
    a(f"v_add_f32 v{YW+2}, v{ACC2+1}, v{ACC2+3}")
    a(f"v_add_f32 v{YW+3}, v{ACC2+5}, v{ACC2+7}")
    a(f"ds_write_b128 v{VYW}, v[{YW}:{YW+3}] offset:{L_Y1P}")
    lds_arrive(C5, VZ, 3, rtn=True)
    stamp(6)
    a("s_cmp_eq_u32 s10, 3")
    a("s_cbranch_scc0 L_fin")
    for w in range(4):
        a(f"ds_read_b128 v[{YR+4*w}:{YR+4*w+3}], v{VY1} offset:{L_Y1P + w*1024}")
    if opts.y1lay:
        a("s_mov_b32 s10, -1")
        a("s_mov_b32 s11, 0xff")
    else:
        a(f"s_mov_b32 s10, {LANES10}")
        a(f"s_mov_b32 s11, {LANES10}")
    a("s_waitcnt lgkmcnt(2)")
    for e in range(4):
        a(f"v_add_f32 v{YR+e}, v{YR+e}, v{YR+4+e}")
    a("s_waitcnt lgkmcnt(0)")
    for e in range(4):
        a(f"v_add_f32 v{YR+8+e}, v{YR+8+e}, v{YR+12+e}")
    a(f"v_add_f32 v{GY}, v{YR}, v{YR+8}")
    a(f"v_add_f32 v{GY+1}, v{YR+1}, v{YR+9}")
    a(f"v_add_f32 v{GY+4}, v{YR+2}, v{YR+10}")
    a(f"v_add_f32 v{GY+5}, v{YR+3}, v{YR+11}")
    a("s_mov_b64 exec, s[10:11]")
    a(f"buffer_store_dwordx4 v[{GY}:{GY+3}], v{VY0}, s[56:59], 0 offen sc1")
    a(f"buffer_store_dwordx4 v[{GY+4}:{GY+7}], v{VY0}, s[56:59], s9 offen sc1")
    a("s_mov_b64 exec, -1")
    stamp(7)
    a.label("L_fin")
    if stamps:
        a("s_mul_i32 s90, s6, 12")
        a("s_add_u32 s90, s90, s3")
        a("s_lshl_b32 s90, s90, 6")
        a(f"s_add_u32 s90, s90, {WS_STAMP}")
        a("v_mov_b32 v2, s90")
        a("s_waitcnt lgkmcnt(0)")
        for i in range(16):
            a(f"v_mov_b32 v{8+i}, s{ST0+i}")
        a("s_mov_b64 exec, 1")
        for q in range(4):
            a(f"buffer_store_dwordx4 v[{8+4*q}:{11+4*q}], v2, s[56:59], 0 offen offset:{16*q}")
    a.label("L_end")
    a("s_endpgm")

    nv = 168
    out = HEADER
    out += f"; @launch grid=(256,1,1) block=(768,1,1) lds={L_TOTAL}\n"
    out += '.amdgcn_target "amdgcn-amd-amdhsa--gfx950"\n.text\n'
    out += f".globl {KNAME}\n.p2align 8\n.type {KNAME},@function\n{KNAME}:\n"
    out += "\n".join(a.l) + "\n"
    out += f""".section .rodata,"a"
.p2align 6
.amdhsa_kernel {KNAME}
  .amdhsa_next_free_vgpr {nv}
  .amdhsa_next_free_sgpr 96
  .amdhsa_accum_offset {nv}
  .amdhsa_group_segment_fixed_size 0
  .amdhsa_kernarg_size 88
  .amdhsa_user_sgpr_count 2
  .amdhsa_user_sgpr_kernarg_segment_ptr 1
  .amdhsa_system_sgpr_workgroup_id_x 1
.end_amdhsa_kernel
"""
    return out


def main():
    p = argparse.ArgumentParser()
    p.add_argument("-o", default="recurrent_scan__sliding_block_cached__dense_activation_relu__decode.s")
    p.add_argument("--kvpol", default="nt")
    p.add_argument("--wpol", default="nt")
    p.add_argument("--stamps", action="store_true")
    p.add_argument("--maxpoll", type=int, default=20000)
    p.add_argument("--maxspin", type=int, default=2000000)
    p.add_argument("--rotg", type=int, default=1)
    p.add_argument("--rotw", type=int, default=4)
    p.add_argument("--map", default="C")
    p.add_argument("--win", type=int, default=4)
    p.add_argument("--qkv", type=lambda s: [int(x) for x in s.split(",")], default=[1, 1, 1, 1])
    p.add_argument("--fpos", type=int, default=12)
    p.add_argument("--qpos", type=int, default=24)
    p.add_argument("--sched", default="dyn")
    p.add_argument("--kwin", type=int, default=0)
    p.add_argument("--dbgst", action="store_true")
    p.add_argument("--abl", default="")
    p.add_argument("--win2", type=int, default=0)
    p.add_argument("--bpos", type=int, default=3)
    p.add_argument("--hpos", type=int, default=8)
    p.add_argument("--ygate", type=lambda s: tuple(eval(x) for x in s.split(",")), default=(C5, 1))
    p.add_argument("--gate", type=int, default=8)
    p.add_argument("--npoll2", type=int, default=2)
    p.add_argument("--npoll3", type=int, default=4)
    p.add_argument("--stag2", type=int, default=6)
    p.add_argument("--stag3", type=int, default=3)
    p.add_argument("--prio", default="")
    p.add_argument("--qprio", type=int, default=-1)
    p.add_argument("--fast", action="store_true")
    p.add_argument("--nf", type=int, default=48)
    p.add_argument("--slow3", default="")
    p.add_argument("--mlsleep", type=int, default=4)
    p.add_argument("--reclaim", action="store_true")
    p.add_argument("--y1lay", type=int, default=0)
    p.add_argument("--y2lay", type=int, default=0)
    p.add_argument("--burst", type=int, default=-1)
    p.add_argument("--hloc", type=int, default=0)
    p.add_argument("--earlyann", type=int, default=0)
    p.add_argument("--fperm", default="")
    p.add_argument("--xthr", default="")
    p.add_argument("--nohint", type=int, default=0)
    p.add_argument("--hvsleep", type=int, default=2)
    p.add_argument("--hsleep", type=int, default=0)
    p.add_argument("--hfsleep", type=int, default=0)
    p.add_argument("--opol", default="")
    p.add_argument("--wsw", type=int, default=99)
    p.add_argument("--fastpro", type=int, default=0)
    p.add_argument("--b0late", type=int, default=0)
    p.add_argument("--winy", type=int, default=0)
    p.add_argument("--wpos", type=int, default=-1)
    p.add_argument("--wcnt", type=int, default=8)
    p.add_argument("--preld", type=int, default=0)
    p.add_argument("--h1f", type=int, default=0)
    p.add_argument("--bhi", type=int, default=2)
    o = p.parse_args()
    open(o.o, "w").write(gen(o))
    print("wrote", o.o)


if __name__ == "__main__":
    main()
```
